```python
import torch

def _softmax(x, axis=-1):
    return torch.softmax(x, dim=axis)
def _gelu(x):
    return torch.nn.functional.gelu(x, approximate="tanh")
def _silu(x):
    return torch.nn.functional.silu(x)
def _sigmoid(x):
    return torch.sigmoid(x)
def _layernorm(x, axis=-1, eps=1e-5):
    m = x.mean(dim=axis, keepdim=True)
    v = x.var(dim=axis, keepdim=True, unbiased=False)
    return (x - m) / torch.sqrt(v + eps)
def _scatter_add(tgt, idx, src, axis=0):
    return tgt.clone().index_add_(axis, idx, src)
def _segment_sum(src, seg, n):
    out = torch.zeros((n,) + src.shape[1:], dtype=src.dtype)
    return out.index_add_(0, seg, src)
def _pad(x, pw):
    flat = tuple(v for pair in reversed(pw) for v in pair)
    return torch.nn.functional.pad(x, flat)

kernel_name = 'concat_heads__mha_block_cached__mha_block_cached__near_ridge'

def setup_inputs():

    _w = (lambda a: (lambda t: t.to(torch.bfloat16) if t.is_floating_point() else t)(torch.as_tensor(a)))
    def _A_setup():
        B, Sq, D = 8, 96, 448
        H, Sk, Dh = 16, 512, 256
        return {
            "x": _w((lambda *s: torch.randn(*s, dtype=torch.bfloat16) * 0.8)(B, Sq, D)),
            "k_cache": _w((lambda *s: torch.randn(*s, dtype=torch.bfloat16) * 0.8)(B, H, Sk, Dh)),
            "v_cache": _w((lambda *s: torch.randn(*s, dtype=torch.bfloat16) * 0.05)(B, H, Sk, Dh)),
            "wq": _w((lambda *s: torch.randn(*s, dtype=torch.bfloat16) * 0.8)(D, H * Dh) * (D ** -0.5)),
            "wo": _w((lambda *s: torch.randn(*s, dtype=torch.bfloat16) * 0.05)(H * Dh, D) * ((H * Dh) ** -0.5)),
        }
    _A_in = _A_setup()

    def _B_setup():
        B, Sq, D = 8, 96, 448
        H, Sk, Dh = 16, 512, 256
        return {
            "x": _w((lambda *s: torch.randn(*s, dtype=torch.bfloat16) * 0.8)(B, Sq, D)),
            "k_cache": _w((lambda *s: torch.randn(*s, dtype=torch.bfloat16) * 0.8)(B, H, Sk, Dh)),
            "v_cache": _w((lambda *s: torch.randn(*s, dtype=torch.bfloat16) * 0.05)(B, H, Sk, Dh)),
            "wq": _w((lambda *s: torch.randn(*s, dtype=torch.bfloat16) * 0.8)(D, H * Dh) * (D ** -0.5)),
            "wo": _w((lambda *s: torch.randn(*s, dtype=torch.bfloat16) * 0.05)(H * Dh, D) * ((H * Dh) ** -0.5)),
        }
    _B_in = _B_setup()

    return {
        "A_x": _A_in["x"],
        "A_k_cache": _A_in["k_cache"],
        "A_v_cache": _A_in["v_cache"],
        "A_wq": _A_in["wq"],
        "A_wo": _A_in["wo"],
        "B_x": _B_in["x"],
        "B_k_cache": _B_in["k_cache"],
        "B_v_cache": _B_in["v_cache"],
        "B_wq": _B_in["wq"],
        "B_wo": _B_in["wo"],
    }

def reference(A_x, A_k_cache, A_v_cache, A_wq, A_wo, B_x, B_k_cache, B_v_cache, B_wq, B_wo):
    def _A_ref(x, k_cache, v_cache, wq, wo):
        B, Sq, D = x.shape
        H, Dh = 16, 256
        q = (lambda x, *d: x.permute(*d))((x @ wq).reshape(B, Sq, H, Dh), 0, 2, 1, 3)
        scores = torch.einsum("bhqd,bhkd->bhqk", q, k_cache) * (Dh ** -0.5)
        p = _softmax(scores, axis=-1)
        o = torch.einsum("bhqk,bhkd->bhqd", p, v_cache)
        return (lambda x, *d: x.permute(*d))(o, 0, 2, 1, 3).reshape(B, Sq, H * Dh) @ wo

    def _B_ref(x, k_cache, v_cache, wq, wo):
        B, Sq, D = x.shape
        H, Dh = 16, 256
        q = (lambda x, *d: x.permute(*d))((x @ wq).reshape(B, Sq, H, Dh), 0, 2, 1, 3)
        scores = torch.einsum("bhqd,bhkd->bhqk", q, k_cache) * (Dh ** -0.5)
        p = _softmax(scores, axis=-1)
        o = torch.einsum("bhqk,bhkd->bhqd", p, v_cache)
        return (lambda x, *d: x.permute(*d))(o, 0, 2, 1, 3).reshape(B, Sq, H * Dh) @ wo

    a = _A_ref(A_x, A_k_cache, A_v_cache, A_wq, A_wo)
    b = _B_ref(B_x, B_k_cache, B_v_cache, B_wq, B_wo)
    return torch.concatenate([a, b], axis=-1)
```

```python
import re, copy

def _regs(tok):
    tok = tok.strip()
    tok = re.sub(r"^-|^abs\(|\)$|^\|", "", tok).rstrip("|")
    m = re.fullmatch(r"([vsa])(\d+)", tok)
    if m: return m.group(1), {int(m.group(2))}
    m = re.fullmatch(r"([vsa])\[(\d+):(\d+)\]", tok)
    if m: return m.group(1), set(range(int(m.group(2)), int(m.group(3)) + 1))
    if tok == "vcc": return "s", {106, 107}
    if tok == "m0": return "s", {124}
    if tok == "exec": return "s", {126, 127}
    return None, set()

TRANS = ("v_exp_f32", "v_rcp_f32", "v_log_f32", "v_rsq_f32", "v_sqrt_f32")

class Emitter:
    def __init__(self):
        self.lines = []
        self.pos = 0
        self.vw = {}
        self.mf_d = {}
        self.mfc = {}
        self.sw_valu = {}
        self.m0w = -99
        self.stw = {}
        self.ds = []
        self.vm = []
        self.smem_out = False
        self.ninst = 0
        self.nops = 0

    def raw(self, s):
        self.lines.append(s)

    def comment(self, s):
        self.lines.append("    ; " + s)

    def label(self, name):
        self.lines.append(name + ":")

    def snapshot(self):
        d = {k: copy.deepcopy(v) for k, v in self.__dict__.items() if k not in ("lines", "ninst", "nops")}
        return d

    def restore(self, d):
        for k, v in d.items(): setattr(self, k, copy.deepcopy(v))

    def _out(self, s, slots=1):
        self.lines.append("    " + s); self.pos += slots; self.ninst += 1

    def nop(self, n):
        while n > 0:
            k = min(n, 16); self._out(f"s_nop {k-1}", k); n -= k; self.nops += 1

    def wait(self, vm=None, lgkm=None):
        parts = []
        if vm is not None:
            assert 0 <= vm <= 63
            if len(self.vm) > vm:
                parts.append(f"vmcnt({vm})"); self.vm = self.vm[len(self.vm) - vm:] if vm else []
        if lgkm is not None:
            lg = min(lgkm, 15)
            if len(self.ds) > lg or (self.smem_out and lg == 0):
                parts.append(f"lgkmcnt({lg})"); self.ds = self.ds[len(self.ds) - lg:] if lg else []
                if lg == 0: self.smem_out = False
        if parts: self._out("s_waitcnt " + " ".join(parts))

    def wait_tag(self, tag, lgkm=None):
        idx = [i for i, (t, _) in enumerate(self.vm) if t == tag]
        self.wait(vm=(len(self.vm) - 1 - idx[-1]) if idx else None, lgkm=lgkm)

    def force_wait(self, s):
        self._out("s_waitcnt " + s)
        if "lgkmcnt(0)" in s: self.ds = []; self.smem_out = False
        if "vmcnt(0)" in s: self.vm = []

    def barrier(self):
        self._out("s_barrier")

    def __call__(self, text, tag=None):
        text = text.strip()
        mn, _, rest = text.partition(" ")
        ops = [o.strip() for o in re.split(r",(?![^\[]*\])", rest)] if rest else []
        if ops:
            last = ops[-1].split()
            ops[-1] = last[0]; mods = last[1:]
        else: mods = []
        P = [_regs(o) for o in ops]
        vr, vwr, sr, swr = set(), set(), set(), set()
        def rd(i):
            k, s = P[i]
            if k == "v": vr.update(s)
            elif k == "s": sr.update(s)
        def wr(i):
            k, s = P[i]
            if k == "v": vwr.update(s)
            elif k == "s": swr.update(s)
        cls = None
        is_lds_dma = "lds" in mods
        if mn.startswith("v_mfma"):
            cls = "mfma"; wr(0); rd(1); rd(2); rd(3)
        elif mn.startswith("ds_read"):
            cls = "ds"; wr(0); rd(1)
        elif mn.startswith("ds_write"):
            cls = "ds"; [rd(i) for i in range(len(ops))]
        elif mn.startswith("buffer_load") or mn.startswith("global_load"):
            cls = "vmem"
            if is_lds_dma: [rd(i) for i in range(len(ops))]
            else: wr(0); [rd(i) for i in range(1, len(ops))]
        elif mn.startswith("buffer_store") or mn.startswith("global_store") or mn.startswith("global_atomic") or mn.startswith("buffer_atomic"):
            cls = "vmem"; [rd(i) for i in range(len(ops))]
            if "atomic" in mn and "sc0" in mods:
                vr -= P[0][1] if mn.startswith("global") else set(); wr(0)
        elif mn.startswith("buffer_wbl2") or mn.startswith("buffer_inv"):
            cls = "vmem"
        elif mn.startswith("v_"):
            cls = "valu"
            if mn.startswith("v_cmp"): wr(0); [rd(i) for i in range(1, len(ops))]
            elif mn.startswith("v_permlane32_swap") or mn.startswith("v_permlane16_swap"): wr(0); wr(1); rd(0); rd(1)
            elif mn in ("v_add_co_u32", "v_addc_co_u32"): wr(0); wr(1); [rd(i) for i in range(2, len(ops))]
            else:
                wr(0); [rd(i) for i in range(1, len(ops))]
                if mn.startswith("v_fmac") or mn.startswith("v_pk_fmac"): rd(0)
        elif mn.startswith("s_load") or mn.startswith("s_memrealtime") or mn.startswith("s_memtime"):
            cls = "smem"; wr(0); [rd(i) for i in range(1, len(ops))]
        elif mn.startswith("s_"):
            cls = "salu"
            if mn.startswith("s_cmp") or mn.startswith("s_cbranch") or mn in ("s_branch", "s_barrier", "s_endpgm", "s_setprio", "s_sleep", "s_nop", "s_setpc_b64", "s_bitcmp1_b32", "s_bitcmp0_b32"):
                [rd(i) for i in range(len(ops))]
            else: wr(0); [rd(i) for i in range(1, len(ops))]
        else:
            raise ValueError("unknown instr " + text)

        touched = vr | vwr
        need = None
        for i, d in enumerate(self.ds):
            if d and (d & touched):
                if cls == "ds" and not (d & vr): continue
                need = len(self.ds) - 1 - i
        if need is not None:
            if self.smem_out: need = 0
            self.wait(lgkm=need)
        need = None
        for i, (t, d) in enumerate(self.vm):
            if d and (d & touched): need = len(self.vm) - 1 - i
        if need is not None: self.wait(vm=need)

        req = 0
        def dist(p, n):
            nonlocal req
            req = max(req, n - (self.pos - p - 1))
        if cls == "mfma":
            passes = 8 if "32x32x16" in mn else 4
            dset = P[0][1]; cset = P[3][1] if P[3][0] == "v" else set()
            ab = (P[1][1] | P[2][1])
            for r in ab | cset:
                if r in self.vw:
                    p, k = self.vw[r]
                    if k in ("valu", "trans"): dist(p, 2)
                    elif k.startswith("mfma"):
                        pp = int(k[4:])
                        if r in ab: dist(p, {4: 8, 8: 12}[pp])
                        if r in cset:
                            same = self.mf_d[r] == (min(cset), len(cset)) and pp == passes
                            if not same: dist(p, {4: 6, 8: 10}[pp])
            for r in dset - cset:
                if r in self.vw and self.vw[r][1].startswith("mfma"):
                    dist(self.vw[r][0], {4: 8, 8: 12}[int(self.vw[r][1][4:])])
        else:
            for r in touched:
                if r in self.vw:
                    p, k = self.vw[r]
                    if k.startswith("mfma"): dist(p, {4: 8, 8: 12}[int(k[4:])])
                    elif k == "trans" and cls == "valu" and r in vr and mn not in TRANS: dist(p, 1)
                    elif k == "trans" and cls != "valu" and r in vr: dist(p, 1)
                    if k in ("valu", "trans") and r in vr:
                        if mn.startswith("v_permlane"): dist(p, 2)
                        if mn.startswith("v_readfirstlane") or mn.startswith("v_readlane"): dist(p, 1)
                        if "dpp" in text or "row_" in text or "quad_perm" in text: dist(p, 2)
            for r in vwr:
                if r in self.mfc: dist(self.mfc[r][0], {4: 3, 8: 7}[self.mfc[r][1]])
                if r in self.stw: dist(self.stw[r], 2)
        for r in sr:
            if r in self.sw_valu:
                if cls == "vmem": dist(self.sw_valu[r], 5)
                elif cls in ("valu", "mfma"): dist(self.sw_valu[r], 2)
                elif cls in ("salu", "smem"): dist(self.sw_valu[r], 1)
        if is_lds_dma: dist(self.m0w, 1)
        if req > 0: self.nop(req)

        p = self.pos
        self._out(text)
        if cls == "mfma":
            for r in P[0][1]:
                self.vw[r] = (p, f"mfma{passes}"); self.mf_d[r] = (min(P[0][1]), len(P[0][1]))
            for r in cset: self.mfc[r] = (p, passes)
        elif cls == "valu":
            for r in vwr: self.vw[r] = (p, "trans" if mn in TRANS else "valu")
            for r in swr: self.sw_valu[r] = p
        elif cls == "ds":
            self.ds.append(set(vwr) if vwr else None)
            for r in vwr: self.vw.pop(r, None)
            assert len(self.ds) <= 64
        elif cls == "vmem":
            self.vm.append((tag, set(vwr) if vwr else None))
            for r in vwr: self.vw.pop(r, None)
            if "store" in mn and ("x4" in mn or "x3" in mn):
                di = 0 if mn.startswith("buffer") else 1
                for r in P[di][1]: self.stw[r] = p
        elif cls == "smem":
            self.smem_out = True
        elif cls == "salu":
            if 124 in swr: self.m0w = p
            for r in swr: self.sw_valu.pop(r, None)

    def text(self):
        return "\n".join(self.lines) + "\n"
```

```python
import sys, argparse
from emit import Emitter

NAME = "concat_heads__mha_block_cached__mha_block_cached__near_ridge"
STAMP_OFF = 200 << 20
SLOT = 8192
X_SLOT0 = 0
RING0 = 11
STAT = 19 * SLOT
HEADER = open("cdna_kernels/" + NAME + ".s.ref").read().split("; Override launch")[0] if True else ""

def v(a, n=1): return f"v{a}" if n == 1 else f"v[{a}:{a+n-1}]"
def s(a, n=1): return f"s{a}" if n == 1 else f"s[{a}:{a+n-1}]"

V_TID = 0
V_DX, V_DW, V_DK = 1, 2, 3
V_DV, V_DO = 1, 2
V_XA = 4
V_KA = 8
V_WA = 12
V_QB = 13
V_T0, V_T1 = 14, 15
R_FR = 16
R_A = 48
R_K0 = 96
R_K1 = 160
R_T = 224
S_X, S_WQ, S_K, S_V, S_WO, S_P = 4, 8, 12, 16, 20, 24
S_W, S_M0B, S_XO, S_XR, S_SO, S_TMP, S_C = 28, 29, 30, 31, 32, 33, 34
S_BLK, S_H, S_B = 35, 36, 37

class Gen:
    def __init__(self, a):
        self.a = a
        self.e = Emitter()
        self.nst = 0
        self.free = list(range(RING0, RING0 + 8))
        self.pend_shared = []; self.pend_priv = []
        self.slot_of = {}

    def stamp(self):
        if self.a.stamps:
            i = self.nst; self.nst += 1
            assert i < 12
            self.e(f"s_memrealtime {s(64+2*i,2)}")
            self.e.force_wait("lgkmcnt(0)")

    def alloc(self, item, allowed=None):
        if item[0] == "X":
            sl = X_SLOT0 + item[1]
        else:
            c = [x for x in self.free if allowed is None or x in allowed]
            assert c, f"no free slot for {item} free={self.free}"
            sl = c[0]; self.free.remove(sl)
        self.slot_of[item] = sl
        return sl

    def can_alloc(self, item):
        if item[0] == "X": return True
        if item[0] in "WK": return any(x >= RING0 for x in self.free)
        return bool(self.free)

    def issue(self, item, slot=None):
        e = self.e; ty, i = item
        if slot is None:
            slot = self.alloc(item, allowed=set(range(RING0, RING0 + 8)) if ty in "WK" else None)
        sh = self.a.spol
        sh = (" " + sh) if sh else ""
        kv = (" " + self.a.kvpol) if self.a.kvpol else ""
        e(f"s_add_u32 m0, {s(S_M0B)}, {slot*SLOT}")
        if ty == "X":
            if i == 10:
                e(f"s_cmp_ge_u32 {s(S_W)}, 4"); e(f"s_cselect_b32 {s(S_XO)}, 0x100000, {s(S_XO)}")
            e(f"buffer_load_dwordx4 {v(V_DX)}, {s(S_X,4)}, {s(S_XO)} offen{sh} lds", tag=item)
            if i < 10:
                e(f"s_add_u32 {s(S_XO)}, {s(S_XO)}, {8*7168}")
                e(f"s_add_u32 {s(S_XR)}, {s(S_XR)}, 8")
                e(f"s_cmp_ge_u32 {s(S_XR)}, 12")
                e(f"s_cselect_b32 {s(S_TMP)}, {12*7168-128}, 0"); e(f"s_sub_u32 {s(S_XO)}, {s(S_XO)}, {s(S_TMP)}")
                e(f"s_cmp_ge_u32 {s(S_XR)}, 12")
                e(f"s_cselect_b32 {s(S_TMP)}, 12, 0"); e(f"s_sub_u32 {s(S_XR)}, {s(S_XR)}, {s(S_TMP)}")
        elif ty == "W":
            e(f"s_mov_b32 {s(S_SO)}, {i*16*8192}")
            e(f"buffer_load_dwordx4 {v(V_DW)}, {s(S_WQ,4)}, {s(S_SO)} offen{sh} lds", tag=item)
        elif ty == "K":
            t, r = divmod(i, 16); dc, ii = divmod(r, 4)
            e(f"s_mov_b32 {s(S_SO)}, {(256*t+64*ii)*512 + dc*128}")
            e(f"buffer_load_dwordx4 {v(V_DK)}, {s(S_K,4)}, {s(S_SO)} offen{kv} lds", tag=item)
        elif ty == "V":
            c, sg = divmod(i, 8)
            e(f"s_mov_b32 {s(S_SO)}, {sg*64*512 + c*128}")
            e(f"buffer_load_dwordx4 {v(V_DV)}, {s(S_V,4)}, {s(S_SO)} offen{kv} lds", tag=item)
        elif ty == "O":
            c, cb = divmod(i, 7)
            e(f"s_mov_b32 {s(S_SO)}, {c*64*896 + cb*128}")
            e(f"buffer_load_dwordx4 {v(V_DO)}, {s(S_WO,4)}, {s(S_SO)} offen{sh} lds", tag=item)

    def bar(self, need=None):
        e = self.e
        if need is not None: e.wait_tag(need, lgkm=0)
        else: e.wait(lgkm=0)
        e.barrier()
        self.free += self.pend_shared + self.pend_priv; self.pend_shared = []; self.pend_priv = []
        self.free.sort()

    def park_K(self, i):
        e = self.e
        t, r = divmod(i, 16); dc, ii = divmod(r, 4)
        off = (self.slot_of[("K", i)] - RING0) * SLOT
        e(f"s_mov_b32 exec_lo, {0xFF << (8*ii):#x}"); e(f"s_mov_b32 exec_hi, {0xFF << (8*ii):#x}")
        base = (R_K0 if t == 0 else R_K1) + dc * 16
        for ks in range(4):
            e(f"ds_read_b128 {v(base+4*ks,4)}, {v(V_KA+ks)} offset:{off}")
        e("s_mov_b64 exec, -1")
        self.pend_priv.append(self.slot_of[("K", i)])

    def read_W(self, j, buf):
        e = self.e
        off = (self.slot_of[("W", j)] - RING0) * SLOT
        e(f"ds_read_b64_tr_b16 {v(buf,2)}, {v(V_WA)} offset:{off}")
        e(f"ds_read_b64_tr_b16 {v(buf+2,2)}, {v(V_WA)} offset:{off+2048}")
        ks = j % 4
        for qt in range(3):
            e(f"ds_read_b128 {v(buf+4+4*qt,4)}, {v(V_XA+ks)} offset:{qt*4096}")
        e(f"v_add_u32 {v(V_XA+ks)}, 12288, {v(V_XA+ks)}")
        self.pend_shared.append(self.slot_of[("W", j)])

    def mfma_W(self, j, buf):
        e = self.e
        for qt in range(3):
            c = "0" if j == 0 else v(R_A+16*qt, 16)
            e(f"v_mfma_f32_32x32x16_bf16 {v(R_A+16*qt,16)}, {v(buf,4)}, {v(buf+4+4*qt,4)}, {c}")

    def prologue(self):
        e = self.e
        e("s_cmp_ge_u32 s2, 256"); e("s_cbranch_scc1 L_end1")
        self.stamp()
        e("s_load_dwordx16 s[40:55], s[0:1], 0")
        e("s_load_dwordx4 s[56:59], s[0:1], 64")
        e("s_load_dwordx2 s[60:61], s[0:1], 96")
        if self.a.codepf:
            e("s_getpc_b64 s[62:63]")
            e.label("L_pc0")
            e(f"s_sub_u32 s62, s62, L_pc0-{NAME}_kernel"); e("s_subb_u32 s63, s63, 0")
            e(f"v_lshlrev_b32 {v(R_T+8)}, 4, v0")
            if self.a.codepf == 1:
                e("s_bfe_u32 s3, s2, 0x20003"); e("s_lshl_b32 s3, s3, 13")
                e(f"v_add_u32 {v(R_T+8)}, s3, {v(R_T+8)}")
                e(f"global_load_dwordx4 {v(R_T+12,4)}, {v(R_T+8)}, s[62:63]", tag="pf")
            else:
                for i in range(4):
                    e(f"global_load_dwordx4 {v(R_T+12+4*i,4)}, {v(R_T+8)}, s[62:63]", tag="pf")
                    if i < 3: e(f"v_add_u32 {v(R_T+8)}, 8192, {v(R_T+8)}")
        e("s_and_b32 s3, s2, 7"); e("s_lshr_b32 s38, s2, 3")
        e("s_lshr_b32 s39, s38, 3"); e("s_lshl_b32 s3, s3, 2"); e("s_add_u32 s3, s3, s39")
        e(f"s_lshr_b32 {s(S_BLK)}, s3, 4"); e(f"s_and_b32 {s(S_H)}, s3, 15"); e(f"s_and_b32 {s(S_B)}, s38, 7")
        e(f"v_lshrrev_b32 {v(V_T0)}, 6, v0")
        e(f"v_readfirstlane_b32 {s(S_W)}, {v(V_T0)}")
        L, T0, T1 = R_T, R_T + 1, R_T + 2
        T2, T3 = R_T + 3, R_T + 4
        e(f"v_and_b32 {v(L)}, 63, v0")
        e(f"s_lshl_b32 {s(S_M0B)}, {s(S_W)}, 10")
        e(f"v_lshrrev_b32 {v(T0)}, 3, {v(L)}")
        e(f"v_and_b32 {v(T1)}, 7, {v(L)}")
        e(f"v_lshrrev_b32 {v(T2)}, 4, {v(L)}")
        e(f"s_and_b32 {s(S_TMP)}, {s(S_W)}, 1"); e(f"s_lshl_b32 {s(S_TMP)}, {s(S_TMP)}, 2")
        e(f"v_add_u32 {v(T3)}, {s(S_TMP)}, {v(T2)}")
        e(f"v_xor_b32 {v(T3)}, {v(T3)}, {v(T1)}")
        e(f"v_lshlrev_b32 {v(T3)}, 4, {v(T3)}")
        e(f"v_mul_u32_u24 {v(V_DX)}, 896, {v(T0)}")
        e(f"v_add_u32 {v(V_DX)}, {v(V_DX)}, {v(T3)}")
        e(f"s_mul_i32 {s(S_XO)}, {s(S_W)}, 7168"); e(f"s_mov_b32 {s(S_XR)}, {s(S_W)}")
        e(f"v_lshrrev_b32 {v(V_DK)}, 3, v0"); e(f"v_lshlrev_b32 {v(V_DK)}, 9, {v(V_DK)}")
        e(f"v_xor_b32 {v(T3)}, {v(T0)}, {v(T1)}"); e(f"v_lshlrev_b32 {v(T3)}, 4, {v(T3)}")
        e(f"v_add_u32 {v(V_DK)}, {v(V_DK)}, {v(T3)}")
        e(f"v_lshrrev_b32 {v(T0)}, 5, v0")
        e(f"v_and_b32 {v(T1)}, 3, {v(T0)}"); e(f"v_lshlrev_b32 {v(T1)}, 2, {v(T1)}")
        e(f"v_and_b32 {v(T2)}, 31, v0"); e(f"v_xor_b32 {v(T1)}, {v(T1)}, {v(T2)}"); e(f"v_lshlrev_b32 {v(T1)}, 4, {v(T1)}")
        e(f"v_lshlrev_b32 {v(V_DW)}, 13, {v(T0)}"); e(f"v_add_u32 {v(V_DW)}, {v(V_DW)}, {v(T1)}")
        e.wait(lgkm=0)
        e(f"s_cmp_eq_u32 {s(S_BLK)}, 0")
        e(f"s_cselect_b64 {s(S_X,2)}, s[40:41], s[50:51]")
        e(f"s_cselect_b64 {s(S_K,2)}, s[42:43], s[52:53]")
        e(f"s_cselect_b64 {s(S_V,2)}, s[44:45], s[54:55]")
        e(f"s_cselect_b64 {s(S_WQ,2)}, s[46:47], s[56:57]")
        e(f"s_cselect_b64 {s(S_WO,2)}, s[48:49], s[58:59]")
        def srd(S, off_setup, size):
            for t in off_setup: e(t)
            e(f"s_add_u32 {s(S)}, {s(S)}, {s(S_TMP)}"); e(f"s_addc_u32 {s(S+1)}, {s(S+1)}, 0")
            e(f"s_mov_b32 {s(S+2)}, {size}"); e(f"s_mov_b32 {s(S+3)}, 0x20000")
        srd(S_X, [f"s_mul_i32 {s(S_TMP)}, {s(S_B)}, 86016"], 86016)
        srd(S_WQ, [f"s_lshl_b32 {s(S_TMP)}, {s(S_H)}, 9"], 447*8192 + 512)
        srd(S_K, [f"s_lshl_b32 {s(S_TMP)}, {s(S_B)}, 4", f"s_add_u32 {s(S_TMP)}, {s(S_TMP)}, {s(S_H)}", f"s_lshl_b32 {s(S_TMP)}, {s(S_TMP)}, 18"], 262144)
        srd(S_V, [], 262144)
        srd(S_WO, [f"s_mul_i32 {s(S_TMP)}, {s(S_H)}, 229376"], 229376)

    def prologue2(self):
        e = self.e
        L, T0, T1, T2, T3 = R_T, R_T + 1, R_T + 2, R_T + 3, R_T + 4
        e(f"s_lshl_b32 {s(S_TMP)}, {s(S_BLK)}, 3"); e(f"s_add_u32 {s(S_TMP)}, {s(S_TMP)}, {s(S_B)}"); e(f"s_lshl_b32 {s(S_TMP)}, {s(S_TMP)}, 4")
        e(f"s_add_u32 {s(S_TMP)}, {s(S_TMP)}, {s(S_H)}"); e(f"s_mul_i32 {s(S_TMP)}, {s(S_TMP)}, 86016")
        e(f"s_add_u32 {s(S_P)}, s60, {s(S_TMP)}"); e(f"s_addc_u32 {s(S_P+1)}, s61, 0")
        e(f"s_mov_b32 {s(S_P+2)}, 86016"); e(f"s_mov_b32 {s(S_P+3)}, 0x20000")
        e(f"s_mov_b32 {s(S_C)}, 0x3db8aa3b")
        e(f"v_and_b32 {v(T0)}, 31, {v(L)}"); e(f"v_lshrrev_b32 {v(T1)}, 5, {v(L)}")
        e(f"v_bfe_u32 {v(T2)}, {v(T0)}, 1, 3"); e(f"v_xor_b32 {v(T2)}, {v(T2)}, {v(T1)}"); e(f"v_lshlrev_b32 {v(T2)}, 4, {v(T2)}")
        e(f"v_lshl_add_u32 {v(V_XA)}, {v(T0)}, 7, {v(T2)}")
        for ks in range(1, 4): e(f"v_xor_b32 {v(V_XA+ks)}, {32*ks}, {v(V_XA)}")
        e(f"v_and_b32 {v(T2)}, 7, {v(T0)}"); e(f"v_xor_b32 {v(T3)}, {v(T2)}, {v(T1)}"); e(f"v_lshlrev_b32 {v(T3)}, 4, {v(T3)}")
        e(f"v_lshl_add_u32 {v(V_KA)}, {v(T2)}, 7, {v(T3)}")
        e(f"s_add_u32 {s(S_TMP)}, {s(S_M0B)}, {RING0*SLOT}")
        e(f"v_add_u32 {v(V_KA)}, {s(S_TMP)}, {v(V_KA)}")
        for ks in range(1, 4): e(f"v_xor_b32 {v(V_KA+ks)}, {32*ks}, {v(V_KA)}")
        e(f"v_and_b32 {v(T2)}, 15, {v(T0)}"); e(f"v_xor_b32 {v(T2)}, {v(T2)}, {v(T1)}"); e(f"v_lshlrev_b32 {v(T2)}, 4, {v(T2)}")
        e(f"v_lshl_add_u32 {v(V_QB)}, {v(T0)}, 9, {v(T2)}")
        e(f"v_bfe_u32 {v(T0)}, {v(L)}, 2, 2")
        e(f"v_lshl_add_u32 {v(T2)}, {v(T1)}, 3, {v(T0)}")
        e(f"v_bfe_u32 {v(T3)}, {v(L)}, 4, 1"); e(f"v_lshlrev_b32 {v(T3)}, 1, {v(T3)}")
        e(f"v_bfe_u32 {v(T1)}, {v(L)}, 1, 1"); e(f"v_add_u32 {v(T3)}, {v(T3)}, {v(T1)}")
        e(f"s_lshl_b32 {s(S_TMP)}, {s(S_W)}, 2"); e(f"v_add_u32 {v(T3)}, {s(S_TMP)}, {v(T3)}")
        e(f"v_lshlrev_b32 {v(T0)}, 2, {v(T0)}"); e(f"v_xor_b32 {v(T3)}, {v(T3)}, {v(T0)}"); e(f"v_lshlrev_b32 {v(T3)}, 4, {v(T3)}")
        e(f"v_lshl_add_u32 {v(V_WA)}, {v(T2)}, 9, {v(T3)}")
        e(f"v_and_b32 {v(T1)}, 1, {v(L)}"); e(f"v_lshl_add_u32 {v(V_WA)}, {v(T1)}, 3, {v(V_WA)}")
        e(f"v_add_u32 {v(V_WA)}, {RING0*SLOT}, {v(V_WA)}")

    def setup_VO_dma(self):
        e = self.e
        T0, T1 = V_T0, V_T1
        e(f"v_bfe_u32 {v(T0)}, v0, 4, 1"); e(f"v_bfe_u32 {v(T1)}, v0, 6, 1")
        e(f"v_lshl_add_u32 {v(T0)}, {v(T1)}, 1, {v(T0)}"); e(f"v_lshlrev_b32 {v(T0)}, 1, {v(T0)}")
        e(f"v_and_b32 {v(T1)}, 7, v0"); e(f"v_xor_b32 {v(T0)}, {v(T0)}, {v(T1)}"); e(f"v_lshlrev_b32 {v(T0)}, 4, {v(T0)}")
        e(f"v_lshrrev_b32 {v(V_DV)}, 3, v0"); e(f"v_lshl_add_u32 {v(V_DV)}, {v(V_DV)}, 9, {v(T0)}")
        e(f"v_bfe_u32 {v(T0)}, v0, 4, 2"); e(f"v_lshlrev_b32 {v(T0)}, 1, {v(T0)}"); e(f"v_xor_b32 {v(T0)}, {v(T0)}, {v(T1)}"); e(f"v_lshlrev_b32 {v(T0)}, 4, {v(T0)}")
        e(f"v_lshrrev_b32 {v(V_DO)}, 3, v0"); e(f"v_mul_u32_u24 {v(V_DO)}, 896, {v(V_DO)}"); e(f"v_add_u32 {v(V_DO)}, {v(V_DO)}, {v(T0)}")

    def build_order(self):
        a = self.a
        sh = []
        xneed = {0: [0, 1], 4: [2], 8: [3, 4], 12: [5], 16: [6, 7], 20: [8], 24: [9, 10]}
        for j in range(28):
            for jj, xs in xneed.items():
                if max(jj - 2, 0) == j: sh += [("X", x) for x in xs]
            sh.append(("W", j))
        nk1 = a.nk1
        order = []; ik = 0
        for n, it in enumerate(sh):
            order.append(it)
            while ik < nk1 and (ik + 1) * len(sh) <= (n + 1) * nk1 + (len(sh) - 1) - 0 and (ik * len(sh) <= n * nk1):
                order.append(("K", ik)); ik += 1
        while ik < nk1: order.insert(len(order) - 1, ("K", ik)); ik += 1
        nq = len(order)
        order += [("K", i) for i in range(nk1, 32)]
        return order, nq

    def kernel1(self):
        a = self.a; e = self.e
        e.label(NAME + "_kernel")
        self.prologue()
        order, nq = self.build_order()
        order += [("V", i) for i in range(a.vpre)]
        ip = 0
        def issue_next(n=1):
            nonlocal ip
            for _ in range(n):
                if ip < len(order) and self.can_alloc(order[ip]):
                    if order[ip] == ("V", 0): self.setup_VO_dma()
                    self.issue(order[ip]); ip += 1
        D = a.depth
        issue_next(D)
        self.prologue2()
        G = 2
        nt = (nq + G - 1) // G
        prev = []
        cp = 0
        for t in range(nt):
            items = order[cp:min(cp + G, nq)]; cp += len(items)
            self.bar(items[-1])
            bufs = [R_FR, R_FR + 16] if t % 2 == 0 else [R_T, R_T + 16]
            cur = []
            for it in items:
                if it[0] == "W":
                    b = bufs.pop(0); self.read_W(it[1], b); cur.append((it[1], b))
                elif it[0] == "K":
                    self.park_K(it[1])
            n_iss = len(items)
            for k, (j, b) in enumerate(prev):
                issue_next(1); n_iss -= 1
                self.mfma_W(j, b)
            issue_next(max(n_iss, 0))
            prev = cur
        for (j, b) in prev: self.mfma_W(j, b)
        self.stamp()
        self.bar()
        self.free += [8, 9, 10]; self.free.sort()
        T = R_FR
        e(f"v_and_b32 {v(V_T0)}, 31, v0")
        e(f"v_and_b32 {v(V_T1)}, 15, v0")
        e(f"s_lshl_b32 {s(S_TMP)}, {s(S_W)}, 2")
        e(f"v_xor_b32 {v(V_T1)}, {s(S_TMP)}, {v(V_T1)}"); e(f"v_lshlrev_b32 {v(V_T1)}, 4, {v(V_T1)}")
        e(f"v_lshl_add_u32 {v(V_T0)}, {v(V_T0)}, 9, {v(V_T1)}")
        e(f"v_bfe_u32 {v(V_T1)}, v0, 5, 1"); e(f"v_lshl_add_u32 {v(V_XA)}, {v(V_T1)}, 3, {v(V_T0)}")
        for j in range(1, 4): e(f"v_xor_b32 {v(V_XA+j)}, {16*j}, {v(V_XA)}")
        for qt in range(3):
            for j in range(4):
                r = R_A + 16 * qt + 4 * j; tt = T + 2 * ((qt * 4 + j) % 8)
                e(f"v_cvt_pk_bf16_f32 {v(tt)}, {v(r)}, {v(r+1)}"); e(f"v_cvt_pk_bf16_f32 {v(tt+1)}, {v(r+2)}, {v(r+3)}")
                e(f"ds_write_b64 {v(V_XA+j)}, {v(tt,2)} offset:{qt*16384}")
        kp = a.nk1
        def service():
            nonlocal kp
            if kp < 32:
                e.wait_tag(("K", kp)); self.park_K(kp); kp += 1
            if len(self.pend_priv) > 1:
                keep = self.pend_priv[-1:]
                e.wait(lgkm=4)
                self.free += self.pend_priv[:-1]; self.free.sort(); self.pend_priv = keep
            issue_next(1)
        service()
        self.bar()
        def qread(ks, buf):
            e(f"v_xor_b32 {v(V_T0 + (ks & 1))}, {32*(ks&7)}, {v(V_QB)}")
            for qt in range(3):
                e(f"ds_read_b128 {v(buf+4*qt,4)}, {v(V_T0 + (ks & 1))} offset:{qt*16384 + 256*(ks>>3)}")
        qb = [R_FR, R_FR + 12, R_T, R_T + 12]
        seq = [(t, ks) for t in range(2) for ks in range(16)]
        PF = 2
        for n in range(PF): qread(seq[n][1], qb[n % 4])
        for n, (t, ks) in enumerate(seq):
            if n + PF < len(seq): qread(seq[n + PF][1], qb[(n + PF) % 4])
            if t == 0:
                if ks % a.svc == a.svc - 1: service()
                while kp < min(32, 4 * (ks // 4) + 4): service()
            else:
                while kp < 16 + 4 * (ks // 4) + 4: service()
            acc = R_A if t == 0 else R_K0
            kr = (R_K0 if t == 0 else R_K1) + 4 * ks
            for qt in range(3):
                c = "0" if ks == 0 else v(acc + 16 * qt, 16)
                e(f"v_mfma_f32_32x32x16_bf16 {v(acc+16*qt,16)}, {v(kr,4)}, {v(qb[n%4]+4*qt,4)}, {c}")
        self.stamp()
        SA = lambda t, qt: (R_A if t == 0 else R_K0) + 16 * qt
        M = R_FR
        SUM = R_FR + 3
        e(f"v_and_b32 {v(V_T0)}, 31, v0"); e(f"v_lshlrev_b32 {v(V_T0)}, 6, {v(V_T0)}")
        e(f"v_lshrrev_b32 {v(V_T1)}, 5, v0")
        e(f"v_lshl_add_u32 {v(V_XA)}, {v(V_T1)}, 2, {v(V_T0)}"); e(f"v_add_u32 {v(V_XA)}, {STAT}, {v(V_XA)}")
        e(f"v_add_u32 {v(V_XA+1)}, {STAT}, {v(V_T0)}")
        for qt in range(3):
            regs = [SA(0, qt) + r for r in range(16)] + [SA(1, qt) + r for r in range(16)]
            e(f"v_max3_f32 {v(M+qt)}, {v(regs[0])}, {v(regs[1])}, {v(regs[2])}")
            for k in range(3, 31, 2): e(f"v_max3_f32 {v(M+qt)}, {v(M+qt)}, {v(regs[k])}, {v(regs[k+1])}")
            e(f"v_max_f32 {v(M+qt)}, {v(M+qt)}, {v(regs[31])}")
            e(f"ds_write_b32 {v(V_XA)}, {v(M+qt)} offset:{qt*2048}")
        service()
        self.bar()
        TM = R_K1
        for qt in range(3):
            for k in range(4): e(f"ds_read_b128 {v(TM+16*qt+4*k,4)}, {v(V_XA+1)} offset:{qt*2048+16*k}")
        PA = V_KA
        e(f"v_and_b32 {v(V_T0)}, 31, v0"); e(f"v_and_b32 {v(V_T1)}, 15, v0")
        e(f"v_xor_b32 {v(V_T1)}, {s(S_W)}, {v(V_T1)}"); e(f"v_lshlrev_b32 {v(V_T1)}, 4, {v(V_T1)}")
        e(f"v_lshl_add_u32 {v(V_T0)}, {v(V_T0)}, 10, {v(V_T1)}")
        e(f"v_bfe_u32 {v(V_T1)}, v0, 5, 1"); e(f"v_lshl_add_u32 {v(PA)}, {v(V_T1)}, 3, {v(V_T0)}")
        e(f"v_xor_b32 {v(PA+1)}, 128, {v(PA)}")
        PR = V_KA + 2
        e(f"v_and_b32 {v(V_T0)}, 15, v0"); e(f"v_bfe_u32 {v(V_T1)}, v0, 4, 2"); e(f"v_xor_b32 {v(V_T1)}, {v(V_T1)}, {v(V_T0)}")
        e(f"v_lshlrev_b32 {v(V_T1)}, 4, {v(V_T1)}"); e(f"v_lshl_add_u32 {v(PR)}, {v(V_T0)}, 10, {v(V_T1)}")
        e(f"v_bfe_u32 {v(V_T1)}, v0, 7, 1"); e(f"v_lshl_add_u32 {v(PR)}, {v(V_T1)}, 14, {v(PR)}")
        for qt in range(3):
            b = TM + 16 * qt
            e(f"v_max3_f32 {v(M+qt)}, {v(b)}, {v(b+1)}, {v(b+2)}")
            for k in range(3, 15, 2): e(f"v_max3_f32 {v(M+qt)}, {v(M+qt)}, {v(b+k)}, {v(b+k+1)}")
            e(f"v_max_f32 {v(M+qt)}, {v(M+qt)}, {v(b+15)}")
            e(f"v_mul_f32 {v(M+qt)}, {s(S_C)}, {v(M+qt)}")
        B = lambda i: 48 + 16 * i
        PBLK = [[7, 8, 9, 10], [6, 11, 12, 0], [3, 1, 4, 2]]
        self.PREG = lambda qt, kap: B(PBLK[qt][kap >> 2]) + 4 * (kap & 3)
        def pread(qt):
            lab = f"L_pr{qt}"
            e(f"s_cmp_ge_u32 {s(S_W)}, 4"); e(f"s_cbranch_scc1 {lab}")
            pb = (qt % 2) * 32768
            for x in range(4):
                e(f"v_xor_b32 {v(V_T0 + (x & 1))}, {64*x}, {v(PR)}")
                for y in range(4):
                    kap = 4 * y + x
                    e(f"ds_read_b128 {v(self.PREG(qt, kap),4)}, {v(V_T0 + (x & 1))} offset:{pb + 256*y}")
            e.label(lab)
        PK = R_FR + 8
        for qt in range(3):
            pb = (qt % 2) * 32768
            first = True
            for t in range(2):
                for j in range(4):
                    r = SA(t, qt) + 4 * j
                    for k in range(4): e(f"v_fma_f32 {v(r+k)}, {v(r+k)}, {s(S_C)}, -{v(M+qt)}")
                    for k in range(4): e(f"v_exp_f32 {v(r+k)}, {v(r+k)}")
                    tt = PK + 2 * ((t * 4 + j) % 8)
                    e(f"v_cvt_pk_bf16_f32 {v(tt)}, {v(r)}, {v(r+1)}"); e(f"v_cvt_pk_bf16_f32 {v(tt+1)}, {v(r+2)}, {v(r+3)}")
                    e(f"ds_write_b64 {v(PA + (j & 1))}, {v(tt,2)} offset:{pb + 512*t + 256*(j>>1)}")
                    e(f"v_add_f32 {v(r)}, {v(r)}, {v(r+1)}"); e(f"v_add_f32 {v(r+2)}, {v(r+2)}, {v(r+3)}")
                    if first: e(f"v_add_f32 {v(SUM+qt)}, {v(r)}, {v(r+2)}"); first = False
                    else:
                        e(f"v_add_f32 {v(r)}, {v(r)}, {v(r+2)}"); e(f"v_add_f32 {v(SUM+qt)}, {v(SUM+qt)}, {v(r)}")
                if t == 0: issue_next(1)
            if qt == 2:
                for q2 in range(3): e(f"ds_write_b32 {v(V_XA)}, {v(SUM+q2)} offset:{q2*2048}")
            issue_next(1)
            e.force_wait("lgkmcnt(0)")
            self.bar()
            if qt < 2: pread(qt)
        self.stamp()
        assert ip <= len(order)
        nv_issued = sum(1 for it in order[:ip] if it[0] == "V")
        rest = []
        nv, no = 32 - nv_issued, 28
        iv, io = nv_issued, 0
        tailv = a.tailv
        while iv < 32 or io < 28:
            takeO = io < 28 and (iv >= 32 - tailv or (io * max(nv - tailv, 1) <= (iv - nv_issued) * no))
            if takeO: rest.append(("O", io)); io += 1
            else: rest.append(("V", iv)); iv += 1
        order = order[:ip] + rest
        first_v = order.index(("V", 0))
        vis = first_v
        plan = []
        self.free += [4, 5, 6, 7]; self.free.sort()
        self.pend_shared += [3]
        cv, co = 0, 0
        oready = -1
        oloaded = -1
        owritten = -1
        tick = 0
        while cv < 32 or co < 28 or oloaded < 3:
            P = dict(need=None, issue=[], pv=[], op=[], bar=True)
            if tick > 0:
                self.free += self.pend_shared + self.pend_priv; self.pend_shared = []; self.pend_priv = []; self.free.sort()
                oready = owritten
            if tick == 0:
                P["bar"] = False
                P["pv"].append(("pread2",))
            else:
                if cv < 32:
                    nvt = a.vcatch if (cv < a.vcatch_n) else 1
                    if cv % 8 + nvt > 8: nvt = 8 - cv % 8
                    tgt = order.index(("V", cv + nvt - 1))
                    while tgt >= ip:
                        nvt -= 1
                        if nvt == 0: break
                        tgt = order.index(("V", cv + nvt - 1))
                    if nvt > 0:
                        vis = max(vis, tgt + 1)
                        P["need"] = order[vis - 1]
                        for k in range(nvt):
                            P["pv"].append(("V", cv, self.slot_of[("V", cv)])); self.pend_shared.append(self.slot_of[("V", cv)]); cv += 1
                        if cv % 8 == 0:
                            P["pv"].append(("owrite", cv // 8 - 1)); owritten = cv // 8 - 1
                    else:
                        vis = ip; P["need"] = order[vis - 1]
                else:
                    vis = ip; P["need"] = order[vis - 1]
                if oloaded < oready and co == 7 * (oloaded + 1):
                    oloaded += 1; P["op"].append(("oread", oloaded))
                nop = 7 if cv >= 32 and oloaded == 3 else a.opn
                while nop > 0 and co < 7 * (oloaded + 1) and order.index(("O", co)) < vis:
                    P["op"].append(("O", co, self.slot_of[("O", co)])); self.pend_shared.append(self.slot_of[("O", co)]); co += 1; nop -= 1
            while ip < len(order) and ip - vis < D and self.free:
                sl = self.alloc(order[ip]); P["issue"].append((order[ip], sl)); ip += 1
            plan.append(P); tick += 1
            assert tick < 200, "plan stuck"
        self.plan = plan
        if a.verbose:
            for i, P in enumerate(plan): print(i, P, file=sys.stderr)
        e(f"s_cmp_ge_u32 {s(S_W)}, 4"); e("s_cbranch_scc1 L_op")
        snap = e.snapshot(); nst = self.nst
        self.role_pv(pread)
        e.restore(snap); self.nst = nst
        e.label("L_op")
        self.role_op()
        e.label("L_end1"); e("s_endpgm")

    def plan_bar(self, P):
        e = self.e
        if P["bar"]:
            if P["need"] is not None: e.wait_tag(P["need"], lgkm=0)
            else: e.wait(lgkm=0)
            e.barrier()

    def role_pv(self, pread):
        e = self.e; a = self.a
        OACC = R_FR
        LINV = R_FR + 24
        VF = 48 + 16 * 5
        VA0, VA1 = V_XA, V_XA + 1
        OA = V_XA + 2
        PR = V_KA + 2
        for P in self.plan:
            self.plan_bar(P)
            iss = list(P["issue"])
            for act in P["pv"]:
                if act[0] == "pread2":
                    pb = 0
                    for x in range(4):
                        e(f"v_xor_b32 {v(V_T0 + (x & 1))}, {64*x}, {v(PR)}")
                        for y in range(4):
                            kap = 4 * y + x
                            e(f"ds_read_b128 {v(self.PREG(2, kap),4)}, {v(V_T0 + (x & 1))} offset:{pb + 256*y}")
                    e(f"v_and_b32 {v(V_T0)}, 15, v0"); e(f"v_bfe_u32 {v(V_T1)}, v0, 7, 1")
                    e(f"v_lshl_add_u32 {v(V_T0)}, {v(V_T1)}, 4, {v(V_T0)}"); e(f"v_lshlrev_b32 {v(V_T0)}, 6, {v(V_T0)}")
                    e(f"v_add_u32 {v(V_T0)}, {STAT}, {v(V_T0)}")
                    for qt in range(3):
                        for k in range(4): e(f"ds_read_b128 {v(VF+4*k,4)}, {v(V_T0)} offset:{qt*2048+16*k}")
                        for k in range(8): e(f"v_add_f32 {v(VF+k)}, {v(VF+k)}, {v(VF+8+k)}")
                        for k in range(4): e(f"v_add_f32 {v(VF+k)}, {v(VF+k)}, {v(VF+4+k)}")
                        e(f"v_add_f32 {v(VF)}, {v(VF)}, {v(VF+2)}"); e(f"v_add_f32 {v(VF+1)}, {v(VF+1)}, {v(VF+3)}")
                        e(f"v_add_f32 {v(VF)}, {v(VF)}, {v(VF+1)}")
                        e(f"v_rcp_f32 {v(LINV+qt)}, {v(VF)}")
                    e(f"v_bfe_u32 {v(V_T0)}, v0, 2, 2"); e(f"v_bfe_u32 {v(V_T1)}, v0, 4, 2")
                    e(f"v_lshl_add_u32 {v(VA0)}, {v(V_T1)}, 3, {v(V_T0)}"); e(f"v_lshlrev_b32 {v(VA0)}, 7, {v(VA0)}")
                    e(f"v_bfe_u32 {v(V_T0)}, v0, 3, 2")
                    e(f"v_bfe_u32 {v(V_T1)}, v0, 6, 1"); e(f"v_lshlrev_b32 {v(V_T1)}, 1, {v(V_T1)}")
                    e(f"v_xor_b32 {v(V_T0)}, {v(V_T0)}, {v(V_T1)}"); e(f"v_lshl_add_u32 {v(VA0)}, {v(V_T0)}, 5, {v(VA0)}")
                    e(f"v_and_b32 {v(V_T0)}, 3, v0"); e(f"v_lshl_add_u32 {v(VA0)}, {v(V_T0)}, 3, {v(VA0)}")
                    e(f"v_xor_b32 {v(VA1)}, 32, {v(VA0)}")
                    e(f"v_and_b32 {v(V_T0)}, 63, v0"); e(f"v_lshlrev_b32 {v(OA)}, 4, {v(V_T0)}")
                    e(f"v_bfe_u32 {v(V_T0)}, v0, 7, 1"); e(f"v_lshl_add_u32 {v(OA)}, {v(V_T0)}, 10, {v(OA)}")
                    e(f"v_bfe_u32 {v(V_T0)}, v0, 6, 1"); e(f"v_mul_u32_u24 {v(V_T0)}, 6144, {v(V_T0)}"); e(f"v_add_u32 {v(OA)}, {v(OA)}, {v(V_T0)}")
                elif act[0] == "V":
                    _, i, sl = act
                    sg = i % 8
                    e(f"v_add_u32 {v(V_T0)}, {sl*SLOT}, {v(VA0)}"); e(f"v_add_u32 {v(V_T1)}, {sl*SLOT}, {v(VA1)}")
                    for k2 in range(2):
                        for dt in range(2):
                            r = VF + 8 * k2 + 4 * dt
                            e(f"ds_read_b64_tr_b16 {v(r,2)}, {v(V_T0+dt)} offset:{4096*k2}")
                            e(f"ds_read_b64_tr_b16 {v(r+2,2)}, {v(V_T0+dt)} offset:{4096*k2+512}")
                    if iss: self.issue(*iss.pop(0))
                    for k2 in range(2):
                        kap = 2 * sg + k2
                        for dt in range(2):
                            for qt in range(3):
                                acc = OACC + 12 * dt + 4 * qt
                                c = "0" if kap == 0 else v(acc, 4)
                                e(f"v_mfma_f32_16x16x32_bf16 {v(acc,4)}, {v(VF+8*k2+4*dt,4)}, {v(self.PREG(qt,kap),4)}, {c}")
                        if k2 == 0 and iss: self.issue(*iss.pop(0))
                elif act[0] == "owrite":
                    c = act[1]
                    for qt in range(3):
                        tt = VF + 4 * qt
                        for dt in range(2):
                            acc = OACC + 12 * dt + 4 * qt
                            for k in range(4): e(f"v_mul_f32 {v(acc+k)}, {v(LINV+qt)}, {v(acc+k)}")
                            e(f"v_cvt_pk_bf16_f32 {v(tt+2*dt)}, {v(acc)}, {v(acc+1)}"); e(f"v_cvt_pk_bf16_f32 {v(tt+2*dt+1)}, {v(acc+2)}, {v(acc+3)}")
                        e(f"ds_write_b128 {v(OA)}, {v(tt,4)} offset:{(c%2)*12288 + qt*2048}")
            for it in iss: self.issue(*it)
        e("s_endpgm")

    def role_op(self):
        e = self.e; a = self.a
        ACC = lambda cb, q6: 48 + 24 * cb + 4 * q6
        OF = lambda k2, q6: (R_FR + 4 * (6 * k2 + q6)) if (6 * k2 + q6) < 8 else (216 + 4 * (6 * k2 + q6 - 8))
        WF = 232
        PKT = 248
        WA, LA, SA_ = V_XA, V_XA + 1, V_XA + 2
        init = False
        wpar = 0
        for P in self.plan:
            self.plan_bar(P)
            iss = list(P["issue"])
            if not init:
                init = True
                e(f"v_bfe_u32 {v(V_T0)}, v0, 2, 4"); e(f"v_lshlrev_b32 {v(WA)}, 7, {v(V_T0)}")
                e(f"v_bfe_u32 {v(V_T0)}, v0, 3, 2"); e(f"v_bfe_u32 {v(V_T1)}, v0, 6, 2"); e(f"v_xor_b32 {v(V_T0)}, {v(V_T0)}, {v(V_T1)}")
                e(f"v_lshl_add_u32 {v(WA)}, {v(V_T0)}, 5, {v(WA)}")
                e(f"v_and_b32 {v(V_T0)}, 3, v0"); e(f"v_lshl_add_u32 {v(WA)}, {v(V_T0)}, 3, {v(WA)}")
                e(f"v_and_b32 {v(V_T0)}, 63, v0"); e(f"v_lshlrev_b32 {v(LA)}, 4, {v(V_T0)}")
                e(f"v_mul_u32_u24 {v(V_T1)}, 21504, {v(V_T1)}"); e(f"v_add_u32 {v(SA_)}, {v(LA)}, {v(V_T1)}")
            for act in P["op"]:
                if act[0] == "oread":
                    c = act[1]
                    for k2 in range(2):
                        for q6 in range(6):
                            e(f"ds_read_b128 {v(OF(k2,q6),4)}, {v(LA)} offset:{(c%2)*12288 + k2*6144 + q6*1024}")
                elif act[0] == "O":
                    _, i, sl = act
                    c, cb = divmod(i, 7)
                    wf = WF + 8 * wpar; tt = V_T0 + wpar; wpar ^= 1
                    e(f"v_add_u32 {v(tt)}, {sl*SLOT}, {v(WA)}")
                    for k2 in range(2):
                        e(f"ds_read_b64_tr_b16 {v(wf+4*k2,2)}, {v(tt)} offset:{4096*k2}")
                        e(f"ds_read_b64_tr_b16 {v(wf+4*k2+2,2)}, {v(tt)} offset:{4096*k2+2048}")
                    if iss: self.issue(*iss.pop(0))
                    for k2 in range(2):
                        for q6 in range(6):
                            acc = ACC(cb, q6)
                            cc = "0" if (c == 0 and k2 == 0) else v(acc, 4)
                            e(f"v_mfma_f32_16x16x32_bf16 {v(acc,4)}, {v(wf+4*k2,4)}, {v(OF(k2,q6),4)}, {cc}")
                    if c == 3:
                        self.store_cb(cb - 1) if cb > 0 else None
                        if cb == 6: self.store_cb(6)
            for it in iss: self.issue(*it)
        self.stamp()
        if a.stamps:
            e.force_wait("vmcnt(0)")
            self.stamp()
            e(f"s_cmp_lg_u32 {s(S_W)}, 4"); e("s_cbranch_scc1 L_end1")
            e(f"s_add_u32 s60, s60, {STAMP_OFF}"); e("s_addc_u32 s61, s61, 0"); e("s_lshl_b32 s33, s2, 7"); e("s_add_u32 s60, s60, s33"); e("s_addc_u32 s61, s61, 0")
            e("v_mov_b32 v10, 0")
            for i in range(self.nst):
                e(f"v_mov_b32 v8, s{64+2*i}"); e(f"v_mov_b32 v9, s{65+2*i}")
                e(f"global_store_dwordx2 v10, v[8:9], s[60:61] offset:{8*i}"); e.nop(2)

    def store_cb(self, cb):
        e = self.e
        ACC = lambda cb, q6: 48 + 24 * cb + 4 * q6
        SA_ = V_XA + 2
        wp = (" " + self.a.wpol) if self.a.wpol else ""
        for qt in range(3):
            a0, a1 = ACC(cb, 2 * qt), ACC(cb, 2 * qt + 1)
            tt = 248 + 4 * (qt % 2)
            e(f"v_cvt_pk_bf16_f32 {v(tt)}, {v(a0)}, {v(a0+1)}"); e(f"v_cvt_pk_bf16_f32 {v(tt+1)}, {v(a0+2)}, {v(a0+3)}")
            e(f"v_cvt_pk_bf16_f32 {v(tt+2)}, {v(a1)}, {v(a1+1)}"); e(f"v_cvt_pk_bf16_f32 {v(tt+3)}, {v(a1+2)}, {v(a1+3)}")
            e(f"s_mov_b32 {s(S_SO)}, {(cb*3+qt)*1024}")
            e(f"buffer_store_dwordx4 {v(tt,4)}, {v(SA_)}, {s(S_P,4)}, {s(S_SO)} offen{wp}")

def reducer(a):
    e = Emitter()
    e.label("reduce_kernel")
    e("s_cmp_ge_u32 s2, 336"); e("s_cbranch_scc1 L_end2")
    e("s_load_dwordx2 s[4:5], s[0:1], 96")
    e("s_load_dwordx2 s[8:9], s[0:1], 80")
    e(f"s_mul_hi_u32 s12, s2, {-(-(1<<32)//21)}")
    e("s_mul_i32 s13, s12, 21"); e("s_sub_u32 s13, s2, s13")
    e(f"s_mul_hi_u32 s14, s13, {-(-(1<<32)//3)}")
    e("s_mul_i32 s15, s14, 3"); e("s_sub_u32 s15, s13, s15")
    e("v_lshrrev_b32 v1, 6, v0"); e("v_and_b32 v2, 63, v0")
    e("v_mul_u32_u24 v3, 21504, v1"); e("v_lshl_add_u32 v3, v2, 4, v3")
    e(f"s_mul_i32 s16, s12, {16*86016}"); e("s_lshl_b32 s17, s13, 10"); e("s_add_u32 s16, s16, s17")
    e.wait(lgkm=0)
    e("s_add_u32 s4, s4, s16"); e("s_addc_u32 s5, s5, 0"); e(f"s_mov_b32 s6, {16*86016}"); e("s_mov_b32 s7, 0x20000")
    e(f"s_mov_b32 s10, {8*96*896*2}"); e("s_mov_b32 s11, 0x20000")
    rp = (" " + a.rpol) if a.rpol else ""
    for h in range(16):
        e(f"s_mov_b32 s18, {h*86016}")
        e(f"buffer_load_dwordx4 {v(16+4*h,4)}, v3, s[4:7], s18 offen{rp}")
    e("s_and_b32 s19, s12, 7"); e("s_lshr_b32 s20, s12, 3")
    e("s_mul_i32 s19, s19, 96"); e("s_lshl_b32 s21, s15, 5"); e("s_add_u32 s19, s19, s21"); e("s_mul_i32 s19, s19, 1792")
    e("s_mul_i32 s20, s20, 896"); e("s_add_u32 s19, s19, s20"); e("s_lshl_b32 s21, s14, 7"); e("s_add_u32 s19, s19, s21")
    e("v_and_b32 v4, 15, v0"); e("v_mul_u32_u24 v4, 1792, v4")
    e("v_lshl_add_u32 v4, v1, 5, v4"); e("v_bfe_u32 v5, v0, 4, 2"); e("v_lshl_add_u32 v4, v5, 3, v4")
    e("s_mov_b32 s22, 0xffff0000")
    for h in range(16):
        for k in range(4):
            r = 16 + 4 * h + k
            if h == 0:
                e(f"v_lshlrev_b32 v{8+2*k}, 16, v{r}"); e(f"v_and_b32 v{9+2*k}, s22, v{r}")
            else:
                e(f"v_lshlrev_b32 v6, 16, v{r}"); e(f"v_and_b32 v7, s22, v{r}")
                e(f"v_add_f32 v{8+2*k}, v{8+2*k}, v6"); e(f"v_add_f32 v{9+2*k}, v{9+2*k}, v7")
    for k in range(4): e(f"v_cvt_pk_bf16_f32 v{16+k}, v{8+2*k}, v{9+2*k}")
    e("buffer_store_dwordx2 v[16:17], v4, s[8:11], s19 offen")
    e(f"s_add_u32 s19, s19, {16*1792}")
    e("buffer_store_dwordx2 v[18:19], v4, s[8:11], s19 offen")
    e.label("L_end2"); e("s_endpgm")
    return e

def desc(name, vgpr, sgpr=102):
    return "\n".join([f".amdhsa_kernel {name}", f"  .amdhsa_next_free_vgpr {vgpr}", f"  .amdhsa_next_free_sgpr {sgpr}",
        f"  .amdhsa_accum_offset {(vgpr+3)//4*4}", "  .amdhsa_group_segment_fixed_size 0", "  .amdhsa_kernarg_size 104",
        "  .amdhsa_user_sgpr_count 2", "  .amdhsa_user_sgpr_kernarg_segment_ptr 1", "  .amdhsa_system_sgpr_workgroup_id_x 1",
        "  .amdhsa_float_denorm_mode_32 3", ".end_amdhsa_kernel"]) + "\n"

def main(argv=None):
    ap = argparse.ArgumentParser()
    ap.add_argument("-o", default="k1.s")
    ap.add_argument("--stamps", type=int, default=0)
    ap.add_argument("--depth", type=int, default=6)
    ap.add_argument("--nk1", type=int, default=23)
    ap.add_argument("--svc", type=int, default=4)
    ap.add_argument("--vpre", type=int, default=11)
    ap.add_argument("--tailv", type=int, default=2)
    ap.add_argument("--vcatch", type=int, default=2)
    ap.add_argument("--vcatch_n", type=int, default=8)
    ap.add_argument("--opn", type=int, default=2)
    ap.add_argument("--kvpol", default="nt")
    ap.add_argument("--codepf", type=int, default=0)
    ap.add_argument("--spol", default="nt")
    ap.add_argument("--wpol", default="nt")
    ap.add_argument("--rpol", default="nt")
    ap.add_argument("--verbose", action="store_true")
    a = ap.parse_args(argv)
    g = Gen(a); g.kernel1()
    r = reducer(a)
    out = HEADER
    out += f"; @launch kernel={NAME}_kernel grid=(256,1,1) block=(512,1,1) lds=163840\n"
    out += "; @launch kernel=reduce_kernel grid=(336,1,1) block=(256,1,1) lds=0\n"
    out += '.amdgcn_target "amdgcn-amd-amdhsa--gfx950"\n.text\n'
    out += f".globl {NAME}_kernel\n.p2align 8\n.type {NAME}_kernel,@function\n" + g.e.text()
    out += ".globl reduce_kernel\n.p2align 8\n.type reduce_kernel,@function\n" + r.text()
    out += ".p2align 8\n.fill 1024, 4, 0xbf800000\ns_endpgm\n"
    out += '.section .rodata,"a"\n.p2align 6\n' + desc(NAME + "_kernel", 256) + ".p2align 6\n" + desc("reduce_kernel", 80, 32)
    open(a.o, "w").write(out)
    print(f"{a.o}: k1 insts {g.e.ninst} (nops {g.e.nops}), ticks in PV plan {len(g.plan)}, stamps {g.nst}", file=sys.stderr)

if __name__ == "__main__":
    main()
```

```python
import re, copy

def _regs(tok):
    tok = tok.strip()
    tok = re.sub(r"^-|^abs\(|\)$|^\|", "", tok).rstrip("|")
    m = re.fullmatch(r"([vsa])(\d+)", tok)
    if m: return m.group(1), {int(m.group(2))}
    m = re.fullmatch(r"([vsa])\[(\d+):(\d+)\]", tok)
    if m: return m.group(1), set(range(int(m.group(2)), int(m.group(3)) + 1))
    if tok == "vcc": return "s", {106, 107}
    if tok == "vcc_lo": return "s", {106}
    if tok == "m0": return "s", {124}
    if tok == "exec": return "s", {126, 127}
    return None, set()

TRANS = ("v_exp_f32", "v_rcp_f32", "v_log_f32", "v_rsq_f32", "v_sqrt_f32")

class Emitter:
    def __init__(self):
        self.lines = []
        self.pos = 0
        self.vw = {}
        self.mf_d = {}
        self.mfc = {}
        self.sw_valu = {}
        self.m0w = -99
        self.stw = {}
        self.ds = []
        self.vm = []
        self.smem_out = False
        self.ninst = 0
        self.nops = 0

    def raw(self, s):
        self.lines.append(s)

    def comment(self, s):
        self.lines.append("    ; " + s)

    def label(self, name):
        self.lines.append(name + ":")

    def snapshot(self):
        d = {k: copy.deepcopy(v) for k, v in self.__dict__.items() if k not in ("lines", "ninst", "nops", "drop")}
        return d

    def restore(self, d):
        for k, v in d.items(): setattr(self, k, copy.deepcopy(v))

    def _out(self, s, slots=1):
        self.lines.append("    " + s); self.pos += slots; self.ninst += 1

    def nop(self, n):
        while n > 0:
            k = min(n, 16); self._out(f"s_nop {k-1}", k); n -= k; self.nops += 1

    def wait(self, vm=None, lgkm=None):
        parts = []
        if vm is not None:
            assert 0 <= vm <= 63
            if len(self.vm) > vm:
                parts.append(f"vmcnt({vm})"); self.vm = self.vm[len(self.vm) - vm:] if vm else []
        if lgkm is not None:
            lg = min(lgkm, 15)
            if len(self.ds) > lg or (self.smem_out and lg == 0):
                parts.append(f"lgkmcnt({lg})"); self.ds = self.ds[len(self.ds) - lg:] if lg else []
                if lg == 0: self.smem_out = False
        if parts: self._out("s_waitcnt " + " ".join(parts))

    def wait_tag(self, tag, lgkm=None):
        idx = [i for i, (t, _) in enumerate(self.vm) if t == tag]
        self.wait(vm=(len(self.vm) - 1 - idx[-1]) if idx else None, lgkm=lgkm)

    def wait_regs(self, regs):
        need = None
        for i, d in enumerate(self.ds):
            if d and (d & regs): need = len(self.ds) - 1 - i
        if need is not None: self.wait(lgkm=0 if self.smem_out else need)

    def force_wait(self, s):
        self._out("s_waitcnt " + s)
        if "lgkmcnt(0)" in s: self.ds = []; self.smem_out = False
        if "vmcnt(0)" in s: self.vm = []

    def barrier(self):
        self._out("s_barrier")

    drop = ()
    def __call__(self, text, tag=None):
        text = text.strip()
        if self.drop and text.startswith(self.drop): return
        mn, _, rest = text.partition(" ")
        ops = [o.strip() for o in re.split(r",(?![^\[]*\])", rest)] if rest else []
        if ops:
            last = ops[-1].split()
            ops[-1] = last[0]; mods = last[1:]
        else: mods = []
        P = [_regs(o) for o in ops]
        vr, vwr, sr, swr = set(), set(), set(), set()
        def rd(i):
            k, s = P[i]
            if k == "v": vr.update(s)
            elif k == "s": sr.update(s)
        def wr(i):
            k, s = P[i]
            if k == "v": vwr.update(s)
            elif k == "s": swr.update(s)
        cls = None
        is_lds_dma = "lds" in mods
        if mn.startswith("v_mfma"):
            cls = "mfma"; wr(0); rd(1); rd(2); rd(3)
        elif mn.startswith("ds_read"):
            cls = "ds"; wr(0); rd(1)
        elif mn.startswith("ds_add_rtn"):
            cls = "ds"; wr(0); rd(1); rd(2)
        elif mn.startswith("ds_write") or mn in ("ds_add_u32", "ds_max_f32"):
            cls = "ds"; [rd(i) for i in range(len(ops))]
        elif mn.startswith("buffer_load") or mn.startswith("global_load"):
            cls = "vmem"
            if is_lds_dma: [rd(i) for i in range(len(ops))]
            else: wr(0); [rd(i) for i in range(1, len(ops))]
        elif mn.startswith("buffer_store") or mn.startswith("global_store") or mn.startswith("global_atomic") or mn.startswith("buffer_atomic"):
            cls = "vmem"; [rd(i) for i in range(len(ops))]
            if "atomic" in mn and "sc0" in mods:
                vr -= P[0][1] if mn.startswith("global") else set(); wr(0)
        elif mn.startswith("buffer_wbl2") or mn.startswith("buffer_inv"):
            cls = "vmem"
        elif mn.startswith("v_"):
            cls = "valu"
            if mn.startswith("v_cmp"): wr(0); [rd(i) for i in range(1, len(ops))]
            elif mn.startswith("v_permlane32_swap") or mn.startswith("v_permlane16_swap"): wr(0); wr(1); rd(0); rd(1)
            elif mn in ("v_add_co_u32", "v_addc_co_u32"): wr(0); wr(1); [rd(i) for i in range(2, len(ops))]
            else:
                wr(0); [rd(i) for i in range(1, len(ops))]
                if mn.startswith("v_fmac") or mn.startswith("v_pk_fmac"): rd(0)
        elif mn.startswith("s_load") or mn.startswith("s_memrealtime") or mn.startswith("s_memtime"):
            cls = "smem"; wr(0); [rd(i) for i in range(1, len(ops))]
        elif mn.startswith("s_"):
            cls = "salu"
            if mn.startswith("s_cmp") or mn.startswith("s_cbranch") or mn in ("s_branch", "s_barrier", "s_endpgm", "s_setprio", "s_sleep", "s_nop", "s_setpc_b64", "s_bitcmp1_b32", "s_bitcmp0_b32"):
                [rd(i) for i in range(len(ops))]
            else: wr(0); [rd(i) for i in range(1, len(ops))]
        else:
            raise ValueError("unknown instr " + text)

        touched = vr | vwr
        need = None
        for i, d in enumerate(self.ds):
            if d and (d & touched):
                if cls == "ds" and not (d & vr): continue
                need = len(self.ds) - 1 - i
        if need is not None:
            if self.smem_out: need = 0
            self.wait(lgkm=need)
        need = None
        for i, (t, d) in enumerate(self.vm):
            if d and (d & touched): need = len(self.vm) - 1 - i
        if need is not None: self.wait(vm=need)

        req = 0
        def dist(p, n):
            nonlocal req
            req = max(req, n - (self.pos - p - 1))
        if cls == "mfma":
            passes = 8 if "32x32x16" in mn else 4
            dset = P[0][1]; cset = P[3][1] if P[3][0] == "v" else set()
            ab = (P[1][1] | P[2][1])
            for r in ab | cset:
                if r in self.vw:
                    p, k = self.vw[r]
                    if k in ("valu", "trans"): dist(p, 2)
                    elif k.startswith("mfma"):
                        pp = int(k[4:])
                        if r in ab: dist(p, {4: 8, 8: 12}[pp])
                        if r in cset:
                            same = self.mf_d[r] == (min(cset), len(cset)) and pp == passes
                            if not same: dist(p, {4: 6, 8: 10}[pp])
            for r in dset - cset:
                if r in self.vw and self.vw[r][1].startswith("mfma"):
                    dist(self.vw[r][0], {4: 8, 8: 12}[int(self.vw[r][1][4:])])
        else:
            for r in touched:
                if r in self.vw:
                    p, k = self.vw[r]
                    if k.startswith("mfma"): dist(p, {4: 8, 8: 12}[int(k[4:])])
                    elif k == "trans" and cls == "valu" and r in vr and mn not in TRANS: dist(p, 1)
                    elif k == "trans" and cls != "valu" and r in vr: dist(p, 1)
                    if k in ("valu", "trans") and r in vr:
                        if mn.startswith("v_permlane"): dist(p, 2)
                        if mn.startswith("v_readfirstlane") or mn.startswith("v_readlane"): dist(p, 1)
                        if "dpp" in text or "row_" in text or "quad_perm" in text: dist(p, 2)
            for r in vwr:
                if r in self.mfc: dist(self.mfc[r][0], {4: 3, 8: 7}[self.mfc[r][1]])
                if r in self.stw: dist(self.stw[r], 2)
        for r in sr:
            if r in self.sw_valu:
                if cls == "vmem": dist(self.sw_valu[r], 5)
                elif cls in ("valu", "mfma"): dist(self.sw_valu[r], 2)
                elif cls in ("salu", "smem"): dist(self.sw_valu[r], 1)
        if is_lds_dma: dist(self.m0w, 1)
        if req > 0: self.nop(req)

        p = self.pos
        self._out(text)
        if cls == "mfma":
            for r in P[0][1]:
                self.vw[r] = (p, f"mfma{passes}"); self.mf_d[r] = (min(P[0][1]), len(P[0][1]))
            for r in cset: self.mfc[r] = (p, passes)
        elif cls == "valu":
            for r in vwr: self.vw[r] = (p, "trans" if mn in TRANS else "valu")
            for r in swr: self.sw_valu[r] = p
        elif cls == "ds":
            self.ds.append(set(vwr) if vwr else None)
            for r in vwr: self.vw.pop(r, None)
            assert len(self.ds) <= 64 or self.drop
        elif cls == "vmem":
            self.vm.append((tag, set(vwr) if vwr else None))
            for r in vwr: self.vw.pop(r, None)
            if "store" in mn and ("x4" in mn or "x3" in mn):
                di = 0 if mn.startswith("buffer") else 1
                for r in P[di][1]: self.stw[r] = p
        elif cls == "smem":
            self.smem_out = True
        elif cls == "salu":
            if 124 in swr: self.m0w = p
            for r in swr: self.sw_valu.pop(r, None)

    def text(self):
        return "\n".join(self.lines) + "\n"
```

```python
import sys, argparse
from emit import Emitter

NAME = "concat_heads__mha_block_cached__mha_block_cached__near_ridge"
STAMP_OFF = 200 << 20
SLOT = 8192
STAT = 19 * SLOT
HEADER = open("cdna_kernels/" + NAME + ".s.ref").read().split("; Override launch")[0]

def v(a, n=1): return f"v{a}" if n == 1 else f"v[{a}:{a+n-1}]"
def s(a, n=1): return f"s{a}" if n == 1 else f"s[{a}:{a+n-1}]"

T0, T1 = 14, 15
S_R0, S_R1, S_R2 = 4, 8, 12
S_W, S_M0B, S_SO, S_TMP, S_C = 16, 17, 18, 19, 20
S_BLK, S_H, S_B, S_PP, S_U = 21, 22, 23, 24, 25
S_R7, S_R4, S_RB = 26, 27, 28
S_A0, S_A1, S_A2, S_A3, S_ST = 29, 30, 31, 32, 33
QBUF = [0, 12288]
PBUF = [0, 24576]
OBUF = [0, 0]

class Gen:
    def __init__(self, a):
        self.a = a
        self.e = Emitter()
        D = dict(mfma=("v_mfma",), ds=("ds_",), valu=("v_exp", "v_fma_f32", "v_max", "v_cvt_pk", "v_pk_", "v_mul_f32", "v_add_f32", "v_rcp"), store=("buffer_store",), dma=("buffer_load",))
        self.e.drop = tuple(x for k in a.skip.split(",") if k for x in D[k])
        self.nst = 0

    def stamp(self, wait=True):
        if self.a.stamps:
            i = self.nst; self.nst += 1
            assert i < 16
            self.e(f"{'s_memtime' if self.a.clk else 's_memrealtime'} {s(64+2*i,2)}")
            if wait: self.e.force_wait("lgkmcnt(0)")

    def pol(self, p): return (" " + p) if p else ""

    def issue(self, item, slot):
        e = self.e; a = self.a
        ty = item[0]
        sh, kv = self.pol(a.spol), self.pol(a.kvpol)
        if ty == "X":
            n = item[1]
            for j in range(3):
                e(f"s_add_u32 m0, {s(S_M0B)}, {(n%4)*12288 + j*4096}")
                e(f"s_add_u32 {s(S_SO)}, {s(S_A0)}, {j*32*896}")
                e(f"buffer_load_dwordx4 v1, {s(S_R0,4)}, {s(S_SO)} offen{sh} lds", tag=item)
            e(f"s_add_u32 {s(S_A0)}, {s(S_A0)}, 128"); e(f"s_cmp_eq_u32 {s(S_A0)}, 896"); e(f"s_cselect_b32 {s(S_A0)}, 0, {s(S_A0)}")
        elif ty == "W":
            c, n = divmod(item[1], 7)
            e(f"s_add_u32 m0, {s(S_M0B)}, {slot*SLOT}")
            e(f"s_add_u32 {s(S_SO)}, {s(S_A1)}, {s(S_A2)}")
            e(f"buffer_load_dwordx4 v2, {s(S_R1,4)}, {s(S_SO)} offen{sh} lds", tag=item)
            e(f"s_add_u32 m0, {s(S_M0B)}, {slot*SLOT+4096}")
            e(f"s_add_u32 {s(S_SO)}, {s(S_SO)}, {32*8192}")
            e(f"buffer_load_dwordx4 v2, {s(S_R1,4)}, {s(S_SO)} offen{sh} lds", tag=item)
            e(f"s_add_u32 {s(S_A1)}, {s(S_A1)}, {64*8192}"); e(f"s_cmp_eq_u32 {s(S_A1)}, {7*64*8192}"); e(f"s_cselect_b32 {s(S_A1)}, 0, {s(S_A1)}")
            if n == 6:
                e(f"s_add_u32 {s(S_A2)}, {s(S_A2)}, 128"); e(f"s_and_b32 {s(S_A2)}, {s(S_A2)}, 511")
        elif ty == "V":
            c, i = divmod(item[1], 8)
            if item[1] == 0: self.setup_dv()
            for j in range(2):
                e(f"s_add_u32 m0, {s(S_M0B)}, {slot*SLOT + j*4096}")
                e(f"s_add_u32 {s(S_SO)}, {s(S_A3)}, {(i*64+j*32)*512}")
                e(f"buffer_load_dwordx4 v1, {s(S_R2,4)}, {s(S_SO)} offen{kv} lds", tag=item)
            if i == 7:
                e(f"s_add_u32 {s(S_A3)}, {s(S_A3)}, 128"); e(f"s_and_b32 {s(S_A3)}, {s(S_A3)}, 511")
        elif ty == "K":
            c, T = divmod(item[1], 4)
            for p in range(4):
                e(f"s_add_u32 m0, {s(S_A3)}, {slot*SLOT + p*1024}")
                e(f"s_add_u32 {s(S_SO)}, {s(S_A0)}, {(128*T+8*p)*512}")
                e(f"buffer_load_dwordx4 v{1+(p&1)}, {s(S_R0,4)}, {s(S_SO)} offen{kv} lds", tag=item)
            if T == 3:
                e(f"s_add_u32 {s(S_A0)}, {s(S_A0)}, 128"); e(f"s_and_b32 {s(S_A0)}, {s(S_A0)}, 511")
        elif ty == "O":
            c, n = divmod(item[1], 7)
            e(f"s_add_u32 m0, {s(S_M0B)}, {slot*SLOT}")
            e(f"s_add_u32 {s(S_SO)}, {s(S_A1)}, {s(S_A2)}")
            e(f"buffer_load_dwordx4 v3, {s(S_R1,4)}, {s(S_SO)} offen{sh} lds", tag=item)
            e(f"s_add_u32 m0, {s(S_M0B)}, {slot*SLOT+4096}")
            e(f"s_add_u32 {s(S_SO)}, {s(S_SO)}, {32*896}")
            e(f"buffer_load_dwordx4 v3, {s(S_R1,4)}, {s(S_SO)} offen{sh} lds", tag=item)
            e(f"s_add_u32 {s(S_A2)}, {s(S_A2)}, 128"); e(f"s_cmp_eq_u32 {s(S_A2)}, 896"); e(f"s_cselect_b32 {s(S_A2)}, 0, {s(S_A2)}")
            if n == 6:
                e(f"s_add_u32 {s(S_A1)}, {s(S_A1)}, 57344"); e(f"s_cmp_eq_u32 {s(S_A1)}, {4*57344}"); e(f"s_cselect_b32 {s(S_A1)}, 0, {s(S_A1)}")

    def issue_parts(self, item, slot):
        class Rec:
            def __init__(s2): s2.l = []
            def __call__(s2, t, tag=None): s2.l.append((t, tag))
        real = self.e; rec = Rec(); self.e = rec
        self.issue(item, slot)
        self.e = real
        parts = []; cur = []
        for t, tag in rec.l:
            cur.append((t, tag))
            if t.startswith("buffer_load"): parts.append(cur); cur = []
        parts[-1] += cur
        return [(lambda p=p: [real(t, tag=tag) for t, tag in p]) for p in parts]

    def store_parts(self, cb):
        class Rec:
            def __init__(s2): s2.l = []
            def __call__(s2, t, tag=None): s2.l.append((t, tag))
        real = self.e; rec = Rec(); self.e = rec
        self.store_cb(cb)
        self.e = real
        L = rec.l
        parts = [[x] for x in L[:-3]]
        parts[-1] += L[-3:]
        return [(lambda p=p: [real(t, tag=tag) for t, tag in p]) for p in parts]

    def setup_dv(self):
        e = self.e
        e(f"v_bfe_u32 v46, v0, 4, 2"); e("v_lshlrev_b32 v46, 1, v46"); e("v_and_b32 v47, 7, v0"); e("v_xor_b32 v46, v46, v47"); e("v_lshlrev_b32 v46, 4, v46")
        e("v_lshrrev_b32 v1, 3, v0"); e("v_lshl_add_u32 v1, v1, 9, v46")

    def build_plan(self):
        a = self.a
        nkd = a.nkd
        kslots = [19 - 2 * (i + 1) for i in range(nkd)]
        self.KBASE = min(kslots)
        free = list(range(6, self.KBASE)) + [19]
        WONLY = {3, 4, 5, 19}
        kfree = sorted(kslots)
        plan = []
        slot = {}
        def newtick(bar=True):
            P = dict(bar=bar, A=dict(need=None, issue=[], act=[]), B=dict(need=None, issue=[], act=[])); plan.append(P); return P
        pend = []
        astr = []
        for n in range(7): astr += [("X", n), ("W", n)]
        astr += [("W", i) for i in range(7, 28)]
        ia = 0; ca = 0; xdone = 0
        ik = 0; ck = 0
        def cost(it): return 1.5 if it[0] == "X" else 1.0
        def issueA(P, la):
            nonlocal ia
            while ia < len(astr) and sum(cost(x) for x in astr[ca:ia + 1]) <= la:
                it = astr[ia]
                if it[0] == "X":
                    if it[1] - 4 >= xdone: break
                    P["A"]["issue"].append((it, None))
                else:
                    if not free: break
                    slot[it] = free.pop(0); P["A"]["issue"].append((it, slot[it]))
                ia += 1
        def issueK(P, n):
            nonlocal ik
            while n > 0 and ik < 16 and kfree:
                slot[("K", ik)] = kfree.pop(0); P["B"]["issue"].append((("K", ik), slot[("K", ik)])); ik += 1; n -= 1
        P = newtick(False); issueA(P, a.la); issueK(P, a.k0)
        P["A"]["act"].append(("init",)); P["B"]["act"].append(("init",))
        qwritten = -1; qready = -1; xread = 0
        tick = 0
        wacc = 0.0
        kage = {i: 0 for i in range(ik)}
        iv = 0
        def issueV(P, n):
            nonlocal iv
            while n > 0 and iv < 32 and [x for x in free if x not in WONLY]:
                slot[("V", iv)] = [x for x in free if x not in WONLY][0]; free.remove(slot[("V", iv)]); P["A"]["issue"].append((("V", iv), slot[("V", iv)])); iv += 1; n -= 1
        ckprev = 0; vinit = False; qdefer = None
        while ck < 16:
            tick += 1
            P = newtick()
            free += pend; pend = []; free.sort(); xdone = xread; qready = qwritten; ckprev = ck
            if qdefer is not None:
                qwritten = qdefer; qdefer = None; P["A"]["act"].append(("flushw",))
            if ca < 14: n = 2
            else:
                wacc += a.wrate; n = int(wacc + 1e-9); wacc -= n
            took = []
            while n > 0 and ca < min(ia, len(astr)):
                it = astr[ca]
                if it[0] == "W" and it[1] % 7 == 6 and it[1] // 7 >= 2 and ckprev < 4 * (it[1] // 7 - 1):
                    break
                took.append(it); ca += 1; n -= 1
                if it[0] == "X":
                    P["A"]["act"].append(("X", it[1])); xread = it[1] + 1
                    if it[1] == 6: pend += [3, 4, 5]
                else:
                    P["A"]["act"].append(("W", it[1], slot[it])); pend.append(slot[it])
                    if it[1] % 7 == 6:
                        cq = it[1] // 7
                        if a.lag == 0 or cq in a.qdrain:
                            P["A"]["act"].append(("drain",)); qwritten = cq; break
                        else: qdefer = cq
            if qdefer is not None and took[-1] != ("W", 7 * qdefer + 6):
                qwritten = qdefer; qdefer = None; P["A"]["act"].append(("flushw",))
            if took: P["A"]["need"] = took[-1]
            if not a.alt1 or tick < 8 or tick % 2 == 1: issueA(P, a.la)
            if qready == 3 and not vinit:
                P["A"]["act"].append(("initv",)); vinit = True
            if qwritten == 0 and qready < 0: P["B"]["act"].append(("Kpre", 0))
            issued = False
            n = a.kmax if (ca == len(astr) and not took) or tick >= a.kmax_from else 1
            last = ik == 16 and qready == 3 and 16 - ck <= a.kburn
            while ck < ik and ck // 4 <= qready and (last or (n > 0 and tick - kage[ck] >= a.klag)):
                sl = slot[("K", ck)]
                P["B"]["act"].append(("S", ck, sl)); self.sinfo[ck] = (tick, qready); ck += 1; n -= 1
                if a.alt1 and ia < len(astr):
                    if tick % 2 == 0 and ik < 16 and (kfree or tick == 8):
                        if kfree:
                            k2_ = kfree.pop(0); slot[("K", ik)] = k2_; P["B"]["issue"].append((("K", ik), k2_)); kage[ik] = tick; ik += 1
                        if ik < 16:
                            slot[("K", ik)] = sl; P["B"]["act"].append(("issue", ("K", ik), sl)); kage[ik] = tick; ik += 1
                        else: kfree.append(sl)
                    else: kfree.append(sl)
                    issued = True
                elif ik < 16 and not issued and not kfree:
                    slot[("K", ik)] = sl; P["B"]["act"].append(("issue", ("K", ik), sl)); kage[ik] = tick; ik += 1; issued = True
                else:
                    kfree.append(sl)
            if not issued and ik < 16 and (tick in a.kticks or tick >= 8):
                cand = [x for x in kfree if not any(ac[0] == "S" and ac[2] == x for ac in P["B"]["act"])]
                if cand:
                    kfree.remove(cand[0]); slot[("K", ik)] = cand[0]; P["B"]["issue"].append((("K", ik), cand[0])); kage[ik] = tick; ik += 1
            while tick >= 8 and len(kfree) > min(16 - ik, a.kkeep):
                k = kfree.pop(0); pend += [k, k + 1]
            if ik == 16 and kage[15] < tick and ia == len(astr):
                issueV(P, a.vtr0 if last else 2)
            assert tick < 100
        assert vinit
        self.kage = kage; self.kslot = {i: slot[("K", i)] for i in range(16)}
        P["B"]["act"].append(("maxw",))
        P = newtick()
        free += pend; pend = []; free.sort()
        assert not kfree and all(x in free for x in WONLY)
        for x in sorted(WONLY): free.remove(x)
        WONLY.clear()
        P["B"]["act"] += [("maxr",), ("smx", 0)]
        issueV(P, a.vtr1)
        ostr = [("O", i) for i in range(28)]
        io = 0; co = 0; cv = 0
        pw = 0
        oready = oloaded = owritten = -1
        odefer = None
        t2 = 0
        while cv < 32 or co < 28 or oloaded < 3:
            t2 += 1
            P = newtick()
            free += pend; pend = []; free.sort(); oready = owritten
            if odefer is not None:
                owritten = odefer; odefer = None; P["A"]["act"].append(("flushw",))
            if t2 <= 4:
                P["A"]["act"].append(("pread", t2 - 1))
                if t2 <= 3: P["B"]["act"].append(("smx", t2))
                if t2 == 4: P["B"]["act"].append(("inito",)); pend += [2, 3, 4, 5]
            if t2 == 5: pend += [19]
            if cv < 32:
                nvt = 1 if cv >= 32 - a.vend else 2
                nvt = min(nvt, 8 - cv % 8, iv - cv)
                if (cv + nvt) % 8 == 0 and oloaded < (cv + nvt) // 8 - 2: nvt -= 1
                for k in range(nvt):
                    P["A"]["act"].append(("V", cv, slot[("V", cv)])); pend.append(slot[("V", cv)]); P["A"]["need"] = ("V", cv); cv += 1
                if nvt and cv % 8 == 0:
                    if a.lag == 0 or cv == 32 or (cv // 8 - 1) in a.odrain:
                        P["A"]["act"].append(("drain",)); owritten = cv // 8 - 1
                    else: odefer = cv // 8 - 1
                elif cv >= 32 - a.vend: P["A"]["act"].append(("drain",))
            if oloaded < oready and co == 7 * (oloaded + 1):
                oloaded += 1; P["B"]["act"].append(("oread", oloaded))
            nop = 7 if oloaded == 3 else a.opn
            while nop > 0 and co < 7 * (oloaded + 1) and co < io and (("O", co) in self.oage and t2 - self.oage[("O", co)] >= a.olag or cv >= 32):
                P["B"]["act"].append(("O", co, slot[("O", co)])); pend.append(slot[("O", co)]); P["B"]["need"] = ("O", co); co += 1; nop -= 1
            lv = a.lv0 if t2 <= 4 else a.lv
            if t2 <= 4 or not a.alt2 or t2 % 2 == 0 or io == 28:
                issueV(P, max(0, min(a.vmax0 if t2 <= 4 else a.vmax, cv + lv - iv)))
            if t2 >= a.ostart and (not a.alt2 or t2 % 2 == 1 or iv == 32):
                n = a.omax
                while n > 0 and io < 28 and free and io < co + a.lo and len(free) > (1 if iv < 32 else 0) * a.vres:
                    slot[("O", io)] = free.pop(); P["B"]["issue"].append((("O", io), slot[("O", io)])); self.oage[("O", io)] = t2; io += 1; n -= 1
            assert t2 < 100, "plan stuck"
        self.plan = plan
        if a.verbose:
            f = lambda L: " ".join(str(x[0]) + (str(x[1]) if len(x) > 1 else "") for x in L)
            g = lambda L: " ".join(f"{x[0][0]}{x[0][1]}@{x[1]}" for x in L)
            for i, P in enumerate(plan):
                print(f"{i:2d} A[need {P['A']['need']} iss {g(P['A']['issue'])} act {f(P['A']['act'])}]  B[need {P['B']['need']} iss {g(P['B']['issue'])} act {f(P['B']['act'])}]", file=sys.stderr)

    def prologue(self):
        e = self.e; a = self.a
        e("s_cmp_ge_u32 s2, 256"); e("s_cbranch_scc1 L_end1")
        e("s_load_dwordx16 s[40:55], s[0:1], 0")
        e("s_load_dwordx4 s[56:59], s[0:1], 64")
        e("s_load_dwordx2 s[60:61], s[0:1], 96")
        self.stamp(wait=False)
        e("s_and_b32 s3, s2, 7"); e("s_lshr_b32 s39, s2, 3")
        e(f"s_lshr_b32 {s(S_PP)}, s39, 3"); e("s_lshl_b32 s3, s3, 2"); e(f"s_add_u32 s3, s3, {s(S_PP)}")
        e(f"s_lshr_b32 {s(S_BLK)}, s3, 4"); e(f"s_and_b32 {s(S_H)}, s3, 15"); e(f"s_and_b32 {s(S_B)}, s39, 7")
        e(f"v_lshrrev_b32 {v(T0)}, 6, v0")
        e(f"v_readfirstlane_b32 {s(S_W)}, {v(T0)}")
        e("v_and_b32 v0, 255, v0")
        if a.rot:
            e(f"s_lshr_b32 {s(S_RB)}, {s(S_B)}, 2"); e(f"s_and_b32 {s(S_R4)}, {s(S_B)}, 3")
            e(f"s_mul_i32 {s(S_RB)}, {s(S_RB)}, 3")
            e(f"s_lshl_b32 {s(S_R7)}, {s(S_PP)}, 1"); e(f"s_add_u32 {s(S_R7)}, {s(S_R7)}, {s(S_RB)}")
            e(f"s_cmp_ge_u32 {s(S_R7)}, 7"); e(f"s_cselect_b32 {s(S_TMP)}, 7, 0"); e(f"s_sub_u32 {s(S_R7)}, {s(S_R7)}, {s(S_TMP)}")
        else:
            for r in (S_R7, S_R4, S_RB): e(f"s_mov_b32 {s(r)}, 0")
        e(f"s_and_b32 {s(S_U)}, {s(S_W)}, 3"); e(f"s_lshl_b32 {s(S_M0B)}, {s(S_U)}, 10")
        e(f"s_lshl_b32 s34, {s(S_B)}, 4"); e(f"s_add_u32 s34, s34, {s(S_H)}"); e("s_lshl_b32 s35, s34, 18")
        for S in (S_R0, S_R1, S_R2): e(f"s_mov_b32 {s(S+3)}, 0x20000")
        e(f"s_cmp_ge_u32 {s(S_W)}, 4"); e("s_cbranch_scc1 L_roleB")

    def bar(self, P, R):
        e = self.e
        if P["bar"]:
            need = P[R]["need"]
            if need is not None: e.wait_tag(need, lgkm=0)
            else: e.wait(lgkm=0)
            e.barrier()

    def role_A(self):
        e = self.e; a = self.a
        ACC = 16; LINV = 40; XA = 43; QA = 45
        UB = [4, 48, 56]
        VA0, VA1, OA = 3, 12, 13
        FR = lambda qt, kap: 64 + (kap * 3 + qt) * 4
        e("v_lshrrev_b32 v46, 3, v0"); e("v_and_b32 v47, 7, v0")
        e(f"v_bfe_u32 {v(T0)}, v0, 4, 3"); e(f"v_xor_b32 {v(T0)}, {v(T0)}, v47"); e(f"v_lshlrev_b32 {v(T0)}, 4, {v(T0)}")
        e("v_mul_u32_u24 v1, 896, v46"); e(f"v_add_u32 v1, v1, {v(T0)}")
        e(f"v_bfe_u32 {v(T0)}, v0, 4, 1"); e(f"v_bfe_u32 {v(T1)}, v0, 6, 1"); e(f"v_lshl_add_u32 {v(T0)}, {v(T1)}, 1, {v(T0)}")
        e(f"v_lshlrev_b32 {v(T0)}, 1, {v(T0)}"); e(f"v_xor_b32 {v(T0)}, {v(T0)}, v47"); e(f"v_lshlrev_b32 {v(T0)}, 4, {v(T0)}")
        e(f"v_lshl_add_u32 v2, v46, 13, {v(T0)}")
        e(f"s_lshl_b32 {s(S_A0)}, {s(S_R7)}, 7"); e(f"s_lshl_b32 {s(S_A1)}, {s(S_R7)}, 19"); e(f"s_lshl_b32 {s(S_A2)}, {s(S_R4)}, 7"); e(f"s_mov_b32 {s(S_A3)}, {s(S_A2)}")
        e(f"s_mov_b32 {s(S_R0+2)}, 86016"); e(f"s_mov_b32 {s(S_R1+2)}, {447*8192+512}"); e(f"s_mov_b32 {s(S_R2+2)}, 262144")
        e(f"s_mul_i32 s36, {s(S_B)}, 86016"); e(f"s_lshl_b32 s37, {s(S_H)}, 9")
        e(f"s_cmp_eq_u32 {s(S_BLK)}, 0")
        e.wait(lgkm=0)
        e(f"s_cselect_b64 {s(S_R0,2)}, s[40:41], s[50:51]")
        e(f"s_cselect_b64 {s(S_R1,2)}, s[46:47], s[56:57]")
        e(f"s_cselect_b64 {s(S_R2,2)}, s[44:45], s[54:55]")
        for S, o in ((S_R0, 36), (S_R1, 37), (S_R2, 35)):
            e(f"s_add_u32 {s(S)}, {s(S)}, s{o}"); e(f"s_addc_u32 {s(S+1)}, {s(S+1)}, 0")
        pending = []
        for ti, P in enumerate(self.plan):
            self.bar(P, "A")
            iss = list(P["A"]["issue"])
            acts = P["A"]["act"]
            units = []
            for act in acts:
                if act[0] in "WV": units += [(act[0], act[1], act[2], 0), (act[0], act[1], act[2], 1)]
            def uread(u, b):
                ty, i, sl, k2 = u
                second = 512 if ty == "W" else 1024
                if k2 == 0:
                    e(f"v_add_u32 {v(T0)}, {sl*SLOT}, {v(VA0)}"); e(f"v_add_u32 {v(T1)}, {sl*SLOT}, {v(VA1)}")
                for dt in range(2):
                    e(f"ds_read_b64_tr_b16 {v(b+4*dt,2)}, {v(T0+dt)} offset:{4096*k2}")
                    e(f"ds_read_b64_tr_b16 {v(b+4*dt+2,2)}, {v(T0+dt)} offset:{4096*k2+second}")
            def umfma(u, b):
                ty, i, sl, k2 = u
                kap = 2 * (i % (7 if ty == "W" else 8)) + k2
                for dt in range(2):
                    for qt in range(3):
                        acc = ACC + 12 * dt + 4 * qt
                        c = "0" if kap == 0 else v(acc, 4)
                        e(f"v_mfma_f32_16x16x32_bf16 {v(acc,4)}, {v(b+4*dt,4)}, {v(FR(qt,kap),4)}, {c}")
            for act in acts:
                if act[0] == "init":
                    for it in iss: self.issue(*it)
                    iss = []
                    e(f"v_and_b32 {v(T0)}, 15, v0"); e(f"v_bfe_u32 {v(T1)}, v0, 7, 1"); e(f"v_lshl_add_u32 v46, {v(T1)}, 4, {v(T0)}")
                    e(f"v_bfe_u32 {v(T0)}, v0, 1, 3"); e(f"v_bfe_u32 {v(T1)}, v0, 4, 2"); e(f"v_xor_b32 {v(T1)}, {v(T1)}, {v(T0)}"); e(f"v_lshlrev_b32 {v(T1)}, 4, {v(T1)}")
                    e(f"v_lshl_add_u32 {v(XA)}, v46, 7, {v(T1)}"); e(f"v_xor_b32 {v(XA+1)}, 64, {v(XA)}")
                    e(f"v_bfe_u32 {v(T1)}, v0, 5, 1"); e(f"v_bfe_u32 v47, v0, 6, 1"); e(f"v_lshl_add_u32 {v(T1)}, v47, 2, {v(T1)}")
                    e(f"v_xor_b32 {v(T1)}, {v(T1)}, {v(T0)}"); e(f"v_lshlrev_b32 {v(T1)}, 4, {v(T1)}"); e(f"v_lshl_add_u32 {v(QA)}, v46, 7, {v(T1)}")
                    e(f"v_bfe_u32 {v(T1)}, v0, 4, 1"); e(f"v_lshl_add_u32 {v(QA)}, {v(T1)}, 3, {v(QA)}"); e(f"v_xor_b32 v13, 32, {v(QA)}")
                    e(f"v_bfe_u32 {v(T0)}, v0, 2, 2"); e(f"v_bfe_u32 {v(T1)}, v0, 4, 2")
                    e(f"v_lshl_add_u32 {v(VA0)}, {v(T1)}, 3, {v(T0)}"); e(f"v_lshlrev_b32 {v(VA0)}, 7, {v(VA0)}")
                    e(f"v_bfe_u32 {v(T0)}, v0, 3, 2"); e(f"v_lshlrev_b32 {v(T1)}, 1, v47")
                    e(f"v_xor_b32 {v(T0)}, {v(T0)}, {v(T1)}"); e(f"v_lshl_add_u32 {v(VA0)}, {v(T0)}, 5, {v(VA0)}")
                    e(f"v_and_b32 {v(T0)}, 3, v0"); e(f"v_lshl_add_u32 {v(VA0)}, {v(T0)}, 3, {v(VA0)}")
                    e(f"v_xor_b32 {v(VA1)}, 32, {v(VA0)}")
                elif act[0] == "X":
                    n = act[1]
                    for k2 in range(2):
                        for qt in range(3):
                            e(f"ds_read_b128 {v(FR(qt, 2*n+k2),4)}, {v(XA+k2)} offset:{(n%4)*12288 + qt*4096}")
                elif act[0] == "initv":
                    e(f"v_bfe_u32 {v(T0)}, v0, 2, 3"); e(f"v_bfe_u32 {v(T1)}, v0, 5, 1")
                    e(f"v_lshl_add_u32 {v(VA0)}, {v(T1)}, 4, {v(T0)}"); e(f"v_lshlrev_b32 {v(VA0)}, 7, {v(VA0)}")
                    e(f"v_bfe_u32 {v(T0)}, v0, 3, 2"); e(f"v_bfe_u32 {v(T1)}, v0, 6, 1"); e(f"v_lshlrev_b32 {v(T1)}, 1, {v(T1)}")
                    e(f"v_xor_b32 {v(T0)}, {v(T0)}, {v(T1)}"); e(f"v_lshl_add_u32 {v(VA0)}, {v(T0)}, 5, {v(VA0)}")
                    e(f"v_and_b32 {v(T0)}, 3, v0"); e(f"v_lshl_add_u32 {v(VA0)}, {v(T0)}, 3, {v(VA0)}")
                    e(f"v_xor_b32 {v(VA1)}, 32, {v(VA0)}")
                    e(f"v_and_b32 {v(T0)}, 63, v0"); e(f"v_lshlrev_b32 {v(XA)}, 4, {v(T0)}")
                    e(f"v_bfe_u32 {v(T0)}, v0, 7, 1"); e(f"v_lshl_add_u32 {v(XA)}, {v(T0)}, 10, {v(XA)}")
                    e(f"v_bfe_u32 {v(T1)}, v0, 6, 1"); e(f"v_mul_u32_u24 {v(T1)}, 6144, {v(T1)}"); e(f"v_add_u32 {v(OA)}, {v(XA)}, {v(T1)}")
                    e(f"v_and_b32 {v(T1)}, 15, v0"); e(f"v_lshl_add_u32 {v(T0)}, {v(T0)}, 4, {v(T1)}"); e(f"v_lshlrev_b32 {v(T0)}, 5, {v(T0)}")
                    e(f"v_add_u32 {v(XA+1)}, {STAT+4096}, {v(T0)}")
                elif act[0] == "pread":
                    T = act[1]
                    for u in range(4):
                        for qt in range(3):
                            e(f"ds_read_b128 {v(FR(qt, 4*T+u),4)}, {v(XA)} offset:{PBUF[T%2] + u*6144 + qt*2048}")
            def linv(tb):
                for k in range(2): e(f"ds_read_b128 {v(tb+4*k,4)}, {v(XA+1)} offset:{16*k}")
                for qt in range(3):
                    b = tb
                    for k in range(4): e(f"v_add_f32 {v(b+k)}, {v(b+k)}, {v(b+4+k)}")
                    e(f"v_add_f32 {v(b)}, {v(b)}, {v(b+2)}"); e(f"v_add_f32 {v(b+1)}, {v(b+1)}, {v(b+3)}")
                    e(f"v_add_f32 {v(LINV+qt)}, {v(b)}, {v(b+1)}")
                    if qt < 2:
                        for k in range(2): e(f"ds_read_b128 {v(tb+4*k,4)}, {v(XA+1)} offset:{(qt+1)*1024+16*k}")
                    e(f"v_rcp_f32 {v(LINV+qt)}, {v(LINV+qt)}")
            def write_out(ty, c, tb):
                if ty == "W":
                    for qt in range(3):
                        for dt in range(2):
                            acc = ACC + 12 * dt + 4 * qt; tt = tb + 2 * ((2 * qt + dt) % 4)
                            e(f"v_cvt_pk_bf16_f32 {v(tt)}, {v(acc)}, {v(acc+1)}"); e(f"v_cvt_pk_bf16_f32 {v(tt+1)}, {v(acc+2)}, {v(acc+3)}")
                            e(f"ds_write_b64 {v(QA if dt == 0 else 13)}, {v(tt,2)} offset:{QBUF[c%2] + qt*4096}")
                else:
                    if c == 0: linv(tb)
                    for qt in range(3):
                        tt = tb + 4 * (qt % 2)
                        for dt in range(2):
                            acc = ACC + 12 * dt + 4 * qt
                            for k in range(4): e(f"v_mul_f32 {v(acc+k)}, {v(LINV+qt)}, {v(acc+k)}")
                            e(f"v_cvt_pk_bf16_f32 {v(tt+2*dt)}, {v(acc)}, {v(acc+1)}"); e(f"v_cvt_pk_bf16_f32 {v(tt+2*dt+1)}, {v(acc+2)}, {v(acc+3)}")
                        e(f"ds_write_b128 {v(OA)}, {v(tt,4)} offset:{OBUF[c%2] + qt*2048}")
            def pop():
                u, b = pending.pop(0)
                umfma(u, b)
                per = 7 if u[0] == "W" else 8
                if u[1] % per == per - 1 and u[3] == 1:
                    write_out(u[0], u[1] // per, b); return True
                return False
            names = [x[0] for x in acts]
            nis = 0
            wrote = False
            for k, u in enumerate(units):
                while len(pending) >= 3: wrote |= pop()
                b = [x for x in UB if x not in [p[1] for p in pending]][0]
                uread(u, b); pending.append((u, b))
                if len(pending) > a.lag and (a.lag > 0 or k >= min(2, len(units) - 1)) :
                    if nis < a.a_first and iss: self.issue(*iss.pop(0)); nis += 1
                    wrote |= pop()
                if iss and k % 2 == 1: self.issue(*iss.pop(0))
            if "drain" in names or not units or a.lag == 0:
                while pending: wrote |= pop()
            if "flushw" in names:
                while not wrote and pending: wrote |= pop()
            for it in iss: self.issue(*it)
        e("s_endpgm")

    def role_B(self):
        e = self.e; a = self.a
        KA, QA = 4, 8
        KF = 16; QF = 32; M = 56; SUM = 59
        SACC = lambda T, qt: 64 + (T * 3 + qt) * 16
        ACC = lambda cb, q6: 64 + 24 * cb + 4 * q6
        self.ACC = ACC
        OF = lambda k2, q6: 16 + 4 * (6 * k2 + q6)
        WB = [232, 240, 248]
        e(f"v_bfe_u32 {v(T0)}, v0, 3, 3"); e(f"v_lshrrev_b32 {v(T1)}, 6, v0"); e(f"v_lshl_add_u32 {v(T0)}, {v(T1)}, 5, {v(T0)}")
        e("v_and_b32 v12, 7, v0"); e(f"v_bfe_u32 {v(T1)}, v0, 4, 2"); e(f"v_xor_b32 v13, v12, {v(T1)}"); e("v_lshlrev_b32 v13, 4, v13")
        e(f"v_lshl_add_u32 v1, {v(T0)}, 9, v13"); e("v_xor_b32 v2, 64, v1")
        e(f"s_lshl_b32 {s(S_A0)}, {s(S_R4)}, 7"); e(f"s_mul_i32 {s(S_A1)}, {s(S_R4)}, 57344"); e(f"s_lshl_b32 {s(S_A2)}, {s(S_RB)}, 7")
        e(f"s_lshl_b32 {s(S_A3)}, {s(S_U)}, 12"); e(f"s_mul_i32 {s(S_ST)}, {s(S_RB)}, 3072")
        e(f"s_mov_b32 {s(S_R0+2)}, 262144"); e(f"s_mov_b32 {s(S_R1+2)}, 229376"); e(f"s_mov_b32 {s(S_R2+2)}, 86016")
        e(f"s_mul_i32 s36, {s(S_H)}, 229376")
        e(f"s_lshl_b32 s37, {s(S_BLK)}, 7"); e("s_add_u32 s37, s37, s34"); e("s_mul_i32 s37, s37, 86016")
        e(f"s_cmp_eq_u32 {s(S_BLK)}, 0")
        e.wait(lgkm=0)
        e(f"s_cselect_b64 {s(S_R0,2)}, s[42:43], s[52:53]")
        e(f"s_cselect_b64 {s(S_R1,2)}, s[48:49], s[58:59]")
        e(f"s_mov_b64 {s(S_R2,2)}, s[60:61]")
        for S, o in ((S_R0, 35), (S_R1, 36), (S_R2, 37)):
            e(f"s_add_u32 {s(S)}, {s(S)}, s{o}"); e(f"s_addc_u32 {s(S+1)}, {s(S+1)}, 0")
        if a.prio >= 2: e("s_setprio 1")
        kpre = qpre = -1
        def qrd(i, n):
            ks, qt = divmod(n, 3)
            e(f"ds_read_b128 {v(QF+4*(n%6),4)}, {v(QA+ks)} offset:{QBUF[(i//4)%2] + qt*4096}")
        def kread(i, ks):
            e(f"ds_read_b128 {v(KF+4*ks,4)}, {v(KA+ks)} offset:{(self.kslot[i]-self.KBASE)*SLOT}")
        phase1 = True
        opend = []
        for ti, P in enumerate(self.plan):
            if any(x[0] == "maxr" for x in P["B"]["act"]): phase1 = False
            if phase1:
                if P["bar"]: e.barrier()
            else: self.bar(P, "B")
            if ti in a.stamp_ticks: self.stamp()
            iss = list(P["B"]["issue"])
            acts = P["B"]["act"]
            for ai, act in enumerate(acts):
                if act[0] == "init":
                    for it in iss: self.issue(*it)
                    iss = []
                    e(f"s_mov_b32 {s(S_C)}, 0x3db8aa3b")
                    e(f"v_lshlrev_b32 {v(T1)}, 1, {v(T1)}"); e(f"v_xor_b32 {v(T1)}, {v(T1)}, v12"); e(f"v_lshlrev_b32 {v(T1)}, 4, {v(T1)}")
                    e("v_lshrrev_b32 v3, 3, v0"); e("v_mul_u32_u24 v3, 896, v3"); e(f"v_add_u32 v3, v3, {v(T1)}")
                    e(f"v_and_b32 {v(T0)}, 31, v0"); e(f"v_bfe_u32 {v(T1)}, v0, 1, 3"); e("v_bfe_u32 v12, v0, 5, 1"); e(f"v_xor_b32 {v(T1)}, {v(T1)}, v12")
                    e(f"v_lshlrev_b32 {v(T1)}, 4, {v(T1)}"); e(f"v_lshl_add_u32 {v(QA)}, {v(T0)}, 7, {v(T1)}")
                    for ks in range(1, 4): e(f"v_xor_b32 {v(QA+ks)}, {32*ks}, {v(QA)}")
                    e(f"s_add_u32 {s(S_TMP)}, {s(S_A3)}, {self.KBASE*SLOT}")
                    for ks in range(4): e(f"v_add_u32 {v(KA+ks)}, {s(S_TMP)}, {v(QA+ks)}")
                    e(f"v_lshlrev_b32 {v(T0)}, 5, {v(T0)}"); e(f"v_add_u32 v13, {STAT}, {v(T0)}")
                    e(f"v_lshrrev_b32 {v(T1)}, 5, v0"); e(f"v_lshl_add_u32 v12, {v(T1)}, 2, v13")
                elif act[0] == "Kpre":
                    e.wait_tag(("K", 0))
                    for ks in range(4): kread(0, ks)
                    kpre = 0; qpre = -1
                elif act[0] == "S":
                    _, i, sl = act
                    c, T = divmod(i, 4)
                    seq = [(ks, qt) for ks in range(4) for qt in range(3)]
                    dma = []
                    for it in iss: dma += self.issue_parts(*it)
                    iss = []
                    if qpre != i:
                        for n in range(3): qrd(i, n)
                    if kpre != i:
                        while dma: dma.pop(0)()
                        e.wait_tag(("K", i))
                        for ks in range(4): kread(i, ks)
                    if qpre != i:
                        for n in range(3, 6): qrd(i, n)
                    own = []
                    if ai + 1 < len(acts) and acts[ai + 1][0] == "issue": own = self.issue_parts(acts[ai + 1][1], acts[ai + 1][2])
                    mode = None; qok = False
                    if i + 1 < 16 and self.kage[i + 1] < ti:
                        mode = "roll" if ti - self.kage[i + 1] >= a.kpre else "after"
                        qok = (i + 1) // 4 <= self.sinfo[i][1]
                    for n, (ks, qt) in enumerate(seq):
                        cc = "0" if (c == 0 and ks == 0) else v(SACC(T, qt), 16)
                        e(f"v_mfma_f32_32x32x16_bf16 {v(SACC(T,qt),16)}, {v(KF+4*ks,4)}, {v(QF+4*(n%6),4)}, {cc}")
                        if n + 6 < 12: qrd(i, n + 6)
                        elif qok: qrd(i + 1, n - 6)
                        if mode == "roll" and qt == 2:
                            if ks == 0: e.wait_tag(("K", i + 1))
                            kread(i + 1, ks)
                        if n == 0 and own:
                            e.wait_regs(set(range(KF, KF + 16)))
                            dma += own
                        if dma and n % 2 == 0: dma.pop(0)()
                        if c == 3 and T > 0 and n >= 3 and (n - 3) < 9:
                            qq, part = divmod(n - 3, 3)
                            self.maxpart(M + qq, SACC(T - 1, qq), part, first=(T == 1))
                    while dma: dma.pop(0)()
                    if mode == "after":
                        e.wait_tag(("K", i + 1))
                        for ks in range(4): kread(i + 1, ks)
                    kpre = i + 1 if mode else -1
                    qpre = i + 1 if qok else -1
                elif act[0] == "maxw":
                    self.stamp()
                    for qt in range(3):
                        for part in range(3): self.maxpart(M + qt, SACC(3, qt), part, first=False)
                        e(f"ds_write_b32 v12, {v(M+qt)} offset:{qt*1024}")
                elif act[0] == "maxr":
                    if a.prio: e("s_setprio 1")
                    for qt in range(3):
                        for k in range(2): e(f"ds_read_b128 {v(16+8*qt+4*k,4)}, v13 offset:{qt*1024+16*k}")
                    e(f"v_and_b32 {v(T0)}, 15, v0"); e(f"v_lshlrev_b32 v4, 4, {v(T0)}")
                    e(f"v_bfe_u32 {v(T0)}, v0, 4, 1"); e(f"v_lshl_add_u32 v4, {v(T0)}, 10, v4")
                    e(f"v_bfe_u32 {v(T0)}, v0, 5, 1"); e(f"v_lshl_add_u32 v4, {v(T0)}, 8, v4")
                    e(f"s_mul_i32 {s(S_TMP)}, {s(S_U)}, 6144"); e(f"v_add_u32 v4, {s(S_TMP)}, v4")
                    for qt in range(3):
                        b = 16 + 8 * qt
                        e(f"v_max3_f32 {v(M+qt)}, {v(b)}, {v(b+1)}, {v(b+2)}")
                        e(f"v_max3_f32 {v(M+qt)}, {v(M+qt)}, {v(b+3)}, {v(b+4)}"); e(f"v_max3_f32 {v(M+qt)}, {v(M+qt)}, {v(b+5)}, {v(b+6)}")
                        e(f"v_max_f32 {v(M+qt)}, {v(M+qt)}, {v(b+7)}")
                        e(f"v_mul_f32 {v(M+qt)}, {s(S_C)}, {v(M+qt)}")
                elif act[0] == "smx":
                    T = act[1]
                    grp = [(qt, hf) for qt in range(3) for hf in range(2)]
                    def fe(g):
                        r = SACC(T, g[0]) + 8 * g[1]
                        for k in range(8): e(f"v_fma_f32 {v(r+k)}, {v(r+k)}, {s(S_C)}, -{v(M+g[0])}")
                        for k in range(8): e(f"v_exp_f32 {v(r+k)}, {v(r+k)}")
                    fe(grp[0])
                    for n, (qt, hf) in enumerate(grp):
                        if n + 1 < 6: fe(grp[n + 1])
                        r = SACC(T, qt) + 8 * hf
                        tt = 16 + 4 * n
                        for k in range(4): e(f"v_cvt_pk_bf16_f32 {v(tt+k)}, {v(r+2*k)}, {v(r+2*k+1)}")
                        e(f"ds_write_b128 v4, {v(tt,4)} offset:{PBUF[T%2] + qt*2048 + hf*512}")
                    if iss and a.b_smx_issue:
                        pass
                    self.defer_sum = (T,)
                    if T == 3 or not a.defer:
                        self.sums(T, SACC, SUM)
                        if T == 3:
                            for qt in range(3): e(f"ds_write_b32 v12, {v(SUM+qt)} offset:{4096+qt*1024}")
                elif act[0] == "inito":
                    self.stamp()
                    if a.prio == 1: e("s_setprio 0")
                    e(f"v_bfe_u32 {v(T0)}, v0, 2, 4"); e(f"v_lshlrev_b32 v5, 7, {v(T0)}")
                    e(f"v_bfe_u32 {v(T0)}, v0, 3, 2"); e(f"v_bfe_u32 {v(T1)}, v0, 6, 2"); e(f"v_xor_b32 {v(T0)}, {v(T0)}, {v(T1)}")
                    e(f"v_lshl_add_u32 v5, {v(T0)}, 5, v5")
                    e(f"v_and_b32 {v(T0)}, 3, v0"); e(f"v_lshl_add_u32 v5, {v(T0)}, 3, v5")
                    e(f"v_and_b32 {v(T0)}, 63, v0"); e(f"v_lshlrev_b32 v6, 4, {v(T0)}")
                    e(f"v_mul_u32_u24 {v(T1)}, 21504, {v(T1)}"); e(f"v_add_u32 v7, v6, {v(T1)}")
            ws = [x for x in acts if x[0] == "O"]
            dma = []
            for it in iss: dma += self.issue_parts(*it)
            def wread(x, b):
                _, i, sl = x
                tt = T0 + (i % 2)
                e(f"v_add_u32 {v(tt)}, {sl*SLOT}, v5")
                for k2 in range(2):
                    e(f"ds_read_b64_tr_b16 {v(b+4*k2,2)}, {v(tt)} offset:{4096*k2}")
                    e(f"ds_read_b64_tr_b16 {v(b+4*k2+2,2)}, {v(tt)} offset:{4096*k2+2048}")
            def ord_(c, k2, q6):
                e(f"ds_read_b128 {v(OF(k2,q6),4)}, v6 offset:{OBUF[c%2] + k2*6144 + q6*1024}")
            def opop(roll=None):
                x, b = opend.pop(0)
                c, cb = divmod(x[1], 7)
                st = self.store_parts(cb - 1) if (c == 3 and cb > 0) else []
                for k2 in range(2):
                    for q6 in range(6):
                        acc = ACC(cb, q6)
                        cc = "0" if (c == 0 and k2 == 0) else v(acc, 4)
                        e(f"v_mfma_f32_16x16x32_bf16 {v(acc,4)}, {v(b+4*k2,4)}, {v(OF(k2,q6),4)}, {cc}")
                        if roll is not None: ord_(roll, k2, q6)
                        if dma and q6 % 3 == 2: dma.pop(0)()
                        if st and (k2 or q6 >= 2):
                            st.pop(0)()
                            if st: st.pop(0)()
                while st: st.pop(0)()
                if c == 3 and cb == 6:
                    for f in self.store_parts(6): f()
            ord_c = [x[1] for x in acts if x[0] == "oread"]
            if ord_c:
                c = ord_c[0]
                if c == 3: self.stamp()
                if ws and len(opend) < 3:
                    b = [x for x in WB if x not in [p[1] for p in opend]][0]
                    first = (ws.pop(0), b); wread(*first)
                else: first = None
                while len(opend) > 1: opop()
                if opend: opop(roll=c)
                else:
                    for k2 in range(2):
                        for q6 in range(6): ord_(c, k2, q6)
                if first: opend.append(first)
            lastt = ti == len(self.plan) - 1
            nows = not ws and not ord_c
            for x in ws:
                while len(opend) >= 3: opop()
                b = [y for y in WB if y not in [p[1] for p in opend]][0]
                wread(x, b); opend.append((x, b))
                if len(opend) > (2 if lastt else max(a.blag, 1)): opop()
            while len(opend) > (0 if (lastt or nows) else a.blag): opop()
            while dma: dma.pop(0)()
        self.stamp()
        if a.stamps:
            e.force_wait("vmcnt(0)")
            self.stamp()
            e(f"s_cmp_lg_u32 {s(S_W)}, 4"); e("s_cbranch_scc1 L_end1")
            e(f"s_add_u32 s60, s60, {STAMP_OFF}"); e("s_addc_u32 s61, s61, 0"); e("s_lshl_b32 s33, s2, 7"); e("s_add_u32 s60, s60, s33"); e("s_addc_u32 s61, s61, 0")
            e("v_mov_b32 v10, 0")
            for i in range(self.nst):
                e(f"v_mov_b32 v8, s{64+2*i}"); e(f"v_mov_b32 v9, s{65+2*i}")
                e(f"global_store_dwordx2 v10, v[8:9], s[60:61] offset:{8*i}"); e.nop(2)

    def maxpart(self, m, b, part, first):
        e = self.e
        if part == 0:
            if first:
                e(f"v_max3_f32 {v(m)}, {v(b)}, {v(b+1)}, {v(b+1)}")
            else:
                e(f"v_max3_f32 {v(m)}, {v(m)}, {v(b)}, {v(b+1)}")
            e(f"v_max3_f32 {v(m)}, {v(m)}, {v(b+2)}, {v(b+3)}"); e(f"v_max3_f32 {v(m)}, {v(m)}, {v(b+4)}, {v(b+5)}")
        elif part == 1:
            for k in (6, 8, 10): e(f"v_max3_f32 {v(m)}, {v(m)}, {v(b+k)}, {v(b+k+1)}")
        else:
            for k in (12, 14): e(f"v_max3_f32 {v(m)}, {v(m)}, {v(b+k)}, {v(b+k+1)}")

    def sums(self, T, SACC, SUM):
        e = self.e
        for qt in range(3):
            r = SACC(T, qt)
            for k in range(0, 8, 2): e(f"v_pk_add_f32 {v(r+k,2)}, {v(r+k,2)}, {v(r+8+k,2)}")
            for k in range(0, 4, 2): e(f"v_pk_add_f32 {v(r+k,2)}, {v(r+k,2)}, {v(r+4+k,2)}")
            e(f"v_pk_add_f32 {v(r,2)}, {v(r,2)}, {v(r+2,2)}")
            if T == 0: e(f"v_add_f32 {v(SUM+qt)}, {v(r)}, {v(r+1)}")
            else:
                e(f"v_add_f32 {v(r)}, {v(r)}, {v(r+1)}"); e(f"v_add_f32 {v(SUM+qt)}, {v(SUM+qt)}, {v(r)}")

    def store_cb(self, cb):
        e = self.e
        wp = self.pol(self.a.wpol)
        for qt in range(3):
            a0, a1 = self.ACC(cb, 2 * qt), self.ACC(cb, 2 * qt + 1)
            tt = a0
            e(f"v_cvt_pk_bf16_f32 {v(tt)}, {v(a0)}, {v(a0+1)}"); e(f"v_cvt_pk_bf16_f32 {v(tt+1)}, {v(a0+2)}, {v(a0+3)}")
            e(f"v_cvt_pk_bf16_f32 {v(tt+2)}, {v(a1)}, {v(a1+1)}"); e(f"v_cvt_pk_bf16_f32 {v(tt+3)}, {v(a1+2)}, {v(a1+3)}")
            e(f"buffer_store_dwordx4 {v(tt,4)}, v7, {s(S_R2,4)}, {s(S_ST)} offen offset:{qt*1024}{wp}")
        e(f"s_add_u32 {s(S_ST)}, {s(S_ST)}, 3072"); e(f"s_cmp_eq_u32 {s(S_ST)}, 21504"); e(f"s_cselect_b32 {s(S_ST)}, 0, {s(S_ST)}")

    def kernel1(self):
        e = self.e
        self.oage = {}; self.sinfo = {}
        self.build_plan()
        e.label(NAME + "_kernel")
        self.prologue()
        snap = e.snapshot(); nst = self.nst
        self.role_A()
        e.restore(snap); self.nst = nst
        e.label("L_roleB")
        self.role_B()
        e.label("L_end1"); e("s_endpgm")

from gen1 import reducer, desc
ilist = lambda x: [int(t) for t in x.split(",") if t]

def main(argv=None):
    ap = argparse.ArgumentParser()
    ap.add_argument("-o", default="k3.s")
    ap.add_argument("--stamps", type=int, default=0)
    ap.add_argument("--stamp_ticks", type=ilist, default=[])
    ap.add_argument("--clk", type=int, default=0)
    ap.add_argument("--rot", type=int, default=1)
    ap.add_argument("--nkd", type=int, default=4)
    ap.add_argument("--la", type=float, default=6)
    ap.add_argument("--k0", type=int, default=1)
    ap.add_argument("--kticks", type=ilist, default=[2, 4, 6])
    ap.add_argument("--wrate", type=float, default=2.34)
    ap.add_argument("--alt1", type=int, default=0)
    ap.add_argument("--alt2", type=int, default=0)
    ap.add_argument("--lag", type=int, default=2)
    ap.add_argument("--qdrain", type=ilist, default=[0, 3])
    ap.add_argument("--odrain", type=ilist, default=[0])
    ap.add_argument("--kpre", type=int, default=2)
    ap.add_argument("--blag", type=int, default=1)
    ap.add_argument("--kmax", type=int, default=2)
    ap.add_argument("--kmax_from", type=int, default=99)
    ap.add_argument("--klag", type=int, default=2)
    ap.add_argument("--kburn", type=int, default=1)
    ap.add_argument("--kkeep", type=int, default=1)
    ap.add_argument("--vtr0", type=int, default=2)
    ap.add_argument("--vtr1", type=int, default=3)
    ap.add_argument("--lv0", type=int, default=10)
    ap.add_argument("--vmax0", type=int, default=3)
    ap.add_argument("--prio", type=int, default=0)
    ap.add_argument("--vend", type=int, default=2)
    ap.add_argument("--lv", type=int, default=6)
    ap.add_argument("--vmax", type=int, default=2)
    ap.add_argument("--lo", type=int, default=9)
    ap.add_argument("--omax", type=int, default=3)
    ap.add_argument("--ostart", type=int, default=4)
    ap.add_argument("--olag", type=int, default=2)
    ap.add_argument("--opn", type=int, default=2)
    ap.add_argument("--vres", type=int, default=0)
    ap.add_argument("--a_first", type=int, default=1)
    ap.add_argument("--b_first", type=int, default=1)
    ap.add_argument("--b_smx_issue", type=int, default=0)
    ap.add_argument("--defer", type=int, default=0)
    ap.add_argument("--kvpol", default="nt")
    ap.add_argument("--spol", default="")
    ap.add_argument("--wpol", default="nt")
    ap.add_argument("--rpol", default="nt")
    ap.add_argument("--skip", default="")
    ap.add_argument("--verbose", action="store_true")
    a = ap.parse_args(argv)
    g = Gen(a); g.kernel1()
    r = reducer(a)
    out = HEADER
    out += f"; @launch kernel={NAME}_kernel grid=(256,1,1) block=(512,1,1) lds=163840\n"
    out += "; @launch kernel=reduce_kernel grid=(336,1,1) block=(256,1,1) lds=0\n"
    out += '.amdgcn_target "amdgcn-amd-amdhsa--gfx950"\n.text\n'
    out += f".globl {NAME}_kernel\n.p2align 8\n.type {NAME}_kernel,@function\n" + g.e.text()
    out += ".globl reduce_kernel\n.p2align 8\n.type reduce_kernel,@function\n" + r.text()
    out += '.section .rodata,"a"\n.p2align 6\n' + desc(NAME + "_kernel", 256) + ".p2align 6\n" + desc("reduce_kernel", 80, 32)
    open(a.o, "w").write(out)
    print(f"{a.o}: k1 insts {g.e.ninst} (nops {g.e.nops}), ticks {len(g.plan)}, stamps {g.nst}", file=sys.stderr)

if __name__ == "__main__":
    main()
```

```python
import sys, argparse
from emit import Emitter

NAME = "concat_heads__mha_block_cached__mha_block_cached__near_ridge"
STAMP_OFF = 200 << 20
SLOT = 8192
STAT = 19 * SLOT
HEADER = open("cdna_kernels/" + NAME + ".s.ref").read().split("; Override launch")[0]

def v(a, n=1): return f"v{a}" if n == 1 else f"v[{a}:{a+n-1}]"
def s(a, n=1): return f"s{a}" if n == 1 else f"s[{a}:{a+n-1}]"

T0, T1 = 14, 15
S_R0, S_R1, S_R2 = 4, 8, 12
S_W, S_M0B, S_SO, S_TMP, S_C = 16, 17, 18, 19, 20
S_BLK, S_H, S_B, S_PP, S_U = 21, 22, 23, 24, 25
S_R7, S_R4, S_RB = 26, 27, 28
S_A0, S_A1, S_A2, S_A3, S_ST = 29, 30, 31, 32, 33
QBUF = [0, 12288]
PBUF = [0, 24576]
OBUF = [0, 0]

class Gen:
    def __init__(self, a):
        self.a = a
        self.e = Emitter()
        D = dict(mfma=("v_mfma",), ds=("ds_",), valu=("v_exp", "v_fma_f32", "v_max", "v_cvt_pk", "v_pk_", "v_mul_f32", "v_add_f32", "v_rcp"), store=("buffer_store",), dma=("buffer_load",))
        self.e.drop = tuple(x for k in a.skip.split(",") if k for x in D[k])
        self.nst = 0

    def stamp(self, wait=True):
        if self.a.stamps:
            i = self.nst; self.nst += 1
            assert i < 16
            self.e(f"{'s_memtime' if self.a.clk else 's_memrealtime'} {s(64+2*i,2)}")
            if wait: self.e.force_wait("lgkmcnt(0)")

    def pol(self, p): return (" " + p) if p else ""

    def issue(self, item, slot):
        e = self.e; a = self.a
        ty = item[0]
        sh, kv = self.pol(a.spol), self.pol(a.kvpol)
        if ty == "X":
            n = item[1]
            for j in range(3):
                e(f"s_add_u32 m0, {s(S_M0B)}, {(n%4)*12288 + j*4096}")
                e(f"s_add_u32 {s(S_SO)}, {s(S_A0)}, {j*32*896}")
                e(f"buffer_load_dwordx4 v1, {s(S_R0,4)}, {s(S_SO)} offen{sh} lds", tag=item)
            e(f"s_add_u32 {s(S_A0)}, {s(S_A0)}, 128"); e(f"s_cmp_eq_u32 {s(S_A0)}, 896"); e(f"s_cselect_b32 {s(S_A0)}, 0, {s(S_A0)}")
        elif ty == "W":
            c, n = divmod(item[1], 7)
            e(f"s_add_u32 m0, {s(S_M0B)}, {slot*SLOT}")
            e(f"s_add_u32 {s(S_SO)}, {s(S_A1)}, {s(S_A2)}")
            e(f"buffer_load_dwordx4 v2, {s(S_R1,4)}, {s(S_SO)} offen{sh} lds", tag=item)
            e(f"s_add_u32 m0, {s(S_M0B)}, {slot*SLOT+4096}")
            e(f"s_add_u32 {s(S_SO)}, {s(S_SO)}, {32*8192}")
            e(f"buffer_load_dwordx4 v2, {s(S_R1,4)}, {s(S_SO)} offen{sh} lds", tag=item)
            e(f"s_add_u32 {s(S_A1)}, {s(S_A1)}, {64*8192}"); e(f"s_cmp_eq_u32 {s(S_A1)}, {7*64*8192}"); e(f"s_cselect_b32 {s(S_A1)}, 0, {s(S_A1)}")
            if n == 6:
                e(f"s_add_u32 {s(S_A2)}, {s(S_A2)}, 128"); e(f"s_and_b32 {s(S_A2)}, {s(S_A2)}, 511")
        elif ty == "V":
            c, i = divmod(item[1], 8)
            if item[1] == 0: self.setup_dv()
            for j in range(2):
                e(f"s_add_u32 m0, {s(S_M0B)}, {slot*SLOT + j*4096}")
                e(f"s_add_u32 {s(S_SO)}, {s(S_A3)}, {(i*64+j*32)*512}")
                e(f"buffer_load_dwordx4 v1, {s(S_R2,4)}, {s(S_SO)} offen{kv} lds", tag=item)
            if i == 7:
                e(f"s_add_u32 {s(S_A3)}, {s(S_A3)}, 128"); e(f"s_and_b32 {s(S_A3)}, {s(S_A3)}, 511")
        elif ty == "K":
            c, T = divmod(item[1], 4)
            for p in range(4):
                e(f"s_add_u32 m0, {s(S_A3)}, {slot*SLOT + p*1024}")
                e(f"s_add_u32 {s(S_SO)}, {s(S_A0)}, {(128*T+8*p)*512}")
                e(f"buffer_load_dwordx4 v{1+(p&1)}, {s(S_R0,4)}, {s(S_SO)} offen{kv} lds", tag=item)
            if T == 3:
                e(f"s_add_u32 {s(S_A0)}, {s(S_A0)}, 128"); e(f"s_and_b32 {s(S_A0)}, {s(S_A0)}, 511")
        elif ty == "O":
            c, n = divmod(item[1], 7)
            e(f"s_add_u32 m0, {s(S_M0B)}, {slot*SLOT}")
            e(f"s_add_u32 {s(S_SO)}, {s(S_A1)}, {s(S_A2)}")
            e(f"buffer_load_dwordx4 v3, {s(S_R1,4)}, {s(S_SO)} offen{sh} lds", tag=item)
            e(f"s_add_u32 m0, {s(S_M0B)}, {slot*SLOT+4096}")
            e(f"s_add_u32 {s(S_SO)}, {s(S_SO)}, {32*896}")
            e(f"buffer_load_dwordx4 v3, {s(S_R1,4)}, {s(S_SO)} offen{sh} lds", tag=item)
            e(f"s_add_u32 {s(S_A2)}, {s(S_A2)}, 128"); e(f"s_cmp_eq_u32 {s(S_A2)}, 896"); e(f"s_cselect_b32 {s(S_A2)}, 0, {s(S_A2)}")
            if n == 6:
                e(f"s_add_u32 {s(S_A1)}, {s(S_A1)}, 57344"); e(f"s_cmp_eq_u32 {s(S_A1)}, {4*57344}"); e(f"s_cselect_b32 {s(S_A1)}, 0, {s(S_A1)}")

    def issue_parts(self, item, slot):
        class Rec:
            def __init__(s2): s2.l = []
            def __call__(s2, t, tag=None): s2.l.append((t, tag))
        real = self.e; rec = Rec(); self.e = rec
        self.issue(item, slot)
        self.e = real
        parts = []; cur = []
        for t, tag in rec.l:
            cur.append((t, tag))
            if t.startswith("buffer_load"): parts.append(cur); cur = []
        parts[-1] += cur
        return [(lambda p=p: [real(t, tag=tag) for t, tag in p]) for p in parts]

    def store_parts(self, cb):
        class Rec:
            def __init__(s2): s2.l = []
            def __call__(s2, t, tag=None): s2.l.append((t, tag))
        real = self.e; rec = Rec(); self.e = rec
        self.store_cb(cb)
        self.e = real
        L = rec.l
        parts = [[x] for x in L[:-3]]
        parts[-1] += L[-3:]
        return [(lambda p=p: [real(t, tag=tag) for t, tag in p]) for p in parts]

    def setup_dv(self):
        e = self.e
        e(f"v_bfe_u32 v46, v0, 4, 2"); e("v_lshlrev_b32 v46, 1, v46"); e("v_and_b32 v47, 7, v0"); e("v_xor_b32 v46, v46, v47"); e("v_lshlrev_b32 v46, 4, v46")
        e("v_lshrrev_b32 v1, 3, v0"); e("v_lshl_add_u32 v1, v1, 9, v46")

    def build_plan(self):
        a = self.a
        nkd = a.nkd
        kslots = [19 - 2 * (i + 1) for i in range(nkd)]
        self.KBASE = min(kslots)
        free = list(range(6, self.KBASE)) + [19]
        WONLY = {3, 4, 5, 19}
        kfree = sorted(kslots)
        plan = []
        slot = {}
        def newtick(bar=True):
            P = dict(bar=bar, A=dict(need=None, issue=[], act=[]), B=dict(need=None, issue=[], act=[])); plan.append(P); return P
        pend = []
        astr = []
        for n in range(7): astr += [("X", n), ("W", n)]
        astr += [("W", i) for i in range(7, 28)]
        ia = 0; ca = 0; xdone = 0
        ik = 0; ck = 0
        def cost(it): return 1.5 if it[0] == "X" else 1.0
        def issueA(P, la):
            nonlocal ia
            while ia < len(astr) and sum(cost(x) for x in astr[ca:ia + 1]) <= la:
                it = astr[ia]
                if it[0] == "X":
                    if it[1] - 4 >= xdone: break
                    P["A"]["issue"].append((it, None))
                else:
                    if not free: break
                    slot[it] = free.pop(0); P["A"]["issue"].append((it, slot[it]))
                ia += 1
        def issueK(P, n):
            nonlocal ik
            while n > 0 and ik < 16 and kfree:
                slot[("K", ik)] = kfree.pop(0); P["B"]["issue"].append((("K", ik), slot[("K", ik)])); ik += 1; n -= 1
        P = newtick(False); issueA(P, a.la); issueK(P, a.k0)
        P["A"]["act"].append(("init",)); P["B"]["act"].append(("init",))
        qwritten = -1; qready = -1; xread = 0
        tick = 0
        wacc = 0.0
        kage = {i: 0 for i in range(ik)}
        iv = 0
        def issueV(P, n):
            nonlocal iv
            while n > 0 and iv < 32 and [x for x in free if x not in WONLY]:
                slot[("V", iv)] = [x for x in free if x not in WONLY][0]; free.remove(slot[("V", iv)]); P["A"]["issue"].append((("V", iv), slot[("V", iv)])); iv += 1; n -= 1
        ckprev = 0; vinit = False; qdefer = None
        while ck < 16:
            tick += 1
            P = newtick()
            free += pend; pend = []; free.sort(); xdone = xread; qready = qwritten; ckprev = ck
            if qdefer is not None:
                qwritten = qdefer; qdefer = None; P["A"]["act"].append(("flushw",))
            if ca < 14: n = 2
            else:
                wacc += a.wrate; n = int(wacc + 1e-9); wacc -= n
            took = []
            while n > 0 and ca < min(ia, len(astr)):
                it = astr[ca]
                if it[0] == "W" and it[1] % 7 == 6 and it[1] // 7 >= 2 and ckprev < 4 * (it[1] // 7 - 1):
                    break
                took.append(it); ca += 1; n -= 1
                if it[0] == "X":
                    P["A"]["act"].append(("X", it[1])); xread = it[1] + 1
                    if it[1] == 6: pend += [3, 4, 5]
                else:
                    P["A"]["act"].append(("W", it[1], slot[it])); pend.append(slot[it])
                    if it[1] % 7 == 6:
                        cq = it[1] // 7
                        if a.lag == 0 or cq in a.qdrain:
                            P["A"]["act"].append(("drain",)); qwritten = cq; break
                        else: qdefer = cq
            if qdefer is not None and took[-1] != ("W", 7 * qdefer + 6):
                qwritten = qdefer; qdefer = None; P["A"]["act"].append(("flushw",))
            if took: P["A"]["need"] = took[-1]
            if not a.alt1 or tick < 8 or tick % 2 == 1: issueA(P, a.la)
            if qready == 3 and not vinit:
                P["A"]["act"].append(("initv",)); vinit = True
            if qwritten == 0 and qready < 0: P["B"]["act"].append(("Kpre", 0))
            issued = False
            n = a.kmax if (ca == len(astr) and not took) or tick >= a.kmax_from else 1
            last = ik == 16 and qready == 3 and 16 - ck <= a.kburn
            while ck < ik and ck // 4 <= qready and (last or (n > 0 and tick - kage[ck] >= a.klag)):
                sl = slot[("K", ck)]
                P["B"]["act"].append(("S", ck, sl)); self.sinfo[ck] = (tick, qready); ck += 1; n -= 1
                if a.alt1 and ia < len(astr):
                    if tick % 2 == 0 and ik < 16 and (kfree or tick == 8):
                        if kfree:
                            k2_ = kfree.pop(0); slot[("K", ik)] = k2_; P["B"]["issue"].append((("K", ik), k2_)); kage[ik] = tick; ik += 1
                        if ik < 16:
                            slot[("K", ik)] = sl; P["B"]["act"].append(("issue", ("K", ik), sl)); kage[ik] = tick; ik += 1
                        else: kfree.append(sl)
                    else: kfree.append(sl)
                    issued = True
                elif ik < 16 and not issued and not kfree:
                    slot[("K", ik)] = sl; P["B"]["act"].append(("issue", ("K", ik), sl)); kage[ik] = tick; ik += 1; issued = True
                else:
                    kfree.append(sl)
            if not issued and ik < 16 and (tick in a.kticks or tick >= 8):
                cand = [x for x in kfree if not any(ac[0] == "S" and ac[2] == x for ac in P["B"]["act"])]
                if cand:
                    kfree.remove(cand[0]); slot[("K", ik)] = cand[0]; P["B"]["issue"].append((("K", ik), cand[0])); kage[ik] = tick; ik += 1
            while tick >= 8 and len(kfree) > min(16 - ik, a.kkeep):
                k = kfree.pop(0); pend += [k, k + 1]
            if ik == 16 and kage[15] < tick and ia == len(astr):
                issueV(P, a.vtr0 if last else 2)
            assert tick < 100
        assert vinit
        self.kage = kage; self.kslot = {i: slot[("K", i)] for i in range(16)}
        P["B"]["act"].append(("maxw",))
        P = newtick()
        free += pend; pend = []; free.sort()
        assert not kfree and all(x in free for x in WONLY)
        for x in sorted(WONLY): free.remove(x)
        WONLY.clear()
        P["B"]["act"] += [("maxr",), ("smx", 0)]
        issueV(P, a.vtr1)
        ostr = [("O", i) for i in range(28)]
        io = 0; co = 0; cv = 0
        pw = 0
        oready = oloaded = owritten = -1
        odefer = None
        t2 = 0
        while cv < 32 or co < 28 or oloaded < 3:
            t2 += 1
            P = newtick()
            free += pend; pend = []; free.sort(); oready = owritten
            if odefer is not None:
                owritten = odefer; odefer = None; P["A"]["act"].append(("flushw",))
            if t2 <= 4:
                P["A"]["act"].append(("pread", t2 - 1))
                if t2 <= 3: P["B"]["act"].append(("smx", t2))
                if t2 == 4: P["B"]["act"].append(("inito",)); pend += [2, 3, 4, 5]
            if t2 == 5: pend += [19]
            if cv < 32:
                nvt = 1 if cv >= 32 - a.vend else 2
                nvt = min(nvt, 8 - cv % 8, iv - cv)
                if (cv + nvt) % 8 == 0 and oloaded < (cv + nvt) // 8 - 2: nvt -= 1
                for k in range(nvt):
                    P["A"]["act"].append(("V", cv, slot[("V", cv)])); pend.append(slot[("V", cv)]); P["A"]["need"] = ("V", cv); cv += 1
                if nvt and cv % 8 == 0:
                    if a.lag == 0 or cv == 32 or (cv // 8 - 1) in a.odrain:
                        P["A"]["act"].append(("drain",)); owritten = cv // 8 - 1
                    else: odefer = cv // 8 - 1
                elif cv >= 32 - a.vend: P["A"]["act"].append(("drain",))
            if oloaded < oready and co == 7 * (oloaded + 1):
                oloaded += 1; P["B"]["act"].append(("oread", oloaded))
            nop = 7 if oloaded == 3 else a.opn
            while nop > 0 and co < 7 * (oloaded + 1) and co < io and (("O", co) in self.oage and t2 - self.oage[("O", co)] >= a.olag or cv >= 32):
                P["B"]["act"].append(("O", co, slot[("O", co)])); pend.append(slot[("O", co)]); P["B"]["need"] = ("O", co); co += 1; nop -= 1
            lv = a.lv0 if t2 <= 4 else a.lv
            if t2 <= 4 or not a.alt2 or t2 % 2 == 0 or io == 28:
                issueV(P, max(0, min(a.vmax0 if t2 <= 4 else a.vmax, cv + lv - iv)))
            if t2 >= a.ostart and (not a.alt2 or t2 % 2 == 1 or iv == 32):
                n = a.omax
                while n > 0 and io < 28 and free and io < co + a.lo and len(free) > (1 if iv < 32 else 0) * a.vres:
                    slot[("O", io)] = free.pop(); P["B"]["issue"].append((("O", io), slot[("O", io)])); self.oage[("O", io)] = t2; io += 1; n -= 1
            assert t2 < 100, "plan stuck"
        self.plan = plan
        if a.verbose:
            f = lambda L: " ".join(str(x[0]) + (str(x[1]) if len(x) > 1 else "") for x in L)
            g = lambda L: " ".join(f"{x[0][0]}{x[0][1]}@{x[1]}" for x in L)
            for i, P in enumerate(plan):
                print(f"{i:2d} A[need {P['A']['need']} iss {g(P['A']['issue'])} act {f(P['A']['act'])}]  B[need {P['B']['need']} iss {g(P['B']['issue'])} act {f(P['B']['act'])}]", file=sys.stderr)

    def prologue(self):
        e = self.e; a = self.a
        e("s_cmp_ge_u32 s2, 256"); e("s_cbranch_scc1 L_end1")
        e("s_load_dwordx16 s[40:55], s[0:1], 0")
        e("s_load_dwordx4 s[56:59], s[0:1], 64")
        e("s_load_dwordx2 s[60:61], s[0:1], 96")
        self.stamp(wait=False)
        if a.padto: e("s_memrealtime s[96:97]")
        e("s_and_b32 s3, s2, 7"); e("s_lshr_b32 s39, s2, 3")
        e(f"s_lshr_b32 {s(S_PP)}, s39, 3"); e("s_lshl_b32 s3, s3, 2"); e(f"s_add_u32 s3, s3, {s(S_PP)}")
        e(f"s_lshr_b32 {s(S_BLK)}, s3, 4"); e(f"s_and_b32 {s(S_H)}, s3, 15"); e(f"s_and_b32 {s(S_B)}, s39, 7")
        e(f"v_lshrrev_b32 {v(T0)}, 6, v0")
        e(f"v_readfirstlane_b32 {s(S_W)}, {v(T0)}")
        e("v_and_b32 v0, 255, v0")
        if a.rot:
            e(f"s_lshr_b32 {s(S_RB)}, {s(S_B)}, 2"); e(f"s_and_b32 {s(S_R4)}, {s(S_B)}, 3")
            e(f"s_mul_i32 {s(S_RB)}, {s(S_RB)}, 3")
            e(f"s_lshl_b32 {s(S_R7)}, {s(S_PP)}, 1"); e(f"s_add_u32 {s(S_R7)}, {s(S_R7)}, {s(S_RB)}")
            e(f"s_cmp_ge_u32 {s(S_R7)}, 7"); e(f"s_cselect_b32 {s(S_TMP)}, 7, 0"); e(f"s_sub_u32 {s(S_R7)}, {s(S_R7)}, {s(S_TMP)}")
        else:
            for r in (S_R7, S_R4, S_RB): e(f"s_mov_b32 {s(r)}, 0")
        e(f"s_and_b32 {s(S_U)}, {s(S_W)}, 3"); e(f"s_lshl_b32 {s(S_M0B)}, {s(S_U)}, 10")
        e(f"s_lshl_b32 s34, {s(S_B)}, 4"); e(f"s_add_u32 s34, s34, {s(S_H)}"); e("s_lshl_b32 s35, s34, 18")
        for S in (S_R0, S_R1, S_R2): e(f"s_mov_b32 {s(S+3)}, 0x20000")
        e(f"s_cmp_ge_u32 {s(S_W)}, 4"); e("s_cbranch_scc1 L_roleB")

    def bar(self, P, R):
        e = self.e
        if P["bar"]:
            need = P[R]["need"]
            if need is not None: e.wait_tag(need, lgkm=0)
            else: e.wait(lgkm=0)
            e.barrier()

    def role_A(self):
        e = self.e; a = self.a
        ACC = 16; LINV = 40; XA = 43; QA = 45
        UB = [4, 48, 56]
        VA0, VA1, OA = 3, 12, 13
        FR = lambda qt, kap: 64 + (kap * 3 + qt) * 4
        e("v_lshrrev_b32 v46, 3, v0"); e("v_and_b32 v47, 7, v0")
        e(f"v_bfe_u32 {v(T0)}, v0, 4, 3"); e(f"v_xor_b32 {v(T0)}, {v(T0)}, v47"); e(f"v_lshlrev_b32 {v(T0)}, 4, {v(T0)}")
        e("v_mul_u32_u24 v1, 896, v46"); e(f"v_add_u32 v1, v1, {v(T0)}")
        e(f"v_bfe_u32 {v(T0)}, v0, 4, 1"); e(f"v_bfe_u32 {v(T1)}, v0, 6, 1"); e(f"v_lshl_add_u32 {v(T0)}, {v(T1)}, 1, {v(T0)}")
        e(f"v_lshlrev_b32 {v(T0)}, 1, {v(T0)}"); e(f"v_xor_b32 {v(T0)}, {v(T0)}, v47"); e(f"v_lshlrev_b32 {v(T0)}, 4, {v(T0)}")
        e(f"v_lshl_add_u32 v2, v46, 13, {v(T0)}")
        e(f"s_lshl_b32 {s(S_A0)}, {s(S_R7)}, 7"); e(f"s_lshl_b32 {s(S_A1)}, {s(S_R7)}, 19"); e(f"s_lshl_b32 {s(S_A2)}, {s(S_R4)}, 7"); e(f"s_mov_b32 {s(S_A3)}, {s(S_A2)}")
        e(f"s_mov_b32 {s(S_R0+2)}, 86016"); e(f"s_mov_b32 {s(S_R1+2)}, {447*8192+512}"); e(f"s_mov_b32 {s(S_R2+2)}, 262144")
        e(f"s_mul_i32 s36, {s(S_B)}, 86016"); e(f"s_lshl_b32 s37, {s(S_H)}, 9")
        e(f"s_cmp_eq_u32 {s(S_BLK)}, 0")
        e.wait(lgkm=0)
        e(f"s_cselect_b64 {s(S_R0,2)}, s[40:41], s[50:51]")
        e(f"s_cselect_b64 {s(S_R1,2)}, s[46:47], s[56:57]")
        e(f"s_cselect_b64 {s(S_R2,2)}, s[44:45], s[54:55]")
        for S, o in ((S_R0, 36), (S_R1, 37), (S_R2, 35)):
            e(f"s_add_u32 {s(S)}, {s(S)}, s{o}"); e(f"s_addc_u32 {s(S+1)}, {s(S+1)}, 0")
        pending = []
        for ti, P in enumerate(self.plan):
            self.bar(P, "A")
            iss = list(P["A"]["issue"])
            acts = P["A"]["act"]
            units = []
            for act in acts:
                if act[0] in "WV": units += [(act[0], act[1], act[2], 0), (act[0], act[1], act[2], 1)]
            def uread(u, b):
                ty, i, sl, k2 = u
                second = 512 if ty == "W" else 1024
                if k2 == 0:
                    e(f"v_add_u32 {v(T0)}, {sl*SLOT}, {v(VA0)}"); e(f"v_add_u32 {v(T1)}, {sl*SLOT}, {v(VA1)}")
                for dt in range(2):
                    e(f"ds_read_b64_tr_b16 {v(b+4*dt,2)}, {v(T0+dt)} offset:{4096*k2}")
                    e(f"ds_read_b64_tr_b16 {v(b+4*dt+2,2)}, {v(T0+dt)} offset:{4096*k2+second}")
            def umfma(u, b):
                ty, i, sl, k2 = u
                kap = 2 * (i % (7 if ty == "W" else 8)) + k2
                for dt in range(2):
                    for qt in range(3):
                        acc = ACC + 12 * dt + 4 * qt
                        c = "0" if kap == 0 else v(acc, 4)
                        e(f"v_mfma_f32_16x16x32_bf16 {v(acc,4)}, {v(b+4*dt,4)}, {v(FR(qt,kap),4)}, {c}")
            for act in acts:
                if act[0] == "init":
                    for it in iss: self.issue(*it)
                    iss = []
                    e(f"v_and_b32 {v(T0)}, 15, v0"); e(f"v_bfe_u32 {v(T1)}, v0, 7, 1"); e(f"v_lshl_add_u32 v46, {v(T1)}, 4, {v(T0)}")
                    e(f"v_bfe_u32 {v(T0)}, v0, 1, 3"); e(f"v_bfe_u32 {v(T1)}, v0, 4, 2"); e(f"v_xor_b32 {v(T1)}, {v(T1)}, {v(T0)}"); e(f"v_lshlrev_b32 {v(T1)}, 4, {v(T1)}")
                    e(f"v_lshl_add_u32 {v(XA)}, v46, 7, {v(T1)}"); e(f"v_xor_b32 {v(XA+1)}, 64, {v(XA)}")
                    e(f"v_bfe_u32 {v(T1)}, v0, 5, 1"); e(f"v_bfe_u32 v47, v0, 6, 1"); e(f"v_lshl_add_u32 {v(T1)}, v47, 2, {v(T1)}")
                    e(f"v_xor_b32 {v(T1)}, {v(T1)}, {v(T0)}"); e(f"v_lshlrev_b32 {v(T1)}, 4, {v(T1)}"); e(f"v_lshl_add_u32 {v(QA)}, v46, 7, {v(T1)}")
                    e(f"v_bfe_u32 {v(T1)}, v0, 4, 1"); e(f"v_lshl_add_u32 {v(QA)}, {v(T1)}, 3, {v(QA)}"); e(f"v_xor_b32 v13, 32, {v(QA)}")
                    e(f"v_bfe_u32 {v(T0)}, v0, 2, 2"); e(f"v_bfe_u32 {v(T1)}, v0, 4, 2")
                    e(f"v_lshl_add_u32 {v(VA0)}, {v(T1)}, 3, {v(T0)}"); e(f"v_lshlrev_b32 {v(VA0)}, 7, {v(VA0)}")
                    e(f"v_bfe_u32 {v(T0)}, v0, 3, 2"); e(f"v_lshlrev_b32 {v(T1)}, 1, v47")
                    e(f"v_xor_b32 {v(T0)}, {v(T0)}, {v(T1)}"); e(f"v_lshl_add_u32 {v(VA0)}, {v(T0)}, 5, {v(VA0)}")
                    e(f"v_and_b32 {v(T0)}, 3, v0"); e(f"v_lshl_add_u32 {v(VA0)}, {v(T0)}, 3, {v(VA0)}")
                    e(f"v_xor_b32 {v(VA1)}, 32, {v(VA0)}")
                elif act[0] == "X":
                    n = act[1]
                    for k2 in range(2):
                        for qt in range(3):
                            e(f"ds_read_b128 {v(FR(qt, 2*n+k2),4)}, {v(XA+k2)} offset:{(n%4)*12288 + qt*4096}")
                elif act[0] == "initv":
                    e(f"v_bfe_u32 {v(T0)}, v0, 2, 3"); e(f"v_bfe_u32 {v(T1)}, v0, 5, 1")
                    e(f"v_lshl_add_u32 {v(VA0)}, {v(T1)}, 4, {v(T0)}"); e(f"v_lshlrev_b32 {v(VA0)}, 7, {v(VA0)}")
                    e(f"v_bfe_u32 {v(T0)}, v0, 3, 2"); e(f"v_bfe_u32 {v(T1)}, v0, 6, 1"); e(f"v_lshlrev_b32 {v(T1)}, 1, {v(T1)}")
                    e(f"v_xor_b32 {v(T0)}, {v(T0)}, {v(T1)}"); e(f"v_lshl_add_u32 {v(VA0)}, {v(T0)}, 5, {v(VA0)}")
                    e(f"v_and_b32 {v(T0)}, 3, v0"); e(f"v_lshl_add_u32 {v(VA0)}, {v(T0)}, 3, {v(VA0)}")
                    e(f"v_xor_b32 {v(VA1)}, 32, {v(VA0)}")
                    e(f"v_and_b32 {v(T0)}, 63, v0"); e(f"v_lshlrev_b32 {v(XA)}, 4, {v(T0)}")
                    e(f"v_bfe_u32 {v(T0)}, v0, 7, 1"); e(f"v_lshl_add_u32 {v(XA)}, {v(T0)}, 10, {v(XA)}")
                    e(f"v_bfe_u32 {v(T1)}, v0, 6, 1"); e(f"v_mul_u32_u24 {v(T1)}, 6144, {v(T1)}"); e(f"v_add_u32 {v(OA)}, {v(XA)}, {v(T1)}")
                    e(f"v_and_b32 {v(T1)}, 15, v0"); e(f"v_lshl_add_u32 {v(T0)}, {v(T0)}, 4, {v(T1)}"); e(f"v_lshlrev_b32 {v(T0)}, 5, {v(T0)}")
                    e(f"v_add_u32 {v(XA+1)}, {STAT+4096}, {v(T0)}")
                elif act[0] == "pread":
                    T = act[1]
                    for u in range(4):
                        for qt in range(3):
                            e(f"ds_read_b128 {v(FR(qt, 4*T+u),4)}, {v(XA)} offset:{PBUF[T%2] + u*6144 + qt*2048}")
            def linv(tb):
                for k in range(2): e(f"ds_read_b128 {v(tb+4*k,4)}, {v(XA+1)} offset:{16*k}")
                for qt in range(3):
                    b = tb
                    for k in range(4): e(f"v_add_f32 {v(b+k)}, {v(b+k)}, {v(b+4+k)}")
                    e(f"v_add_f32 {v(b)}, {v(b)}, {v(b+2)}"); e(f"v_add_f32 {v(b+1)}, {v(b+1)}, {v(b+3)}")
                    e(f"v_add_f32 {v(LINV+qt)}, {v(b)}, {v(b+1)}")
                    if qt < 2:
                        for k in range(2): e(f"ds_read_b128 {v(tb+4*k,4)}, {v(XA+1)} offset:{(qt+1)*1024+16*k}")
                    e(f"v_rcp_f32 {v(LINV+qt)}, {v(LINV+qt)}")
            def write_out(ty, c, tb):
                if ty == "W":
                    for qt in range(3):
                        for dt in range(2):
                            acc = ACC + 12 * dt + 4 * qt; tt = tb + 2 * ((2 * qt + dt) % 4)
                            e(f"v_cvt_pk_bf16_f32 {v(tt)}, {v(acc)}, {v(acc+1)}"); e(f"v_cvt_pk_bf16_f32 {v(tt+1)}, {v(acc+2)}, {v(acc+3)}")
                            e(f"ds_write_b64 {v(QA if dt == 0 else 13)}, {v(tt,2)} offset:{QBUF[c%2] + qt*4096}")
                else:
                    if c == 0: linv(tb)
                    for qt in range(3):
                        tt = tb + 4 * (qt % 2)
                        for dt in range(2):
                            acc = ACC + 12 * dt + 4 * qt
                            for k in range(4): e(f"v_mul_f32 {v(acc+k)}, {v(LINV+qt)}, {v(acc+k)}")
                            e(f"v_cvt_pk_bf16_f32 {v(tt+2*dt)}, {v(acc)}, {v(acc+1)}"); e(f"v_cvt_pk_bf16_f32 {v(tt+2*dt+1)}, {v(acc+2)}, {v(acc+3)}")
                        e(f"ds_write_b128 {v(OA)}, {v(tt,4)} offset:{OBUF[c%2] + qt*2048}")
            def pop():
                u, b = pending.pop(0)
                umfma(u, b)
                per = 7 if u[0] == "W" else 8
                if u[1] % per == per - 1 and u[3] == 1:
                    write_out(u[0], u[1] // per, b); return True
                return False
            names = [x[0] for x in acts]
            nis = 0
            wrote = False
            for k, u in enumerate(units):
                while len(pending) >= 3: wrote |= pop()
                b = [x for x in UB if x not in [p[1] for p in pending]][0]
                uread(u, b); pending.append((u, b))
                if len(pending) > a.lag and (a.lag > 0 or k >= min(2, len(units) - 1)) :
                    if nis < a.a_first and iss: self.issue(*iss.pop(0)); nis += 1
                    wrote |= pop()
                if iss and k % 2 == 1: self.issue(*iss.pop(0))
            if "drain" in names or not units or a.lag == 0:
                while pending: wrote |= pop()
            if "flushw" in names:
                while not wrote and pending: wrote |= pop()
            for it in iss: self.issue(*it)
        e("s_endpgm")

    def role_B(self):
        e = self.e; a = self.a
        KA, QA = 4, 8
        KF = 16; QF = 32; M = 56; SUM = 59
        SACC = lambda T, qt: 64 + (T * 3 + qt) * 16
        ACC = lambda cb, q6: 64 + 24 * cb + 4 * q6
        self.ACC = ACC
        OF = lambda k2, q6: 16 + 4 * (6 * k2 + q6)
        WB = [232, 240, 248]
        e(f"v_bfe_u32 {v(T0)}, v0, 3, 3"); e(f"v_lshrrev_b32 {v(T1)}, 6, v0"); e(f"v_lshl_add_u32 {v(T0)}, {v(T1)}, 5, {v(T0)}")
        e("v_and_b32 v12, 7, v0"); e(f"v_bfe_u32 {v(T1)}, v0, 4, 2"); e(f"v_xor_b32 v13, v12, {v(T1)}"); e("v_lshlrev_b32 v13, 4, v13")
        e(f"v_lshl_add_u32 v1, {v(T0)}, 9, v13"); e("v_xor_b32 v2, 64, v1")
        e(f"s_lshl_b32 {s(S_A0)}, {s(S_R4)}, 7"); e(f"s_mul_i32 {s(S_A1)}, {s(S_R4)}, 57344"); e(f"s_lshl_b32 {s(S_A2)}, {s(S_RB)}, 7")
        e(f"s_lshl_b32 {s(S_A3)}, {s(S_U)}, 12"); e(f"s_mul_i32 {s(S_ST)}, {s(S_RB)}, 3072")
        e(f"s_mov_b32 {s(S_R0+2)}, 262144"); e(f"s_mov_b32 {s(S_R1+2)}, 229376"); e(f"s_mov_b32 {s(S_R2+2)}, 86016")
        e(f"s_mul_i32 s36, {s(S_H)}, 229376")
        e(f"s_lshl_b32 s37, {s(S_BLK)}, 7"); e("s_add_u32 s37, s37, s34"); e("s_mul_i32 s37, s37, 86016")
        e(f"s_cmp_eq_u32 {s(S_BLK)}, 0")
        e.wait(lgkm=0)
        e(f"s_cselect_b64 {s(S_R0,2)}, s[42:43], s[52:53]")
        e(f"s_cselect_b64 {s(S_R1,2)}, s[48:49], s[58:59]")
        e(f"s_mov_b64 {s(S_R2,2)}, s[60:61]")
        for S, o in ((S_R0, 35), (S_R1, 36), (S_R2, 37)):
            e(f"s_add_u32 {s(S)}, {s(S)}, s{o}"); e(f"s_addc_u32 {s(S+1)}, {s(S+1)}, 0")
        if a.prio >= 2: e("s_setprio 1")
        kpre = qpre = -1
        def qrd(i, n):
            ks, qt = divmod(n, 3)
            e(f"ds_read_b128 {v(QF+4*(n%6),4)}, {v(QA+ks)} offset:{QBUF[(i//4)%2] + qt*4096}")
        def kread(i, ks):
            e(f"ds_read_b128 {v(KF+4*ks,4)}, {v(KA+ks)} offset:{(self.kslot[i]-self.KBASE)*SLOT}")
        phase1 = True
        opend = []
        for ti, P in enumerate(self.plan):
            if any(x[0] == "maxr" for x in P["B"]["act"]): phase1 = False
            if phase1:
                if P["bar"]: e.barrier()
            else: self.bar(P, "B")
            if ti in a.stamp_ticks: self.stamp()
            iss = list(P["B"]["issue"])
            acts = P["B"]["act"]
            for ai, act in enumerate(acts):
                if act[0] == "init":
                    for it in iss: self.issue(*it)
                    iss = []
                    e(f"s_mov_b32 {s(S_C)}, 0x3db8aa3b")
                    e(f"v_lshlrev_b32 {v(T1)}, 1, {v(T1)}"); e(f"v_xor_b32 {v(T1)}, {v(T1)}, v12"); e(f"v_lshlrev_b32 {v(T1)}, 4, {v(T1)}")
                    e("v_lshrrev_b32 v3, 3, v0"); e("v_mul_u32_u24 v3, 896, v3"); e(f"v_add_u32 v3, v3, {v(T1)}")
                    e(f"v_and_b32 {v(T0)}, 31, v0"); e(f"v_bfe_u32 {v(T1)}, v0, 1, 3"); e("v_bfe_u32 v12, v0, 5, 1"); e(f"v_xor_b32 {v(T1)}, {v(T1)}, v12")
                    e(f"v_lshlrev_b32 {v(T1)}, 4, {v(T1)}"); e(f"v_lshl_add_u32 {v(QA)}, {v(T0)}, 7, {v(T1)}")
                    for ks in range(1, 4): e(f"v_xor_b32 {v(QA+ks)}, {32*ks}, {v(QA)}")
                    e(f"s_add_u32 {s(S_TMP)}, {s(S_A3)}, {self.KBASE*SLOT}")
                    for ks in range(4): e(f"v_add_u32 {v(KA+ks)}, {s(S_TMP)}, {v(QA+ks)}")
                    e(f"v_lshlrev_b32 {v(T0)}, 5, {v(T0)}"); e(f"v_add_u32 v13, {STAT}, {v(T0)}")
                    e(f"v_lshrrev_b32 {v(T1)}, 5, v0"); e(f"v_lshl_add_u32 v12, {v(T1)}, 2, v13")
                elif act[0] == "Kpre":
                    e.wait_tag(("K", 0))
                    for ks in range(4): kread(0, ks)
                    kpre = 0; qpre = -1
                elif act[0] == "S":
                    _, i, sl = act
                    c, T = divmod(i, 4)
                    seq = [(ks, qt) for ks in range(4) for qt in range(3)]
                    dma = []
                    for it in iss: dma += self.issue_parts(*it)
                    iss = []
                    if qpre != i:
                        for n in range(3): qrd(i, n)
                    if kpre != i:
                        while dma: dma.pop(0)()
                        e.wait_tag(("K", i))
                        for ks in range(4): kread(i, ks)
                    if qpre != i:
                        for n in range(3, 6): qrd(i, n)
                    own = []
                    if ai + 1 < len(acts) and acts[ai + 1][0] == "issue": own = self.issue_parts(acts[ai + 1][1], acts[ai + 1][2])
                    mode = None; qok = False
                    if i + 1 < 16 and self.kage[i + 1] < ti:
                        mode = "roll" if ti - self.kage[i + 1] >= a.kpre else "after"
                        qok = (i + 1) // 4 <= self.sinfo[i][1]
                    for n, (ks, qt) in enumerate(seq):
                        cc = "0" if (c == 0 and ks == 0) else v(SACC(T, qt), 16)
                        e(f"v_mfma_f32_32x32x16_bf16 {v(SACC(T,qt),16)}, {v(KF+4*ks,4)}, {v(QF+4*(n%6),4)}, {cc}")
                        if n + 6 < 12: qrd(i, n + 6)
                        elif qok: qrd(i + 1, n - 6)
                        if mode == "roll" and qt == 2:
                            if ks == 0: e.wait_tag(("K", i + 1))
                            kread(i + 1, ks)
                        if n == 0 and own:
                            e.wait_regs(set(range(KF, KF + 16)))
                            dma += own
                        if dma and n % 2 == 0: dma.pop(0)()
                        if c == 3 and T > 0 and n >= 3 and (n - 3) < 9:
                            qq, part = divmod(n - 3, 3)
                            self.maxpart(M + qq, SACC(T - 1, qq), part, first=(T == 1))
                    while dma: dma.pop(0)()
                    if mode == "after":
                        e.wait_tag(("K", i + 1))
                        for ks in range(4): kread(i + 1, ks)
                    kpre = i + 1 if mode else -1
                    qpre = i + 1 if qok else -1
                elif act[0] == "maxw":
                    self.stamp()
                    for qt in range(3):
                        for part in range(3): self.maxpart(M + qt, SACC(3, qt), part, first=False)
                        e(f"ds_write_b32 v12, {v(M+qt)} offset:{qt*1024}")
                elif act[0] == "maxr":
                    if a.prio: e("s_setprio 1")
                    for qt in range(3):
                        for k in range(2): e(f"ds_read_b128 {v(16+8*qt+4*k,4)}, v13 offset:{qt*1024+16*k}")
                    e(f"v_and_b32 {v(T0)}, 15, v0"); e(f"v_lshlrev_b32 v4, 4, {v(T0)}")
                    e(f"v_bfe_u32 {v(T0)}, v0, 4, 1"); e(f"v_lshl_add_u32 v4, {v(T0)}, 10, v4")
                    e(f"v_bfe_u32 {v(T0)}, v0, 5, 1"); e(f"v_lshl_add_u32 v4, {v(T0)}, 8, v4")
                    e(f"s_mul_i32 {s(S_TMP)}, {s(S_U)}, 6144"); e(f"v_add_u32 v4, {s(S_TMP)}, v4")
                    for qt in range(3):
                        b = 16 + 8 * qt
                        e(f"v_max3_f32 {v(M+qt)}, {v(b)}, {v(b+1)}, {v(b+2)}")
                        e(f"v_max3_f32 {v(M+qt)}, {v(M+qt)}, {v(b+3)}, {v(b+4)}"); e(f"v_max3_f32 {v(M+qt)}, {v(M+qt)}, {v(b+5)}, {v(b+6)}")
                        e(f"v_max_f32 {v(M+qt)}, {v(M+qt)}, {v(b+7)}")
                        e(f"v_mul_f32 {v(M+qt)}, {s(S_C)}, {v(M+qt)}")
                elif act[0] == "smx":
                    T = act[1]
                    grp = [(qt, hf) for qt in range(3) for hf in range(2)]
                    def fe(g):
                        r = SACC(T, g[0]) + 8 * g[1]
                        for k in range(8): e(f"v_fma_f32 {v(r+k)}, {v(r+k)}, {s(S_C)}, -{v(M+g[0])}")
                        for k in range(8): e(f"v_exp_f32 {v(r+k)}, {v(r+k)}")
                    fe(grp[0])
                    for n, (qt, hf) in enumerate(grp):
                        if n + 1 < 6: fe(grp[n + 1])
                        r = SACC(T, qt) + 8 * hf
                        tt = 16 + 4 * n
                        for k in range(4): e(f"v_cvt_pk_bf16_f32 {v(tt+k)}, {v(r+2*k)}, {v(r+2*k+1)}")
                        e(f"ds_write_b128 v4, {v(tt,4)} offset:{PBUF[T%2] + qt*2048 + hf*512}")
                    if iss and a.b_smx_issue:
                        pass
                    self.defer_sum = (T,)
                    if T == 3 or not a.defer:
                        self.sums(T, SACC, SUM)
                        if T == 3:
                            for qt in range(3): e(f"ds_write_b32 v12, {v(SUM+qt)} offset:{4096+qt*1024}")
                elif act[0] == "inito":
                    self.stamp()
                    if a.prio == 1: e("s_setprio 0")
                    e(f"v_bfe_u32 {v(T0)}, v0, 2, 4"); e(f"v_lshlrev_b32 v5, 7, {v(T0)}")
                    e(f"v_bfe_u32 {v(T0)}, v0, 3, 2"); e(f"v_bfe_u32 {v(T1)}, v0, 6, 2"); e(f"v_xor_b32 {v(T0)}, {v(T0)}, {v(T1)}")
                    e(f"v_lshl_add_u32 v5, {v(T0)}, 5, v5")
                    e(f"v_and_b32 {v(T0)}, 3, v0"); e(f"v_lshl_add_u32 v5, {v(T0)}, 3, v5")
                    e(f"v_and_b32 {v(T0)}, 63, v0"); e(f"v_lshlrev_b32 v6, 4, {v(T0)}")
                    e(f"v_mul_u32_u24 {v(T1)}, 21504, {v(T1)}"); e(f"v_add_u32 v7, v6, {v(T1)}")
            ws = [x for x in acts if x[0] == "O"]
            dma = []
            for it in iss: dma += self.issue_parts(*it)
            def wread(x, b):
                _, i, sl = x
                tt = T0 + (i % 2)
                e(f"v_add_u32 {v(tt)}, {sl*SLOT}, v5")
                for k2 in range(2):
                    e(f"ds_read_b64_tr_b16 {v(b+4*k2,2)}, {v(tt)} offset:{4096*k2}")
                    e(f"ds_read_b64_tr_b16 {v(b+4*k2+2,2)}, {v(tt)} offset:{4096*k2+2048}")
            def ord_(c, k2, q6):
                e(f"ds_read_b128 {v(OF(k2,q6),4)}, v6 offset:{OBUF[c%2] + k2*6144 + q6*1024}")
            def opop(roll=None):
                x, b = opend.pop(0)
                c, cb = divmod(x[1], 7)
                st = self.store_parts(cb - 1) if (c == 3 and cb > 0) else []
                for k2 in range(2):
                    for q6 in range(6):
                        acc = ACC(cb, q6)
                        cc = "0" if (c == 0 and k2 == 0) else v(acc, 4)
                        e(f"v_mfma_f32_16x16x32_bf16 {v(acc,4)}, {v(b+4*k2,4)}, {v(OF(k2,q6),4)}, {cc}")
                        if roll is not None: ord_(roll, k2, q6)
                        if dma and q6 % 3 == 2: dma.pop(0)()
                        if st and (k2 or q6 >= 2):
                            st.pop(0)()
                            if st: st.pop(0)()
                while st: st.pop(0)()
                if c == 3 and cb == 6:
                    for f in self.store_parts(6): f()
            ord_c = [x[1] for x in acts if x[0] == "oread"]
            if ord_c:
                c = ord_c[0]
                if c == 3: self.stamp()
                if ws and len(opend) < 3:
                    b = [x for x in WB if x not in [p[1] for p in opend]][0]
                    first = (ws.pop(0), b); wread(*first)
                else: first = None
                while len(opend) > 1: opop()
                if opend: opop(roll=c)
                else:
                    for k2 in range(2):
                        for q6 in range(6): ord_(c, k2, q6)
                if first: opend.append(first)
            lastt = ti == len(self.plan) - 1
            nows = not ws and not ord_c
            for x in ws:
                while len(opend) >= 3: opop()
                b = [y for y in WB if y not in [p[1] for p in opend]][0]
                wread(x, b); opend.append((x, b))
                if len(opend) > (2 if lastt else max(a.blag, 1)): opop()
            while len(opend) > (0 if (lastt or nows) else a.blag): opop()
            while dma: dma.pop(0)()
        if a.padto:
            e.label("L_pad")
            e("s_memrealtime s[98:99]"); e.force_wait("lgkmcnt(0)")
            e("s_sub_u32 s98, s98, s96"); e(f"s_cmp_lt_u32 s98, {a.padto*100}"); e("s_cbranch_scc1 L_pad")
        self.stamp()
        if a.stamps:
            e.force_wait("vmcnt(0)")
            self.stamp()
            e(f"s_cmp_lg_u32 {s(S_W)}, 4"); e("s_cbranch_scc1 L_end1")
            e(f"s_add_u32 s60, s60, {STAMP_OFF}"); e("s_addc_u32 s61, s61, 0"); e("s_lshl_b32 s33, s2, 7"); e("s_add_u32 s60, s60, s33"); e("s_addc_u32 s61, s61, 0")
            e("v_mov_b32 v10, 0")
            for i in range(self.nst):
                e(f"v_mov_b32 v8, s{64+2*i}"); e(f"v_mov_b32 v9, s{65+2*i}")
                e(f"global_store_dwordx2 v10, v[8:9], s[60:61] offset:{8*i}"); e.nop(2)

    def maxpart(self, m, b, part, first):
        e = self.e
        if part == 0:
            if first:
                e(f"v_max3_f32 {v(m)}, {v(b)}, {v(b+1)}, {v(b+1)}")
            else:
                e(f"v_max3_f32 {v(m)}, {v(m)}, {v(b)}, {v(b+1)}")
            e(f"v_max3_f32 {v(m)}, {v(m)}, {v(b+2)}, {v(b+3)}"); e(f"v_max3_f32 {v(m)}, {v(m)}, {v(b+4)}, {v(b+5)}")
        elif part == 1:
            for k in (6, 8, 10): e(f"v_max3_f32 {v(m)}, {v(m)}, {v(b+k)}, {v(b+k+1)}")
        else:
            for k in (12, 14): e(f"v_max3_f32 {v(m)}, {v(m)}, {v(b+k)}, {v(b+k+1)}")

    def sums(self, T, SACC, SUM):
        e = self.e
        for qt in range(3):
            r = SACC(T, qt)
            for k in range(0, 8, 2): e(f"v_pk_add_f32 {v(r+k,2)}, {v(r+k,2)}, {v(r+8+k,2)}")
            for k in range(0, 4, 2): e(f"v_pk_add_f32 {v(r+k,2)}, {v(r+k,2)}, {v(r+4+k,2)}")
            e(f"v_pk_add_f32 {v(r,2)}, {v(r,2)}, {v(r+2,2)}")
            if T == 0: e(f"v_add_f32 {v(SUM+qt)}, {v(r)}, {v(r+1)}")
            else:
                e(f"v_add_f32 {v(r)}, {v(r)}, {v(r+1)}"); e(f"v_add_f32 {v(SUM+qt)}, {v(SUM+qt)}, {v(r)}")

    def store_cb(self, cb):
        e = self.e
        wp = self.pol(self.a.wpol)
        for qt in range(3):
            a0, a1 = self.ACC(cb, 2 * qt), self.ACC(cb, 2 * qt + 1)
            tt = a0
            e(f"v_cvt_pk_bf16_f32 {v(tt)}, {v(a0)}, {v(a0+1)}"); e(f"v_cvt_pk_bf16_f32 {v(tt+1)}, {v(a0+2)}, {v(a0+3)}")
            e(f"v_cvt_pk_bf16_f32 {v(tt+2)}, {v(a1)}, {v(a1+1)}"); e(f"v_cvt_pk_bf16_f32 {v(tt+3)}, {v(a1+2)}, {v(a1+3)}")
            e(f"buffer_store_dwordx4 {v(tt,4)}, v7, {s(S_R2,4)}, {s(S_ST)} offen offset:{qt*1024}{wp}")
        e(f"s_add_u32 {s(S_ST)}, {s(S_ST)}, 3072"); e(f"s_cmp_eq_u32 {s(S_ST)}, 21504"); e(f"s_cselect_b32 {s(S_ST)}, 0, {s(S_ST)}")

    def kernel1(self):
        e = self.e
        self.oage = {}; self.sinfo = {}
        self.build_plan()
        e.label(NAME + "_kernel")
        self.prologue()
        snap = e.snapshot(); nst = self.nst
        self.role_A()
        e.restore(snap); self.nst = nst
        e.label("L_roleB")
        self.role_B()
        e.label("L_end1"); e("s_endpgm")

from gen1 import reducer, desc
ilist = lambda x: [int(t) for t in x.split(",") if t]

def main(argv=None):
    ap = argparse.ArgumentParser()
    ap.add_argument("-o", default="k3.s")
    ap.add_argument("--stamps", type=int, default=0)
    ap.add_argument("--stamp_ticks", type=ilist, default=[])
    ap.add_argument("--clk", type=int, default=0)
    ap.add_argument("--rot", type=int, default=1)
    ap.add_argument("--nkd", type=int, default=4)
    ap.add_argument("--la", type=float, default=6)
    ap.add_argument("--k0", type=int, default=1)
    ap.add_argument("--kticks", type=ilist, default=[2, 4, 6])
    ap.add_argument("--wrate", type=float, default=2.34)
    ap.add_argument("--alt1", type=int, default=0)
    ap.add_argument("--alt2", type=int, default=0)
    ap.add_argument("--lag", type=int, default=2)
    ap.add_argument("--qdrain", type=ilist, default=[0, 3])
    ap.add_argument("--odrain", type=ilist, default=[0])
    ap.add_argument("--kpre", type=int, default=2)
    ap.add_argument("--blag", type=int, default=1)
    ap.add_argument("--kmax", type=int, default=2)
    ap.add_argument("--kmax_from", type=int, default=99)
    ap.add_argument("--klag", type=int, default=2)
    ap.add_argument("--kburn", type=int, default=1)
    ap.add_argument("--kkeep", type=int, default=1)
    ap.add_argument("--vtr0", type=int, default=2)
    ap.add_argument("--vtr1", type=int, default=3)
    ap.add_argument("--lv0", type=int, default=10)
    ap.add_argument("--vmax0", type=int, default=3)
    ap.add_argument("--prio", type=int, default=0)
    ap.add_argument("--vend", type=int, default=2)
    ap.add_argument("--lv", type=int, default=6)
    ap.add_argument("--vmax", type=int, default=2)
    ap.add_argument("--lo", type=int, default=9)
    ap.add_argument("--omax", type=int, default=3)
    ap.add_argument("--ostart", type=int, default=4)
    ap.add_argument("--olag", type=int, default=2)
    ap.add_argument("--opn", type=int, default=2)
    ap.add_argument("--vres", type=int, default=0)
    ap.add_argument("--a_first", type=int, default=1)
    ap.add_argument("--b_first", type=int, default=1)
    ap.add_argument("--b_smx_issue", type=int, default=0)
    ap.add_argument("--defer", type=int, default=0)
    ap.add_argument("--kvpol", default="nt")
    ap.add_argument("--spol", default="")
    ap.add_argument("--wpol", default="sc1")
    ap.add_argument("--rpol", default="nt")
    ap.add_argument("--skip", default="")
    ap.add_argument("--padto", type=int, default=0)
    ap.add_argument("--verbose", action="store_true")
    a = ap.parse_args(argv)
    g = Gen(a); g.kernel1()
    r = reducer(a)
    out = HEADER
    out += f"; @launch kernel={NAME}_kernel grid=(256,1,1) block=(512,1,1) lds=163840\n"
    out += "; @launch kernel=reduce_kernel grid=(336,1,1) block=(256,1,1) lds=0\n"
    out += '.amdgcn_target "amdgcn-amd-amdhsa--gfx950"\n.text\n'
    out += f".globl {NAME}_kernel\n.p2align 8\n.type {NAME}_kernel,@function\n" + g.e.text()
    out += ".globl reduce_kernel\n.p2align 8\n.type reduce_kernel,@function\n" + r.text()
    out += '.section .rodata,"a"\n.p2align 6\n' + desc(NAME + "_kernel", 256) + ".p2align 6\n" + desc("reduce_kernel", 80, 32)
    open(a.o, "w").write(out)
    print(f"{a.o}: k1 insts {g.e.ninst} (nops {g.e.nops}), ticks {len(g.plan)}, stamps {g.nst}", file=sys.stderr)

if __name__ == "__main__":
    main()
```

```python
import sys, argparse
from emit import Emitter

NAME = "concat_heads__mha_block_cached__mha_block_cached__near_ridge"
STAMP_OFF = 200 << 20
SLOT = 8192
STAT = 19 * SLOT
HEADER = open("cdna_kernels/" + NAME + ".s.ref").read().split("; Override launch")[0]

def v(a, n=1): return f"v{a}" if n == 1 else f"v[{a}:{a+n-1}]"
def s(a, n=1): return f"s{a}" if n == 1 else f"s[{a}:{a+n-1}]"

T0, T1 = 14, 15
S_R0, S_R1, S_R2 = 4, 8, 12
S_W, S_M0B, S_SO, S_TMP, S_C = 16, 17, 18, 19, 20
S_BLK, S_H, S_B, S_PP, S_U = 21, 22, 23, 24, 25
S_R7, S_R4, S_RB = 26, 27, 28
S_A0, S_A1, S_A2, S_A3, S_ST = 29, 30, 31, 32, 33
FLAG_OFF = 32 << 20
QBUF = [0, 12288]
PBUF = [0, 24576]
OBUF = [0, 0]

class Gen:
    def __init__(self, a):
        self.a = a
        self.e = Emitter()
        D = dict(mfma=("v_mfma",), ds=("ds_",), valu=("v_exp", "v_fma_f32", "v_max", "v_cvt_pk", "v_pk_", "v_mul_f32", "v_add_f32", "v_rcp"), store=("buffer_store",), dma=("buffer_load",))
        self.e.drop = tuple(x for k in a.skip.split(",") if k for x in D[k])
        self.nst = 0

    def stamp(self, wait=True):
        if self.a.stamps:
            i = self.nst; self.nst += 1
            assert i < 16
            self.e(f"{'s_memtime' if self.a.clk else 's_memrealtime'} {s(64+2*i,2)}")
            if wait: self.e.force_wait("lgkmcnt(0)")

    def pol(self, p): return (" " + p) if p else ""

    def issue(self, item, slot):
        e = self.e; a = self.a
        ty = item[0]
        sh, kv = self.pol(a.spol), self.pol(a.kvpol)
        if ty == "X":
            n = item[1]
            for j in range(3):
                e(f"s_add_u32 m0, {s(S_M0B)}, {(n%4)*12288 + j*4096}")
                e(f"s_add_u32 {s(S_SO)}, {s(S_A0)}, {j*32*896}")
                e(f"buffer_load_dwordx4 v1, {s(S_R0,4)}, {s(S_SO)} offen{sh} lds", tag=item)
            e(f"s_add_u32 {s(S_A0)}, {s(S_A0)}, 128"); e(f"s_cmp_eq_u32 {s(S_A0)}, 896"); e(f"s_cselect_b32 {s(S_A0)}, 0, {s(S_A0)}")
        elif ty == "W":
            c, n = divmod(item[1], 7)
            e(f"s_add_u32 m0, {s(S_M0B)}, {slot*SLOT}")
            e(f"s_add_u32 {s(S_SO)}, {s(S_A1)}, {s(S_A2)}")
            e(f"buffer_load_dwordx4 v2, {s(S_R1,4)}, {s(S_SO)} offen{sh} lds", tag=item)
            e(f"s_add_u32 m0, {s(S_M0B)}, {slot*SLOT+4096}")
            e(f"s_add_u32 {s(S_SO)}, {s(S_SO)}, {32*8192}")
            e(f"buffer_load_dwordx4 v2, {s(S_R1,4)}, {s(S_SO)} offen{sh} lds", tag=item)
            e(f"s_add_u32 {s(S_A1)}, {s(S_A1)}, {64*8192}"); e(f"s_cmp_eq_u32 {s(S_A1)}, {7*64*8192}"); e(f"s_cselect_b32 {s(S_A1)}, 0, {s(S_A1)}")
            if n == 6:
                e(f"s_add_u32 {s(S_A2)}, {s(S_A2)}, 128"); e(f"s_and_b32 {s(S_A2)}, {s(S_A2)}, 511")
        elif ty == "V":
            c, i = divmod(item[1], 8)
            if item[1] == 0: self.setup_dv()
            for j in range(2):
                e(f"s_add_u32 m0, {s(S_M0B)}, {slot*SLOT + j*4096}")
                e(f"s_add_u32 {s(S_SO)}, {s(S_A3)}, {(i*64+j*32)*512}")
                e(f"buffer_load_dwordx4 v1, {s(S_R2,4)}, {s(S_SO)} offen{kv} lds", tag=item)
            if i == 7:
                e(f"s_add_u32 {s(S_A3)}, {s(S_A3)}, 128"); e(f"s_and_b32 {s(S_A3)}, {s(S_A3)}, 511")
        elif ty == "K":
            c, T = divmod(item[1], 4)
            for p in range(4):
                e(f"s_add_u32 m0, {s(S_A3)}, {slot*SLOT + p*1024}")
                e(f"s_add_u32 {s(S_SO)}, {s(S_A0)}, {(128*T+8*p)*512}")
                e(f"buffer_load_dwordx4 v{1+(p&1)}, {s(S_R0,4)}, {s(S_SO)} offen{kv} lds", tag=item)
            if T == 3:
                e(f"s_add_u32 {s(S_A0)}, {s(S_A0)}, 128"); e(f"s_and_b32 {s(S_A0)}, {s(S_A0)}, 511")
        elif ty == "O":
            c, n = divmod(item[1], 7)
            e(f"s_add_u32 m0, {s(S_M0B)}, {slot*SLOT}")
            e(f"s_add_u32 {s(S_SO)}, {s(S_A1)}, {s(S_A2)}")
            e(f"buffer_load_dwordx4 v3, {s(S_R1,4)}, {s(S_SO)} offen{sh} lds", tag=item)
            e(f"s_add_u32 m0, {s(S_M0B)}, {slot*SLOT+4096}")
            e(f"s_add_u32 {s(S_SO)}, {s(S_SO)}, {32*896}")
            e(f"buffer_load_dwordx4 v3, {s(S_R1,4)}, {s(S_SO)} offen{sh} lds", tag=item)
            e(f"s_add_u32 {s(S_A2)}, {s(S_A2)}, 128"); e(f"s_cmp_eq_u32 {s(S_A2)}, 896"); e(f"s_cselect_b32 {s(S_A2)}, 0, {s(S_A2)}")
            if n == 6:
                e(f"s_add_u32 {s(S_A1)}, {s(S_A1)}, 57344"); e(f"s_cmp_eq_u32 {s(S_A1)}, {4*57344}"); e(f"s_cselect_b32 {s(S_A1)}, 0, {s(S_A1)}")

    def issue_parts(self, item, slot):
        class Rec:
            def __init__(s2): s2.l = []
            def __call__(s2, t, tag=None): s2.l.append((t, tag))
        real = self.e; rec = Rec(); self.e = rec
        self.issue(item, slot)
        self.e = real
        parts = []; cur = []
        for t, tag in rec.l:
            cur.append((t, tag))
            if t.startswith("buffer_load"): parts.append(cur); cur = []
        parts[-1] += cur
        return [(lambda p=p: [real(t, tag=tag) for t, tag in p]) for p in parts]

    def store_parts(self, cb):
        class Rec:
            def __init__(s2): s2.l = []
            def __call__(s2, t, tag=None): s2.l.append((t, tag))
        real = self.e; rec = Rec(); self.e = rec
        self.store_cb(cb)
        self.e = real
        L = rec.l
        parts = [[x] for x in L[:-3]]
        parts[-1] += L[-3:]
        return [(lambda p=p: [real(t, tag=tag) for t, tag in p]) for p in parts]

    def setup_dv(self):
        e = self.e
        e(f"v_bfe_u32 v46, v0, 4, 2"); e("v_lshlrev_b32 v46, 1, v46"); e("v_and_b32 v47, 7, v0"); e("v_xor_b32 v46, v46, v47"); e("v_lshlrev_b32 v46, 4, v46")
        e("v_lshrrev_b32 v1, 3, v0"); e("v_lshl_add_u32 v1, v1, 9, v46")

    def build_plan(self):
        a = self.a
        nkd = a.nkd
        kslots = [19 - 2 * (i + 1) for i in range(nkd)]
        self.KBASE = min(kslots)
        free = list(range(6, self.KBASE)) + [19]
        WONLY = {3, 4, 5, 19}
        kfree = sorted(kslots)
        plan = []
        slot = {}
        def newtick(bar=True):
            P = dict(bar=bar, A=dict(need=None, issue=[], act=[]), B=dict(need=None, issue=[], act=[])); plan.append(P); return P
        pend = []
        astr = []
        for n in range(7): astr += [("X", n), ("W", n)]
        astr += [("W", i) for i in range(7, 28)]
        ia = 0; ca = 0; xdone = 0
        ik = 0; ck = 0
        def cost(it): return 1.5 if it[0] == "X" else 1.0
        def issueA(P, la):
            nonlocal ia
            while ia < len(astr) and sum(cost(x) for x in astr[ca:ia + 1]) <= la:
                it = astr[ia]
                if it[0] == "X":
                    if it[1] - 4 >= xdone: break
                    P["A"]["issue"].append((it, None))
                else:
                    if not free: break
                    slot[it] = free.pop(0); P["A"]["issue"].append((it, slot[it]))
                ia += 1
        def issueK(P, n):
            nonlocal ik
            while n > 0 and ik < 16 and kfree:
                slot[("K", ik)] = kfree.pop(0); P["B"]["issue"].append((("K", ik), slot[("K", ik)])); ik += 1; n -= 1
        P = newtick(False); issueA(P, a.la); issueK(P, a.k0)
        P["A"]["act"].append(("init",)); P["B"]["act"].append(("init",))
        qwritten = -1; qready = -1; xread = 0
        tick = 0
        wacc = 0.0
        kage = {i: 0 for i in range(ik)}
        iv = 0
        def issueV(P, n):
            nonlocal iv
            while n > 0 and iv < 32 and [x for x in free if x not in WONLY]:
                slot[("V", iv)] = [x for x in free if x not in WONLY][0]; free.remove(slot[("V", iv)]); P["A"]["issue"].append((("V", iv), slot[("V", iv)])); iv += 1; n -= 1
        ckprev = 0; vinit = False; qdefer = None
        while ck < 16:
            tick += 1
            P = newtick()
            free += pend; pend = []; free.sort(); xdone = xread; qready = qwritten; ckprev = ck
            if qdefer is not None:
                qwritten = qdefer; qdefer = None; P["A"]["act"].append(("flushw",))
            if ca < 14: n = 2
            else:
                wacc += a.wrate; n = int(wacc + 1e-9); wacc -= n
            took = []
            while n > 0 and ca < min(ia, len(astr)):
                it = astr[ca]
                if it[0] == "W" and it[1] % 7 == 6 and it[1] // 7 >= 2 and ckprev < 4 * (it[1] // 7 - 1):
                    break
                took.append(it); ca += 1; n -= 1
                if it[0] == "X":
                    P["A"]["act"].append(("X", it[1])); xread = it[1] + 1
                    if it[1] == 6: pend += [3, 4, 5]
                else:
                    P["A"]["act"].append(("W", it[1], slot[it])); pend.append(slot[it])
                    if it[1] % 7 == 6:
                        cq = it[1] // 7
                        if a.lag == 0 or cq in a.qdrain:
                            P["A"]["act"].append(("drain",)); qwritten = cq; break
                        else: qdefer = cq
            if qdefer is not None and took[-1] != ("W", 7 * qdefer + 6):
                qwritten = qdefer; qdefer = None; P["A"]["act"].append(("flushw",))
            if took: P["A"]["need"] = took[-1]
            if not a.alt1 or tick < 8 or tick % 2 == 1: issueA(P, a.la)
            if qready == 3 and not vinit:
                P["A"]["act"].append(("initv",)); vinit = True
            if qwritten == 0 and qready < 0: P["B"]["act"].append(("Kpre", 0))
            issued = False
            n = a.kmax if (ca == len(astr) and not took) or tick >= a.kmax_from else 1
            last = ik == 16 and qready == 3 and 16 - ck <= a.kburn
            while ck < ik and ck // 4 <= qready and (last or (n > 0 and tick - kage[ck] >= a.klag)):
                sl = slot[("K", ck)]
                P["B"]["act"].append(("S", ck, sl)); self.sinfo[ck] = (tick, qready); ck += 1; n -= 1
                if a.alt1 and ia < len(astr):
                    if tick % 2 == 0 and ik < 16 and (kfree or tick == 8):
                        if kfree:
                            k2_ = kfree.pop(0); slot[("K", ik)] = k2_; P["B"]["issue"].append((("K", ik), k2_)); kage[ik] = tick; ik += 1
                        if ik < 16:
                            slot[("K", ik)] = sl; P["B"]["act"].append(("issue", ("K", ik), sl)); kage[ik] = tick; ik += 1
                        else: kfree.append(sl)
                    else: kfree.append(sl)
                    issued = True
                elif ik < 16 and not issued and not kfree:
                    slot[("K", ik)] = sl; P["B"]["act"].append(("issue", ("K", ik), sl)); kage[ik] = tick; ik += 1; issued = True
                else:
                    kfree.append(sl)
            if not issued and ik < 16 and (tick in a.kticks or tick >= 8):
                cand = [x for x in kfree if not any(ac[0] == "S" and ac[2] == x for ac in P["B"]["act"])]
                if cand:
                    kfree.remove(cand[0]); slot[("K", ik)] = cand[0]; P["B"]["issue"].append((("K", ik), cand[0])); kage[ik] = tick; ik += 1
            while tick >= 8 and len(kfree) > min(16 - ik, a.kkeep):
                k = kfree.pop(0); pend += [k, k + 1]
            if ik == 16 and kage[15] < tick and ia == len(astr):
                issueV(P, a.vtr0 if last else 2)
            assert tick < 100
        assert vinit
        self.kage = kage; self.kslot = {i: slot[("K", i)] for i in range(16)}
        P["B"]["act"].append(("maxw",))
        P = newtick()
        free += pend; pend = []; free.sort()
        assert not kfree and all(x in free for x in WONLY)
        for x in sorted(WONLY): free.remove(x)
        WONLY.clear()
        P["B"]["act"] += [("maxr",), ("smx", 0)]
        issueV(P, a.vtr1)
        ostr = [("O", i) for i in range(28)]
        io = 0; co = 0; cv = 0
        pw = 0
        oready = oloaded = owritten = -1
        odefer = None
        t2 = 0
        while cv < 32 or co < 28 or oloaded < 3:
            t2 += 1
            P = newtick()
            free += pend; pend = []; free.sort(); oready = owritten
            if odefer is not None:
                owritten = odefer; odefer = None; P["A"]["act"].append(("flushw",))
            if t2 <= 4:
                P["A"]["act"].append(("pread", t2 - 1))
                if t2 <= 3: P["B"]["act"].append(("smx", t2))
                if t2 == 4: P["B"]["act"].append(("inito",)); pend += [2, 3, 4, 5]
            if t2 == 5: pend += [19]
            if cv < 32:
                nvt = 1 if cv >= 32 - a.vend else 2
                nvt = min(nvt, 8 - cv % 8, iv - cv)
                if (cv + nvt) % 8 == 0 and oloaded < (cv + nvt) // 8 - 2: nvt -= 1
                for k in range(nvt):
                    P["A"]["act"].append(("V", cv, slot[("V", cv)])); pend.append(slot[("V", cv)]); P["A"]["need"] = ("V", cv); cv += 1
                if nvt and cv % 8 == 0:
                    if a.lag == 0 or cv == 32 or (cv // 8 - 1) in a.odrain:
                        P["A"]["act"].append(("drain",)); owritten = cv // 8 - 1
                    else: odefer = cv // 8 - 1
                elif cv >= 32 - a.vend: P["A"]["act"].append(("drain",))
            if oloaded < oready and co == 7 * (oloaded + 1):
                oloaded += 1; P["B"]["act"].append(("oread", oloaded))
            nop = 7 if oloaded == 3 else a.opn
            while nop > 0 and co < 7 * (oloaded + 1) and co < io and (("O", co) in self.oage and t2 - self.oage[("O", co)] >= a.olag or cv >= 32):
                P["B"]["act"].append(("O", co, slot[("O", co)])); pend.append(slot[("O", co)]); P["B"]["need"] = ("O", co); co += 1; nop -= 1
            lv = a.lv0 if t2 <= 4 else a.lv
            if t2 <= 4 or not a.alt2 or t2 % 2 == 0 or io == 28:
                issueV(P, max(0, min(a.vmax0 if t2 <= 4 else a.vmax, cv + lv - iv)))
            if t2 >= a.ostart and (not a.alt2 or t2 % 2 == 1 or iv == 32):
                n = a.omax
                while n > 0 and io < 28 and free and io < co + a.lo and len(free) > (1 if iv < 32 else 0) * a.vres:
                    slot[("O", io)] = free.pop(); P["B"]["issue"].append((("O", io), slot[("O", io)])); self.oage[("O", io)] = t2; io += 1; n -= 1
            assert t2 < 100, "plan stuck"
        self.plan = plan
        if a.verbose:
            f = lambda L: " ".join(str(x[0]) + (str(x[1]) if len(x) > 1 else "") for x in L)
            g = lambda L: " ".join(f"{x[0][0]}{x[0][1]}@{x[1]}" for x in L)
            for i, P in enumerate(plan):
                print(f"{i:2d} A[need {P['A']['need']} iss {g(P['A']['issue'])} act {f(P['A']['act'])}]  B[need {P['B']['need']} iss {g(P['B']['issue'])} act {f(P['B']['act'])}]", file=sys.stderr)

    def prologue(self):
        e = self.e; a = self.a
        e("s_cmp_ge_u32 s2, 256"); e("s_cbranch_scc1 L_end1")
        e("s_load_dwordx16 s[40:55], s[0:1], 0")
        e("s_load_dwordx4 s[56:59], s[0:1], 64")
        e("s_load_dwordx2 s[60:61], s[0:1], 96")
        self.stamp(wait=False)
        if a.padto: e("s_memrealtime s[96:97]")
        e("s_and_b32 s3, s2, 7"); e("s_lshr_b32 s39, s2, 3")
        e(f"s_lshr_b32 {s(S_PP)}, s39, 3"); e("s_lshl_b32 s3, s3, 2"); e(f"s_add_u32 s3, s3, {s(S_PP)}")
        e(f"s_lshr_b32 {s(S_BLK)}, s3, 4"); e(f"s_and_b32 {s(S_H)}, s3, 15"); e(f"s_and_b32 {s(S_B)}, s39, 7")
        e(f"v_lshrrev_b32 {v(T0)}, 6, v0")
        e(f"v_readfirstlane_b32 {s(S_W)}, {v(T0)}")
        e("v_and_b32 v0, 255, v0")
        if a.rot:
            e(f"s_lshr_b32 {s(S_RB)}, {s(S_B)}, 2"); e(f"s_and_b32 {s(S_R4)}, {s(S_B)}, 3")
            e(f"s_mul_i32 {s(S_RB)}, {s(S_RB)}, 3")
            e(f"s_lshl_b32 {s(S_R7)}, {s(S_PP)}, 1"); e(f"s_add_u32 {s(S_R7)}, {s(S_R7)}, {s(S_RB)}")
            e(f"s_cmp_ge_u32 {s(S_R7)}, 7"); e(f"s_cselect_b32 {s(S_TMP)}, 7, 0"); e(f"s_sub_u32 {s(S_R7)}, {s(S_R7)}, {s(S_TMP)}")
        else:
            for r in (S_R7, S_R4, S_RB): e(f"s_mov_b32 {s(r)}, 0")
        e(f"s_and_b32 {s(S_U)}, {s(S_W)}, 3"); e(f"s_lshl_b32 {s(S_M0B)}, {s(S_U)}, 10")
        e(f"s_lshl_b32 s34, {s(S_B)}, 4"); e(f"s_add_u32 s34, s34, {s(S_H)}"); e("s_lshl_b32 s35, s34, 18")
        for S in (S_R0, S_R1, S_R2): e(f"s_mov_b32 {s(S+3)}, 0x20000")
        e(f"s_cmp_ge_u32 {s(S_W)}, 4"); e("s_cbranch_scc1 L_roleB")

    def bar(self, P, R):
        e = self.e
        if P["bar"]:
            need = P[R]["need"]
            if need is not None: e.wait_tag(need, lgkm=0)
            else: e.wait(lgkm=0)
            e.barrier()

    def role_A(self):
        e = self.e; a = self.a
        ACC = 16; LINV = 40; XA = 43; QA = 45
        UB = [4, 48, 56]
        VA0, VA1, OA = 3, 12, 13
        FR = lambda qt, kap: 64 + (kap * 3 + qt) * 4
        e("v_lshrrev_b32 v46, 3, v0"); e("v_and_b32 v47, 7, v0")
        e(f"v_bfe_u32 {v(T0)}, v0, 4, 3"); e(f"v_xor_b32 {v(T0)}, {v(T0)}, v47"); e(f"v_lshlrev_b32 {v(T0)}, 4, {v(T0)}")
        e("v_mul_u32_u24 v1, 896, v46"); e(f"v_add_u32 v1, v1, {v(T0)}")
        e(f"v_bfe_u32 {v(T0)}, v0, 4, 1"); e(f"v_bfe_u32 {v(T1)}, v0, 6, 1"); e(f"v_lshl_add_u32 {v(T0)}, {v(T1)}, 1, {v(T0)}")
        e(f"v_lshlrev_b32 {v(T0)}, 1, {v(T0)}"); e(f"v_xor_b32 {v(T0)}, {v(T0)}, v47"); e(f"v_lshlrev_b32 {v(T0)}, 4, {v(T0)}")
        e(f"v_lshl_add_u32 v2, v46, 13, {v(T0)}")
        e(f"s_lshl_b32 {s(S_A0)}, {s(S_R7)}, 7"); e(f"s_lshl_b32 {s(S_A1)}, {s(S_R7)}, 19"); e(f"s_lshl_b32 {s(S_A2)}, {s(S_R4)}, 7"); e(f"s_mov_b32 {s(S_A3)}, {s(S_A2)}")
        e(f"s_mov_b32 {s(S_R0+2)}, 86016"); e(f"s_mov_b32 {s(S_R1+2)}, {447*8192+512}"); e(f"s_mov_b32 {s(S_R2+2)}, 262144")
        e(f"s_mul_i32 s36, {s(S_B)}, 86016"); e(f"s_lshl_b32 s37, {s(S_H)}, 9")
        e(f"s_cmp_eq_u32 {s(S_BLK)}, 0")
        e.wait(lgkm=0)
        e(f"s_cselect_b64 {s(S_R0,2)}, s[40:41], s[50:51]")
        e(f"s_cselect_b64 {s(S_R1,2)}, s[46:47], s[56:57]")
        e(f"s_cselect_b64 {s(S_R2,2)}, s[44:45], s[54:55]")
        for S, o in ((S_R0, 36), (S_R1, 37), (S_R2, 35)):
            e(f"s_add_u32 {s(S)}, {s(S)}, s{o}"); e(f"s_addc_u32 {s(S+1)}, {s(S+1)}, 0")
        pending = []
        for ti, P in enumerate(self.plan):
            self.bar(P, "A")
            iss = list(P["A"]["issue"])
            acts = P["A"]["act"]
            units = []
            for act in acts:
                if act[0] in "WV": units += [(act[0], act[1], act[2], 0), (act[0], act[1], act[2], 1)]
            def uread(u, b):
                ty, i, sl, k2 = u
                second = 512 if ty == "W" else 1024
                if k2 == 0:
                    e(f"v_add_u32 {v(T0)}, {sl*SLOT}, {v(VA0)}"); e(f"v_add_u32 {v(T1)}, {sl*SLOT}, {v(VA1)}")
                for dt in range(2):
                    e(f"ds_read_b64_tr_b16 {v(b+4*dt,2)}, {v(T0+dt)} offset:{4096*k2}")
                    e(f"ds_read_b64_tr_b16 {v(b+4*dt+2,2)}, {v(T0+dt)} offset:{4096*k2+second}")
            def umfma(u, b):
                ty, i, sl, k2 = u
                kap = 2 * (i % (7 if ty == "W" else 8)) + k2
                for dt in range(2):
                    for qt in range(3):
                        acc = ACC + 12 * dt + 4 * qt
                        c = "0" if kap == 0 else v(acc, 4)
                        e(f"v_mfma_f32_16x16x32_bf16 {v(acc,4)}, {v(b+4*dt,4)}, {v(FR(qt,kap),4)}, {c}")
            for act in acts:
                if act[0] == "init":
                    for it in iss: self.issue(*it)
                    iss = []
                    e(f"v_and_b32 {v(T0)}, 15, v0"); e(f"v_bfe_u32 {v(T1)}, v0, 7, 1"); e(f"v_lshl_add_u32 v46, {v(T1)}, 4, {v(T0)}")
                    e(f"v_bfe_u32 {v(T0)}, v0, 1, 3"); e(f"v_bfe_u32 {v(T1)}, v0, 4, 2"); e(f"v_xor_b32 {v(T1)}, {v(T1)}, {v(T0)}"); e(f"v_lshlrev_b32 {v(T1)}, 4, {v(T1)}")
                    e(f"v_lshl_add_u32 {v(XA)}, v46, 7, {v(T1)}"); e(f"v_xor_b32 {v(XA+1)}, 64, {v(XA)}")
                    e(f"v_bfe_u32 {v(T1)}, v0, 5, 1"); e(f"v_bfe_u32 v47, v0, 6, 1"); e(f"v_lshl_add_u32 {v(T1)}, v47, 2, {v(T1)}")
                    e(f"v_xor_b32 {v(T1)}, {v(T1)}, {v(T0)}"); e(f"v_lshlrev_b32 {v(T1)}, 4, {v(T1)}"); e(f"v_lshl_add_u32 {v(QA)}, v46, 7, {v(T1)}")
                    e(f"v_bfe_u32 {v(T1)}, v0, 4, 1"); e(f"v_lshl_add_u32 {v(QA)}, {v(T1)}, 3, {v(QA)}"); e(f"v_xor_b32 v13, 32, {v(QA)}")
                    e(f"v_bfe_u32 {v(T0)}, v0, 2, 2"); e(f"v_bfe_u32 {v(T1)}, v0, 4, 2")
                    e(f"v_lshl_add_u32 {v(VA0)}, {v(T1)}, 3, {v(T0)}"); e(f"v_lshlrev_b32 {v(VA0)}, 7, {v(VA0)}")
                    e(f"v_bfe_u32 {v(T0)}, v0, 3, 2"); e(f"v_lshlrev_b32 {v(T1)}, 1, v47")
                    e(f"v_xor_b32 {v(T0)}, {v(T0)}, {v(T1)}"); e(f"v_lshl_add_u32 {v(VA0)}, {v(T0)}, 5, {v(VA0)}")
                    e(f"v_and_b32 {v(T0)}, 3, v0"); e(f"v_lshl_add_u32 {v(VA0)}, {v(T0)}, 3, {v(VA0)}")
                    e(f"v_xor_b32 {v(VA1)}, 32, {v(VA0)}")
                elif act[0] == "X":
                    n = act[1]
                    for k2 in range(2):
                        for qt in range(3):
                            e(f"ds_read_b128 {v(FR(qt, 2*n+k2),4)}, {v(XA+k2)} offset:{(n%4)*12288 + qt*4096}")
                elif act[0] == "initv":
                    e(f"v_bfe_u32 {v(T0)}, v0, 2, 3"); e(f"v_bfe_u32 {v(T1)}, v0, 5, 1")
                    e(f"v_lshl_add_u32 {v(VA0)}, {v(T1)}, 4, {v(T0)}"); e(f"v_lshlrev_b32 {v(VA0)}, 7, {v(VA0)}")
                    e(f"v_bfe_u32 {v(T0)}, v0, 3, 2"); e(f"v_bfe_u32 {v(T1)}, v0, 6, 1"); e(f"v_lshlrev_b32 {v(T1)}, 1, {v(T1)}")
                    e(f"v_xor_b32 {v(T0)}, {v(T0)}, {v(T1)}"); e(f"v_lshl_add_u32 {v(VA0)}, {v(T0)}, 5, {v(VA0)}")
                    e(f"v_and_b32 {v(T0)}, 3, v0"); e(f"v_lshl_add_u32 {v(VA0)}, {v(T0)}, 3, {v(VA0)}")
                    e(f"v_xor_b32 {v(VA1)}, 32, {v(VA0)}")
                    e(f"v_and_b32 {v(T0)}, 63, v0"); e(f"v_lshlrev_b32 {v(XA)}, 4, {v(T0)}")
                    e(f"v_bfe_u32 {v(T0)}, v0, 7, 1"); e(f"v_lshl_add_u32 {v(XA)}, {v(T0)}, 10, {v(XA)}")
                    e(f"v_bfe_u32 {v(T1)}, v0, 6, 1"); e(f"v_mul_u32_u24 {v(T1)}, 6144, {v(T1)}"); e(f"v_add_u32 {v(OA)}, {v(XA)}, {v(T1)}")
                    e(f"v_and_b32 {v(T1)}, 15, v0"); e(f"v_lshl_add_u32 {v(T0)}, {v(T0)}, 4, {v(T1)}"); e(f"v_lshlrev_b32 {v(T0)}, 5, {v(T0)}")
                    e(f"v_add_u32 {v(XA+1)}, {STAT+4096}, {v(T0)}")
                elif act[0] == "pread":
                    T = act[1]
                    for u in range(4):
                        for qt in range(3):
                            e(f"ds_read_b128 {v(FR(qt, 4*T+u),4)}, {v(XA)} offset:{PBUF[T%2] + u*6144 + qt*2048}")
            def linv(tb):
                for k in range(2): e(f"ds_read_b128 {v(tb+4*k,4)}, {v(XA+1)} offset:{16*k}")
                for qt in range(3):
                    b = tb
                    for k in range(4): e(f"v_add_f32 {v(b+k)}, {v(b+k)}, {v(b+4+k)}")
                    e(f"v_add_f32 {v(b)}, {v(b)}, {v(b+2)}"); e(f"v_add_f32 {v(b+1)}, {v(b+1)}, {v(b+3)}")
                    e(f"v_add_f32 {v(LINV+qt)}, {v(b)}, {v(b+1)}")
                    if qt < 2:
                        for k in range(2): e(f"ds_read_b128 {v(tb+4*k,4)}, {v(XA+1)} offset:{(qt+1)*1024+16*k}")
                    e(f"v_rcp_f32 {v(LINV+qt)}, {v(LINV+qt)}")
            def write_out(ty, c, tb):
                if ty == "W":
                    for qt in range(3):
                        for dt in range(2):
                            acc = ACC + 12 * dt + 4 * qt; tt = tb + 2 * ((2 * qt + dt) % 4)
                            e(f"v_cvt_pk_bf16_f32 {v(tt)}, {v(acc)}, {v(acc+1)}"); e(f"v_cvt_pk_bf16_f32 {v(tt+1)}, {v(acc+2)}, {v(acc+3)}")
                            e(f"ds_write_b64 {v(QA if dt == 0 else 13)}, {v(tt,2)} offset:{QBUF[c%2] + qt*4096}")
                else:
                    if c == 0: linv(tb)
                    for qt in range(3):
                        tt = tb + 4 * (qt % 2)
                        for dt in range(2):
                            acc = ACC + 12 * dt + 4 * qt
                            for k in range(4): e(f"v_mul_f32 {v(acc+k)}, {v(LINV+qt)}, {v(acc+k)}")
                            e(f"v_cvt_pk_bf16_f32 {v(tt+2*dt)}, {v(acc)}, {v(acc+1)}"); e(f"v_cvt_pk_bf16_f32 {v(tt+2*dt+1)}, {v(acc+2)}, {v(acc+3)}")
                        e(f"ds_write_b128 {v(OA)}, {v(tt,4)} offset:{OBUF[c%2] + qt*2048}")
            def pop():
                u, b = pending.pop(0)
                umfma(u, b)
                per = 7 if u[0] == "W" else 8
                if u[1] % per == per - 1 and u[3] == 1:
                    write_out(u[0], u[1] // per, b); return True
                return False
            names = [x[0] for x in acts]
            nis = 0
            wrote = False
            for k, u in enumerate(units):
                while len(pending) >= 3: wrote |= pop()
                b = [x for x in UB if x not in [p[1] for p in pending]][0]
                uread(u, b); pending.append((u, b))
                if len(pending) > a.lag and (a.lag > 0 or k >= min(2, len(units) - 1)) :
                    if nis < a.a_first and iss: self.issue(*iss.pop(0)); nis += 1
                    wrote |= pop()
                if iss and k % 2 == 1: self.issue(*iss.pop(0))
            if "drain" in names or not units or a.lag == 0:
                while pending: wrote |= pop()
            if "flushw" in names:
                while not wrote and pending: wrote |= pop()
            for it in iss: self.issue(*it)
        if a.fused == 1: e("s_branch L_red")
        else:
            if a.fused == 2: self.staged_reduce()
            e("s_endpgm")

    def role_B(self):
        e = self.e; a = self.a
        KA, QA = 4, 8
        KF = 16; QF = 32; M = 56; SUM = 59
        SACC = lambda T, qt: 64 + (T * 3 + qt) * 16
        ACC = lambda cb, q6: 64 + 24 * cb + 4 * q6
        self.ACC = ACC
        OF = lambda k2, q6: 16 + 4 * (6 * k2 + q6)
        WB = [232, 240, 248]
        e(f"v_bfe_u32 {v(T0)}, v0, 3, 3"); e(f"v_lshrrev_b32 {v(T1)}, 6, v0"); e(f"v_lshl_add_u32 {v(T0)}, {v(T1)}, 5, {v(T0)}")
        e("v_and_b32 v12, 7, v0"); e(f"v_bfe_u32 {v(T1)}, v0, 4, 2"); e(f"v_xor_b32 v13, v12, {v(T1)}"); e("v_lshlrev_b32 v13, 4, v13")
        e(f"v_lshl_add_u32 v1, {v(T0)}, 9, v13"); e("v_xor_b32 v2, 64, v1")
        e(f"s_lshl_b32 {s(S_A0)}, {s(S_R4)}, 7"); e(f"s_mul_i32 {s(S_A1)}, {s(S_R4)}, 57344"); e(f"s_lshl_b32 {s(S_A2)}, {s(S_RB)}, 7")
        e(f"s_lshl_b32 {s(S_A3)}, {s(S_U)}, 12"); e(f"s_mul_i32 {s(S_ST)}, {s(S_RB)}, 12288")
        e(f"s_mov_b32 {s(S_R0+2)}, 262144"); e(f"s_mov_b32 {s(S_R1+2)}, 229376"); e(f"s_mov_b32 {s(S_R2+2)}, 86016")
        e(f"s_mul_i32 s36, {s(S_H)}, 229376")
        e(f"s_lshl_b32 s37, {s(S_BLK)}, 7"); e("s_add_u32 s37, s37, s34"); e("s_mul_i32 s37, s37, 86016")
        e(f"s_cmp_eq_u32 {s(S_BLK)}, 0")
        e.wait(lgkm=0)
        e(f"s_cselect_b64 {s(S_R0,2)}, s[42:43], s[52:53]")
        e(f"s_cselect_b64 {s(S_R1,2)}, s[48:49], s[58:59]")
        e(f"s_mov_b64 {s(S_R2,2)}, s[60:61]")
        for S, o in ((S_R0, 35), (S_R1, 36), (S_R2, 37)):
            e(f"s_add_u32 {s(S)}, {s(S)}, s{o}"); e(f"s_addc_u32 {s(S+1)}, {s(S+1)}, 0")
        if a.prio >= 2: e("s_setprio 1")
        kpre = qpre = -1
        def qrd(i, n):
            ks, qt = divmod(n, 3)
            e(f"ds_read_b128 {v(QF+4*(n%6),4)}, {v(QA+ks)} offset:{QBUF[(i//4)%2] + qt*4096}")
        def kread(i, ks):
            e(f"ds_read_b128 {v(KF+4*ks,4)}, {v(KA+ks)} offset:{(self.kslot[i]-self.KBASE)*SLOT}")
        phase1 = True
        opend = []
        for ti, P in enumerate(self.plan):
            if any(x[0] == "maxr" for x in P["B"]["act"]): phase1 = False
            if phase1:
                if P["bar"]: e.barrier()
            else: self.bar(P, "B")
            if ti in a.stamp_ticks: self.stamp()
            if a.fused == 2 and ti == 9:
                assert not any(t == "fz" for t, _ in e.vm)
                e("v_lshlrev_b32 v62, 8, v0"); e("v_mov_b32 v63, 1")
                e("buffer_atomic_add v63, v62, s[40:43], s63 offen")
            iss = list(P["B"]["issue"])
            acts = P["B"]["act"]
            for ai, act in enumerate(acts):
                if act[0] == "init":
                    for it in iss: self.issue(*it)
                    iss = []
                    e(f"s_mov_b32 {s(S_C)}, 0x3db8aa3b")
                    if a.fused == 2:
                        self.flag_srd()
                        e(f"s_lshl_b32 s62, {s(S_H)}, 2"); e(f"s_add_u32 s62, s62, {s(S_U)}"); e("s_lshl_b32 s62, s62, 7")
                        e("v_and_b32 v62, 63, v0"); e("v_lshlrev_b32 v62, 13, v62"); e("v_mov_b32 v63, 0")
                        e("buffer_store_dword v63, v62, s[36:39], s62 offen sc1", tag="fz")
                    e(f"v_lshlrev_b32 {v(T1)}, 1, {v(T1)}"); e(f"v_xor_b32 {v(T1)}, {v(T1)}, v12"); e(f"v_lshlrev_b32 {v(T1)}, 4, {v(T1)}")
                    e("v_lshrrev_b32 v3, 3, v0"); e("v_mul_u32_u24 v3, 896, v3"); e(f"v_add_u32 v3, v3, {v(T1)}")
                    e(f"v_and_b32 {v(T0)}, 31, v0"); e(f"v_bfe_u32 {v(T1)}, v0, 1, 3"); e("v_bfe_u32 v12, v0, 5, 1"); e(f"v_xor_b32 {v(T1)}, {v(T1)}, v12")
                    e(f"v_lshlrev_b32 {v(T1)}, 4, {v(T1)}"); e(f"v_lshl_add_u32 {v(QA)}, {v(T0)}, 7, {v(T1)}")
                    for ks in range(1, 4): e(f"v_xor_b32 {v(QA+ks)}, {32*ks}, {v(QA)}")
                    e(f"s_add_u32 {s(S_TMP)}, {s(S_A3)}, {self.KBASE*SLOT}")
                    for ks in range(4): e(f"v_add_u32 {v(KA+ks)}, {s(S_TMP)}, {v(QA+ks)}")
                    e(f"v_lshlrev_b32 {v(T0)}, 5, {v(T0)}"); e(f"v_add_u32 v13, {STAT}, {v(T0)}")
                    e(f"v_lshrrev_b32 {v(T1)}, 5, v0"); e(f"v_lshl_add_u32 v12, {v(T1)}, 2, v13")
                elif act[0] == "Kpre":
                    e.wait_tag(("K", 0))
                    for ks in range(4): kread(0, ks)
                    kpre = 0; qpre = -1
                elif act[0] == "S":
                    _, i, sl = act
                    c, T = divmod(i, 4)
                    seq = [(ks, qt) for ks in range(4) for qt in range(3)]
                    dma = []
                    for it in iss: dma += self.issue_parts(*it)
                    iss = []
                    if qpre != i:
                        for n in range(3): qrd(i, n)
                    if kpre != i:
                        while dma: dma.pop(0)()
                        e.wait_tag(("K", i))
                        for ks in range(4): kread(i, ks)
                    if qpre != i:
                        for n in range(3, 6): qrd(i, n)
                    own = []
                    if ai + 1 < len(acts) and acts[ai + 1][0] == "issue": own = self.issue_parts(acts[ai + 1][1], acts[ai + 1][2])
                    mode = None; qok = False
                    if i + 1 < 16 and self.kage[i + 1] < ti:
                        mode = "roll" if ti - self.kage[i + 1] >= a.kpre else "after"
                        qok = (i + 1) // 4 <= self.sinfo[i][1]
                    for n, (ks, qt) in enumerate(seq):
                        cc = "0" if (c == 0 and ks == 0) else v(SACC(T, qt), 16)
                        e(f"v_mfma_f32_32x32x16_bf16 {v(SACC(T,qt),16)}, {v(KF+4*ks,4)}, {v(QF+4*(n%6),4)}, {cc}")
                        if n + 6 < 12: qrd(i, n + 6)
                        elif qok: qrd(i + 1, n - 6)
                        if mode == "roll" and qt == 2:
                            if ks == 0: e.wait_tag(("K", i + 1))
                            kread(i + 1, ks)
                        if n == 0 and own:
                            e.wait_regs(set(range(KF, KF + 16)))
                            dma += own
                        if dma and n % 2 == 0: dma.pop(0)()
                        if c == 3 and T > 0 and n >= 3 and (n - 3) < 9:
                            qq, part = divmod(n - 3, 3)
                            self.maxpart(M + qq, SACC(T - 1, qq), part, first=(T == 1))
                    while dma: dma.pop(0)()
                    if mode == "after":
                        e.wait_tag(("K", i + 1))
                        for ks in range(4): kread(i + 1, ks)
                    kpre = i + 1 if mode else -1
                    qpre = i + 1 if qok else -1
                elif act[0] == "maxw":
                    self.stamp()
                    for qt in range(3):
                        for part in range(3): self.maxpart(M + qt, SACC(3, qt), part, first=False)
                        e(f"ds_write_b32 v12, {v(M+qt)} offset:{qt*1024}")
                elif act[0] == "maxr":
                    if a.prio: e("s_setprio 1")
                    for qt in range(3):
                        for k in range(2): e(f"ds_read_b128 {v(16+8*qt+4*k,4)}, v13 offset:{qt*1024+16*k}")
                    e(f"v_and_b32 {v(T0)}, 15, v0"); e(f"v_lshlrev_b32 v4, 4, {v(T0)}")
                    e(f"v_bfe_u32 {v(T0)}, v0, 4, 1"); e(f"v_lshl_add_u32 v4, {v(T0)}, 10, v4")
                    e(f"v_bfe_u32 {v(T0)}, v0, 5, 1"); e(f"v_lshl_add_u32 v4, {v(T0)}, 8, v4")
                    e(f"s_mul_i32 {s(S_TMP)}, {s(S_U)}, 6144"); e(f"v_add_u32 v4, {s(S_TMP)}, v4")
                    for qt in range(3):
                        b = 16 + 8 * qt
                        e(f"v_max3_f32 {v(M+qt)}, {v(b)}, {v(b+1)}, {v(b+2)}")
                        e(f"v_max3_f32 {v(M+qt)}, {v(M+qt)}, {v(b+3)}, {v(b+4)}"); e(f"v_max3_f32 {v(M+qt)}, {v(M+qt)}, {v(b+5)}, {v(b+6)}")
                        e(f"v_max_f32 {v(M+qt)}, {v(M+qt)}, {v(b+7)}")
                        e(f"v_mul_f32 {v(M+qt)}, {s(S_C)}, {v(M+qt)}")
                elif act[0] == "smx":
                    T = act[1]
                    grp = [(qt, hf) for qt in range(3) for hf in range(2)]
                    def fe(g):
                        r = SACC(T, g[0]) + 8 * g[1]
                        for k in range(8): e(f"v_fma_f32 {v(r+k)}, {v(r+k)}, {s(S_C)}, -{v(M+g[0])}")
                        for k in range(8): e(f"v_exp_f32 {v(r+k)}, {v(r+k)}")
                    fe(grp[0])
                    for n, (qt, hf) in enumerate(grp):
                        if n + 1 < 6: fe(grp[n + 1])
                        r = SACC(T, qt) + 8 * hf
                        tt = 16 + 4 * n
                        for k in range(4): e(f"v_cvt_pk_bf16_f32 {v(tt+k)}, {v(r+2*k)}, {v(r+2*k+1)}")
                        e(f"ds_write_b128 v4, {v(tt,4)} offset:{PBUF[T%2] + qt*2048 + hf*512}")
                    if iss and a.b_smx_issue:
                        pass
                    self.defer_sum = (T,)
                    if T == 3 or not a.defer:
                        self.sums(T, SACC, SUM)
                        if T == 3:
                            for qt in range(3): e(f"ds_write_b32 v12, {v(SUM+qt)} offset:{4096+qt*1024}")
                elif act[0] == "inito":
                    self.stamp()
                    if a.prio == 1: e("s_setprio 0")
                    e(f"v_bfe_u32 {v(T0)}, v0, 2, 4"); e(f"v_lshlrev_b32 v5, 7, {v(T0)}")
                    e(f"v_bfe_u32 {v(T0)}, v0, 3, 2"); e(f"v_bfe_u32 {v(T1)}, v0, 6, 2"); e(f"v_xor_b32 {v(T0)}, {v(T0)}, {v(T1)}")
                    e(f"v_lshl_add_u32 v5, {v(T0)}, 5, v5")
                    e(f"v_and_b32 {v(T0)}, 3, v0"); e(f"v_lshl_add_u32 v5, {v(T0)}, 3, v5")
                    e(f"v_and_b32 {v(T0)}, 63, v0"); e(f"v_lshlrev_b32 v6, 4, {v(T0)}")
                    e(f"v_lshlrev_b32 v7, 4, v0")
                    e("v_lshlrev_b32 v8, 9, v6")
            ws = [x for x in acts if x[0] == "O"]
            dma = []
            for it in iss: dma += self.issue_parts(*it)
            def wread(x, b):
                _, i, sl = x
                tt = T0 + (i % 2)
                e(f"v_add_u32 {v(tt)}, {sl*SLOT}, v5")
                for k2 in range(2):
                    e(f"ds_read_b64_tr_b16 {v(b+4*k2,2)}, {v(tt)} offset:{4096*k2}")
                    e(f"ds_read_b64_tr_b16 {v(b+4*k2+2,2)}, {v(tt)} offset:{4096*k2+2048}")
            def ord_(c, k2, q6):
                e(f"ds_read_b128 {v(OF(k2,q6),4)}, v6 offset:{OBUF[c%2] + k2*6144 + q6*1024}")
            def opop(roll=None):
                x, b = opend.pop(0)
                c, cb = divmod(x[1], 7)
                st = self.store_parts(cb - 1) if (c == 3 and cb > 0) else []
                for k2 in range(2):
                    for q6 in range(6):
                        acc = ACC(cb, q6)
                        cc = "0" if (c == 0 and k2 == 0) else v(acc, 4)
                        e(f"v_mfma_f32_16x16x32_bf16 {v(acc,4)}, {v(b+4*k2,4)}, {v(OF(k2,q6),4)}, {cc}")
                        if roll is not None: ord_(roll, k2, q6)
                        if dma and q6 % 3 == 2: dma.pop(0)()
                        if st and (k2 or q6 >= 2):
                            st.pop(0)()
                            if st: st.pop(0)()
                while st: st.pop(0)()
                if c == 3 and a.fused == 2 and cb - 1 - a.flag_lag >= 0: self.flag(cb - 1 - a.flag_lag)
                if c == 3 and cb == 6:
                    for f in self.store_parts(6): f()
                    if a.fused == 2 and 6 - a.flag_lag >= 0: self.flag(6 - a.flag_lag)
            ord_c = [x[1] for x in acts if x[0] == "oread"]
            if ord_c:
                c = ord_c[0]
                if c == 3: self.stamp()
                if ws and len(opend) < 3:
                    b = [x for x in WB if x not in [p[1] for p in opend]][0]
                    first = (ws.pop(0), b); wread(*first)
                else: first = None
                while len(opend) > 1: opop()
                if opend: opop(roll=c)
                else:
                    for k2 in range(2):
                        for q6 in range(6): ord_(c, k2, q6)
                if first: opend.append(first)
            lastt = ti == len(self.plan) - 1
            nows = not ws and not ord_c
            for x in ws:
                while len(opend) >= 3: opop()
                b = [y for y in WB if y not in [p[1] for p in opend]][0]
                wread(x, b); opend.append((x, b))
                if len(opend) > (2 if lastt else max(a.blag, 1)): opop()
            while len(opend) > (0 if (lastt or nows) else a.blag): opop()
            while dma: dma.pop(0)()
        if a.padto:
            e.label("L_pad")
            e("s_memrealtime s[98:99]"); e.force_wait("lgkmcnt(0)")
            e("s_sub_u32 s98, s98, s96"); e(f"s_cmp_lt_u32 s98, {a.padto*100}"); e("s_cbranch_scc1 L_pad")
        self.stamp()
        if a.fused == 1: self.fused_reduce()
        if a.fused == 2:
            for n in range(7 - a.flag_lag, 7): self.flag(n)
        if a.stamps:
            e.force_wait("vmcnt(0)")
            self.stamp()
            e(f"s_cmp_lg_u32 {s(S_W)}, 4"); e("s_cbranch_scc1 L_end1")
            e(f"s_add_u32 s60, s60, {STAMP_OFF}"); e("s_addc_u32 s61, s61, 0"); e("s_lshl_b32 s33, s2, 7"); e("s_add_u32 s60, s60, s33"); e("s_addc_u32 s61, s61, 0")
            e("v_mov_b32 v10, 0")
            for i in range(self.nst):
                e(f"v_mov_b32 v8, s{64+2*i}"); e(f"v_mov_b32 v9, s{65+2*i}")
                e(f"global_store_dwordx2 v10, v[8:9], s[60:61] offset:{8*i}"); e.nop(2)

    def flag_srd(self):
        e = self.e
        e("s_load_dwordx4 s[44:47], s[0:1], 80")
        e(f"s_lshl_b32 s63, {s(S_BLK)}, 3"); e(f"s_add_u32 s63, s63, {s(S_B)}")
        e(f"s_mul_i32 {s(S_TMP)}, s63, 8192"); e(f"s_add_u32 {s(S_TMP)}, {s(S_TMP)}, {FLAG_OFF}")
        e(f"s_add_u32 s36, s60, {s(S_TMP)}"); e("s_addc_u32 s37, s61, 0"); e("s_mov_b32 s38, 8192"); e("s_mov_b32 s39, 0x20000")
        e("s_lshl_b32 s63, s63, 4")
        e.force_wait("lgkmcnt(0)")
        e("s_mov_b64 s[40:41], s[46:47]"); e("s_mov_b32 s42, 256"); e("s_mov_b32 s43, 0x20000")

    def flag(self, n):
        e = self.e
        e.wait_tag(("st", n))
        e(f"v_mov_b32 v9, {n+1}")
        e("buffer_store_dword v9, v8, s[36:39], s62 offen sc1")

    def poll(self, name, load, cmp):
        e = self.e
        e("s_mov_b32 s51, 0")
        e.label(name)
        e(load); e.force_wait("vmcnt(0)")
        e(cmp)
        e("s_add_u32 s51, s51, 1")
        e("s_cmp_eq_u64 vcc, -1"); e(f"s_cbranch_scc1 {name}_ok")
        e("s_cmp_ge_u32 s51, 200000"); e(f"s_cbranch_scc1 {name}_ok")
        if self.a.psleep: e(f"s_sleep {self.a.psleep}")
        e(f"s_branch {name}")
        e.label(name + "_ok")

    def staged_reduce(self):
        e = self.e; a = self.a
        self.flag_srd()
        e(f"s_lshr_b32 {s(S_TMP)}, s63, 4"); e(f"s_mul_i32 {s(S_TMP)}, {s(S_TMP)}, {16*86016}")
        e(f"s_add_u32 s52, s60, {s(S_TMP)}"); e("s_addc_u32 s53, s61, 0"); e(f"s_mov_b32 s54, {16*86016}"); e("s_mov_b32 s55, 0x20000")
        e("s_mov_b64 s[56:57], s[44:45]"); e(f"s_mov_b32 s58, {8*96*1792}"); e("s_mov_b32 s59, 0x20000")
        e("v_and_b32 v1, 63, v0")
        e(f"s_lshr_b32 {s(S_TMP)}, {s(S_H)}, 2"); e(f"s_mul_i32 {s(S_TMP)}, {s(S_TMP)}, 48"); e(f"v_add_u32 v2, {s(S_TMP)}, v1")
        e("v_lshrrev_b32 v3, 6, v2"); e("v_and_b32 v2, 63, v2"); e("v_lshl_add_u32 v2, v3, 8, v2")
        e(f"s_and_b32 s46, {s(S_H)}, 3"); e(f"s_lshl_b32 {s(S_TMP)}, s46, 6"); e(f"v_add_u32 v2, {s(S_TMP)}, v2")
        e("s_lshl_b32 s46, s46, 7")
        e("v_mov_b32 v4, 0x200000"); e("v_cmp_gt_u32 vcc, 48, v1")
        e("v_lshlrev_b32 v3, 4, v2"); e("v_cndmask_b32 v3, v4, v3, vcc")
        e("v_lshrrev_b32 v7, 8, v2"); e("v_and_b32 v8, 15, v2"); e("v_lshl_add_u32 v8, v7, 5, v8"); e("v_mul_u32_u24 v8, 1792, v8")
        e("v_bfe_u32 v9, v2, 4, 4"); e("v_lshl_add_u32 v8, v9, 3, v8"); e("v_cndmask_b32 v8, v4, v8, vcc")
        e("v_and_b32 v5, 15, v1"); e("v_lshlrev_b32 v5, 9, v5"); e("v_mov_b32 v6, 0")
        e(f"s_mul_i32 s49, {s(S_B)}, {96*1792}"); e(f"s_mul_i32 {s(S_TMP)}, {s(S_BLK)}, 896"); e(f"s_add_u32 s49, s49, {s(S_TMP)}")
        e("s_mov_b32 s50, 0xffff0000")
        self.poll("L_pc", "buffer_load_dword v10, v6, s[40:43], s63 offen sc1", "v_cmp_le_u32 vcc, 16, v10")
        e(f"s_mov_b32 s48, {s(S_U)}")
        e.label("L_stage")
        self.poll("L_pf", "buffer_load_dword v10, v5, s[36:39], s46 offen sc1", "v_cmp_lt_u32 vcc, s48, v10")
        e(f"s_add_u32 s47, s48, {s(S_RB)}"); e("s_cmp_ge_u32 s47, 7"); e(f"s_cselect_b32 {s(S_TMP)}, 7, 0"); e(f"s_sub_u32 s47, s47, {s(S_TMP)}")
        e(f"s_mul_i32 {s(S_SO)}, s47, 12288")
        rp = self.pol(a.frpol)
        for h in range(16):
            e(f"buffer_load_dwordx4 {v(32+4*h,4)}, v3, s[52:55], {s(S_SO)} offen{rp}")
            if h < 15: e(f"s_add_u32 {s(S_SO)}, {s(S_SO)}, 86016")
        e("s_lshl_b32 s47, s47, 7"); e("s_add_u32 s47, s47, s49")
        for h in range(16):
            for k in range(4):
                r = 32 + 4 * h + k
                if h == 0:
                    e(f"v_lshlrev_b32 v{16+2*k}, 16, v{r}"); e(f"v_and_b32 v{17+2*k}, s50, v{r}")
                else:
                    e(f"v_lshlrev_b32 v{24+2*k}, 16, v{r}"); e(f"v_and_b32 v{25+2*k}, s50, v{r}")
                    e(f"v_pk_add_f32 {v(16+2*k,2)}, {v(16+2*k,2)}, {v(24+2*k,2)}")
        for k in range(4): e(f"v_cvt_pk_bf16_f32 v{24+k}, v{16+2*k}, v{17+2*k}")
        e("buffer_store_dwordx2 v[24:25], v8, s[56:59], s47 offen")
        e(f"s_add_u32 s47, s47, {16*1792}")
        e("buffer_store_dwordx2 v[26:27], v8, s[56:59], s47 offen")
        e("s_add_u32 s48, s48, 4"); e("s_cmp_lt_u32 s48, 7"); e("s_cbranch_scc1 L_stage")
        if a.stamps:
            e.force_wait("vmcnt(0)")
            e("s_memrealtime s[64:65]"); e.force_wait("lgkmcnt(0)")
            e(f"s_cmp_lg_u32 {s(S_W)}, 2"); e("s_cbranch_scc1 L_end1")
            e(f"s_add_u32 s60, s60, {STAMP_OFF}"); e("s_addc_u32 s61, s61, 0"); e("s_lshl_b32 s33, s2, 7"); e("s_add_u32 s60, s60, s33"); e("s_addc_u32 s61, s61, 0")
            e("v_mov_b32 v10, 0"); e("v_mov_b32 v8, s64"); e("v_mov_b32 v9, s65")
            e(f"global_store_dwordx2 v10, v[8:9], s[60:61] offset:{8*a.astamp}")

    def fused_reduce(self):
        e = self.e; a = self.a
        e.label("L_red")
        e.nop(12)
        e("s_load_dwordx4 s[40:43], s[0:1], 80")
        e(f"s_lshr_b32 {s(S_TMP)}, {s(S_W)}, 2"); e(f"s_lshl_b32 {s(S_TMP)}, {s(S_TMP)}, 8")
        e(f"v_add_u32 v1, {s(S_TMP)}, v0")
        e(f"s_mul_i32 {s(S_TMP)}, {s(S_H)}, 336")
        e(f"v_add_u32 v2, {s(S_TMP)}, v1")
        e("v_lshlrev_b32 v3, 4, v2")
        e("v_mov_b32 v4, 0x200000")
        e("v_cmp_gt_u32 vcc, 336, v1")
        e("v_cndmask_b32 v3, v4, v3, vcc")
        e(f"s_lshl_b32 s48, {s(S_BLK)}, 3"); e(f"s_add_u32 s48, s48, {s(S_B)}")
        e(f"s_mul_i32 {s(S_TMP)}, s48, {16*86016}")
        e(f"s_add_u32 s44, s60, {s(S_TMP)}"); e("s_addc_u32 s45, s61, 0"); e(f"s_mov_b32 s46, {16*86016}"); e("s_mov_b32 s47, 0x20000")
        e("v_lshrrev_b32 v5, 8, v2"); e("v_mul_u32_u24 v6, 43, v5"); e("v_lshrrev_b32 v6, 7, v6")
        e("v_mul_u32_u24 v7, 3, v6"); e("v_sub_u32 v7, v5, v7")
        e("v_and_b32 v8, 15, v2"); e("v_lshl_add_u32 v8, v7, 5, v8"); e("v_mul_u32_u24 v8, 1792, v8")
        e("v_lshl_add_u32 v8, v6, 7, v8"); e("v_bfe_u32 v9, v2, 4, 4"); e("v_lshl_add_u32 v8, v9, 3, v8")
        e("v_cndmask_b32 v8, v4, v8, vcc")
        e(f"s_mul_i32 s49, {s(S_B)}, {96*1792}"); e(f"s_mul_i32 {s(S_TMP)}, {s(S_BLK)}, 896"); e(f"s_add_u32 s49, s49, {s(S_TMP)}")
        e.force_wait("vmcnt(0) lgkmcnt(0)")
        e("s_mov_b64 s[52:53], s[40:41]"); e(f"s_mov_b32 s54, {8*96*1792}"); e("s_mov_b32 s55, 0x20000")
        e.barrier()
        e(f"s_cmp_lg_u32 {s(S_W)}, 0"); e("s_cbranch_scc1 L_go")
        e("s_lshl_b32 s50, s48, 4")
        e("v_mov_b32 v10, s50"); e("v_mov_b32 v11, 1")
        e("s_mov_b64 exec, 1")
        e("global_atomic_add v12, v10, v11, s[42:43] sc0")
        e("s_mov_b32 s51, 0")
        e.force_wait("vmcnt(0)")
        e("v_add_u32 v12, 1, v12")
        e.label("L_poll")
        e("v_readfirstlane_b32 s50, v12")
        e("s_add_u32 s51, s51, 1")
        e("s_cmp_ge_u32 s50, 16"); e("s_cbranch_scc1 L_polled")
        e(f"s_cmp_ge_u32 s51, 200000"); e("s_cbranch_scc1 L_polled")
        if a.psleep: e(f"s_sleep {a.psleep}")
        e("global_load_dword v12, v10, s[42:43] sc1")
        e.force_wait("vmcnt(0)")
        e("s_branch L_poll")
        e.label("L_polled")
        e("s_mov_b64 exec, -1")
        e.label("L_go")
        e.barrier()
        self.stamp()
        e(f"s_cmp_ge_u32 {s(S_W)}, 6"); e("s_cbranch_scc1 L_end1")
        rp = self.pol(a.frpol)
        for h in range(16):
            e(f"s_mov_b32 {s(S_SO)}, {h*86016}")
            e(f"buffer_load_dwordx4 {v(32+4*h,4)}, v3, s[44:47], {s(S_SO)} offen{rp}")
        e("s_mov_b32 s50, 0xffff0000")
        for h in range(16):
            for k in range(4):
                r = 32 + 4 * h + k
                if h == 0:
                    e(f"v_lshlrev_b32 v{16+2*k}, 16, v{r}"); e(f"v_and_b32 v{17+2*k}, s50, v{r}")
                else:
                    e(f"v_lshlrev_b32 v{24+2*k}, 16, v{r}"); e(f"v_and_b32 v{25+2*k}, s50, v{r}")
                    e(f"v_pk_add_f32 {v(16+2*k,2)}, {v(16+2*k,2)}, {v(24+2*k,2)}")
        for k in range(4): e(f"v_cvt_pk_bf16_f32 v{24+k}, v{16+2*k}, v{17+2*k}")
        e("buffer_store_dwordx2 v[24:25], v8, s[52:55], s49 offen")
        e(f"s_add_u32 s49, s49, {16*1792}")
        e("buffer_store_dwordx2 v[26:27], v8, s[52:55], s49 offen")

    def maxpart(self, m, b, part, first):
        e = self.e
        if part == 0:
            if first:
                e(f"v_max3_f32 {v(m)}, {v(b)}, {v(b+1)}, {v(b+1)}")
            else:
                e(f"v_max3_f32 {v(m)}, {v(m)}, {v(b)}, {v(b+1)}")
            e(f"v_max3_f32 {v(m)}, {v(m)}, {v(b+2)}, {v(b+3)}"); e(f"v_max3_f32 {v(m)}, {v(m)}, {v(b+4)}, {v(b+5)}")
        elif part == 1:
            for k in (6, 8, 10): e(f"v_max3_f32 {v(m)}, {v(m)}, {v(b+k)}, {v(b+k+1)}")
        else:
            for k in (12, 14): e(f"v_max3_f32 {v(m)}, {v(m)}, {v(b+k)}, {v(b+k+1)}")

    def sums(self, T, SACC, SUM):
        e = self.e
        for qt in range(3):
            r = SACC(T, qt)
            for k in range(0, 8, 2): e(f"v_pk_add_f32 {v(r+k,2)}, {v(r+k,2)}, {v(r+8+k,2)}")
            for k in range(0, 4, 2): e(f"v_pk_add_f32 {v(r+k,2)}, {v(r+k,2)}, {v(r+4+k,2)}")
            e(f"v_pk_add_f32 {v(r,2)}, {v(r,2)}, {v(r+2,2)}")
            if T == 0: e(f"v_add_f32 {v(SUM+qt)}, {v(r)}, {v(r+1)}")
            else:
                e(f"v_add_f32 {v(r)}, {v(r)}, {v(r+1)}"); e(f"v_add_f32 {v(SUM+qt)}, {v(SUM+qt)}, {v(r)}")

    def store_cb(self, cb):
        e = self.e
        wp = self.pol(self.a.wpol)
        for qt in range(3):
            a0, a1 = self.ACC(cb, 2 * qt), self.ACC(cb, 2 * qt + 1)
            tt = a0
            e(f"v_cvt_pk_bf16_f32 {v(tt)}, {v(a0)}, {v(a0+1)}"); e(f"v_cvt_pk_bf16_f32 {v(tt+1)}, {v(a0+2)}, {v(a0+3)}")
            e(f"v_cvt_pk_bf16_f32 {v(tt+2)}, {v(a1)}, {v(a1+1)}"); e(f"v_cvt_pk_bf16_f32 {v(tt+3)}, {v(a1+2)}, {v(a1+3)}")
            e(f"buffer_store_dwordx4 {v(tt,4)}, v7, {s(S_R2,4)}, {s(S_ST)} offen{wp}", tag=("st", cb))
            if qt < 2: e(f"s_add_u32 {s(S_ST)}, {s(S_ST)}, 4096")
        e(f"s_add_u32 {s(S_ST)}, {s(S_ST)}, 4096"); e(f"s_cmp_eq_u32 {s(S_ST)}, 86016"); e(f"s_cselect_b32 {s(S_ST)}, 0, {s(S_ST)}")

    def kernel1(self):
        e = self.e
        self.oage = {}; self.sinfo = {}
        self.build_plan()
        e.label(NAME + "_kernel")
        self.prologue()
        snap = e.snapshot(); nst = self.nst
        self.role_A()
        e.restore(snap); self.nst = nst
        e.label("L_roleB")
        self.role_B()
        e.label("L_end1"); e("s_endpgm")

from gen1 import reducer, desc
ilist = lambda x: [int(t) for t in x.split(",") if t]

def main(argv=None):
    ap = argparse.ArgumentParser()
    ap.add_argument("-o", default="k3.s")
    ap.add_argument("--stamps", type=int, default=0)
    ap.add_argument("--stamp_ticks", type=ilist, default=[])
    ap.add_argument("--clk", type=int, default=0)
    ap.add_argument("--rot", type=int, default=1)
    ap.add_argument("--nkd", type=int, default=4)
    ap.add_argument("--la", type=float, default=6)
    ap.add_argument("--k0", type=int, default=1)
    ap.add_argument("--kticks", type=ilist, default=[2, 4, 6])
    ap.add_argument("--wrate", type=float, default=2.34)
    ap.add_argument("--alt1", type=int, default=0)
    ap.add_argument("--alt2", type=int, default=0)
    ap.add_argument("--lag", type=int, default=2)
    ap.add_argument("--qdrain", type=ilist, default=[0, 3])
    ap.add_argument("--odrain", type=ilist, default=[0])
    ap.add_argument("--kpre", type=int, default=2)
    ap.add_argument("--blag", type=int, default=1)
    ap.add_argument("--kmax", type=int, default=2)
    ap.add_argument("--kmax_from", type=int, default=99)
    ap.add_argument("--klag", type=int, default=2)
    ap.add_argument("--kburn", type=int, default=1)
    ap.add_argument("--kkeep", type=int, default=1)
    ap.add_argument("--vtr0", type=int, default=2)
    ap.add_argument("--vtr1", type=int, default=3)
    ap.add_argument("--lv0", type=int, default=10)
    ap.add_argument("--vmax0", type=int, default=3)
    ap.add_argument("--prio", type=int, default=0)
    ap.add_argument("--vend", type=int, default=2)
    ap.add_argument("--lv", type=int, default=6)
    ap.add_argument("--vmax", type=int, default=2)
    ap.add_argument("--lo", type=int, default=9)
    ap.add_argument("--omax", type=int, default=3)
    ap.add_argument("--ostart", type=int, default=4)
    ap.add_argument("--olag", type=int, default=2)
    ap.add_argument("--opn", type=int, default=2)
    ap.add_argument("--vres", type=int, default=0)
    ap.add_argument("--a_first", type=int, default=1)
    ap.add_argument("--b_first", type=int, default=1)
    ap.add_argument("--b_smx_issue", type=int, default=0)
    ap.add_argument("--defer", type=int, default=0)
    ap.add_argument("--kvpol", default="nt")
    ap.add_argument("--spol", default="")
    ap.add_argument("--wpol", default="sc1")
    ap.add_argument("--rpol", default="nt")
    ap.add_argument("--fused", type=int, default=0)
    ap.add_argument("--flag_lag", type=int, default=1)
    ap.add_argument("--astamp", type=int, default=8)
    ap.add_argument("--psleep", type=int, default=2)
    ap.add_argument("--frpol", default="sc1")
    ap.add_argument("--skip", default="")
    ap.add_argument("--padto", type=int, default=0)
    ap.add_argument("--verbose", action="store_true")
    a = ap.parse_args(argv)
    g = Gen(a); g.kernel1()
    out = HEADER
    if a.fused:
        out += "; @launch grid=(256,1,1) block=(512,1,1) lds=163840\n"
    else:
        out += f"; @launch kernel={NAME}_kernel grid=(256,1,1) block=(512,1,1) lds=163840\n"
        out += "; @launch kernel=reduce_kernel grid=(336,1,1) block=(256,1,1) lds=0\n"
    out += '.amdgcn_target "amdgcn-amd-amdhsa--gfx950"\n.text\n'
    out += f".globl {NAME}_kernel\n.p2align 8\n.type {NAME}_kernel,@function\n" + g.e.text()
    if not a.fused:
        rt = reducer(a).text().replace("v_mul_u32_u24 v3, 21504, v1", "v_lshlrev_b32 v3, 10, v1").replace("s_lshl_b32 s17, s13, 10", "s_lshl_b32 s17, s13, 12")
        out += ".globl reduce_kernel\n.p2align 8\n.type reduce_kernel,@function\n" + rt
    out += '.section .rodata,"a"\n.p2align 6\n' + desc(NAME + "_kernel", 256)
    if not a.fused: out += ".p2align 6\n" + desc("reduce_kernel", 80, 32)
    open(a.o, "w").write(out)
    print(f"{a.o}: k1 insts {g.e.ninst} (nops {g.e.nops}), ticks {len(g.plan)}, stamps {g.nst}", file=sys.stderr)

if __name__ == "__main__":
    main()
```

```python
import sys, argparse
from emit import Emitter

NAME = "concat_heads__mha_block_cached__mha_block_cached__near_ridge"
STAMP_OFF = 200 << 20
SLOT = 8192
STAT = 19 * SLOT
HEADER = open("cdna_kernels/" + NAME + ".s.ref").read().split("; Override launch")[0]

def v(a, n=1): return f"v{a}" if n == 1 else f"v[{a}:{a+n-1}]"
def s(a, n=1): return f"s{a}" if n == 1 else f"s[{a}:{a+n-1}]"

T0, T1 = 14, 15
S_R0, S_R1, S_R2 = 4, 8, 12
S_W, S_M0B, S_SO, S_TMP, S_C = 16, 17, 18, 19, 20
S_BLK, S_H, S_B, S_PP, S_U = 21, 22, 23, 24, 25
S_R7, S_R4, S_RB = 26, 27, 28
S_A0, S_A1, S_A2, S_A3, S_ST = 29, 30, 31, 32, 33
FLAG_OFF = 32 << 20
QBUF = [0, 12288]
PBUF = [0, 24576]
OBUF = [0, 0]

class Gen:
    def __init__(self, a):
        self.a = a
        self.e = Emitter()
        D = dict(mfma=("v_mfma",), ds=("ds_",), valu=("v_exp", "v_fma_f32", "v_max", "v_cvt_pk", "v_pk_", "v_mul_f32", "v_add_f32", "v_rcp"), store=("buffer_store",), dma=("buffer_load",))
        self.e.drop = tuple(x for k in a.skip.split(",") if k for x in D[k])
        self.nst = 0

    def stamp(self, wait=True):
        if self.a.stamps:
            i = self.nst; self.nst += 1
            assert i < 16
            self.e(f"{'s_memtime' if self.a.clk else 's_memrealtime'} {s(64+2*i,2)}")
            if wait: self.e.force_wait("lgkmcnt(0)")

    def pol(self, p): return (" " + p) if p else ""

    def issue(self, item, slot):
        e = self.e; a = self.a
        ty = item[0]
        sh, kv = self.pol(a.spol), self.pol(a.kvpol)
        if ty == "X":
            n = item[1]
            for j in range(3):
                e(f"s_add_u32 m0, {s(S_M0B)}, {(n%4)*12288 + j*4096}")
                e(f"s_add_u32 {s(S_SO)}, {s(S_A0)}, {j*32*896}")
                e(f"buffer_load_dwordx4 v1, {s(S_R0,4)}, {s(S_SO)} offen{sh} lds", tag=item)
            e(f"s_add_u32 {s(S_A0)}, {s(S_A0)}, 128"); e(f"s_cmp_eq_u32 {s(S_A0)}, 896"); e(f"s_cselect_b32 {s(S_A0)}, 0, {s(S_A0)}")
        elif ty == "W":
            c, n = divmod(item[1], 7)
            e(f"s_add_u32 m0, {s(S_M0B)}, {slot*SLOT}")
            e(f"s_add_u32 {s(S_SO)}, {s(S_A1)}, {s(S_A2)}")
            e(f"buffer_load_dwordx4 v2, {s(S_R1,4)}, {s(S_SO)} offen{sh} lds", tag=item)
            e(f"s_add_u32 m0, {s(S_M0B)}, {slot*SLOT+4096}")
            e(f"s_add_u32 {s(S_SO)}, {s(S_SO)}, {32*8192}")
            e(f"buffer_load_dwordx4 v2, {s(S_R1,4)}, {s(S_SO)} offen{sh} lds", tag=item)
            e(f"s_add_u32 {s(S_A1)}, {s(S_A1)}, {64*8192}"); e(f"s_cmp_eq_u32 {s(S_A1)}, {7*64*8192}"); e(f"s_cselect_b32 {s(S_A1)}, 0, {s(S_A1)}")
            if n == 6:
                e(f"s_add_u32 {s(S_A2)}, {s(S_A2)}, 128"); e(f"s_and_b32 {s(S_A2)}, {s(S_A2)}, 511")
        elif ty == "V":
            c, i = divmod(item[1], 8)
            if item[1] == 0: self.setup_dv()
            for j in range(2):
                e(f"s_add_u32 m0, {s(S_M0B)}, {slot*SLOT + j*4096}")
                e(f"s_add_u32 {s(S_SO)}, {s(S_A3)}, {(i*64+j*32)*512}")
                e(f"buffer_load_dwordx4 v1, {s(S_R2,4)}, {s(S_SO)} offen{kv} lds", tag=item)
            if i == 7:
                e(f"s_add_u32 {s(S_A3)}, {s(S_A3)}, 128"); e(f"s_and_b32 {s(S_A3)}, {s(S_A3)}, 511")
        elif ty == "K":
            c, T = divmod(item[1], 4)
            for p in range(4):
                e(f"s_add_u32 m0, {s(S_A3)}, {slot*SLOT + p*1024}")
                e(f"s_add_u32 {s(S_SO)}, {s(S_A0)}, {(128*T+8*p)*512}")
                e(f"buffer_load_dwordx4 v{1+(p&1)}, {s(S_R0,4)}, {s(S_SO)} offen{kv} lds", tag=item)
            if T == 3:
                e(f"s_add_u32 {s(S_A0)}, {s(S_A0)}, 128"); e(f"s_and_b32 {s(S_A0)}, {s(S_A0)}, 511")
        elif ty == "O":
            c, n = divmod(item[1], 7)
            e(f"s_add_u32 m0, {s(S_M0B)}, {slot*SLOT}")
            e(f"s_add_u32 {s(S_SO)}, {s(S_A1)}, {s(S_A2)}")
            e(f"buffer_load_dwordx4 v3, {s(S_R1,4)}, {s(S_SO)} offen{sh} lds", tag=item)
            e(f"s_add_u32 m0, {s(S_M0B)}, {slot*SLOT+4096}")
            e(f"s_add_u32 {s(S_SO)}, {s(S_SO)}, {32*896}")
            e(f"buffer_load_dwordx4 v3, {s(S_R1,4)}, {s(S_SO)} offen{sh} lds", tag=item)
            e(f"s_add_u32 {s(S_A2)}, {s(S_A2)}, 128"); e(f"s_cmp_eq_u32 {s(S_A2)}, 896"); e(f"s_cselect_b32 {s(S_A2)}, 0, {s(S_A2)}")
            if n == 6:
                e(f"s_add_u32 {s(S_A1)}, {s(S_A1)}, 57344"); e(f"s_cmp_eq_u32 {s(S_A1)}, {4*57344}"); e(f"s_cselect_b32 {s(S_A1)}, 0, {s(S_A1)}")

    def issue_parts(self, item, slot):
        class Rec:
            def __init__(s2): s2.l = []
            def __call__(s2, t, tag=None): s2.l.append((t, tag))
        real = self.e; rec = Rec(); self.e = rec
        self.issue(item, slot)
        self.e = real
        parts = []; cur = []
        for t, tag in rec.l:
            cur.append((t, tag))
            if t.startswith("buffer_load"): parts.append(cur); cur = []
        parts[-1] += cur
        return [(lambda p=p: [real(t, tag=tag) for t, tag in p]) for p in parts]

    def store_parts(self, cb):
        class Rec:
            def __init__(s2): s2.l = []
            def __call__(s2, t, tag=None): s2.l.append((t, tag))
        real = self.e; rec = Rec(); self.e = rec
        self.store_cb(cb)
        self.e = real
        L = rec.l
        parts = [[x] for x in L[:-3]]
        parts[-1] += L[-3:]
        return [(lambda p=p: [real(t, tag=tag) for t, tag in p]) for p in parts]

    def setup_dv(self):
        e = self.e
        e(f"v_bfe_u32 v46, v0, 4, 2"); e("v_lshlrev_b32 v46, 1, v46"); e("v_and_b32 v47, 7, v0"); e("v_xor_b32 v46, v46, v47"); e("v_lshlrev_b32 v46, 4, v46")
        e("v_lshrrev_b32 v1, 3, v0"); e("v_lshl_add_u32 v1, v1, 9, v46")

    def build_plan(self):
        a = self.a
        nkd = a.nkd
        kslots = [19 - 2 * (i + 1) for i in range(nkd)]
        self.KBASE = min(kslots)
        free = list(range(6, self.KBASE)) + [19]
        WONLY = {3, 4, 5, 19}
        kfree = sorted(kslots)
        plan = []
        slot = {}
        def newtick(bar=True):
            P = dict(bar=bar, A=dict(need=None, issue=[], act=[]), B=dict(need=None, issue=[], act=[])); plan.append(P); return P
        pend = []
        astr = []
        for n in range(7): astr += [("X", n), ("W", n)]
        astr += [("W", i) for i in range(7, 28)]
        ia = 0; ca = 0; xdone = 0
        ik = 0; ck = 0
        def cost(it): return 1.5 if it[0] == "X" else 1.0
        def issueA(P, la):
            nonlocal ia
            while ia < len(astr) and sum(cost(x) for x in astr[ca:ia + 1]) <= la:
                it = astr[ia]
                if it[0] == "X":
                    if it[1] - 4 >= xdone: break
                    P["A"]["issue"].append((it, None))
                else:
                    if not free: break
                    slot[it] = free.pop(0); P["A"]["issue"].append((it, slot[it]))
                ia += 1
        def issueK(P, n):
            nonlocal ik
            while n > 0 and ik < 16 and kfree:
                slot[("K", ik)] = kfree.pop(0); P["B"]["issue"].append((("K", ik), slot[("K", ik)])); ik += 1; n -= 1
        P = newtick(False); issueA(P, a.la); issueK(P, a.k0)
        P["A"]["act"].append(("init",)); P["B"]["act"].append(("init",))
        qwritten = -1; qready = -1; xread = 0
        tick = 0
        wacc = 0.0
        kage = {i: 0 for i in range(ik)}
        iv = 0
        def issueV(P, n):
            nonlocal iv
            while n > 0 and iv < 32 and [x for x in free if x not in WONLY]:
                slot[("V", iv)] = [x for x in free if x not in WONLY][0]; free.remove(slot[("V", iv)]); P["A"]["issue"].append((("V", iv), slot[("V", iv)])); iv += 1; n -= 1
        ckprev = 0; vinit = False; qdefer = None; io = 0; npark = 0; parked_free = []
        while ck < 16:
            tick += 1
            P = newtick()
            free += pend; pend = []; free.sort(); xdone = xread; qready = qwritten; ckprev = ck
            kfree += parked_free; parked_free = []
            if qdefer is not None:
                qwritten = qdefer; qdefer = None; P["A"]["act"].append(("flushw",))
            if ca < 14: n = 2
            else:
                wacc += a.wrate; n = int(wacc + 1e-9); wacc -= n
            took = []
            while n > 0 and ca < min(ia, len(astr)):
                it = astr[ca]
                if it[0] == "W" and it[1] % 7 == 6 and it[1] // 7 >= 2 and ckprev < 4 * (it[1] // 7 - 1):
                    break
                took.append(it); ca += 1; n -= 1
                if it[0] == "X":
                    P["A"]["act"].append(("X", it[1])); xread = it[1] + 1
                    if it[1] == 6: pend += [3, 4, 5]
                else:
                    P["A"]["act"].append(("W", it[1], slot[it])); pend.append(slot[it])
                    if it[1] % 7 == 6:
                        cq = it[1] // 7
                        if a.lag == 0 or cq in a.qdrain:
                            P["A"]["act"].append(("drain",)); qwritten = cq; break
                        else: qdefer = cq
            if qdefer is not None and took[-1] != ("W", 7 * qdefer + 6):
                qwritten = qdefer; qdefer = None; P["A"]["act"].append(("flushw",))
            if took: P["A"]["need"] = took[-1]
            if not a.alt1 or tick < 8 or tick % 2 == 1: issueA(P, a.la)
            if qready == 3 and not vinit:
                P["A"]["act"].append(("initv",)); vinit = True
            if qready < 0 and npark < a.park and npark < ik and tick - kage[npark] >= 2:
                P["B"]["act"].append(("Kpark", npark)); parked_free.append(slot[("K", npark)]); self.parked.add(npark); npark += 1
            if qwritten == 0 and qready < 0 and 0 not in self.parked: P["B"]["act"].append(("Kpre", 0))
            issued = False
            n = a.kmax if (ca == len(astr) and not took) or tick >= a.kmax_from else 1
            last = ik == 16 and qready == 3 and 16 - ck <= a.kburn
            while ck < ik and ck // 4 <= qready and (last or (n > 0 and tick - kage[ck] >= a.klag)):
                sl = slot[("K", ck)]
                P["B"]["act"].append(("S", ck, sl)); self.sinfo[ck] = (tick, qready); ck += 1; n -= 1
                if ck - 1 in self.parked:
                    n += a.parkfast if len([x for x in P["B"]["act"] if x[0] == "S"]) < 2 else 0
                    continue
                if a.alt1 and ia < len(astr):
                    if tick % 2 == 0 and ik < 16 and (kfree or tick == 8):
                        if kfree:
                            k2_ = kfree.pop(0); slot[("K", ik)] = k2_; P["B"]["issue"].append((("K", ik), k2_)); kage[ik] = tick; ik += 1
                        if ik < 16:
                            slot[("K", ik)] = sl; P["B"]["act"].append(("issue", ("K", ik), sl)); kage[ik] = tick; ik += 1
                        else: kfree.append(sl)
                    else: kfree.append(sl)
                    issued = True
                elif ik < 16 and not issued and not kfree:
                    slot[("K", ik)] = sl; P["B"]["act"].append(("issue", ("K", ik), sl)); kage[ik] = tick; ik += 1; issued = True
                else:
                    kfree.append(sl)
            if not issued and ik < 16 and (tick in a.kticks or tick >= 8):
                cand = [x for x in kfree if not any(ac[0] == "S" and ac[2] == x and ac[1] not in self.parked for ac in P["B"]["act"])]
                if cand:
                    kfree.remove(cand[0]); slot[("K", ik)] = cand[0]; P["B"]["issue"].append((("K", ik), cand[0])); kage[ik] = tick; ik += 1
            while tick >= 8 and len(kfree) > min(16 - ik, a.kkeep):
                k = kfree.pop(0); pend += [k, k + 1]
            if ia == len(astr) and tick >= a.oe_from:
                n = a.oe_rate
                while n > 0 and io < a.oearly and [x for x in free if x not in WONLY]:
                    sl = [x for x in free if x not in WONLY][-1]; free.remove(sl)
                    slot[("O", io)] = sl; P["B"]["issue"].append((("O", io), sl)); self.oage[("O", io)] = -9; io += 1; n -= 1
            if ik == 16 and kage[15] < tick and ia == len(astr):
                issueV(P, a.vtr0 if last else 2)
            assert tick < 100
        assert vinit
        self.kage = kage; self.kslot = {i: slot[("K", i)] for i in range(16)}
        P["B"]["act"].append(("maxw",))
        P = newtick()
        free += pend; pend = []; free.sort()
        assert not kfree and all(x in free for x in WONLY)
        for x in sorted(WONLY): free.remove(x)
        WONLY.clear()
        P["B"]["act"] += [("maxr",), ("smx", 0)]
        issueV(P, a.vtr1)
        ostr = [("O", i) for i in range(28)]
        co = 0; cv = 0
        pw = 0
        oready = oloaded = owritten = -1
        odefer = None
        t2 = 0
        while cv < 32 or co < 28 or oloaded < 3:
            t2 += 1
            P = newtick()
            free += pend; pend = []; free.sort(); oready = owritten
            if odefer is not None:
                owritten = odefer; odefer = None; P["A"]["act"].append(("flushw",))
            if t2 <= 4:
                P["A"]["act"].append(("pread", t2 - 1))
                if t2 <= 3: P["B"]["act"].append(("smx", t2))
                if t2 == 4: P["B"]["act"].append(("inito",)); pend += [2, 3, 4, 5]
            if t2 == 5: pend += [19]
            if cv < 32:
                if t2 <= 4: nvt = 2
                elif cv >= 32 - a.vend: nvt = 1
                else:
                    nvt = max(2 if iv < 32 or cv + 2 <= 32 - a.vend else 1, min(a.vcmax, iv - a.lc - cv))
                    nvt = min(nvt, 32 - a.vend - cv)
                nvt = min(nvt, iv - cv)
                k = 0
                while k < nvt:
                    if (cv + 1) % 8 == 0 and oloaded < (cv + 1) // 8 - 2: break
                    P["A"]["act"].append(("V", cv, slot[("V", cv)])); pend.append(slot[("V", cv)]); P["A"]["need"] = ("V", cv); cv += 1; k += 1
                    if cv % 8 == 0:
                        if k < nvt and a.lag:
                            P["A"]["act"].append(("flushw",)); owritten = cv // 8 - 1
                        elif a.lag == 0 or cv == 32 or (cv // 8 - 1) in a.odrain:
                            P["A"]["act"].append(("drain",)); owritten = cv // 8 - 1
                        else: odefer = cv // 8 - 1
                if cv >= 32 - a.vend: P["A"]["act"].append(("drain",))
            if oloaded < oready and co == 7 * (oloaded + 1):
                oloaded += 1; P["B"]["act"].append(("oread", oloaded))
            nop = 7 if oloaded == 3 else a.opn
            while nop > 0 and co < 7 * (oloaded + 1) and co < io and (("O", co) in self.oage and t2 - self.oage[("O", co)] >= a.olag or cv >= 32):
                P["B"]["act"].append(("O", co, slot[("O", co)])); pend.append(slot[("O", co)]); P["B"]["need"] = ("O", co); co += 1; nop -= 1
            lv = a.lv0 if t2 <= 4 else a.lv
            if t2 <= 4 or not a.alt2 or t2 % 2 == 0 or io == 28:
                issueV(P, max(0, min(a.vmax0 if t2 <= 4 else a.vmax, cv + lv - iv)))
            if t2 >= a.ostart and (not a.alt2 or t2 % 2 == 1 or iv == 32):
                n = a.omax
                while n > 0 and io < 28 and free and io < co + a.lo and len(free) > (1 if iv < 32 else 0) * a.vres:
                    slot[("O", io)] = free.pop(); P["B"]["issue"].append((("O", io), slot[("O", io)])); self.oage[("O", io)] = t2; io += 1; n -= 1
            assert t2 < 100, "plan stuck"
        self.plan = plan
        if a.verbose:
            f = lambda L: " ".join(str(x[0]) + (str(x[1]) if len(x) > 1 else "") for x in L)
            g = lambda L: " ".join(f"{x[0][0]}{x[0][1]}@{x[1]}" for x in L)
            for i, P in enumerate(plan):
                print(f"{i:2d} A[need {P['A']['need']} iss {g(P['A']['issue'])} act {f(P['A']['act'])}]  B[need {P['B']['need']} iss {g(P['B']['issue'])} act {f(P['B']['act'])}]", file=sys.stderr)

    def prologue(self):
        e = self.e; a = self.a
        e("s_cmp_ge_u32 s2, 256"); e("s_cbranch_scc1 L_end1")
        e("s_load_dwordx16 s[40:55], s[0:1], 0")
        e("s_load_dwordx4 s[56:59], s[0:1], 64")
        e("s_load_dwordx2 s[60:61], s[0:1], 96")
        self.stamp(wait=False)
        if a.padto: e("s_memrealtime s[96:97]")
        e("s_and_b32 s3, s2, 7"); e("s_lshr_b32 s39, s2, 3")
        e(f"s_lshr_b32 {s(S_PP)}, s39, 3"); e("s_lshl_b32 s3, s3, 2"); e(f"s_add_u32 s3, s3, {s(S_PP)}")
        e(f"s_lshr_b32 {s(S_BLK)}, s3, 4"); e(f"s_and_b32 {s(S_H)}, s3, 15"); e(f"s_and_b32 {s(S_B)}, s39, 7")
        e(f"v_lshrrev_b32 {v(T0)}, 6, v0")
        e(f"v_readfirstlane_b32 {s(S_W)}, {v(T0)}")
        e("v_and_b32 v0, 255, v0")
        if a.rot:
            e(f"s_lshr_b32 {s(S_RB)}, {s(S_B)}, 2"); e(f"s_and_b32 {s(S_R4)}, {s(S_B)}, 3")
            e(f"s_mul_i32 {s(S_RB)}, {s(S_RB)}, 3")
            e(f"s_lshl_b32 {s(S_R7)}, {s(S_PP)}, 1"); e(f"s_add_u32 {s(S_R7)}, {s(S_R7)}, {s(S_RB)}")
            e(f"s_cmp_ge_u32 {s(S_R7)}, 7"); e(f"s_cselect_b32 {s(S_TMP)}, 7, 0"); e(f"s_sub_u32 {s(S_R7)}, {s(S_R7)}, {s(S_TMP)}")
        else:
            for r in (S_R7, S_R4, S_RB): e(f"s_mov_b32 {s(r)}, 0")
        e(f"s_and_b32 {s(S_U)}, {s(S_W)}, 3"); e(f"s_lshl_b32 {s(S_M0B)}, {s(S_U)}, 10")
        e(f"s_lshl_b32 s34, {s(S_B)}, 4"); e(f"s_add_u32 s34, s34, {s(S_H)}"); e("s_lshl_b32 s35, s34, 18")
        for S in (S_R0, S_R1, S_R2): e(f"s_mov_b32 {s(S+3)}, 0x20000")
        e(f"s_cmp_ge_u32 {s(S_W)}, 4"); e("s_cbranch_scc1 L_roleB")

    def bar(self, P, R):
        e = self.e
        if P["bar"]:
            need = P[R]["need"]
            if need is not None: e.wait_tag(need, lgkm=0)
            else: e.wait(lgkm=0)
            e.barrier()

    def role_A(self):
        e = self.e; a = self.a
        ACC = 16; LINV = 40; XA = 43; QA = 45
        UB = [4, 48, 56]
        VA0, VA1, OA = 3, 12, 13
        FR = lambda qt, kap: 64 + (kap * 3 + qt) * 4
        e("v_lshrrev_b32 v46, 3, v0"); e("v_and_b32 v47, 7, v0")
        e(f"v_bfe_u32 {v(T0)}, v0, 4, 3"); e(f"v_xor_b32 {v(T0)}, {v(T0)}, v47"); e(f"v_lshlrev_b32 {v(T0)}, 4, {v(T0)}")
        e("v_mul_u32_u24 v1, 896, v46"); e(f"v_add_u32 v1, v1, {v(T0)}")
        e(f"v_bfe_u32 {v(T0)}, v0, 4, 1"); e(f"v_bfe_u32 {v(T1)}, v0, 6, 1"); e(f"v_lshl_add_u32 {v(T0)}, {v(T1)}, 1, {v(T0)}")
        e(f"v_lshlrev_b32 {v(T0)}, 1, {v(T0)}"); e(f"v_xor_b32 {v(T0)}, {v(T0)}, v47"); e(f"v_lshlrev_b32 {v(T0)}, 4, {v(T0)}")
        e(f"v_lshl_add_u32 v2, v46, 13, {v(T0)}")
        e(f"s_lshl_b32 {s(S_A0)}, {s(S_R7)}, 7"); e(f"s_lshl_b32 {s(S_A1)}, {s(S_R7)}, 19"); e(f"s_lshl_b32 {s(S_A2)}, {s(S_R4)}, 7"); e(f"s_mov_b32 {s(S_A3)}, {s(S_A2)}")
        e(f"s_mov_b32 {s(S_R0+2)}, 86016"); e(f"s_mov_b32 {s(S_R1+2)}, {447*8192+512}"); e(f"s_mov_b32 {s(S_R2+2)}, 262144")
        e(f"s_mul_i32 s36, {s(S_B)}, 86016"); e(f"s_lshl_b32 s37, {s(S_H)}, 9")
        e(f"s_cmp_eq_u32 {s(S_BLK)}, 0")
        e.wait(lgkm=0)
        e(f"s_cselect_b64 {s(S_R0,2)}, s[40:41], s[50:51]")
        e(f"s_cselect_b64 {s(S_R1,2)}, s[46:47], s[56:57]")
        e(f"s_cselect_b64 {s(S_R2,2)}, s[44:45], s[54:55]")
        for S, o in ((S_R0, 36), (S_R1, 37), (S_R2, 35)):
            e(f"s_add_u32 {s(S)}, {s(S)}, s{o}"); e(f"s_addc_u32 {s(S+1)}, {s(S+1)}, 0")
        pending = []
        for ti, P in enumerate(self.plan):
            self.bar(P, "A")
            iss = list(P["A"]["issue"])
            acts = P["A"]["act"]
            units = []
            for act in acts:
                if act[0] in "WV": units += [(act[0], act[1], act[2], 0), (act[0], act[1], act[2], 1)]
            def uread(u, b):
                ty, i, sl, k2 = u
                second = 512 if ty == "W" else 1024
                if k2 == 0:
                    e(f"v_add_u32 {v(T0)}, {sl*SLOT}, {v(VA0)}"); e(f"v_add_u32 {v(T1)}, {sl*SLOT}, {v(VA1)}")
                for dt in range(2):
                    e(f"ds_read_b64_tr_b16 {v(b+4*dt,2)}, {v(T0+dt)} offset:{4096*k2}")
                    e(f"ds_read_b64_tr_b16 {v(b+4*dt+2,2)}, {v(T0+dt)} offset:{4096*k2+second}")
            def umfma(u, b):
                ty, i, sl, k2 = u
                kap = 2 * (i % (7 if ty == "W" else 8)) + k2
                for dt in range(2):
                    for qt in range(3):
                        acc = ACC + 12 * dt + 4 * qt
                        c = "0" if kap == 0 else v(acc, 4)
                        e(f"v_mfma_f32_16x16x32_bf16 {v(acc,4)}, {v(b+4*dt,4)}, {v(FR(qt,kap),4)}, {c}")
            for act in acts:
                if act[0] == "init":
                    for it in iss: self.issue(*it)
                    iss = []
                    e(f"v_and_b32 {v(T0)}, 15, v0"); e(f"v_bfe_u32 {v(T1)}, v0, 7, 1"); e(f"v_lshl_add_u32 v46, {v(T1)}, 4, {v(T0)}")
                    e(f"v_bfe_u32 {v(T0)}, v0, 1, 3"); e(f"v_bfe_u32 {v(T1)}, v0, 4, 2"); e(f"v_xor_b32 {v(T1)}, {v(T1)}, {v(T0)}"); e(f"v_lshlrev_b32 {v(T1)}, 4, {v(T1)}")
                    e(f"v_lshl_add_u32 {v(XA)}, v46, 7, {v(T1)}"); e(f"v_xor_b32 {v(XA+1)}, 64, {v(XA)}")
                    e(f"v_bfe_u32 {v(T1)}, v0, 5, 1"); e(f"v_bfe_u32 v47, v0, 6, 1"); e(f"v_lshl_add_u32 {v(T1)}, v47, 2, {v(T1)}")
                    e(f"v_xor_b32 {v(T1)}, {v(T1)}, {v(T0)}"); e(f"v_lshlrev_b32 {v(T1)}, 4, {v(T1)}"); e(f"v_lshl_add_u32 {v(QA)}, v46, 7, {v(T1)}")
                    e(f"v_bfe_u32 {v(T1)}, v0, 4, 1"); e(f"v_lshl_add_u32 {v(QA)}, {v(T1)}, 3, {v(QA)}"); e(f"v_xor_b32 v13, 32, {v(QA)}")
                    e(f"v_bfe_u32 {v(T0)}, v0, 2, 2"); e(f"v_bfe_u32 {v(T1)}, v0, 4, 2")
                    e(f"v_lshl_add_u32 {v(VA0)}, {v(T1)}, 3, {v(T0)}"); e(f"v_lshlrev_b32 {v(VA0)}, 7, {v(VA0)}")
                    e(f"v_bfe_u32 {v(T0)}, v0, 3, 2"); e(f"v_lshlrev_b32 {v(T1)}, 1, v47")
                    e(f"v_xor_b32 {v(T0)}, {v(T0)}, {v(T1)}"); e(f"v_lshl_add_u32 {v(VA0)}, {v(T0)}, 5, {v(VA0)}")
                    e(f"v_and_b32 {v(T0)}, 3, v0"); e(f"v_lshl_add_u32 {v(VA0)}, {v(T0)}, 3, {v(VA0)}")
                    e(f"v_xor_b32 {v(VA1)}, 32, {v(VA0)}")
                elif act[0] == "X":
                    n = act[1]
                    for k2 in range(2):
                        for qt in range(3):
                            e(f"ds_read_b128 {v(FR(qt, 2*n+k2),4)}, {v(XA+k2)} offset:{(n%4)*12288 + qt*4096}")
                elif act[0] == "initv":
                    if a.fused == 3:
                        self.flag_srd()
                        e(f"s_or_b32 {s(S_TMP)}, {s(S_H)}, {s(S_W)}"); e(f"s_cmp_lg_u32 {s(S_TMP)}, 0"); e("s_cbranch_scc1 L_noz")
                        e("v_lshlrev_b32 v46, 13, v0"); e("v_mov_b32 v47, 0")
                        e("buffer_store_dword v47, v46, s[36:39], 0 offen sc1")
                        e.force_wait("vmcnt(0)")
                        e("v_mov_b32 v47, 1")
                        e("buffer_atomic_add v47, v46, s[40:43], s63 offen")
                        e.force_wait("vmcnt(0)")
                        e.label("L_noz")
                    e(f"v_bfe_u32 {v(T0)}, v0, 2, 3"); e(f"v_bfe_u32 {v(T1)}, v0, 5, 1")
                    e(f"v_lshl_add_u32 {v(VA0)}, {v(T1)}, 4, {v(T0)}"); e(f"v_lshlrev_b32 {v(VA0)}, 7, {v(VA0)}")
                    e(f"v_bfe_u32 {v(T0)}, v0, 3, 2"); e(f"v_bfe_u32 {v(T1)}, v0, 6, 1"); e(f"v_lshlrev_b32 {v(T1)}, 1, {v(T1)}")
                    e(f"v_xor_b32 {v(T0)}, {v(T0)}, {v(T1)}"); e(f"v_lshl_add_u32 {v(VA0)}, {v(T0)}, 5, {v(VA0)}")
                    e(f"v_and_b32 {v(T0)}, 3, v0"); e(f"v_lshl_add_u32 {v(VA0)}, {v(T0)}, 3, {v(VA0)}")
                    e(f"v_xor_b32 {v(VA1)}, 32, {v(VA0)}")
                    e(f"v_and_b32 {v(T0)}, 63, v0"); e(f"v_lshlrev_b32 {v(XA)}, 4, {v(T0)}")
                    e(f"v_bfe_u32 {v(T0)}, v0, 7, 1"); e(f"v_lshl_add_u32 {v(XA)}, {v(T0)}, 10, {v(XA)}")
                    e(f"v_bfe_u32 {v(T1)}, v0, 6, 1"); e(f"v_mul_u32_u24 {v(T1)}, 6144, {v(T1)}"); e(f"v_add_u32 {v(OA)}, {v(XA)}, {v(T1)}")
                    e(f"v_and_b32 {v(T1)}, 15, v0"); e(f"v_lshl_add_u32 {v(T0)}, {v(T0)}, 4, {v(T1)}"); e(f"v_lshlrev_b32 {v(T0)}, 5, {v(T0)}")
                    e(f"v_add_u32 {v(XA+1)}, {STAT+4096}, {v(T0)}")
                elif act[0] == "pread":
                    T = act[1]
                    for u in range(4):
                        for qt in range(3):
                            e(f"ds_read_b128 {v(FR(qt, 4*T+u),4)}, {v(XA)} offset:{PBUF[T%2] + u*6144 + qt*2048}")
            def linv(tb):
                for k in range(2): e(f"ds_read_b128 {v(tb+4*k,4)}, {v(XA+1)} offset:{16*k}")
                for qt in range(3):
                    b = tb
                    for k in range(4): e(f"v_add_f32 {v(b+k)}, {v(b+k)}, {v(b+4+k)}")
                    e(f"v_add_f32 {v(b)}, {v(b)}, {v(b+2)}"); e(f"v_add_f32 {v(b+1)}, {v(b+1)}, {v(b+3)}")
                    e(f"v_add_f32 {v(LINV+qt)}, {v(b)}, {v(b+1)}")
                    if qt < 2:
                        for k in range(2): e(f"ds_read_b128 {v(tb+4*k,4)}, {v(XA+1)} offset:{(qt+1)*1024+16*k}")
                    e(f"v_rcp_f32 {v(LINV+qt)}, {v(LINV+qt)}")
            def write_out(ty, c, tb):
                if ty == "W":
                    for qt in range(3):
                        for dt in range(2):
                            acc = ACC + 12 * dt + 4 * qt; tt = tb + 2 * ((2 * qt + dt) % 4)
                            e(f"v_cvt_pk_bf16_f32 {v(tt)}, {v(acc)}, {v(acc+1)}"); e(f"v_cvt_pk_bf16_f32 {v(tt+1)}, {v(acc+2)}, {v(acc+3)}")
                            e(f"ds_write_b64 {v(QA if dt == 0 else 13)}, {v(tt,2)} offset:{QBUF[c%2] + qt*4096}")
                else:
                    if c == 0: linv(tb)
                    for qt in range(3):
                        tt = tb + 4 * (qt % 2)
                        for dt in range(2):
                            acc = ACC + 12 * dt + 4 * qt
                            for k in range(4): e(f"v_mul_f32 {v(acc+k)}, {v(LINV+qt)}, {v(acc+k)}")
                            e(f"v_cvt_pk_bf16_f32 {v(tt+2*dt)}, {v(acc)}, {v(acc+1)}"); e(f"v_cvt_pk_bf16_f32 {v(tt+2*dt+1)}, {v(acc+2)}, {v(acc+3)}")
                        e(f"ds_write_b128 {v(OA)}, {v(tt,4)} offset:{OBUF[c%2] + qt*2048}")
            def pop():
                u, b = pending.pop(0)
                umfma(u, b)
                per = 7 if u[0] == "W" else 8
                if u[1] % per == per - 1 and u[3] == 1:
                    write_out(u[0], u[1] // per, b); return True
                return False
            names = [x[0] for x in acts]
            nis = 0
            wrote = False
            for k, u in enumerate(units):
                while len(pending) >= 3: wrote |= pop()
                b = [x for x in UB if x not in [p[1] for p in pending]][0]
                uread(u, b); pending.append((u, b))
                if len(pending) > a.lag and (a.lag > 0 or k >= min(2, len(units) - 1)) :
                    if nis < a.a_first and iss: self.issue(*iss.pop(0)); nis += 1
                    wrote |= pop()
                if iss and k % 2 == 1: self.issue(*iss.pop(0))
            if "drain" in names or not units or a.lag == 0:
                while pending: wrote |= pop()
            if "flushw" in names:
                while not wrote and pending: wrote |= pop()
            for it in iss: self.issue(*it)
        if a.fused == 3:
            e(f"s_cmp_lg_u32 {s(S_W)}, 0"); e("s_cbranch_scc1 L_red")
            e("v_mov_b32 v6, 0")
            self.poll("L_pc", "buffer_load_dword v10, v6, s[40:43], s63 offen sc1", "v_cmp_le_u32 vcc, 1, v10")
        if a.fused in (1, 3): e("s_branch L_red")
        else:
            if a.fused == 2: self.staged_reduce()
            e("s_endpgm")

    def role_B(self):
        e = self.e; a = self.a
        KA, QA = 4, 8
        KF = 16; QF = 32; M = 56; SUM = 59
        SACC = lambda T, qt: 64 + (T * 3 + qt) * 16
        ACC = lambda cb, q6: 64 + 24 * cb + 4 * q6
        self.ACC = ACC
        OF = lambda k2, q6: 16 + 4 * (6 * k2 + q6)
        WB = [232, 240, 248]
        e(f"v_bfe_u32 {v(T0)}, v0, 3, 3"); e(f"v_lshrrev_b32 {v(T1)}, 6, v0"); e(f"v_lshl_add_u32 {v(T0)}, {v(T1)}, 5, {v(T0)}")
        e("v_and_b32 v12, 7, v0"); e(f"v_bfe_u32 {v(T1)}, v0, 4, 2"); e(f"v_xor_b32 v13, v12, {v(T1)}"); e("v_lshlrev_b32 v13, 4, v13")
        e(f"v_lshl_add_u32 v1, {v(T0)}, 9, v13"); e("v_xor_b32 v2, 64, v1")
        e(f"s_lshl_b32 {s(S_A0)}, {s(S_R4)}, 7"); e(f"s_mul_i32 {s(S_A1)}, {s(S_R4)}, 57344"); e(f"s_lshl_b32 {s(S_A2)}, {s(S_RB)}, 7")
        e(f"s_lshl_b32 {s(S_A3)}, {s(S_U)}, 12"); e(f"s_mul_i32 {s(S_ST)}, {s(S_RB)}, 12288")
        e(f"s_mov_b32 {s(S_R0+2)}, 262144"); e(f"s_mov_b32 {s(S_R1+2)}, 229376"); e(f"s_mov_b32 {s(S_R2+2)}, 86016")
        e(f"s_mul_i32 s36, {s(S_H)}, 229376")
        e(f"s_lshl_b32 s37, {s(S_BLK)}, 7"); e("s_add_u32 s37, s37, s34"); e("s_mul_i32 s37, s37, 86016")
        e(f"s_cmp_eq_u32 {s(S_BLK)}, 0")
        e.wait(lgkm=0)
        e(f"s_cselect_b64 {s(S_R0,2)}, s[42:43], s[52:53]")
        e(f"s_cselect_b64 {s(S_R1,2)}, s[48:49], s[58:59]")
        e(f"s_mov_b64 {s(S_R2,2)}, s[60:61]")
        for S, o in ((S_R0, 35), (S_R1, 36), (S_R2, 37)):
            e(f"s_add_u32 {s(S)}, {s(S)}, s{o}"); e(f"s_addc_u32 {s(S+1)}, {s(S+1)}, 0")
        if a.prio >= 2: e("s_setprio 1")
        kpre = qpre = -1
        def qrd(i, n):
            ks, qt = divmod(n, 3)
            e(f"ds_read_b128 {v(QF+4*(n%6),4)}, {v(QA+ks)} offset:{QBUF[(i//4)%2] + qt*4096}")
        def kreg(i): return SACC(3, i) if i in self.parked else KF
        def kread(i, ks):
            e(f"ds_read_b128 {v(kreg(i)+4*ks,4)}, {v(KA+ks)} offset:{(self.kslot[i]-self.KBASE)*SLOT}")
        phase1 = True
        opend = []
        for ti, P in enumerate(self.plan):
            if any(x[0] == "maxr" for x in P["B"]["act"]): phase1 = False
            if phase1:
                if P["bar"]: e.barrier()
            else: self.bar(P, "B")
            if ti in a.stamp_ticks: self.stamp()
            if a.fused == 2 and ti == 9:
                assert not any(t == "fz" for t, _ in e.vm)
                e("v_lshlrev_b32 v62, 8, v0"); e("v_mov_b32 v63, 1")
                e("buffer_atomic_add v63, v62, s[40:43], s63 offen")
            iss = list(P["B"]["issue"])
            acts = P["B"]["act"]
            for ai, act in enumerate(acts):
                if act[0] == "init":
                    for it in iss: self.issue(*it)
                    iss = []
                    e(f"s_mov_b32 {s(S_C)}, 0x3db8aa3b")
                    if a.fused == 2:
                        self.flag_srd()
                        e(f"s_lshl_b32 s62, {s(S_H)}, 2"); e(f"s_add_u32 s62, s62, {s(S_U)}"); e("s_lshl_b32 s62, s62, 7")
                        e("v_and_b32 v62, 63, v0"); e("v_lshlrev_b32 v62, 13, v62"); e("v_mov_b32 v63, 0")
                        e("buffer_store_dword v63, v62, s[36:39], s62 offen sc1", tag="fz")
                    e(f"v_lshlrev_b32 {v(T1)}, 1, {v(T1)}"); e(f"v_xor_b32 {v(T1)}, {v(T1)}, v12"); e(f"v_lshlrev_b32 {v(T1)}, 4, {v(T1)}")
                    e("v_lshrrev_b32 v3, 3, v0"); e("v_mul_u32_u24 v3, 896, v3"); e(f"v_add_u32 v3, v3, {v(T1)}")
                    e(f"v_and_b32 {v(T0)}, 31, v0"); e(f"v_bfe_u32 {v(T1)}, v0, 1, 3"); e("v_bfe_u32 v12, v0, 5, 1"); e(f"v_xor_b32 {v(T1)}, {v(T1)}, v12")
                    e(f"v_lshlrev_b32 {v(T1)}, 4, {v(T1)}"); e(f"v_lshl_add_u32 {v(QA)}, {v(T0)}, 7, {v(T1)}")
                    for ks in range(1, 4): e(f"v_xor_b32 {v(QA+ks)}, {32*ks}, {v(QA)}")
                    e(f"s_add_u32 {s(S_TMP)}, {s(S_A3)}, {self.KBASE*SLOT}")
                    for ks in range(4): e(f"v_add_u32 {v(KA+ks)}, {s(S_TMP)}, {v(QA+ks)}")
                    e(f"v_lshlrev_b32 {v(T0)}, 5, {v(T0)}"); e(f"v_add_u32 v13, {STAT}, {v(T0)}")
                    e(f"v_lshrrev_b32 {v(T1)}, 5, v0"); e(f"v_lshl_add_u32 v12, {v(T1)}, 2, v13")
                elif act[0] == "Kpark":
                    for it in iss: self.issue(*it)
                    iss = []
                    e.wait_tag(("K", act[1]))
                    for ks in range(4): kread(act[1], ks)
                    e.wait(lgkm=0)
                elif act[0] == "Kpre":
                    e.wait_tag(("K", 0))
                    for ks in range(4): kread(0, ks)
                    kpre = 0; qpre = -1
                elif act[0] == "S":
                    _, i, sl = act
                    c, T = divmod(i, 4)
                    seq = [(ks, qt) for ks in range(4) for qt in range(3)]
                    dma = []
                    for it in iss: dma += self.issue_parts(*it)
                    iss = []
                    if qpre != i:
                        for n in range(3): qrd(i, n)
                    if kpre != i and i not in self.parked:
                        while dma: dma.pop(0)()
                        e.wait_tag(("K", i))
                        for ks in range(4): kread(i, ks)
                    if qpre != i:
                        for n in range(3, 6): qrd(i, n)
                    own = []
                    if ai + 1 < len(acts) and acts[ai + 1][0] == "issue": own = self.issue_parts(acts[ai + 1][1], acts[ai + 1][2])
                    mode = None; qok = False
                    if i + 1 < 16 and self.kage[i + 1] < ti:
                        mode = "roll" if ti - self.kage[i + 1] >= a.kpre else "after"
                        if i + 1 in self.parked: mode = None
                        qok = (i + 1) // 4 <= self.sinfo[i][1]
                    for n, (ks, qt) in enumerate(seq):
                        cc = "0" if (c == 0 and ks == 0) else v(SACC(T, qt), 16)
                        e(f"v_mfma_f32_32x32x16_bf16 {v(SACC(T,qt),16)}, {v(kreg(i)+4*ks,4)}, {v(QF+4*(n%6),4)}, {cc}")
                        if n + 6 < 12: qrd(i, n + 6)
                        elif qok: qrd(i + 1, n - 6)
                        if mode == "roll" and qt == 2:
                            if ks == 0: e.wait_tag(("K", i + 1))
                            kread(i + 1, ks)
                        if n == 0 and own:
                            e.wait_regs(set(range(KF, KF + 16)))
                            dma += own
                        if dma and n % 2 == 0: dma.pop(0)()
                        if c == 3 and T > 0 and n >= 3 and (n - 3) < 9:
                            qq, part = divmod(n - 3, 3)
                            self.maxpart(M + qq, SACC(T - 1, qq), part, first=(T == 1))
                    while dma: dma.pop(0)()
                    if mode == "after":
                        e.wait_tag(("K", i + 1))
                        for ks in range(4): kread(i + 1, ks)
                    kpre = i + 1 if mode else -1
                    qpre = i + 1 if qok else -1
                elif act[0] == "maxw":
                    self.stamp()
                    for qt in range(3):
                        for part in range(3): self.maxpart(M + qt, SACC(3, qt), part, first=False)
                        e(f"ds_write_b32 v12, {v(M+qt)} offset:{qt*1024}")
                elif act[0] == "maxr":
                    if a.prio: e("s_setprio 1")
                    for qt in range(3):
                        for k in range(2): e(f"ds_read_b128 {v(16+8*qt+4*k,4)}, v13 offset:{qt*1024+16*k}")
                    e(f"v_and_b32 {v(T0)}, 15, v0"); e(f"v_lshlrev_b32 v4, 4, {v(T0)}")
                    e(f"v_bfe_u32 {v(T0)}, v0, 4, 1"); e(f"v_lshl_add_u32 v4, {v(T0)}, 10, v4")
                    e(f"v_bfe_u32 {v(T0)}, v0, 5, 1"); e(f"v_lshl_add_u32 v4, {v(T0)}, 8, v4")
                    e(f"s_mul_i32 {s(S_TMP)}, {s(S_U)}, 6144"); e(f"v_add_u32 v4, {s(S_TMP)}, v4")
                    for qt in range(3):
                        b = 16 + 8 * qt
                        e(f"v_max3_f32 {v(M+qt)}, {v(b)}, {v(b+1)}, {v(b+2)}")
                        e(f"v_max3_f32 {v(M+qt)}, {v(M+qt)}, {v(b+3)}, {v(b+4)}"); e(f"v_max3_f32 {v(M+qt)}, {v(M+qt)}, {v(b+5)}, {v(b+6)}")
                        e(f"v_max_f32 {v(M+qt)}, {v(M+qt)}, {v(b+7)}")
                        e(f"v_mul_f32 {v(M+qt)}, {s(S_C)}, {v(M+qt)}")
                elif act[0] == "smx":
                    T = act[1]
                    grp = [(qt, hf) for qt in range(3) for hf in range(2)]
                    def fe(g):
                        r = SACC(T, g[0]) + 8 * g[1]
                        for k in range(8): e(f"v_fma_f32 {v(r+k)}, {v(r+k)}, {s(S_C)}, -{v(M+g[0])}")
                        for k in range(8): e(f"v_exp_f32 {v(r+k)}, {v(r+k)}")
                    fe(grp[0])
                    for n, (qt, hf) in enumerate(grp):
                        if n + 1 < 6: fe(grp[n + 1])
                        r = SACC(T, qt) + 8 * hf
                        tt = 16 + 4 * n
                        for k in range(4): e(f"v_cvt_pk_bf16_f32 {v(tt+k)}, {v(r+2*k)}, {v(r+2*k+1)}")
                        e(f"ds_write_b128 v4, {v(tt,4)} offset:{PBUF[T%2] + qt*2048 + hf*512}")
                    if iss and a.b_smx_issue:
                        pass
                    self.defer_sum = (T,)
                    if T == 3 or not a.defer:
                        self.sums(T, SACC, SUM)
                        if T == 3:
                            for qt in range(3): e(f"ds_write_b32 v12, {v(SUM+qt)} offset:{4096+qt*1024}")
                elif act[0] == "inito":
                    self.stamp()
                    if a.prio == 1: e("s_setprio 0")
                    e(f"v_bfe_u32 {v(T0)}, v0, 2, 4"); e(f"v_lshlrev_b32 v5, 7, {v(T0)}")
                    e(f"v_bfe_u32 {v(T0)}, v0, 3, 2"); e(f"v_bfe_u32 {v(T1)}, v0, 6, 2"); e(f"v_xor_b32 {v(T0)}, {v(T0)}, {v(T1)}")
                    e(f"v_lshl_add_u32 v5, {v(T0)}, 5, v5")
                    e(f"v_and_b32 {v(T0)}, 3, v0"); e(f"v_lshl_add_u32 v5, {v(T0)}, 3, v5")
                    e(f"v_and_b32 {v(T0)}, 63, v0"); e(f"v_lshlrev_b32 v6, 4, {v(T0)}")
                    e(f"v_lshlrev_b32 v7, 4, v0")
                    e("v_lshlrev_b32 v8, 9, v6")
            ws = [x for x in acts if x[0] == "O"]
            dma = []
            for it in iss: dma += self.issue_parts(*it)
            def wread(x, b):
                _, i, sl = x
                tt = T0 + (i % 2)
                e(f"v_add_u32 {v(tt)}, {sl*SLOT}, v5")
                for k2 in range(2):
                    e(f"ds_read_b64_tr_b16 {v(b+4*k2,2)}, {v(tt)} offset:{4096*k2}")
                    e(f"ds_read_b64_tr_b16 {v(b+4*k2+2,2)}, {v(tt)} offset:{4096*k2+2048}")
            def ord_(c, k2, q6):
                e(f"ds_read_b128 {v(OF(k2,q6),4)}, v6 offset:{OBUF[c%2] + k2*6144 + q6*1024}")
            def opop(roll=None):
                x, b = opend.pop(0)
                c, cb = divmod(x[1], 7)
                st = self.store_parts(cb - 1) if (c == 3 and cb > 0) else []
                for k2 in range(2):
                    for q6 in range(6):
                        acc = ACC(cb, q6)
                        cc = "0" if (c == 0 and k2 == 0) else v(acc, 4)
                        e(f"v_mfma_f32_16x16x32_bf16 {v(acc,4)}, {v(b+4*k2,4)}, {v(OF(k2,q6),4)}, {cc}")
                        if roll is not None: ord_(roll, k2, q6)
                        if dma and q6 % 3 == 2: dma.pop(0)()
                        if st and (k2 or q6 >= 2):
                            st.pop(0)()
                            if st: st.pop(0)()
                while st: st.pop(0)()
                if c == 3 and a.fused == 2 and cb - 1 - a.flag_lag >= 0: self.flag(cb - 1 - a.flag_lag)
                if c == 3 and cb == 6:
                    for f in self.store_parts(6): f()
                    if a.fused == 2 and 6 - a.flag_lag >= 0: self.flag(6 - a.flag_lag)
            ord_c = [x[1] for x in acts if x[0] == "oread"]
            if ord_c:
                c = ord_c[0]
                if c == 3: self.stamp()
                if ws and len(opend) < 3:
                    b = [x for x in WB if x not in [p[1] for p in opend]][0]
                    first = (ws.pop(0), b); wread(*first)
                else: first = None
                while len(opend) > 1: opop()
                if opend: opop(roll=c)
                else:
                    for k2 in range(2):
                        for q6 in range(6): ord_(c, k2, q6)
                if first: opend.append(first)
            lastt = ti == len(self.plan) - 1
            nows = not ws and not ord_c
            for x in ws:
                while len(opend) >= 3: opop()
                b = [y for y in WB if y not in [p[1] for p in opend]][0]
                wread(x, b); opend.append((x, b))
                if len(opend) > (2 if lastt else max(a.blag, 1)): opop()
            while len(opend) > (0 if (lastt or nows) else a.blag): opop()
            while dma: dma.pop(0)()
        if a.padto:
            e.label("L_pad")
            e("s_memrealtime s[98:99]"); e.force_wait("lgkmcnt(0)")
            e("s_sub_u32 s98, s98, s96"); e(f"s_cmp_lt_u32 s98, {a.padto*100}"); e("s_cbranch_scc1 L_pad")
        self.stamp()
        if a.fused in (1, 3): self.fused_reduce()
        if a.fused == 2:
            for n in range(7 - a.flag_lag, 7): self.flag(n)
        if a.stamps:
            e.force_wait("vmcnt(0)")
            self.stamp()
            e(f"s_cmp_lg_u32 {s(S_W)}, 4"); e("s_cbranch_scc1 L_end1")
            e(f"s_add_u32 s60, s60, {STAMP_OFF}"); e("s_addc_u32 s61, s61, 0"); e("s_lshl_b32 s33, s2, 7"); e("s_add_u32 s60, s60, s33"); e("s_addc_u32 s61, s61, 0")
            e("v_mov_b32 v10, 0")
            for i in range(self.nst):
                e(f"v_mov_b32 v8, s{64+2*i}"); e(f"v_mov_b32 v9, s{65+2*i}")
                e(f"global_store_dwordx2 v10, v[8:9], s[60:61] offset:{8*i}"); e.nop(2)

    def flag_srd(self):
        e = self.e
        e("s_load_dwordx4 s[44:47], s[0:1], 80")
        e(f"s_lshl_b32 s63, {s(S_BLK)}, 3"); e(f"s_add_u32 s63, s63, {s(S_B)}")
        e(f"s_mul_i32 {s(S_TMP)}, s63, 8192"); e(f"s_add_u32 {s(S_TMP)}, {s(S_TMP)}, {FLAG_OFF}")
        e(f"s_add_u32 s36, s60, {s(S_TMP)}"); e("s_addc_u32 s37, s61, 0"); e("s_mov_b32 s38, 8192"); e("s_mov_b32 s39, 0x20000")
        e("s_lshl_b32 s63, s63, 4")
        e.force_wait("lgkmcnt(0)")
        e("s_mov_b64 s[40:41], s[46:47]"); e("s_mov_b32 s42, 256"); e("s_mov_b32 s43, 0x20000")

    def flag(self, n):
        e = self.e
        e.wait_tag(("st", n))
        e(f"v_mov_b32 v9, {n+1}")
        e("buffer_store_dword v9, v8, s[36:39], s62 offen sc1")

    def poll(self, name, load, cmp):
        e = self.e
        e("s_mov_b32 s51, 0")
        e.label(name)
        e(load); e.force_wait("vmcnt(0)")
        e(cmp)
        e("s_add_u32 s51, s51, 1")
        e("s_cmp_eq_u64 vcc, -1"); e(f"s_cbranch_scc1 {name}_ok")
        e("s_cmp_ge_u32 s51, 200000"); e(f"s_cbranch_scc1 {name}_ok")
        if self.a.psleep: e(f"s_sleep {self.a.psleep}")
        e(f"s_branch {name}")
        e.label(name + "_ok")

    def staged_reduce(self):
        e = self.e; a = self.a
        self.flag_srd()
        e(f"s_lshr_b32 {s(S_TMP)}, s63, 4"); e(f"s_mul_i32 {s(S_TMP)}, {s(S_TMP)}, {16*86016}")
        e(f"s_add_u32 s52, s60, {s(S_TMP)}"); e("s_addc_u32 s53, s61, 0"); e(f"s_mov_b32 s54, {16*86016}"); e("s_mov_b32 s55, 0x20000")
        e("s_mov_b64 s[56:57], s[44:45]"); e(f"s_mov_b32 s58, {8*96*1792}"); e("s_mov_b32 s59, 0x20000")
        e("v_and_b32 v1, 63, v0")
        e(f"s_lshr_b32 {s(S_TMP)}, {s(S_H)}, 2"); e(f"s_mul_i32 {s(S_TMP)}, {s(S_TMP)}, 48"); e(f"v_add_u32 v2, {s(S_TMP)}, v1")
        e("v_lshrrev_b32 v3, 6, v2"); e("v_and_b32 v2, 63, v2"); e("v_lshl_add_u32 v2, v3, 8, v2")
        e(f"s_and_b32 s46, {s(S_H)}, 3"); e(f"s_lshl_b32 {s(S_TMP)}, s46, 6"); e(f"v_add_u32 v2, {s(S_TMP)}, v2")
        e("s_lshl_b32 s46, s46, 7")
        e("v_mov_b32 v4, 0x200000"); e("v_cmp_gt_u32 vcc, 48, v1")
        e("v_lshlrev_b32 v3, 4, v2"); e("v_cndmask_b32 v3, v4, v3, vcc")
        e("v_lshrrev_b32 v7, 8, v2"); e("v_and_b32 v8, 15, v2"); e("v_lshl_add_u32 v8, v7, 5, v8"); e("v_mul_u32_u24 v8, 1792, v8")
        e("v_bfe_u32 v9, v2, 4, 4"); e("v_lshl_add_u32 v8, v9, 3, v8"); e("v_cndmask_b32 v8, v4, v8, vcc")
        e("v_and_b32 v5, 15, v1"); e("v_lshlrev_b32 v5, 9, v5"); e("v_mov_b32 v6, 0")
        e(f"s_mul_i32 s49, {s(S_B)}, {96*1792}"); e(f"s_mul_i32 {s(S_TMP)}, {s(S_BLK)}, 896"); e(f"s_add_u32 s49, s49, {s(S_TMP)}")
        e("s_mov_b32 s50, 0xffff0000")
        self.poll("L_pc", "buffer_load_dword v10, v6, s[40:43], s63 offen sc1", "v_cmp_le_u32 vcc, 16, v10")
        e(f"s_mov_b32 s48, {s(S_U)}")
        e.label("L_stage")
        self.poll("L_pf", "buffer_load_dword v10, v5, s[36:39], s46 offen sc1", "v_cmp_lt_u32 vcc, s48, v10")
        e(f"s_add_u32 s47, s48, {s(S_RB)}"); e("s_cmp_ge_u32 s47, 7"); e(f"s_cselect_b32 {s(S_TMP)}, 7, 0"); e(f"s_sub_u32 s47, s47, {s(S_TMP)}")
        e(f"s_mul_i32 {s(S_SO)}, s47, 12288")
        rp = self.pol(a.frpol)
        for h in range(16):
            e(f"buffer_load_dwordx4 {v(32+4*h,4)}, v3, s[52:55], {s(S_SO)} offen{rp}")
            if h < 15: e(f"s_add_u32 {s(S_SO)}, {s(S_SO)}, 86016")
        e("s_lshl_b32 s47, s47, 7"); e("s_add_u32 s47, s47, s49")
        for h in range(16):
            for k in range(4):
                r = 32 + 4 * h + k
                if h == 0:
                    e(f"v_lshlrev_b32 v{16+2*k}, 16, v{r}"); e(f"v_and_b32 v{17+2*k}, s50, v{r}")
                else:
                    e(f"v_lshlrev_b32 v{24+2*k}, 16, v{r}"); e(f"v_and_b32 v{25+2*k}, s50, v{r}")
                    e(f"v_pk_add_f32 {v(16+2*k,2)}, {v(16+2*k,2)}, {v(24+2*k,2)}")
        for k in range(4): e(f"v_cvt_pk_bf16_f32 v{24+k}, v{16+2*k}, v{17+2*k}")
        e("buffer_store_dwordx2 v[24:25], v8, s[56:59], s47 offen")
        e(f"s_add_u32 s47, s47, {16*1792}")
        e("buffer_store_dwordx2 v[26:27], v8, s[56:59], s47 offen")
        e("s_add_u32 s48, s48, 4"); e("s_cmp_lt_u32 s48, 7"); e("s_cbranch_scc1 L_stage")
        if a.stamps:
            e.force_wait("vmcnt(0)")
            e("s_memrealtime s[64:65]"); e.force_wait("lgkmcnt(0)")
            e(f"s_cmp_lg_u32 {s(S_W)}, 2"); e("s_cbranch_scc1 L_end1")
            e(f"s_add_u32 s60, s60, {STAMP_OFF}"); e("s_addc_u32 s61, s61, 0"); e("s_lshl_b32 s33, s2, 7"); e("s_add_u32 s60, s60, s33"); e("s_addc_u32 s61, s61, 0")
            e("v_mov_b32 v10, 0"); e("v_mov_b32 v8, s64"); e("v_mov_b32 v9, s65")
            e(f"global_store_dwordx2 v10, v[8:9], s[60:61] offset:{8*a.astamp}")

    def fused_reduce(self):
        e = self.e; a = self.a
        e.label("L_red")
        e.nop(12)
        e("s_load_dwordx4 s[40:43], s[0:1], 80")
        e(f"s_lshr_b32 {s(S_TMP)}, {s(S_W)}, 2"); e(f"s_lshl_b32 {s(S_TMP)}, {s(S_TMP)}, 8")
        e(f"v_add_u32 v1, {s(S_TMP)}, v0")
        e(f"s_mul_i32 {s(S_TMP)}, {s(S_H)}, 336")
        e(f"v_add_u32 v2, {s(S_TMP)}, v1")
        e("v_lshlrev_b32 v3, 4, v2")
        e("v_mov_b32 v4, 0x200000")
        e("v_cmp_gt_u32 vcc, 336, v1")
        e("v_cndmask_b32 v3, v4, v3, vcc")
        e(f"s_lshl_b32 s48, {s(S_BLK)}, 3"); e(f"s_add_u32 s48, s48, {s(S_B)}")
        e(f"s_mul_i32 {s(S_TMP)}, s48, {16*86016}")
        e(f"s_add_u32 s44, s60, {s(S_TMP)}"); e("s_addc_u32 s45, s61, 0"); e(f"s_mov_b32 s46, {16*86016}"); e("s_mov_b32 s47, 0x20000")
        e("v_lshrrev_b32 v5, 8, v2"); e("v_mul_u32_u24 v6, 43, v5"); e("v_lshrrev_b32 v6, 7, v6")
        e("v_mul_u32_u24 v7, 3, v6"); e("v_sub_u32 v7, v5, v7")
        e("v_and_b32 v8, 15, v2"); e("v_lshl_add_u32 v8, v7, 5, v8"); e("v_mul_u32_u24 v8, 1792, v8")
        e("v_lshl_add_u32 v8, v6, 7, v8"); e("v_bfe_u32 v9, v2, 4, 4"); e("v_lshl_add_u32 v8, v9, 3, v8")
        e("v_cndmask_b32 v8, v4, v8, vcc")
        e(f"s_mul_i32 s49, {s(S_B)}, {96*1792}"); e(f"s_mul_i32 {s(S_TMP)}, {s(S_BLK)}, 896"); e(f"s_add_u32 s49, s49, {s(S_TMP)}")
        e.force_wait("vmcnt(0) lgkmcnt(0)")
        e("s_mov_b64 s[52:53], s[40:41]"); e(f"s_mov_b32 s54, {8*96*1792}"); e("s_mov_b32 s55, 0x20000")
        e.barrier()
        e(f"s_cmp_lg_u32 {s(S_W)}, 0"); e("s_cbranch_scc1 L_go")
        e("s_lshl_b32 s50, s48, 4")
        if a.fused == 3:
            e("s_mov_b32 s50, 0"); e("s_mov_b64 s[42:43], s[36:37]")
        e("v_mov_b32 v10, s50"); e("v_mov_b32 v11, 1")
        e("s_mov_b64 exec, 1")
        e("global_atomic_add v12, v10, v11, s[42:43] sc0")
        e("s_mov_b32 s51, 0")
        e.force_wait("vmcnt(0)")
        e("v_add_u32 v12, 1, v12")
        e.label("L_poll")
        e("v_readfirstlane_b32 s50, v12")
        e("s_add_u32 s51, s51, 1")
        e("s_cmp_ge_u32 s50, 16"); e("s_cbranch_scc1 L_polled")
        e(f"s_cmp_ge_u32 s51, 200000"); e("s_cbranch_scc1 L_polled")
        if a.psleep: e(f"s_sleep {a.psleep}")
        e("global_load_dword v12, v10, s[42:43] sc1")
        e.force_wait("vmcnt(0)")
        e("s_branch L_poll")
        e.label("L_polled")
        e("s_mov_b64 exec, -1")
        e.label("L_go")
        e.barrier()
        self.stamp()
        e(f"s_cmp_ge_u32 {s(S_W)}, 6"); e("s_cbranch_scc1 L_end1")
        rp = self.pol(a.frpol)
        for h in range(16):
            e(f"s_mov_b32 {s(S_SO)}, {h*86016}")
            e(f"buffer_load_dwordx4 {v(32+4*h,4)}, v3, s[44:47], {s(S_SO)} offen{rp}")
        e("s_mov_b32 s50, 0xffff0000")
        for h in range(16):
            for k in range(4):
                r = 32 + 4 * h + k
                if h == 0:
                    e(f"v_lshlrev_b32 v{16+2*k}, 16, v{r}"); e(f"v_and_b32 v{17+2*k}, s50, v{r}")
                else:
                    e(f"v_lshlrev_b32 v{24+2*k}, 16, v{r}"); e(f"v_and_b32 v{25+2*k}, s50, v{r}")
                    e(f"v_pk_add_f32 {v(16+2*k,2)}, {v(16+2*k,2)}, {v(24+2*k,2)}")
        for k in range(4): e(f"v_cvt_pk_bf16_f32 v{24+k}, v{16+2*k}, v{17+2*k}")
        e("buffer_store_dwordx2 v[24:25], v8, s[52:55], s49 offen")
        e(f"s_add_u32 s49, s49, {16*1792}")
        e("buffer_store_dwordx2 v[26:27], v8, s[52:55], s49 offen")

    def maxpart(self, m, b, part, first):
        e = self.e
        if part == 0:
            if first:
                e(f"v_max3_f32 {v(m)}, {v(b)}, {v(b+1)}, {v(b+1)}")
            else:
                e(f"v_max3_f32 {v(m)}, {v(m)}, {v(b)}, {v(b+1)}")
            e(f"v_max3_f32 {v(m)}, {v(m)}, {v(b+2)}, {v(b+3)}"); e(f"v_max3_f32 {v(m)}, {v(m)}, {v(b+4)}, {v(b+5)}")
        elif part == 1:
            for k in (6, 8, 10): e(f"v_max3_f32 {v(m)}, {v(m)}, {v(b+k)}, {v(b+k+1)}")
        else:
            for k in (12, 14): e(f"v_max3_f32 {v(m)}, {v(m)}, {v(b+k)}, {v(b+k+1)}")

    def sums(self, T, SACC, SUM):
        e = self.e
        for qt in range(3):
            r = SACC(T, qt)
            for k in range(0, 8, 2): e(f"v_pk_add_f32 {v(r+k,2)}, {v(r+k,2)}, {v(r+8+k,2)}")
            for k in range(0, 4, 2): e(f"v_pk_add_f32 {v(r+k,2)}, {v(r+k,2)}, {v(r+4+k,2)}")
            e(f"v_pk_add_f32 {v(r,2)}, {v(r,2)}, {v(r+2,2)}")
            if T == 0: e(f"v_add_f32 {v(SUM+qt)}, {v(r)}, {v(r+1)}")
            else:
                e(f"v_add_f32 {v(r)}, {v(r)}, {v(r+1)}"); e(f"v_add_f32 {v(SUM+qt)}, {v(SUM+qt)}, {v(r)}")

    def store_cb(self, cb):
        e = self.e
        wp = self.pol(self.a.wpol)
        for qt in range(3):
            a0, a1 = self.ACC(cb, 2 * qt), self.ACC(cb, 2 * qt + 1)
            tt = a0
            e(f"v_cvt_pk_bf16_f32 {v(tt)}, {v(a0)}, {v(a0+1)}"); e(f"v_cvt_pk_bf16_f32 {v(tt+1)}, {v(a0+2)}, {v(a0+3)}")
            e(f"v_cvt_pk_bf16_f32 {v(tt+2)}, {v(a1)}, {v(a1+1)}"); e(f"v_cvt_pk_bf16_f32 {v(tt+3)}, {v(a1+2)}, {v(a1+3)}")
            e(f"buffer_store_dwordx4 {v(tt,4)}, v7, {s(S_R2,4)}, {s(S_ST)} offen{wp}", tag=("st", cb))
            if qt < 2: e(f"s_add_u32 {s(S_ST)}, {s(S_ST)}, 4096")
        e(f"s_add_u32 {s(S_ST)}, {s(S_ST)}, 4096"); e(f"s_cmp_eq_u32 {s(S_ST)}, 86016"); e(f"s_cselect_b32 {s(S_ST)}, 0, {s(S_ST)}")

    def kernel1(self):
        e = self.e
        self.oage = {}; self.sinfo = {}; self.parked = set()
        self.build_plan()
        e.label(NAME + "_kernel")
        self.prologue()
        snap = e.snapshot(); nst = self.nst
        self.role_A()
        e.restore(snap); self.nst = nst
        e.label("L_roleB")
        self.role_B()
        e.label("L_end1"); e("s_endpgm")

from gen1 import desc

def reducer2(a):
    per, thr = a.rper, a.rthr
    nwg = 16 * 5376 // per
    assert 5376 % per == 0
    wpg = 5376 // per
    e = Emitter()
    e.label("reduce_kernel")
    e(f"s_cmp_ge_u32 s2, {nwg}"); e("s_cbranch_scc1 L_end2")
    e("s_load_dwordx2 s[4:5], s[0:1], 96")
    e("s_load_dwordx2 s[8:9], s[0:1], 80")
    if a.stamps: e("s_memrealtime s[24:25]")
    e(f"s_mul_hi_u32 s12, s2, {-(-(1<<32)//wpg)}")
    e(f"s_mul_i32 s13, s12, {wpg}"); e("s_sub_u32 s13, s2, s13"); e(f"s_mul_i32 s13, s13, {per}")
    e("v_add_u32 v2, s13, v0")
    e("v_lshlrev_b32 v3, 4, v2")
    if per != thr:
        e("v_mov_b32 v4, 0x200000"); e(f"v_cmp_gt_u32 vcc, {per}, v0"); e("v_cndmask_b32 v3, v4, v3, vcc")
    e(f"s_mul_i32 s16, s12, {16*86016}")
    e(f"s_mov_b32 s6, {16*86016}"); e("s_mov_b32 s7, 0x20000"); e(f"s_mov_b32 s10, {8*96*1792}"); e("s_mov_b32 s11, 0x20000")
    e("s_mov_b32 s18, 0")
    e.wait(lgkm=0)
    if a.stamps: e("s_mov_b64 s[28:29], s[4:5]")
    e("s_add_u32 s4, s4, s16"); e("s_addc_u32 s5, s5, 0")
    rp = (" " + a.rpol) if a.rpol else ""
    for h in range(16):
        e(f"buffer_load_dwordx4 {v(32+4*h,4)}, v3, s[4:7], s18 offen{rp}")
        if h < 15: e("s_add_u32 s18, s18, 86016")
    e("v_lshrrev_b32 v5, 8, v2"); e("v_mul_u32_u24 v6, 43, v5"); e("v_lshrrev_b32 v6, 7, v6")
    e("v_mul_u32_u24 v7, 3, v6"); e("v_sub_u32 v7, v5, v7")
    e("v_and_b32 v8, 15, v2"); e("v_lshl_add_u32 v8, v7, 5, v8"); e("v_mul_u32_u24 v8, 1792, v8")
    e("v_lshl_add_u32 v8, v6, 7, v8"); e("v_bfe_u32 v9, v2, 4, 4"); e("v_lshl_add_u32 v8, v9, 3, v8")
    if per != thr: e("v_cndmask_b32 v8, v4, v8, vcc")
    e("s_and_b32 s19, s12, 7"); e("s_lshr_b32 s20, s12, 3")
    e(f"s_mul_i32 s19, s19, {96*1792}"); e("s_mul_i32 s20, s20, 896"); e("s_add_u32 s19, s19, s20")
    e("s_mov_b32 s22, 0xffff0000")
    for h in range(16):
        for k in range(4):
            r = 32 + 4 * h + k
            if h == 0:
                e(f"v_lshlrev_b32 v{16+2*k}, 16, v{r}"); e(f"v_and_b32 v{17+2*k}, s22, v{r}")
            else:
                e(f"v_lshlrev_b32 v{24+2*k}, 16, v{r}"); e(f"v_and_b32 v{25+2*k}, s22, v{r}")
                e(f"v_pk_add_f32 {v(16+2*k,2)}, {v(16+2*k,2)}, {v(24+2*k,2)}")
    for k in range(4): e(f"v_cvt_pk_bf16_f32 v{24+k}, v{16+2*k}, v{17+2*k}")
    op = (" " + a.opol) if a.opol else ""
    e(f"buffer_store_dwordx2 v[24:25], v8, s[8:11], s19 offen{op}")
    e(f"s_add_u32 s19, s19, {16*1792}")
    e(f"buffer_store_dwordx2 v[26:27], v8, s[8:11], s19 offen{op}")
    if a.stamps:
        e.force_wait("vmcnt(0)")
        e("s_memrealtime s[26:27]"); e.force_wait("lgkmcnt(0)")
        e(f"s_add_u32 s28, s28, {STAMP_OFF + 65536}"); e("s_addc_u32 s29, s29, 0"); e("s_lshl_b32 s13, s2, 4"); e("s_add_u32 s28, s28, s13"); e("s_addc_u32 s29, s29, 0")
        e("v_mov_b32 v10, 0"); e("v_mov_b32 v12, s24"); e("v_mov_b32 v13, s25"); e("v_mov_b32 v14, s26"); e("v_mov_b32 v15, s27")
        e("global_store_dwordx4 v10, v[12:15], s[28:29]")
    e.label("L_end2"); e("s_endpgm")
    return e, nwg

ilist = lambda x: [int(t) for t in x.split(",") if t]

def main(argv=None):
    ap = argparse.ArgumentParser()
    ap.add_argument("-o", default="k3.s")
    ap.add_argument("--stamps", type=int, default=0)
    ap.add_argument("--stamp_ticks", type=ilist, default=[])
    ap.add_argument("--clk", type=int, default=0)
    ap.add_argument("--rot", type=int, default=1)
    ap.add_argument("--nkd", type=int, default=4)
    ap.add_argument("--la", type=float, default=6)
    ap.add_argument("--k0", type=int, default=1)
    ap.add_argument("--kticks", type=ilist, default=[2, 4, 6])
    ap.add_argument("--wrate", type=float, default=2.34)
    ap.add_argument("--alt1", type=int, default=0)
    ap.add_argument("--alt2", type=int, default=0)
    ap.add_argument("--lag", type=int, default=2)
    ap.add_argument("--qdrain", type=ilist, default=[0, 3])
    ap.add_argument("--odrain", type=ilist, default=[0])
    ap.add_argument("--kpre", type=int, default=2)
    ap.add_argument("--blag", type=int, default=1)
    ap.add_argument("--kmax", type=int, default=2)
    ap.add_argument("--kmax_from", type=int, default=99)
    ap.add_argument("--klag", type=int, default=2)
    ap.add_argument("--kburn", type=int, default=1)
    ap.add_argument("--kkeep", type=int, default=1)
    ap.add_argument("--vtr0", type=int, default=2)
    ap.add_argument("--vtr1", type=int, default=3)
    ap.add_argument("--lv0", type=int, default=10)
    ap.add_argument("--vmax0", type=int, default=3)
    ap.add_argument("--prio", type=int, default=0)
    ap.add_argument("--vend", type=int, default=2)
    ap.add_argument("--park", type=int, default=0)
    ap.add_argument("--parkfast", type=int, default=1)
    ap.add_argument("--oearly", type=int, default=0)
    ap.add_argument("--oe_from", type=int, default=16)
    ap.add_argument("--oe_rate", type=int, default=2)
    ap.add_argument("--lv", type=int, default=6)
    ap.add_argument("--lc", type=int, default=9)
    ap.add_argument("--vcmax", type=int, default=3)
    ap.add_argument("--vmax", type=int, default=2)
    ap.add_argument("--lo", type=int, default=9)
    ap.add_argument("--omax", type=int, default=3)
    ap.add_argument("--ostart", type=int, default=4)
    ap.add_argument("--olag", type=int, default=2)
    ap.add_argument("--opn", type=int, default=2)
    ap.add_argument("--vres", type=int, default=0)
    ap.add_argument("--a_first", type=int, default=1)
    ap.add_argument("--b_first", type=int, default=1)
    ap.add_argument("--b_smx_issue", type=int, default=0)
    ap.add_argument("--defer", type=int, default=0)
    ap.add_argument("--kvpol", default="nt")
    ap.add_argument("--spol", default="")
    ap.add_argument("--wpol", default="sc1")
    ap.add_argument("--rpol", default="")
    ap.add_argument("--opol", default="")
    ap.add_argument("--rper", type=int, default=336)
    ap.add_argument("--rthr", type=int, default=384)
    ap.add_argument("--rlds", type=int, default=0)
    ap.add_argument("--fused", type=int, default=0)
    ap.add_argument("--flag_lag", type=int, default=1)
    ap.add_argument("--astamp", type=int, default=8)
    ap.add_argument("--psleep", type=int, default=2)
    ap.add_argument("--frpol", default="sc1")
    ap.add_argument("--skip", default="")
    ap.add_argument("--padto", type=int, default=0)
    ap.add_argument("--verbose", action="store_true")
    a = ap.parse_args(argv)
    g = Gen(a); g.kernel1()
    out = HEADER
    if a.fused:
        out += "; @launch grid=(256,1,1) block=(512,1,1) lds=163840\n"
    else:
        out += f"; @launch kernel={NAME}_kernel grid=(256,1,1) block=(512,1,1) lds=163840\n"
        re_, nwg = reducer2(a)
        out += f"; @launch kernel=reduce_kernel grid=({nwg},1,1) block=({a.rthr},1,1) lds={a.rlds}\n"
    out += '.amdgcn_target "amdgcn-amd-amdhsa--gfx950"\n.text\n'
    out += f".globl {NAME}_kernel\n.p2align 8\n.type {NAME}_kernel,@function\n" + g.e.text()
    if not a.fused:
        out += ".globl reduce_kernel\n.p2align 8\n.type reduce_kernel,@function\n" + re_.text()
    out += '.section .rodata,"a"\n.p2align 6\n' + desc(NAME + "_kernel", 256)
    if not a.fused: out += ".p2align 6\n" + desc("reduce_kernel", 96, 32)
    open(a.o, "w").write(out)
    print(f"{a.o}: k1 insts {g.e.ninst} (nops {g.e.nops}), ticks {len(g.plan)}, stamps {g.nst}", file=sys.stderr)

if __name__ == "__main__":
    main()
```

```python
import sys, argparse
from emit import Emitter

NAME = "concat_heads__mha_block_cached__mha_block_cached__near_ridge"
STAMP_OFF = 200 << 20
SLOT = 8192
STAT = 19 * SLOT
HEADER = open("cdna_kernels/" + NAME + ".s.ref").read().split("; Override launch")[0]

def v(a, n=1): return f"v{a}" if n == 1 else f"v[{a}:{a+n-1}]"
def s(a, n=1): return f"s{a}" if n == 1 else f"s[{a}:{a+n-1}]"

T0, T1 = 14, 15
S_R0, S_R1, S_R2 = 4, 8, 12
S_W, S_M0B, S_SO, S_TMP, S_C = 16, 17, 18, 19, 20
S_BLK, S_H, S_B, S_PP, S_U = 21, 22, 23, 24, 25
S_R7, S_R4, S_RB = 26, 27, 28
S_A0, S_A1, S_A2, S_A3, S_ST = 29, 30, 31, 32, 33
FLAG_OFF = 32 << 20
QBUF = [0, 12288]
PBUF = [0, 24576]
OBUF = [0, 0]

class Gen:
    def __init__(self, a):
        self.a = a
        self.e = Emitter()
        D = dict(mfma=("v_mfma",), ds=("ds_",), valu=("v_exp", "v_fma_f32", "v_max", "v_cvt_pk", "v_pk_", "v_mul_f32", "v_add_f32", "v_rcp"), store=("buffer_store",), dma=("buffer_load",))
        self.e.drop = tuple(x for k in a.skip.split(",") if k for x in D[k])
        self.nst = 0

    def stamp(self, wait=True):
        if self.a.stamps:
            i = self.nst; self.nst += 1
            assert i < 16
            self.e(f"{'s_memtime' if self.a.clk else 's_memrealtime'} {s(64+2*i,2)}")
            if wait: self.e.force_wait("lgkmcnt(0)")

    def pol(self, p): return (" " + p) if p else ""

    def issue(self, item, slot):
        e = self.e; a = self.a
        ty = item[0]
        sh, kv = self.pol(a.spol), self.pol(a.kvpol)
        if ty == "X":
            n = item[1]
            for j in range(3):
                e(f"s_add_u32 m0, {s(S_M0B)}, {(n%4)*12288 + j*4096}")
                e(f"s_add_u32 {s(S_SO)}, {s(S_A0)}, {j*32*896}")
                e(f"buffer_load_dwordx4 v1, {s(S_R0,4)}, {s(S_SO)} offen{sh} lds", tag=item)
            e(f"s_add_u32 {s(S_A0)}, {s(S_A0)}, 128"); e(f"s_cmp_eq_u32 {s(S_A0)}, 896"); e(f"s_cselect_b32 {s(S_A0)}, 0, {s(S_A0)}")
        elif ty == "W":
            c, n = divmod(item[1], 7)
            e(f"s_add_u32 m0, {s(S_M0B)}, {slot*SLOT}")
            e(f"s_add_u32 {s(S_SO)}, {s(S_A1)}, {s(S_A2)}")
            e(f"buffer_load_dwordx4 v2, {s(S_R1,4)}, {s(S_SO)} offen{sh} lds", tag=item)
            e(f"s_add_u32 m0, {s(S_M0B)}, {slot*SLOT+4096}")
            e(f"s_add_u32 {s(S_SO)}, {s(S_SO)}, {32*8192}")
            e(f"buffer_load_dwordx4 v2, {s(S_R1,4)}, {s(S_SO)} offen{sh} lds", tag=item)
            e(f"s_add_u32 {s(S_A1)}, {s(S_A1)}, {64*8192}"); e(f"s_cmp_eq_u32 {s(S_A1)}, {7*64*8192}"); e(f"s_cselect_b32 {s(S_A1)}, 0, {s(S_A1)}")
            if n == 6:
                e(f"s_add_u32 {s(S_A2)}, {s(S_A2)}, 128"); e(f"s_and_b32 {s(S_A2)}, {s(S_A2)}, 511")
        elif ty == "V":
            c, i = divmod(item[1], 8)
            if item[1] == 0: self.setup_dv()
            for j in range(2):
                e(f"s_add_u32 m0, {s(S_M0B)}, {slot*SLOT + j*4096}")
                e(f"s_add_u32 {s(S_SO)}, {s(S_A3)}, {(i*64+j*32)*512}")
                e(f"buffer_load_dwordx4 v1, {s(S_R2,4)}, {s(S_SO)} offen{kv} lds", tag=item)
            if i == 7:
                e(f"s_add_u32 {s(S_A3)}, {s(S_A3)}, 128"); e(f"s_and_b32 {s(S_A3)}, {s(S_A3)}, 511")
        elif ty == "K":
            c, T = divmod(item[1], 4)
            for p in range(4):
                e(f"s_add_u32 m0, {s(S_A3)}, {slot*SLOT + p*1024}")
                e(f"s_add_u32 {s(S_SO)}, {s(S_A0)}, {(128*T+8*p)*512}")
                e(f"buffer_load_dwordx4 v{1+(p&1)}, {s(S_R0,4)}, {s(S_SO)} offen{kv} lds", tag=item)
            if T == 3:
                e(f"s_add_u32 {s(S_A0)}, {s(S_A0)}, 128"); e(f"s_and_b32 {s(S_A0)}, {s(S_A0)}, 511")
        elif ty == "O":
            c, n = divmod(item[1], 7)
            e(f"s_add_u32 m0, {s(S_M0B)}, {slot*SLOT}")
            e(f"s_add_u32 {s(S_SO)}, {s(S_A1)}, {s(S_A2)}")
            e(f"buffer_load_dwordx4 v3, {s(S_R1,4)}, {s(S_SO)} offen{sh} lds", tag=item)
            e(f"s_add_u32 m0, {s(S_M0B)}, {slot*SLOT+4096}")
            e(f"s_add_u32 {s(S_SO)}, {s(S_SO)}, {32*896}")
            e(f"buffer_load_dwordx4 v3, {s(S_R1,4)}, {s(S_SO)} offen{sh} lds", tag=item)
            e(f"s_add_u32 {s(S_A2)}, {s(S_A2)}, 128"); e(f"s_cmp_eq_u32 {s(S_A2)}, 896"); e(f"s_cselect_b32 {s(S_A2)}, 0, {s(S_A2)}")
            if n == 6:
                e(f"s_add_u32 {s(S_A1)}, {s(S_A1)}, 57344"); e(f"s_cmp_eq_u32 {s(S_A1)}, {4*57344}"); e(f"s_cselect_b32 {s(S_A1)}, 0, {s(S_A1)}")

    def issue_parts(self, item, slot):
        class Rec:
            def __init__(s2): s2.l = []
            def __call__(s2, t, tag=None): s2.l.append((t, tag))
        real = self.e; rec = Rec(); self.e = rec
        self.issue(item, slot)
        self.e = real
        parts = []; cur = []
        for t, tag in rec.l:
            cur.append((t, tag))
            if t.startswith("buffer_load"): parts.append(cur); cur = []
        parts[-1] += cur
        return [(lambda p=p: [real(t, tag=tag) for t, tag in p]) for p in parts]

    def store_parts(self, cb):
        class Rec:
            def __init__(s2): s2.l = []
            def __call__(s2, t, tag=None): s2.l.append((t, tag))
        real = self.e; rec = Rec(); self.e = rec
        self.store_cb(cb)
        self.e = real
        L = rec.l
        parts = [[x] for x in L[:-3]]
        parts[-1] += L[-3:]
        return [(lambda p=p: [real(t, tag=tag) for t, tag in p]) for p in parts]

    def setup_dv(self):
        e = self.e
        e(f"v_bfe_u32 v46, v0, 4, 2"); e("v_lshlrev_b32 v46, 1, v46"); e("v_and_b32 v47, 7, v0"); e("v_xor_b32 v46, v46, v47"); e("v_lshlrev_b32 v46, 4, v46")
        e("v_lshrrev_b32 v1, 3, v0"); e("v_lshl_add_u32 v1, v1, 9, v46")

    def build_plan(self):
        a = self.a
        nkd = a.nkd
        kslots = [19 - 2 * (i + 1) for i in range(nkd)]
        self.KBASE = min(kslots)
        free = list(range(6, self.KBASE)) + [19]
        WONLY = {3, 4, 5, 19}
        kfree = sorted(kslots)
        plan = []
        slot = {}
        def newtick(bar=True):
            P = dict(bar=bar, A=dict(need=None, issue=[], act=[]), B=dict(need=None, issue=[], act=[])); plan.append(P); return P
        pend = []
        astr = []
        for n in range(7): astr += [("X", n), ("W", n)]
        astr += [("W", i) for i in range(7, 28)]
        ia = 0; ca = 0; xdone = 0
        ik = 0; ck = 0
        def cost(it): return 1.5 if it[0] == "X" else 1.0
        def issueA(P, la):
            nonlocal ia
            while ia < len(astr) and sum(cost(x) for x in astr[ca:ia + 1]) <= la:
                it = astr[ia]
                if it[0] == "X":
                    if it[1] - 4 >= xdone: break
                    P["A"]["issue"].append((it, None))
                else:
                    if not free: break
                    slot[it] = free.pop(0); P["A"]["issue"].append((it, slot[it]))
                ia += 1
        def issueK(P, n):
            nonlocal ik
            while n > 0 and ik < 16 and kfree:
                slot[("K", ik)] = kfree.pop(0); P["B"]["issue"].append((("K", ik), slot[("K", ik)])); ik += 1; n -= 1
        P = newtick(False); issueA(P, a.la); issueK(P, a.k0)
        P["A"]["act"].append(("init",)); P["B"]["act"].append(("init",))
        qwritten = -1; qready = -1; xread = 0
        tick = 0
        wacc = 0.0
        kage = {i: 0 for i in range(ik)}
        iv = 0
        def issueV(P, n):
            nonlocal iv
            while n > 0 and iv < 32 and [x for x in free if x not in WONLY]:
                slot[("V", iv)] = [x for x in free if x not in WONLY][0]; free.remove(slot[("V", iv)]); P["A"]["issue"].append((("V", iv), slot[("V", iv)])); iv += 1; n -= 1
        ckprev = 0; vinit = False; qdefer = None; io = 0; npark = 0; parked_free = []
        while ck < 16:
            tick += 1
            P = newtick()
            free += pend; pend = []; free.sort(); xdone = xread; qready = qwritten; ckprev = ck
            kfree += parked_free; parked_free = []
            if qdefer is not None:
                qwritten = qdefer; qdefer = None; P["A"]["act"].append(("flushw",))
            if ca < 14: n = 2
            else:
                wacc += a.wrate; n = int(wacc + 1e-9); wacc -= n
            took = []
            while n > 0 and ca < min(ia, len(astr)):
                it = astr[ca]
                if it[0] == "W" and it[1] % 7 == 6 and it[1] // 7 >= 2 and ckprev < 4 * (it[1] // 7 - 1):
                    break
                took.append(it); ca += 1; n -= 1
                if it[0] == "X":
                    P["A"]["act"].append(("X", it[1])); xread = it[1] + 1
                    if it[1] == 6: pend += [3, 4, 5]
                else:
                    P["A"]["act"].append(("W", it[1], slot[it])); pend.append(slot[it])
                    if it[1] % 7 == 6:
                        cq = it[1] // 7
                        if a.lag == 0 or cq in a.qdrain:
                            P["A"]["act"].append(("drain",)); qwritten = cq; break
                        else: qdefer = cq
            if qdefer is not None and took[-1] != ("W", 7 * qdefer + 6):
                qwritten = qdefer; qdefer = None; P["A"]["act"].append(("flushw",))
            if took: P["A"]["need"] = took[-1]
            if not a.alt1 or tick < 8 or tick % 2 == 1: issueA(P, a.la)
            if qready == 3 and not vinit:
                P["A"]["act"].append(("initv",)); vinit = True
            if qready < 0 and npark < a.park and npark < ik and tick - kage[npark] >= 2:
                P["B"]["act"].append(("Kpark", npark)); parked_free.append(slot[("K", npark)]); self.parked.add(npark); npark += 1
            if qwritten == 0 and qready < 0 and 0 not in self.parked: P["B"]["act"].append(("Kpre", 0))
            issued = False
            n = a.kmax if (ca == len(astr) and not took) or tick >= a.kmax_from else 1
            last = ik == 16 and qready == 3 and 16 - ck <= a.kburn
            while ck < ik and ck // 4 <= qready and (last or (n > 0 and tick - kage[ck] >= a.klag)):
                sl = slot[("K", ck)]
                P["B"]["act"].append(("S", ck, sl)); self.sinfo[ck] = (tick, qready); ck += 1; n -= 1
                if ck - 1 in self.parked:
                    n += a.parkfast if len([x for x in P["B"]["act"] if x[0] == "S"]) < 2 else 0
                    continue
                if a.alt1 and ia < len(astr):
                    if tick % 2 == 0 and ik < 16 and (kfree or tick == 8):
                        if kfree:
                            k2_ = kfree.pop(0); slot[("K", ik)] = k2_; P["B"]["issue"].append((("K", ik), k2_)); kage[ik] = tick; ik += 1
                        if ik < 16:
                            slot[("K", ik)] = sl; P["B"]["act"].append(("issue", ("K", ik), sl)); kage[ik] = tick; ik += 1
                        else: kfree.append(sl)
                    else: kfree.append(sl)
                    issued = True
                elif ik < 16 and not issued and not kfree:
                    slot[("K", ik)] = sl; P["B"]["act"].append(("issue", ("K", ik), sl)); kage[ik] = tick; ik += 1; issued = True
                else:
                    kfree.append(sl)
            if not issued and ik < 16 and (tick in a.kticks or tick >= 8):
                cand = [x for x in kfree if not any(ac[0] == "S" and ac[2] == x and ac[1] not in self.parked for ac in P["B"]["act"])]
                if cand:
                    kfree.remove(cand[0]); slot[("K", ik)] = cand[0]; P["B"]["issue"].append((("K", ik), cand[0])); kage[ik] = tick; ik += 1
            while tick >= 8 and len(kfree) > min(16 - ik, a.kkeep):
                k = kfree.pop(0); pend += [k, k + 1]
            if ia == len(astr) and tick >= a.oe_from:
                n = a.oe_rate
                while n > 0 and io < a.oearly and [x for x in free if x not in WONLY]:
                    sl = [x for x in free if x not in WONLY][-1]; free.remove(sl)
                    slot[("O", io)] = sl; P["B"]["issue"].append((("O", io), sl)); self.oage[("O", io)] = -9; io += 1; n -= 1
            if ik == 16 and kage[15] < tick and ia == len(astr):
                issueV(P, a.vtr0 if last else 2)
            assert tick < 100
        assert vinit
        self.kage = kage; self.kslot = {i: slot[("K", i)] for i in range(16)}
        P["B"]["act"].append(("maxw",))
        P = newtick()
        free += pend; pend = []; free.sort()
        assert not kfree and all(x in free for x in WONLY)
        for x in sorted(WONLY): free.remove(x)
        WONLY.clear()
        P["B"]["act"] += [("maxr",), ("smx", 0)]
        issueV(P, a.vtr1)
        ostr = [("O", i) for i in range(28)]
        co = 0; cv = 0
        pw = 0
        oready = oloaded = owritten = -1
        odefer = None
        t2 = 0
        while cv < 32 or co < 28 or oloaded < 3:
            t2 += 1
            P = newtick()
            free += pend; pend = []; free.sort(); oready = owritten
            if odefer is not None:
                owritten = odefer; odefer = None; P["A"]["act"].append(("flushw",))
            if t2 <= 4:
                P["A"]["act"].append(("pread", t2 - 1))
                if t2 <= 3: P["B"]["act"].append(("smx", t2))
                if t2 == 4: P["B"]["act"].append(("inito",)); pend += [2, 3, 4, 5]
            if t2 == 5: pend += [19]
            if cv < 32:
                if t2 <= 4: nvt = 2
                elif cv >= 32 - a.vend: nvt = 1
                else:
                    nvt = max(2 if iv < 32 or cv + 2 <= 32 - a.vend else 1, min(a.vcmax, iv - a.lc - cv))
                    nvt = min(nvt, 32 - a.vend - cv)
                nvt = min(nvt, iv - cv)
                k = 0
                while k < nvt:
                    if (cv + 1) % 8 == 0 and oloaded < (cv + 1) // 8 - 2: break
                    P["A"]["act"].append(("V", cv, slot[("V", cv)])); pend.append(slot[("V", cv)]); P["A"]["need"] = ("V", cv); cv += 1; k += 1
                    if cv % 8 == 0:
                        if k < nvt and a.lag:
                            P["A"]["act"].append(("flushw",)); owritten = cv // 8 - 1
                        elif a.lag == 0 or cv == 32 or (cv // 8 - 1) in a.odrain:
                            P["A"]["act"].append(("drain",)); owritten = cv // 8 - 1
                        else: odefer = cv // 8 - 1
                if cv >= 32 - a.vend: P["A"]["act"].append(("drain",))
            if oloaded < oready and co == 7 * (oloaded + 1):
                oloaded += 1; P["B"]["act"].append(("oread", oloaded))
            nop = 7 if oloaded == 3 else a.opn
            while nop > 0 and co < 7 * (oloaded + 1) and co < io and (("O", co) in self.oage and t2 - self.oage[("O", co)] >= a.olag or cv >= 32):
                P["B"]["act"].append(("O", co, slot[("O", co)])); pend.append(slot[("O", co)]); P["B"]["need"] = ("O", co); co += 1; nop -= 1
            lv = a.lv0 if t2 <= 4 else a.lv
            if t2 <= 4 or not a.alt2 or t2 % 2 == 0 or io == 28:
                issueV(P, max(0, min(a.vmax0 if t2 <= 4 else a.vmax, cv + lv - iv)))
            if t2 >= a.ostart and (not a.alt2 or t2 % 2 == 1 or iv == 32):
                n = a.omax
                while n > 0 and io < 28 and free and io < co + a.lo and len(free) > (1 if iv < 32 else 0) * a.vres:
                    slot[("O", io)] = free.pop(); P["B"]["issue"].append((("O", io), slot[("O", io)])); self.oage[("O", io)] = t2; io += 1; n -= 1
            assert t2 < 100, "plan stuck"
        self.plan = plan
        if a.verbose:
            f = lambda L: " ".join(str(x[0]) + (str(x[1]) if len(x) > 1 else "") for x in L)
            g = lambda L: " ".join(f"{x[0][0]}{x[0][1]}@{x[1]}" for x in L)
            for i, P in enumerate(plan):
                print(f"{i:2d} A[need {P['A']['need']} iss {g(P['A']['issue'])} act {f(P['A']['act'])}]  B[need {P['B']['need']} iss {g(P['B']['issue'])} act {f(P['B']['act'])}]", file=sys.stderr)

    def prologue(self):
        e = self.e; a = self.a
        e("s_cmp_ge_u32 s2, 256"); e("s_cbranch_scc1 L_end1")
        e("s_load_dwordx16 s[40:55], s[0:1], 0")
        e("s_load_dwordx4 s[56:59], s[0:1], 64")
        e("s_load_dwordx2 s[60:61], s[0:1], 96")
        self.stamp(wait=False)
        if a.padto: e("s_memrealtime s[96:97]")
        e("s_and_b32 s3, s2, 7"); e("s_lshr_b32 s39, s2, 3")
        e(f"s_lshr_b32 {s(S_PP)}, s39, 3"); e("s_lshl_b32 s3, s3, 2"); e(f"s_add_u32 s3, s3, {s(S_PP)}")
        e(f"s_lshr_b32 {s(S_BLK)}, s3, 4"); e(f"s_and_b32 {s(S_H)}, s3, 15"); e(f"s_and_b32 {s(S_B)}, s39, 7")
        e(f"v_lshrrev_b32 {v(T0)}, 6, v0")
        e(f"v_readfirstlane_b32 {s(S_W)}, {v(T0)}")
        e("v_and_b32 v0, 255, v0")
        if a.rot:
            e(f"s_lshr_b32 {s(S_RB)}, {s(S_B)}, 2"); e(f"s_and_b32 {s(S_R4)}, {s(S_B)}, 3")
            e(f"s_mul_i32 {s(S_RB)}, {s(S_RB)}, 3")
            e(f"s_lshl_b32 {s(S_R7)}, {s(S_PP)}, 1"); e(f"s_add_u32 {s(S_R7)}, {s(S_R7)}, {s(S_RB)}")
            e(f"s_cmp_ge_u32 {s(S_R7)}, 7"); e(f"s_cselect_b32 {s(S_TMP)}, 7, 0"); e(f"s_sub_u32 {s(S_R7)}, {s(S_R7)}, {s(S_TMP)}")
        else:
            for r in (S_R7, S_R4, S_RB): e(f"s_mov_b32 {s(r)}, 0")
        e(f"s_and_b32 {s(S_U)}, {s(S_W)}, 3"); e(f"s_lshl_b32 {s(S_M0B)}, {s(S_U)}, 10")
        e(f"s_lshl_b32 s34, {s(S_B)}, 4"); e(f"s_add_u32 s34, s34, {s(S_H)}"); e("s_lshl_b32 s35, s34, 18")
        for S in (S_R0, S_R1, S_R2): e(f"s_mov_b32 {s(S+3)}, 0x20000")
        e(f"s_cmp_ge_u32 {s(S_W)}, 4"); e("s_cbranch_scc1 L_roleB")

    def bar(self, P, R):
        e = self.e
        if P["bar"]:
            need = P[R]["need"]
            if need is not None: e.wait_tag(need, lgkm=0)
            else: e.wait(lgkm=0)
            e.barrier()

    def role_A(self):
        e = self.e; a = self.a
        ACC = 16; LINV = 40; XA = 43; QA = 45
        UB = [4, 48, 56]
        VA0, VA1, OA = 3, 12, 13
        FR = lambda qt, kap: 64 + (kap * 3 + qt) * 4
        e("v_lshrrev_b32 v46, 3, v0"); e("v_and_b32 v47, 7, v0")
        e(f"v_bfe_u32 {v(T0)}, v0, 4, 3"); e(f"v_xor_b32 {v(T0)}, {v(T0)}, v47"); e(f"v_lshlrev_b32 {v(T0)}, 4, {v(T0)}")
        e("v_mul_u32_u24 v1, 896, v46"); e(f"v_add_u32 v1, v1, {v(T0)}")
        e(f"v_bfe_u32 {v(T0)}, v0, 4, 1"); e(f"v_bfe_u32 {v(T1)}, v0, 6, 1"); e(f"v_lshl_add_u32 {v(T0)}, {v(T1)}, 1, {v(T0)}")
        e(f"v_lshlrev_b32 {v(T0)}, 1, {v(T0)}"); e(f"v_xor_b32 {v(T0)}, {v(T0)}, v47"); e(f"v_lshlrev_b32 {v(T0)}, 4, {v(T0)}")
        e(f"v_lshl_add_u32 v2, v46, 13, {v(T0)}")
        e(f"s_lshl_b32 {s(S_A0)}, {s(S_R7)}, 7"); e(f"s_lshl_b32 {s(S_A1)}, {s(S_R7)}, 19"); e(f"s_lshl_b32 {s(S_A2)}, {s(S_R4)}, 7"); e(f"s_mov_b32 {s(S_A3)}, {s(S_A2)}")
        e(f"s_mov_b32 {s(S_R0+2)}, 86016"); e(f"s_mov_b32 {s(S_R1+2)}, {447*8192+512}"); e(f"s_mov_b32 {s(S_R2+2)}, 262144")
        e(f"s_mul_i32 s36, {s(S_B)}, 86016"); e(f"s_lshl_b32 s37, {s(S_H)}, 9")
        e(f"s_cmp_eq_u32 {s(S_BLK)}, 0")
        e.wait(lgkm=0)
        e(f"s_cselect_b64 {s(S_R0,2)}, s[40:41], s[50:51]")
        e(f"s_cselect_b64 {s(S_R1,2)}, s[46:47], s[56:57]")
        e(f"s_cselect_b64 {s(S_R2,2)}, s[44:45], s[54:55]")
        for S, o in ((S_R0, 36), (S_R1, 37), (S_R2, 35)):
            e(f"s_add_u32 {s(S)}, {s(S)}, s{o}"); e(f"s_addc_u32 {s(S+1)}, {s(S+1)}, 0")
        pending = []
        for ti, P in enumerate(self.plan):
            self.bar(P, "A")
            iss = list(P["A"]["issue"])
            acts = P["A"]["act"]
            units = []
            for act in acts:
                if act[0] in "WV": units += [(act[0], act[1], act[2], 0), (act[0], act[1], act[2], 1)]
            def uread(u, b):
                ty, i, sl, k2 = u
                second = 512 if ty == "W" else 1024
                if k2 == 0:
                    e(f"v_add_u32 {v(T0)}, {sl*SLOT}, {v(VA0)}"); e(f"v_add_u32 {v(T1)}, {sl*SLOT}, {v(VA1)}")
                for dt in range(2):
                    e(f"ds_read_b64_tr_b16 {v(b+4*dt,2)}, {v(T0+dt)} offset:{4096*k2}")
                    e(f"ds_read_b64_tr_b16 {v(b+4*dt+2,2)}, {v(T0+dt)} offset:{4096*k2+second}")
            def umfma(u, b):
                ty, i, sl, k2 = u
                kap = 2 * (i % (7 if ty == "W" else 8)) + k2
                for dt in range(2):
                    for qt in range(3):
                        acc = ACC + 12 * dt + 4 * qt
                        c = "0" if kap == 0 else v(acc, 4)
                        e(f"v_mfma_f32_16x16x32_bf16 {v(acc,4)}, {v(b+4*dt,4)}, {v(FR(qt,kap),4)}, {c}")
            for act in acts:
                if act[0] == "init":
                    for it in iss: self.issue(*it)
                    iss = []
                    e(f"v_and_b32 {v(T0)}, 15, v0"); e(f"v_bfe_u32 {v(T1)}, v0, 7, 1"); e(f"v_lshl_add_u32 v46, {v(T1)}, 4, {v(T0)}")
                    e(f"v_bfe_u32 {v(T0)}, v0, 1, 3"); e(f"v_bfe_u32 {v(T1)}, v0, 4, 2"); e(f"v_xor_b32 {v(T1)}, {v(T1)}, {v(T0)}"); e(f"v_lshlrev_b32 {v(T1)}, 4, {v(T1)}")
                    e(f"v_lshl_add_u32 {v(XA)}, v46, 7, {v(T1)}"); e(f"v_xor_b32 {v(XA+1)}, 64, {v(XA)}")
                    e(f"v_bfe_u32 {v(T1)}, v0, 5, 1"); e(f"v_bfe_u32 v47, v0, 6, 1"); e(f"v_lshl_add_u32 {v(T1)}, v47, 2, {v(T1)}")
                    e(f"v_xor_b32 {v(T1)}, {v(T1)}, {v(T0)}"); e(f"v_lshlrev_b32 {v(T1)}, 4, {v(T1)}"); e(f"v_lshl_add_u32 {v(QA)}, v46, 7, {v(T1)}")
                    e(f"v_bfe_u32 {v(T1)}, v0, 4, 1"); e(f"v_lshl_add_u32 {v(QA)}, {v(T1)}, 3, {v(QA)}"); e(f"v_xor_b32 v13, 32, {v(QA)}")
                    e(f"v_bfe_u32 {v(T0)}, v0, 2, 2"); e(f"v_bfe_u32 {v(T1)}, v0, 4, 2")
                    e(f"v_lshl_add_u32 {v(VA0)}, {v(T1)}, 3, {v(T0)}"); e(f"v_lshlrev_b32 {v(VA0)}, 7, {v(VA0)}")
                    e(f"v_bfe_u32 {v(T0)}, v0, 3, 2"); e(f"v_lshlrev_b32 {v(T1)}, 1, v47")
                    e(f"v_xor_b32 {v(T0)}, {v(T0)}, {v(T1)}"); e(f"v_lshl_add_u32 {v(VA0)}, {v(T0)}, 5, {v(VA0)}")
                    e(f"v_and_b32 {v(T0)}, 3, v0"); e(f"v_lshl_add_u32 {v(VA0)}, {v(T0)}, 3, {v(VA0)}")
                    e(f"v_xor_b32 {v(VA1)}, 32, {v(VA0)}")
                elif act[0] == "X":
                    n = act[1]
                    for k2 in range(2):
                        for qt in range(3):
                            e(f"ds_read_b128 {v(FR(qt, 2*n+k2),4)}, {v(XA+k2)} offset:{(n%4)*12288 + qt*4096}")
                elif act[0] == "initv":
                    if a.fused == 3:
                        self.flag_srd()
                        e(f"s_or_b32 {s(S_TMP)}, {s(S_H)}, {s(S_W)}"); e(f"s_cmp_lg_u32 {s(S_TMP)}, 0"); e("s_cbranch_scc1 L_noz")
                        e("v_lshlrev_b32 v46, 13, v0"); e("v_mov_b32 v47, 0")
                        e("buffer_store_dword v47, v46, s[36:39], 0 offen sc1")
                        e.force_wait("vmcnt(0)")
                        e("v_mov_b32 v47, 1")
                        e("buffer_atomic_add v47, v46, s[40:43], s63 offen")
                        e.force_wait("vmcnt(0)")
                        e.label("L_noz")
                    e(f"v_bfe_u32 {v(T0)}, v0, 2, 3"); e(f"v_bfe_u32 {v(T1)}, v0, 5, 1")
                    e(f"v_lshl_add_u32 {v(VA0)}, {v(T1)}, 4, {v(T0)}"); e(f"v_lshlrev_b32 {v(VA0)}, 7, {v(VA0)}")
                    e(f"v_bfe_u32 {v(T0)}, v0, 3, 2"); e(f"v_bfe_u32 {v(T1)}, v0, 6, 1"); e(f"v_lshlrev_b32 {v(T1)}, 1, {v(T1)}")
                    e(f"v_xor_b32 {v(T0)}, {v(T0)}, {v(T1)}"); e(f"v_lshl_add_u32 {v(VA0)}, {v(T0)}, 5, {v(VA0)}")
                    e(f"v_and_b32 {v(T0)}, 3, v0"); e(f"v_lshl_add_u32 {v(VA0)}, {v(T0)}, 3, {v(VA0)}")
                    e(f"v_xor_b32 {v(VA1)}, 32, {v(VA0)}")
                    e(f"v_and_b32 {v(T0)}, 63, v0"); e(f"v_lshlrev_b32 {v(XA)}, 4, {v(T0)}")
                    e(f"v_bfe_u32 {v(T0)}, v0, 7, 1"); e(f"v_lshl_add_u32 {v(XA)}, {v(T0)}, 10, {v(XA)}")
                    e(f"v_bfe_u32 {v(T1)}, v0, 6, 1"); e(f"v_mul_u32_u24 {v(T1)}, 6144, {v(T1)}"); e(f"v_add_u32 {v(OA)}, {v(XA)}, {v(T1)}")
                    e(f"v_and_b32 {v(T1)}, 15, v0"); e(f"v_lshl_add_u32 {v(T0)}, {v(T0)}, 4, {v(T1)}"); e(f"v_lshlrev_b32 {v(T0)}, 5, {v(T0)}")
                    e(f"v_add_u32 {v(XA+1)}, {STAT+4096}, {v(T0)}")
                elif act[0] == "pread":
                    T = act[1]
                    for u in range(4):
                        for qt in range(3):
                            e(f"ds_read_b128 {v(FR(qt, 4*T+u),4)}, {v(XA)} offset:{PBUF[T%2] + u*6144 + qt*2048}")
            def linv(tb):
                for k in range(2): e(f"ds_read_b128 {v(tb+4*k,4)}, {v(XA+1)} offset:{16*k}")
                for qt in range(3):
                    b = tb
                    for k in range(4): e(f"v_add_f32 {v(b+k)}, {v(b+k)}, {v(b+4+k)}")
                    e(f"v_add_f32 {v(b)}, {v(b)}, {v(b+2)}"); e(f"v_add_f32 {v(b+1)}, {v(b+1)}, {v(b+3)}")
                    e(f"v_add_f32 {v(LINV+qt)}, {v(b)}, {v(b+1)}")
                    if qt < 2:
                        for k in range(2): e(f"ds_read_b128 {v(tb+4*k,4)}, {v(XA+1)} offset:{(qt+1)*1024+16*k}")
                    e(f"v_rcp_f32 {v(LINV+qt)}, {v(LINV+qt)}")
            def write_out(ty, c, tb):
                if ty == "W":
                    for qt in range(3):
                        for dt in range(2):
                            acc = ACC + 12 * dt + 4 * qt; tt = tb + 2 * ((2 * qt + dt) % 4)
                            e(f"v_cvt_pk_bf16_f32 {v(tt)}, {v(acc)}, {v(acc+1)}"); e(f"v_cvt_pk_bf16_f32 {v(tt+1)}, {v(acc+2)}, {v(acc+3)}")
                            e(f"ds_write_b64 {v(QA if dt == 0 else 13)}, {v(tt,2)} offset:{QBUF[c%2] + qt*4096}")
                else:
                    if c == 0: linv(tb)
                    for qt in range(3):
                        tt = tb + 4 * (qt % 2)
                        for dt in range(2):
                            acc = ACC + 12 * dt + 4 * qt
                            for k in range(4): e(f"v_mul_f32 {v(acc+k)}, {v(LINV+qt)}, {v(acc+k)}")
                            e(f"v_cvt_pk_bf16_f32 {v(tt+2*dt)}, {v(acc)}, {v(acc+1)}"); e(f"v_cvt_pk_bf16_f32 {v(tt+2*dt+1)}, {v(acc+2)}, {v(acc+3)}")
                        e(f"ds_write_b128 {v(OA)}, {v(tt,4)} offset:{OBUF[c%2] + qt*2048}")
            def pop():
                u, b = pending.pop(0)
                umfma(u, b)
                per = 7 if u[0] == "W" else 8
                if u[1] % per == per - 1 and u[3] == 1:
                    write_out(u[0], u[1] // per, b); return True
                return False
            names = [x[0] for x in acts]
            nis = 0
            wrote = False
            for k, u in enumerate(units):
                while len(pending) >= 3: wrote |= pop()
                b = [x for x in UB if x not in [p[1] for p in pending]][0]
                uread(u, b); pending.append((u, b))
                if len(pending) > a.lag and (a.lag > 0 or k >= min(2, len(units) - 1)) :
                    if nis < a.a_first and iss: self.issue(*iss.pop(0)); nis += 1
                    wrote |= pop()
                if iss and k % 2 == 1: self.issue(*iss.pop(0))
            if "drain" in names or not units or a.lag == 0:
                while pending: wrote |= pop()
            if "flushw" in names:
                while not wrote and pending: wrote |= pop()
            for it in iss: self.issue(*it)
        if a.fused == 3:
            e(f"s_cmp_lg_u32 {s(S_W)}, 0"); e("s_cbranch_scc1 L_red")
            e("v_mov_b32 v6, 0")
            self.poll("L_pc", "buffer_load_dword v10, v6, s[40:43], s63 offen sc1", "v_cmp_le_u32 vcc, 1, v10")
        if a.fused in (1, 3): e("s_branch L_red")
        else:
            if a.fused == 2: self.staged_reduce()
            e("s_endpgm")

    def role_B(self):
        e = self.e; a = self.a
        KA, QA = 4, 8
        KF = 16; QF = 32; M = 56; SUM = 59
        SACC = lambda T, qt: 64 + (T * 3 + qt) * 16
        ACC = lambda cb, q6: 64 + 24 * cb + 4 * q6
        self.ACC = ACC
        OF = lambda k2, q6: 16 + 4 * (6 * k2 + q6)
        WB = [232, 240, 248]
        e(f"v_bfe_u32 {v(T0)}, v0, 3, 3"); e(f"v_lshrrev_b32 {v(T1)}, 6, v0"); e(f"v_lshl_add_u32 {v(T0)}, {v(T1)}, 5, {v(T0)}")
        e("v_and_b32 v12, 7, v0"); e(f"v_bfe_u32 {v(T1)}, v0, 4, 2"); e(f"v_xor_b32 v13, v12, {v(T1)}"); e("v_lshlrev_b32 v13, 4, v13")
        e(f"v_lshl_add_u32 v1, {v(T0)}, 9, v13"); e("v_xor_b32 v2, 64, v1")
        e(f"s_lshl_b32 {s(S_A0)}, {s(S_R4)}, 7"); e(f"s_mul_i32 {s(S_A1)}, {s(S_R4)}, 57344"); e(f"s_lshl_b32 {s(S_A2)}, {s(S_RB)}, 7")
        e(f"s_lshl_b32 {s(S_A3)}, {s(S_U)}, 12"); e(f"s_mul_i32 {s(S_ST)}, {s(S_RB)}, 12288")
        e(f"s_mov_b32 {s(S_R0+2)}, 262144"); e(f"s_mov_b32 {s(S_R1+2)}, 229376"); e(f"s_mov_b32 {s(S_R2+2)}, 86016")
        e(f"s_mul_i32 s36, {s(S_H)}, 229376")
        e(f"s_lshl_b32 s37, {s(S_BLK)}, 7"); e("s_add_u32 s37, s37, s34"); e("s_mul_i32 s37, s37, 86016")
        e(f"s_cmp_eq_u32 {s(S_BLK)}, 0")
        e.wait(lgkm=0)
        e(f"s_cselect_b64 {s(S_R0,2)}, s[42:43], s[52:53]")
        e(f"s_cselect_b64 {s(S_R1,2)}, s[48:49], s[58:59]")
        e(f"s_mov_b64 {s(S_R2,2)}, s[60:61]")
        for S, o in ((S_R0, 35), (S_R1, 36), (S_R2, 37)):
            e(f"s_add_u32 {s(S)}, {s(S)}, s{o}"); e(f"s_addc_u32 {s(S+1)}, {s(S+1)}, 0")
        if a.prio >= 2: e("s_setprio 1")
        kpre = qpre = -1
        def qrd(i, n):
            ks, qt = divmod(n, 3)
            e(f"ds_read_b128 {v(QF+4*(n%6),4)}, {v(QA+ks)} offset:{QBUF[(i//4)%2] + qt*4096}")
        def kreg(i): return SACC(3, i) if i in self.parked else KF
        def kread(i, ks):
            e(f"ds_read_b128 {v(kreg(i)+4*ks,4)}, {v(KA+ks)} offset:{(self.kslot[i]-self.KBASE)*SLOT}")
        phase1 = True
        opend = []
        for ti, P in enumerate(self.plan):
            if any(x[0] == "maxr" for x in P["B"]["act"]): phase1 = False
            if phase1:
                if P["bar"]: e.barrier()
            else: self.bar(P, "B")
            if ti in a.stamp_ticks: self.stamp()
            if a.fused == 2 and ti == 9:
                assert not any(t == "fz" for t, _ in e.vm)
                e("v_lshlrev_b32 v62, 8, v0"); e("v_mov_b32 v63, 1")
                e("buffer_atomic_add v63, v62, s[40:43], s63 offen")
            iss = list(P["B"]["issue"])
            acts = P["B"]["act"]
            for ai, act in enumerate(acts):
                if act[0] == "init":
                    for it in iss: self.issue(*it)
                    iss = []
                    e(f"s_mov_b32 {s(S_C)}, 0x3db8aa3b")
                    if a.fused == 2:
                        self.flag_srd()
                        e(f"s_lshl_b32 s62, {s(S_H)}, 2"); e(f"s_add_u32 s62, s62, {s(S_U)}"); e("s_lshl_b32 s62, s62, 7")
                        e("v_and_b32 v62, 63, v0"); e("v_lshlrev_b32 v62, 13, v62"); e("v_mov_b32 v63, 0")
                        e("buffer_store_dword v63, v62, s[36:39], s62 offen sc1", tag="fz")
                    e(f"v_lshlrev_b32 {v(T1)}, 1, {v(T1)}"); e(f"v_xor_b32 {v(T1)}, {v(T1)}, v12"); e(f"v_lshlrev_b32 {v(T1)}, 4, {v(T1)}")
                    e("v_lshrrev_b32 v3, 3, v0"); e("v_mul_u32_u24 v3, 896, v3"); e(f"v_add_u32 v3, v3, {v(T1)}")
                    e(f"v_and_b32 {v(T0)}, 31, v0"); e(f"v_bfe_u32 {v(T1)}, v0, 1, 3"); e("v_bfe_u32 v12, v0, 5, 1"); e(f"v_xor_b32 {v(T1)}, {v(T1)}, v12")
                    e(f"v_lshlrev_b32 {v(T1)}, 4, {v(T1)}"); e(f"v_lshl_add_u32 {v(QA)}, {v(T0)}, 7, {v(T1)}")
                    for ks in range(1, 4): e(f"v_xor_b32 {v(QA+ks)}, {32*ks}, {v(QA)}")
                    e(f"s_add_u32 {s(S_TMP)}, {s(S_A3)}, {self.KBASE*SLOT}")
                    for ks in range(4): e(f"v_add_u32 {v(KA+ks)}, {s(S_TMP)}, {v(QA+ks)}")
                    e(f"v_lshlrev_b32 {v(T0)}, 5, {v(T0)}"); e(f"v_add_u32 v13, {STAT}, {v(T0)}")
                    e(f"v_lshrrev_b32 {v(T1)}, 5, v0"); e(f"v_lshl_add_u32 v12, {v(T1)}, 2, v13")
                elif act[0] == "Kpark":
                    for it in iss: self.issue(*it)
                    iss = []
                    e.wait_tag(("K", act[1]))
                    for ks in range(4): kread(act[1], ks)
                    e.wait(lgkm=0)
                elif act[0] == "Kpre":
                    e.wait_tag(("K", 0))
                    for ks in range(4): kread(0, ks)
                    kpre = 0; qpre = -1
                elif act[0] == "S":
                    _, i, sl = act
                    c, T = divmod(i, 4)
                    seq = [(ks, qt) for ks in range(4) for qt in range(3)]
                    dma = []
                    for it in iss: dma += self.issue_parts(*it)
                    iss = []
                    if qpre != i:
                        for n in range(3): qrd(i, n)
                    if kpre != i and i not in self.parked:
                        while dma: dma.pop(0)()
                        e.wait_tag(("K", i))
                        for ks in range(4): kread(i, ks)
                    if qpre != i:
                        for n in range(3, 6): qrd(i, n)
                    own = []
                    if ai + 1 < len(acts) and acts[ai + 1][0] == "issue": own = self.issue_parts(acts[ai + 1][1], acts[ai + 1][2])
                    mode = None; qok = False
                    if i + 1 < 16 and self.kage[i + 1] < ti:
                        mode = "roll" if ti - self.kage[i + 1] >= a.kpre else "after"
                        if i + 1 in self.parked: mode = None
                        qok = (i + 1) // 4 <= self.sinfo[i][1]
                    for n, (ks, qt) in enumerate(seq):
                        cc = "0" if (c == 0 and ks == 0) else v(SACC(T, qt), 16)
                        e(f"v_mfma_f32_32x32x16_bf16 {v(SACC(T,qt),16)}, {v(kreg(i)+4*ks,4)}, {v(QF+4*(n%6),4)}, {cc}")
                        if n + 6 < 12: qrd(i, n + 6)
                        elif qok: qrd(i + 1, n - 6)
                        if mode == "roll" and qt == 2:
                            if ks == 0: e.wait_tag(("K", i + 1))
                            kread(i + 1, ks)
                        if n == 0 and own:
                            e.wait_regs(set(range(KF, KF + 16)))
                            dma += own
                        if dma and n % 2 == 0: dma.pop(0)()
                        if c == 3 and T > 0 and n >= 3 and (n - 3) < 9:
                            qq, part = divmod(n - 3, 3)
                            self.maxpart(M + qq, SACC(T - 1, qq), part, first=(T == 1))
                    while dma: dma.pop(0)()
                    if mode == "after":
                        e.wait_tag(("K", i + 1))
                        for ks in range(4): kread(i + 1, ks)
                    kpre = i + 1 if mode else -1
                    qpre = i + 1 if qok else -1
                elif act[0] == "maxw":
                    self.stamp()
                    for qt in range(3):
                        for part in range(3): self.maxpart(M + qt, SACC(3, qt), part, first=False)
                        e(f"ds_write_b32 v12, {v(M+qt)} offset:{qt*1024}")
                elif act[0] == "maxr":
                    if a.prio: e("s_setprio 1")
                    for qt in range(3):
                        for k in range(2): e(f"ds_read_b128 {v(16+8*qt+4*k,4)}, v13 offset:{qt*1024+16*k}")
                    e(f"v_and_b32 {v(T0)}, 15, v0"); e(f"v_lshlrev_b32 v4, 4, {v(T0)}")
                    e(f"v_bfe_u32 {v(T0)}, v0, 4, 1"); e(f"v_lshl_add_u32 v4, {v(T0)}, 10, v4")
                    e(f"v_bfe_u32 {v(T0)}, v0, 5, 1"); e(f"v_lshl_add_u32 v4, {v(T0)}, 8, v4")
                    e(f"s_mul_i32 {s(S_TMP)}, {s(S_U)}, 6144"); e(f"v_add_u32 v4, {s(S_TMP)}, v4")
                    for qt in range(3):
                        b = 16 + 8 * qt
                        e(f"v_max3_f32 {v(M+qt)}, {v(b)}, {v(b+1)}, {v(b+2)}")
                        e(f"v_max3_f32 {v(M+qt)}, {v(M+qt)}, {v(b+3)}, {v(b+4)}"); e(f"v_max3_f32 {v(M+qt)}, {v(M+qt)}, {v(b+5)}, {v(b+6)}")
                        e(f"v_max_f32 {v(M+qt)}, {v(M+qt)}, {v(b+7)}")
                        e(f"v_mul_f32 {v(M+qt)}, {s(S_C)}, {v(M+qt)}")
                elif act[0] == "smx":
                    T = act[1]
                    grp = [(qt, hf) for qt in range(3) for hf in range(2)]
                    def fe(g):
                        r = SACC(T, g[0]) + 8 * g[1]
                        for k in range(8): e(f"v_fma_f32 {v(r+k)}, {v(r+k)}, {s(S_C)}, -{v(M+g[0])}")
                        for k in range(8): e(f"v_exp_f32 {v(r+k)}, {v(r+k)}")
                    fe(grp[0])
                    for n, (qt, hf) in enumerate(grp):
                        if n + 1 < 6: fe(grp[n + 1])
                        r = SACC(T, qt) + 8 * hf
                        tt = 16 + 4 * n
                        for k in range(4): e(f"v_cvt_pk_bf16_f32 {v(tt+k)}, {v(r+2*k)}, {v(r+2*k+1)}")
                        e(f"ds_write_b128 v4, {v(tt,4)} offset:{PBUF[T%2] + qt*2048 + hf*512}")
                    if iss and a.b_smx_issue:
                        pass
                    self.defer_sum = (T,)
                    if T == 3 or not a.defer:
                        self.sums(T, SACC, SUM)
                        if T == 3:
                            for qt in range(3): e(f"ds_write_b32 v12, {v(SUM+qt)} offset:{4096+qt*1024}")
                elif act[0] == "inito":
                    self.stamp()
                    if a.prio == 1: e("s_setprio 0")
                    e(f"v_bfe_u32 {v(T0)}, v0, 2, 4"); e(f"v_lshlrev_b32 v5, 7, {v(T0)}")
                    e(f"v_bfe_u32 {v(T0)}, v0, 3, 2"); e(f"v_bfe_u32 {v(T1)}, v0, 6, 2"); e(f"v_xor_b32 {v(T0)}, {v(T0)}, {v(T1)}")
                    e(f"v_lshl_add_u32 v5, {v(T0)}, 5, v5")
                    e(f"v_and_b32 {v(T0)}, 3, v0"); e(f"v_lshl_add_u32 v5, {v(T0)}, 3, v5")
                    e(f"v_and_b32 {v(T0)}, 63, v0"); e(f"v_lshlrev_b32 v6, 4, {v(T0)}")
                    e(f"v_lshlrev_b32 v7, 4, v0")
                    e("v_lshlrev_b32 v8, 9, v6")
            ws = [x for x in acts if x[0] == "O"]
            dma = []
            for it in iss: dma += self.issue_parts(*it)
            def wread(x, b):
                _, i, sl = x
                tt = T0 + (i % 2)
                e(f"v_add_u32 {v(tt)}, {sl*SLOT}, v5")
                for k2 in range(2):
                    e(f"ds_read_b64_tr_b16 {v(b+4*k2,2)}, {v(tt)} offset:{4096*k2}")
                    e(f"ds_read_b64_tr_b16 {v(b+4*k2+2,2)}, {v(tt)} offset:{4096*k2+2048}")
            def ord_(c, k2, q6):
                e(f"ds_read_b128 {v(OF(k2,q6),4)}, v6 offset:{OBUF[c%2] + k2*6144 + q6*1024}")
            def opop(roll=None):
                x, b = opend.pop(0)
                c, cb = divmod(x[1], 7)
                st = self.store_parts(cb - 1) if (c == 3 and cb > 0) else []
                for k2 in range(2):
                    for q6 in range(6):
                        acc = ACC(cb, q6)
                        cc = "0" if (c == 0 and k2 == 0) else v(acc, 4)
                        e(f"v_mfma_f32_16x16x32_bf16 {v(acc,4)}, {v(b+4*k2,4)}, {v(OF(k2,q6),4)}, {cc}")
                        if roll is not None: ord_(roll, k2, q6)
                        if dma and q6 % 3 == 2: dma.pop(0)()
                        if st and (k2 or q6 >= 2):
                            st.pop(0)()
                            if st: st.pop(0)()
                while st: st.pop(0)()
                if c == 3 and a.fused == 2 and cb - 1 - a.flag_lag >= 0: self.flag(cb - 1 - a.flag_lag)
                if c == 3 and cb == 6:
                    for f in self.store_parts(6): f()
                    if a.fused == 2 and 6 - a.flag_lag >= 0: self.flag(6 - a.flag_lag)
            ord_c = [x[1] for x in acts if x[0] == "oread"]
            if ord_c:
                c = ord_c[0]
                if c == 3: self.stamp()
                if ws and len(opend) < 3:
                    b = [x for x in WB if x not in [p[1] for p in opend]][0]
                    first = (ws.pop(0), b); wread(*first)
                else: first = None
                while len(opend) > 1: opop()
                if opend: opop(roll=c)
                else:
                    for k2 in range(2):
                        for q6 in range(6): ord_(c, k2, q6)
                if first: opend.append(first)
            lastt = ti == len(self.plan) - 1
            nows = not ws and not ord_c
            for x in ws:
                while len(opend) >= 3: opop()
                b = [y for y in WB if y not in [p[1] for p in opend]][0]
                wread(x, b); opend.append((x, b))
                if len(opend) > (2 if lastt else max(a.blag, 1)): opop()
            while len(opend) > (0 if (lastt or nows) else a.blag): opop()
            while dma: dma.pop(0)()
        if a.padto and a.padglob:
            e("s_load_dwordx2 s[98:99], s[0:1], 88"); e.force_wait("vmcnt(0) lgkmcnt(0)")
            e("s_not_b32 s97, s96"); e("v_mov_b32 v10, 240"); e("v_mov_b32 v11, s97"); e("s_mov_b64 s[94:95], s[98:99]")
            e("s_mov_b64 exec, 1")
            e("global_atomic_umax v10, v11, s[94:95]"); e.force_wait("vmcnt(0)")
            e.label("L_pad")
            e("global_load_dword v12, v10, s[94:95] sc1"); e("s_memrealtime s[98:99]"); e.force_wait("vmcnt(0) lgkmcnt(0)")
            e("v_readfirstlane_b32 s96, v12"); e("s_sleep 8"); e("s_not_b32 s96, s96")
            e("s_sub_u32 s98, s98, s96"); e(f"s_cmp_lt_u32 s98, {a.padto*100}"); e("s_cbranch_scc1 L_pad")
            e("s_mov_b64 exec, -1")
        elif a.padto:
            e.label("L_pad")
            e("s_memrealtime s[98:99]"); e.force_wait("lgkmcnt(0)")
            e("s_sub_u32 s98, s98, s96"); e(f"s_cmp_lt_u32 s98, {a.padto*100}"); e("s_cbranch_scc1 L_pad")
        self.stamp()
        if a.fused in (1, 3): self.fused_reduce()
        if a.fused == 2:
            for n in range(7 - a.flag_lag, 7): self.flag(n)
        if a.stamps:
            e.force_wait("vmcnt(0)")
            self.stamp()
            e(f"s_cmp_lg_u32 {s(S_W)}, 4"); e("s_cbranch_scc1 L_end1")
            e(f"s_add_u32 s60, s60, {STAMP_OFF}"); e("s_addc_u32 s61, s61, 0"); e("s_lshl_b32 s33, s2, 7"); e("s_add_u32 s60, s60, s33"); e("s_addc_u32 s61, s61, 0")
            e("v_mov_b32 v10, 0")
            for i in range(self.nst):
                e(f"v_mov_b32 v8, s{64+2*i}"); e(f"v_mov_b32 v9, s{65+2*i}")
                e(f"global_store_dwordx2 v10, v[8:9], s[60:61] offset:{8*i}"); e.nop(2)

    def flag_srd(self):
        e = self.e
        e("s_load_dwordx4 s[44:47], s[0:1], 80")
        e(f"s_lshl_b32 s63, {s(S_BLK)}, 3"); e(f"s_add_u32 s63, s63, {s(S_B)}")
        e(f"s_mul_i32 {s(S_TMP)}, s63, 8192"); e(f"s_add_u32 {s(S_TMP)}, {s(S_TMP)}, {FLAG_OFF}")
        e(f"s_add_u32 s36, s60, {s(S_TMP)}"); e("s_addc_u32 s37, s61, 0"); e("s_mov_b32 s38, 8192"); e("s_mov_b32 s39, 0x20000")
        e("s_lshl_b32 s63, s63, 4")
        e.force_wait("lgkmcnt(0)")
        e("s_mov_b64 s[40:41], s[46:47]"); e("s_mov_b32 s42, 256"); e("s_mov_b32 s43, 0x20000")

    def flag(self, n):
        e = self.e
        e.wait_tag(("st", n))
        e(f"v_mov_b32 v9, {n+1}")
        e("buffer_store_dword v9, v8, s[36:39], s62 offen sc1")

    def poll(self, name, load, cmp):
        e = self.e
        e("s_mov_b32 s51, 0")
        e.label(name)
        e(load); e.force_wait("vmcnt(0)")
        e(cmp)
        e("s_add_u32 s51, s51, 1")
        e("s_cmp_eq_u64 vcc, -1"); e(f"s_cbranch_scc1 {name}_ok")
        e("s_cmp_ge_u32 s51, 200000"); e(f"s_cbranch_scc1 {name}_ok")
        if self.a.psleep: e(f"s_sleep {self.a.psleep}")
        e(f"s_branch {name}")
        e.label(name + "_ok")

    def staged_reduce(self):
        e = self.e; a = self.a
        self.flag_srd()
        e(f"s_lshr_b32 {s(S_TMP)}, s63, 4"); e(f"s_mul_i32 {s(S_TMP)}, {s(S_TMP)}, {16*86016}")
        e(f"s_add_u32 s52, s60, {s(S_TMP)}"); e("s_addc_u32 s53, s61, 0"); e(f"s_mov_b32 s54, {16*86016}"); e("s_mov_b32 s55, 0x20000")
        e("s_mov_b64 s[56:57], s[44:45]"); e(f"s_mov_b32 s58, {8*96*1792}"); e("s_mov_b32 s59, 0x20000")
        e("v_and_b32 v1, 63, v0")
        e(f"s_lshr_b32 {s(S_TMP)}, {s(S_H)}, 2"); e(f"s_mul_i32 {s(S_TMP)}, {s(S_TMP)}, 48"); e(f"v_add_u32 v2, {s(S_TMP)}, v1")
        e("v_lshrrev_b32 v3, 6, v2"); e("v_and_b32 v2, 63, v2"); e("v_lshl_add_u32 v2, v3, 8, v2")
        e(f"s_and_b32 s46, {s(S_H)}, 3"); e(f"s_lshl_b32 {s(S_TMP)}, s46, 6"); e(f"v_add_u32 v2, {s(S_TMP)}, v2")
        e("s_lshl_b32 s46, s46, 7")
        e("v_mov_b32 v4, 0x200000"); e("v_cmp_gt_u32 vcc, 48, v1")
        e("v_lshlrev_b32 v3, 4, v2"); e("v_cndmask_b32 v3, v4, v3, vcc")
        e("v_lshrrev_b32 v7, 8, v2"); e("v_and_b32 v8, 15, v2"); e("v_lshl_add_u32 v8, v7, 5, v8"); e("v_mul_u32_u24 v8, 1792, v8")
        e("v_bfe_u32 v9, v2, 4, 4"); e("v_lshl_add_u32 v8, v9, 3, v8"); e("v_cndmask_b32 v8, v4, v8, vcc")
        e("v_and_b32 v5, 15, v1"); e("v_lshlrev_b32 v5, 9, v5"); e("v_mov_b32 v6, 0")
        e(f"s_mul_i32 s49, {s(S_B)}, {96*1792}"); e(f"s_mul_i32 {s(S_TMP)}, {s(S_BLK)}, 896"); e(f"s_add_u32 s49, s49, {s(S_TMP)}")
        e("s_mov_b32 s50, 0xffff0000")
        self.poll("L_pc", "buffer_load_dword v10, v6, s[40:43], s63 offen sc1", "v_cmp_le_u32 vcc, 16, v10")
        e(f"s_mov_b32 s48, {s(S_U)}")
        e.label("L_stage")
        self.poll("L_pf", "buffer_load_dword v10, v5, s[36:39], s46 offen sc1", "v_cmp_lt_u32 vcc, s48, v10")
        e(f"s_add_u32 s47, s48, {s(S_RB)}"); e("s_cmp_ge_u32 s47, 7"); e(f"s_cselect_b32 {s(S_TMP)}, 7, 0"); e(f"s_sub_u32 s47, s47, {s(S_TMP)}")
        e(f"s_mul_i32 {s(S_SO)}, s47, 12288")
        rp = self.pol(a.frpol)
        for h in range(16):
            e(f"buffer_load_dwordx4 {v(32+4*h,4)}, v3, s[52:55], {s(S_SO)} offen{rp}")
            if h < 15: e(f"s_add_u32 {s(S_SO)}, {s(S_SO)}, 86016")
        e("s_lshl_b32 s47, s47, 7"); e("s_add_u32 s47, s47, s49")
        for h in range(16):
            for k in range(4):
                r = 32 + 4 * h + k
                if h == 0:
                    e(f"v_lshlrev_b32 v{16+2*k}, 16, v{r}"); e(f"v_and_b32 v{17+2*k}, s50, v{r}")
                else:
                    e(f"v_lshlrev_b32 v{24+2*k}, 16, v{r}"); e(f"v_and_b32 v{25+2*k}, s50, v{r}")
                    e(f"v_pk_add_f32 {v(16+2*k,2)}, {v(16+2*k,2)}, {v(24+2*k,2)}")
        for k in range(4): e(f"v_cvt_pk_bf16_f32 v{24+k}, v{16+2*k}, v{17+2*k}")
        e("buffer_store_dwordx2 v[24:25], v8, s[56:59], s47 offen")
        e(f"s_add_u32 s47, s47, {16*1792}")
        e("buffer_store_dwordx2 v[26:27], v8, s[56:59], s47 offen")
        e("s_add_u32 s48, s48, 4"); e("s_cmp_lt_u32 s48, 7"); e("s_cbranch_scc1 L_stage")
        if a.stamps:
            e.force_wait("vmcnt(0)")
            e("s_memrealtime s[64:65]"); e.force_wait("lgkmcnt(0)")
            e(f"s_cmp_lg_u32 {s(S_W)}, 2"); e("s_cbranch_scc1 L_end1")
            e(f"s_add_u32 s60, s60, {STAMP_OFF}"); e("s_addc_u32 s61, s61, 0"); e("s_lshl_b32 s33, s2, 7"); e("s_add_u32 s60, s60, s33"); e("s_addc_u32 s61, s61, 0")
            e("v_mov_b32 v10, 0"); e("v_mov_b32 v8, s64"); e("v_mov_b32 v9, s65")
            e(f"global_store_dwordx2 v10, v[8:9], s[60:61] offset:{8*a.astamp}")

    def fused_reduce(self):
        e = self.e; a = self.a
        e.label("L_red")
        e.nop(12)
        e("s_load_dwordx4 s[40:43], s[0:1], 80")
        e(f"s_lshr_b32 {s(S_TMP)}, {s(S_W)}, 2"); e(f"s_lshl_b32 {s(S_TMP)}, {s(S_TMP)}, 8")
        e(f"v_add_u32 v1, {s(S_TMP)}, v0")
        e(f"s_mul_i32 {s(S_TMP)}, {s(S_H)}, 336")
        e(f"v_add_u32 v2, {s(S_TMP)}, v1")
        e("v_lshlrev_b32 v3, 4, v2")
        e("v_mov_b32 v4, 0x200000")
        e("v_cmp_gt_u32 vcc, 336, v1")
        e("v_cndmask_b32 v3, v4, v3, vcc")
        e(f"s_lshl_b32 s48, {s(S_BLK)}, 3"); e(f"s_add_u32 s48, s48, {s(S_B)}")
        e(f"s_mul_i32 {s(S_TMP)}, s48, {16*86016}")
        e(f"s_add_u32 s44, s60, {s(S_TMP)}"); e("s_addc_u32 s45, s61, 0"); e(f"s_mov_b32 s46, {16*86016}"); e("s_mov_b32 s47, 0x20000")
        e("v_lshrrev_b32 v5, 8, v2"); e("v_mul_u32_u24 v6, 43, v5"); e("v_lshrrev_b32 v6, 7, v6")
        e("v_mul_u32_u24 v7, 3, v6"); e("v_sub_u32 v7, v5, v7")
        e("v_and_b32 v8, 15, v2"); e("v_lshl_add_u32 v8, v7, 5, v8"); e("v_mul_u32_u24 v8, 1792, v8")
        e("v_lshl_add_u32 v8, v6, 7, v8"); e("v_bfe_u32 v9, v2, 4, 4"); e("v_lshl_add_u32 v8, v9, 3, v8")
        e("v_cndmask_b32 v8, v4, v8, vcc")
        e(f"s_mul_i32 s49, {s(S_B)}, {96*1792}"); e(f"s_mul_i32 {s(S_TMP)}, {s(S_BLK)}, 896"); e(f"s_add_u32 s49, s49, {s(S_TMP)}")
        e.force_wait("vmcnt(0) lgkmcnt(0)")
        e("s_mov_b64 s[52:53], s[40:41]"); e(f"s_mov_b32 s54, {8*96*1792}"); e("s_mov_b32 s55, 0x20000")
        e.barrier()
        e(f"s_cmp_lg_u32 {s(S_W)}, 0"); e("s_cbranch_scc1 L_go")
        e("s_lshl_b32 s50, s48, 4")
        if a.fused == 3:
            e("s_mov_b32 s50, 0"); e("s_mov_b64 s[42:43], s[36:37]")
        e("v_mov_b32 v10, s50"); e("v_mov_b32 v11, 1")
        e("s_mov_b64 exec, 1")
        e("global_atomic_add v12, v10, v11, s[42:43] sc0")
        e("s_mov_b32 s51, 0")
        e.force_wait("vmcnt(0)")
        e("v_add_u32 v12, 1, v12")
        e.label("L_poll")
        e("v_readfirstlane_b32 s50, v12")
        e("s_add_u32 s51, s51, 1")
        e("s_cmp_ge_u32 s50, 16"); e("s_cbranch_scc1 L_polled")
        e(f"s_cmp_ge_u32 s51, 200000"); e("s_cbranch_scc1 L_polled")
        if a.psleep: e(f"s_sleep {a.psleep}")
        e("global_load_dword v12, v10, s[42:43] sc1")
        e.force_wait("vmcnt(0)")
        e("s_branch L_poll")
        e.label("L_polled")
        e("s_mov_b64 exec, -1")
        e.label("L_go")
        e.barrier()
        self.stamp()
        e(f"s_cmp_ge_u32 {s(S_W)}, 6"); e("s_cbranch_scc1 L_end1")
        rp = self.pol(a.frpol)
        for h in range(16):
            e(f"s_mov_b32 {s(S_SO)}, {h*86016}")
            e(f"buffer_load_dwordx4 {v(32+4*h,4)}, v3, s[44:47], {s(S_SO)} offen{rp}")
        e("s_mov_b32 s50, 0xffff0000")
        for h in range(16):
            for k in range(4):
                r = 32 + 4 * h + k
                if h == 0:
                    e(f"v_lshlrev_b32 v{16+2*k}, 16, v{r}"); e(f"v_and_b32 v{17+2*k}, s50, v{r}")
                else:
                    e(f"v_lshlrev_b32 v{24+2*k}, 16, v{r}"); e(f"v_and_b32 v{25+2*k}, s50, v{r}")
                    e(f"v_pk_add_f32 {v(16+2*k,2)}, {v(16+2*k,2)}, {v(24+2*k,2)}")
        for k in range(4): e(f"v_cvt_pk_bf16_f32 v{24+k}, v{16+2*k}, v{17+2*k}")
        e("buffer_store_dwordx2 v[24:25], v8, s[52:55], s49 offen")
        e(f"s_add_u32 s49, s49, {16*1792}")
        e("buffer_store_dwordx2 v[26:27], v8, s[52:55], s49 offen")

    def maxpart(self, m, b, part, first):
        e = self.e
        if part == 0:
            if first:
                e(f"v_max3_f32 {v(m)}, {v(b)}, {v(b+1)}, {v(b+1)}")
            else:
                e(f"v_max3_f32 {v(m)}, {v(m)}, {v(b)}, {v(b+1)}")
            e(f"v_max3_f32 {v(m)}, {v(m)}, {v(b+2)}, {v(b+3)}"); e(f"v_max3_f32 {v(m)}, {v(m)}, {v(b+4)}, {v(b+5)}")
        elif part == 1:
            for k in (6, 8, 10): e(f"v_max3_f32 {v(m)}, {v(m)}, {v(b+k)}, {v(b+k+1)}")
        else:
            for k in (12, 14): e(f"v_max3_f32 {v(m)}, {v(m)}, {v(b+k)}, {v(b+k+1)}")

    def sums(self, T, SACC, SUM):
        e = self.e
        for qt in range(3):
            r = SACC(T, qt)
            for k in range(0, 8, 2): e(f"v_pk_add_f32 {v(r+k,2)}, {v(r+k,2)}, {v(r+8+k,2)}")
            for k in range(0, 4, 2): e(f"v_pk_add_f32 {v(r+k,2)}, {v(r+k,2)}, {v(r+4+k,2)}")
            e(f"v_pk_add_f32 {v(r,2)}, {v(r,2)}, {v(r+2,2)}")
            if T == 0: e(f"v_add_f32 {v(SUM+qt)}, {v(r)}, {v(r+1)}")
            else:
                e(f"v_add_f32 {v(r)}, {v(r)}, {v(r+1)}"); e(f"v_add_f32 {v(SUM+qt)}, {v(SUM+qt)}, {v(r)}")

    def store_cb(self, cb):
        e = self.e
        wp = self.pol(self.a.wpol)
        for qt in range(3):
            a0, a1 = self.ACC(cb, 2 * qt), self.ACC(cb, 2 * qt + 1)
            tt = a0
            e(f"v_cvt_pk_bf16_f32 {v(tt)}, {v(a0)}, {v(a0+1)}"); e(f"v_cvt_pk_bf16_f32 {v(tt+1)}, {v(a0+2)}, {v(a0+3)}")
            e(f"v_cvt_pk_bf16_f32 {v(tt+2)}, {v(a1)}, {v(a1+1)}"); e(f"v_cvt_pk_bf16_f32 {v(tt+3)}, {v(a1+2)}, {v(a1+3)}")
            e(f"buffer_store_dwordx4 {v(tt,4)}, v7, {s(S_R2,4)}, {s(S_ST)} offen{wp}", tag=("st", cb))
            if qt < 2: e(f"s_add_u32 {s(S_ST)}, {s(S_ST)}, 4096")
        e(f"s_add_u32 {s(S_ST)}, {s(S_ST)}, 4096"); e(f"s_cmp_eq_u32 {s(S_ST)}, 86016"); e(f"s_cselect_b32 {s(S_ST)}, 0, {s(S_ST)}")

    def kernel1(self):
        e = self.e
        self.oage = {}; self.sinfo = {}; self.parked = set()
        self.build_plan()
        e.label(NAME + "_kernel")
        self.prologue()
        snap = e.snapshot(); nst = self.nst
        self.role_A()
        e.restore(snap); self.nst = nst
        e.label("L_roleB")
        self.role_B()
        e.label("L_end1"); e("s_endpgm")

from gen1 import desc

def reducer2(a):
    per, thr = a.rper, a.rthr
    nwg = 16 * 5376 // per
    assert 5376 % per == 0
    wpg = 5376 // per
    e = Emitter()
    e.label("reduce_kernel")
    e(f"s_cmp_ge_u32 s2, {nwg}"); e("s_cbranch_scc1 L_end2")
    e("s_load_dwordx2 s[4:5], s[0:1], 96")
    e("s_load_dwordx2 s[8:9], s[0:1], 80")
    if a.stamps: e("s_memrealtime s[24:25]")
    e(f"s_mul_hi_u32 s12, s2, {-(-(1<<32)//wpg)}")
    e(f"s_mul_i32 s13, s12, {wpg}"); e("s_sub_u32 s13, s2, s13"); e(f"s_mul_i32 s13, s13, {per}")
    e("v_add_u32 v2, s13, v0")
    e("v_lshlrev_b32 v3, 4, v2")
    if per != thr:
        e("v_mov_b32 v4, 0x200000"); e(f"v_cmp_gt_u32 vcc, {per}, v0"); e("v_cndmask_b32 v3, v4, v3, vcc")
    e(f"s_mul_i32 s16, s12, {16*86016}")
    e(f"s_mov_b32 s6, {16*86016}"); e("s_mov_b32 s7, 0x20000"); e(f"s_mov_b32 s10, {8*96*1792}"); e("s_mov_b32 s11, 0x20000")
    e("s_mov_b32 s18, 0")
    e.wait(lgkm=0)
    if a.stamps: e("s_mov_b64 s[28:29], s[4:5]")
    e("s_add_u32 s4, s4, s16"); e("s_addc_u32 s5, s5, 0")
    rp = (" " + a.rpol) if a.rpol else ""
    for h in range(16):
        e(f"buffer_load_dwordx4 {v(32+4*h,4)}, v3, s[4:7], s18 offen{rp}")
        if h < 15: e("s_add_u32 s18, s18, 86016")
    e("v_lshrrev_b32 v5, 8, v2"); e("v_mul_u32_u24 v6, 43, v5"); e("v_lshrrev_b32 v6, 7, v6")
    e("v_mul_u32_u24 v7, 3, v6"); e("v_sub_u32 v7, v5, v7")
    e("v_and_b32 v8, 15, v2"); e("v_lshl_add_u32 v8, v7, 5, v8"); e("v_mul_u32_u24 v8, 1792, v8")
    e("v_lshl_add_u32 v8, v6, 7, v8"); e("v_bfe_u32 v9, v2, 4, 4"); e("v_lshl_add_u32 v8, v9, 3, v8")
    if per != thr: e("v_cndmask_b32 v8, v4, v8, vcc")
    e("s_and_b32 s19, s12, 7"); e("s_lshr_b32 s20, s12, 3")
    e(f"s_mul_i32 s19, s19, {96*1792}"); e("s_mul_i32 s20, s20, 896"); e("s_add_u32 s19, s19, s20")
    e("s_mov_b32 s22, 0xffff0000")
    for h in range(16):
        for k in range(4):
            r = 32 + 4 * h + k
            if h == 0:
                e(f"v_lshlrev_b32 v{16+2*k}, 16, v{r}"); e(f"v_and_b32 v{17+2*k}, s22, v{r}")
            else:
                e(f"v_lshlrev_b32 v{24+2*k}, 16, v{r}"); e(f"v_and_b32 v{25+2*k}, s22, v{r}")
                e(f"v_pk_add_f32 {v(16+2*k,2)}, {v(16+2*k,2)}, {v(24+2*k,2)}")
    for k in range(4): e(f"v_cvt_pk_bf16_f32 v{24+k}, v{16+2*k}, v{17+2*k}")
    op = (" " + a.opol) if a.opol else ""
    e(f"buffer_store_dwordx2 v[24:25], v8, s[8:11], s19 offen{op}")
    e(f"s_add_u32 s19, s19, {16*1792}")
    e(f"buffer_store_dwordx2 v[26:27], v8, s[8:11], s19 offen{op}")
    if a.stamps:
        e.force_wait("vmcnt(0)")
        e("s_memrealtime s[26:27]"); e.force_wait("lgkmcnt(0)")
        e(f"s_add_u32 s28, s28, {STAMP_OFF + 65536}"); e("s_addc_u32 s29, s29, 0"); e("s_lshl_b32 s13, s2, 4"); e("s_add_u32 s28, s28, s13"); e("s_addc_u32 s29, s29, 0")
        e("v_mov_b32 v10, 0"); e("v_mov_b32 v12, s24"); e("v_mov_b32 v13, s25"); e("v_mov_b32 v14, s26"); e("v_mov_b32 v15, s27")
        e("global_store_dwordx4 v10, v[12:15], s[28:29]")
    e.label("L_end2"); e("s_endpgm")
    return e, nwg

ilist = lambda x: [int(t) for t in x.split(",") if t]

def main(argv=None):
    ap = argparse.ArgumentParser()
    ap.add_argument("-o", default="k3.s")
    ap.add_argument("--stamps", type=int, default=0)
    ap.add_argument("--stamp_ticks", type=ilist, default=[])
    ap.add_argument("--clk", type=int, default=0)
    ap.add_argument("--rot", type=int, default=1)
    ap.add_argument("--nkd", type=int, default=4)
    ap.add_argument("--la", type=float, default=6)
    ap.add_argument("--k0", type=int, default=1)
    ap.add_argument("--kticks", type=ilist, default=[2, 4, 6])
    ap.add_argument("--wrate", type=float, default=2.34)
    ap.add_argument("--alt1", type=int, default=0)
    ap.add_argument("--alt2", type=int, default=0)
    ap.add_argument("--lag", type=int, default=2)
    ap.add_argument("--qdrain", type=ilist, default=[0, 3])
    ap.add_argument("--odrain", type=ilist, default=[0])
    ap.add_argument("--kpre", type=int, default=2)
    ap.add_argument("--blag", type=int, default=1)
    ap.add_argument("--kmax", type=int, default=2)
    ap.add_argument("--kmax_from", type=int, default=99)
    ap.add_argument("--klag", type=int, default=2)
    ap.add_argument("--kburn", type=int, default=1)
    ap.add_argument("--kkeep", type=int, default=1)
    ap.add_argument("--vtr0", type=int, default=2)
    ap.add_argument("--vtr1", type=int, default=3)
    ap.add_argument("--lv0", type=int, default=10)
    ap.add_argument("--vmax0", type=int, default=3)
    ap.add_argument("--prio", type=int, default=0)
    ap.add_argument("--vend", type=int, default=2)
    ap.add_argument("--park", type=int, default=0)
    ap.add_argument("--parkfast", type=int, default=1)
    ap.add_argument("--oearly", type=int, default=0)
    ap.add_argument("--oe_from", type=int, default=16)
    ap.add_argument("--oe_rate", type=int, default=2)
    ap.add_argument("--lv", type=int, default=6)
    ap.add_argument("--lc", type=int, default=9)
    ap.add_argument("--vcmax", type=int, default=3)
    ap.add_argument("--vmax", type=int, default=2)
    ap.add_argument("--lo", type=int, default=9)
    ap.add_argument("--omax", type=int, default=3)
    ap.add_argument("--ostart", type=int, default=4)
    ap.add_argument("--olag", type=int, default=2)
    ap.add_argument("--opn", type=int, default=2)
    ap.add_argument("--vres", type=int, default=0)
    ap.add_argument("--a_first", type=int, default=1)
    ap.add_argument("--b_first", type=int, default=1)
    ap.add_argument("--b_smx_issue", type=int, default=0)
    ap.add_argument("--defer", type=int, default=0)
    ap.add_argument("--kvpol", default="nt")
    ap.add_argument("--spol", default="")
    ap.add_argument("--wpol", default="sc1")
    ap.add_argument("--rpol", default="")
    ap.add_argument("--opol", default="")
    ap.add_argument("--rper", type=int, default=336)
    ap.add_argument("--rthr", type=int, default=384)
    ap.add_argument("--rlds", type=int, default=0)
    ap.add_argument("--fused", type=int, default=0)
    ap.add_argument("--flag_lag", type=int, default=1)
    ap.add_argument("--astamp", type=int, default=8)
    ap.add_argument("--psleep", type=int, default=2)
    ap.add_argument("--frpol", default="sc1")
    ap.add_argument("--skip", default="")
    ap.add_argument("--padto", type=int, default=0)
    ap.add_argument("--padglob", type=int, default=0)
    ap.add_argument("--verbose", action="store_true")
    a = ap.parse_args(argv)
    g = Gen(a); g.kernel1()
    out = HEADER
    if a.fused:
        out += "; @launch grid=(256,1,1) block=(512,1,1) lds=163840\n"
    else:
        out += f"; @launch kernel={NAME}_kernel grid=(256,1,1) block=(512,1,1) lds=163840\n"
        re_, nwg = reducer2(a)
        out += f"; @launch kernel=reduce_kernel grid=({nwg},1,1) block=({a.rthr},1,1) lds={a.rlds}\n"
    out += '.amdgcn_target "amdgcn-amd-amdhsa--gfx950"\n.text\n'
    out += f".globl {NAME}_kernel\n.p2align 8\n.type {NAME}_kernel,@function\n" + g.e.text()
    if not a.fused:
        out += ".globl reduce_kernel\n.p2align 8\n.type reduce_kernel,@function\n" + re_.text()
    out += '.section .rodata,"a"\n.p2align 6\n' + desc(NAME + "_kernel", 256)
    if not a.fused: out += ".p2align 6\n" + desc("reduce_kernel", 96, 32)
    open(a.o, "w").write(out)
    print(f"{a.o}: k1 insts {g.e.ninst} (nops {g.e.nops}), ticks {len(g.plan)}, stamps {g.nst}", file=sys.stderr)

if __name__ == "__main__":
    main()
```

```python
import sys, argparse
from emit import Emitter

NAME = "concat_heads__mha_block_cached__mha_block_cached__near_ridge"
STAMP_OFF = 200 << 20
SLOT = 8192
STAT = 19 * SLOT
HEADER = open("cdna_kernels/" + NAME + ".s.ref").read().split("; Override launch")[0]

def v(a, n=1): return f"v{a}" if n == 1 else f"v[{a}:{a+n-1}]"
def s(a, n=1): return f"s{a}" if n == 1 else f"s[{a}:{a+n-1}]"

T0, T1 = 14, 15
S_R0, S_R1, S_R2 = 4, 8, 12
S_W, S_M0B, S_SO, S_TMP, S_C = 16, 17, 18, 19, 20
S_BLK, S_H, S_B, S_PP, S_U = 21, 22, 23, 24, 25
S_R7, S_R4, S_RB = 26, 27, 28
S_A0, S_A1, S_A2, S_A3, S_ST = 29, 30, 31, 32, 33
FLAG_OFF = 32 << 20
QBUF = [0, 12288]
PBUF = [0, 24576]
OBUF = [0, 0]

class Gen:
    def __init__(self, a):
        self.a = a
        self.e = Emitter()
        D = dict(mfma=("v_mfma",), ds=("ds_",), valu=("v_exp", "v_fma_f32", "v_max", "v_cvt_pk", "v_pk_", "v_mul_f32", "v_add_f32", "v_rcp"), store=("buffer_store",), dma=("buffer_load",))
        self.e.drop = tuple(x for k in a.skip.split(",") if k for x in D[k])
        self.nst = 0

    def stamp(self, wait=True):
        if self.a.stamps:
            i = self.nst; self.nst += 1
            assert i < 16
            self.e(f"{'s_memtime' if self.a.clk else 's_memrealtime'} {s(64+2*i,2)}")
            if wait: self.e.force_wait("lgkmcnt(0)")

    def pol(self, p): return (" " + p) if p else ""

    def issue(self, item, slot):
        e = self.e; a = self.a
        ty = item[0]
        sh, kv = self.pol(a.spol), self.pol(a.kvpol)
        if ty == "X":
            n = item[1]
            for j in range(3):
                e(f"s_add_u32 m0, {s(S_M0B)}, {(n%4)*12288 + j*4096}")
                e(f"s_add_u32 {s(S_SO)}, {s(S_A0)}, {j*32*896}")
                e(f"buffer_load_dwordx4 v1, {s(S_R0,4)}, {s(S_SO)} offen{sh} lds", tag=item)
            e(f"s_add_u32 {s(S_A0)}, {s(S_A0)}, 128"); e(f"s_cmp_eq_u32 {s(S_A0)}, 896"); e(f"s_cselect_b32 {s(S_A0)}, 0, {s(S_A0)}")
        elif ty == "W":
            c, n = divmod(item[1], 7)
            e(f"s_add_u32 m0, {s(S_M0B)}, {slot*SLOT}")
            e(f"s_add_u32 {s(S_SO)}, {s(S_A1)}, {s(S_A2)}")
            e(f"buffer_load_dwordx4 v2, {s(S_R1,4)}, {s(S_SO)} offen{sh} lds", tag=item)
            e(f"s_add_u32 m0, {s(S_M0B)}, {slot*SLOT+4096}")
            e(f"s_add_u32 {s(S_SO)}, {s(S_SO)}, {32*8192}")
            e(f"buffer_load_dwordx4 v2, {s(S_R1,4)}, {s(S_SO)} offen{sh} lds", tag=item)
            e(f"s_add_u32 {s(S_A1)}, {s(S_A1)}, {64*8192}"); e(f"s_cmp_eq_u32 {s(S_A1)}, {7*64*8192}"); e(f"s_cselect_b32 {s(S_A1)}, 0, {s(S_A1)}")
            if n == 6:
                e(f"s_add_u32 {s(S_A2)}, {s(S_A2)}, 128"); e(f"s_and_b32 {s(S_A2)}, {s(S_A2)}, 511")
        elif ty == "V":
            c, i = divmod(item[1], 8)
            if item[1] == 0: self.setup_dv()
            for j in range(2):
                e(f"s_add_u32 m0, {s(S_M0B)}, {slot*SLOT + j*4096}")
                e(f"s_add_u32 {s(S_SO)}, {s(S_A3)}, {(i*64+j*32)*512}")
                e(f"buffer_load_dwordx4 v1, {s(S_R2,4)}, {s(S_SO)} offen{kv} lds", tag=item)
            if i == 7:
                e(f"s_add_u32 {s(S_A3)}, {s(S_A3)}, 128"); e(f"s_and_b32 {s(S_A3)}, {s(S_A3)}, 511")
        elif ty == "K":
            c, T = divmod(item[1], 4)
            for p in range(4):
                e(f"s_add_u32 m0, {s(S_A3)}, {slot*SLOT + p*1024}")
                e(f"s_add_u32 {s(S_SO)}, {s(S_A0)}, {(128*T+8*p)*512}")
                e(f"buffer_load_dwordx4 v{1+(p&1)}, {s(S_R0,4)}, {s(S_SO)} offen{kv} lds", tag=item)
            if T == 3:
                e(f"s_add_u32 {s(S_A0)}, {s(S_A0)}, 128"); e(f"s_and_b32 {s(S_A0)}, {s(S_A0)}, 511")
        elif ty == "O":
            c, n = divmod(item[1], 7)
            e(f"s_add_u32 m0, {s(S_M0B)}, {slot*SLOT}")
            e(f"s_add_u32 {s(S_SO)}, {s(S_A1)}, {s(S_A2)}")
            e(f"buffer_load_dwordx4 v3, {s(S_R1,4)}, {s(S_SO)} offen{sh} lds", tag=item)
            e(f"s_add_u32 m0, {s(S_M0B)}, {slot*SLOT+4096}")
            e(f"s_add_u32 {s(S_SO)}, {s(S_SO)}, {32*896}")
            e(f"buffer_load_dwordx4 v3, {s(S_R1,4)}, {s(S_SO)} offen{sh} lds", tag=item)
            e(f"s_add_u32 {s(S_A2)}, {s(S_A2)}, 128"); e(f"s_cmp_eq_u32 {s(S_A2)}, 896"); e(f"s_cselect_b32 {s(S_A2)}, 0, {s(S_A2)}")
            if n == 6:
                e(f"s_add_u32 {s(S_A1)}, {s(S_A1)}, 57344"); e(f"s_cmp_eq_u32 {s(S_A1)}, {4*57344}"); e(f"s_cselect_b32 {s(S_A1)}, 0, {s(S_A1)}")

    def issue_parts(self, item, slot):
        class Rec:
            def __init__(s2): s2.l = []
            def __call__(s2, t, tag=None): s2.l.append((t, tag))
        real = self.e; rec = Rec(); self.e = rec
        self.issue(item, slot)
        self.e = real
        parts = []; cur = []
        for t, tag in rec.l:
            cur.append((t, tag))
            if t.startswith("buffer_load"): parts.append(cur); cur = []
        parts[-1] += cur
        return [(lambda p=p: [real(t, tag=tag) for t, tag in p]) for p in parts]

    def store_parts(self, cb):
        class Rec:
            def __init__(s2): s2.l = []
            def __call__(s2, t, tag=None): s2.l.append((t, tag))
        real = self.e; rec = Rec(); self.e = rec
        self.store_cb(cb)
        self.e = real
        L = rec.l
        parts = [[x] for x in L[:-3]]
        parts[-1] += L[-3:]
        return [(lambda p=p: [real(t, tag=tag) for t, tag in p]) for p in parts]

    def setup_dv(self):
        e = self.e
        e(f"v_bfe_u32 v46, v0, 4, 2"); e("v_lshlrev_b32 v46, 1, v46"); e("v_and_b32 v47, 7, v0"); e("v_xor_b32 v46, v46, v47"); e("v_lshlrev_b32 v46, 4, v46")
        e("v_lshrrev_b32 v1, 3, v0"); e("v_lshl_add_u32 v1, v1, 9, v46")

    def build_plan(self):
        a = self.a
        nkd = a.nkd
        kslots = [19 - 2 * (i + 1) for i in range(nkd)]
        self.KBASE = min(kslots)
        free = list(range(6, self.KBASE)) + [19]
        WONLY = {3, 4, 5, 19}
        kfree = sorted(kslots)
        plan = []
        slot = {}
        def newtick(bar=True):
            P = dict(bar=bar, A=dict(need=None, issue=[], act=[]), B=dict(need=None, issue=[], act=[])); plan.append(P); return P
        pend = []
        astr = []
        for n in range(7): astr += [("X", n), ("W", n)]
        astr += [("W", i) for i in range(7, 28)]
        ia = 0; ca = 0; xdone = 0
        ik = 0; ck = 0
        def cost(it): return 1.5 if it[0] == "X" else 1.0
        def issueA(P, la):
            nonlocal ia
            while ia < len(astr) and sum(cost(x) for x in astr[ca:ia + 1]) <= la:
                it = astr[ia]
                if it[0] == "X":
                    if it[1] - 4 >= xdone: break
                    P["A"]["issue"].append((it, None))
                else:
                    if not free: break
                    slot[it] = free.pop(0); P["A"]["issue"].append((it, slot[it]))
                ia += 1
        def issueK(P, n):
            nonlocal ik
            while n > 0 and ik < 16 and kfree:
                slot[("K", ik)] = kfree.pop(0); P["B"]["issue"].append((("K", ik), slot[("K", ik)])); ik += 1; n -= 1
        P = newtick(False); issueA(P, a.la); issueK(P, a.k0)
        P["A"]["act"].append(("init",)); P["B"]["act"].append(("init",))
        qwritten = -1; qready = -1; xread = 0
        tick = 0
        wacc = 0.0
        kage = {i: 0 for i in range(ik)}
        iv = 0
        def issueV(P, n):
            nonlocal iv
            while n > 0 and iv < 32 and [x for x in free if x not in WONLY]:
                slot[("V", iv)] = [x for x in free if x not in WONLY][0]; free.remove(slot[("V", iv)]); P["A"]["issue"].append((("V", iv), slot[("V", iv)])); iv += 1; n -= 1
        ckprev = 0; vinit = False; qdefer = None; io = 0; npark = 0; parked_free = []
        while ck < 16:
            tick += 1
            P = newtick()
            free += pend; pend = []; free.sort(); xdone = xread; qready = qwritten; ckprev = ck
            kfree += parked_free; parked_free = []
            if qdefer is not None:
                qwritten = qdefer; qdefer = None; P["A"]["act"].append(("flushw",))
            if ca < 14: n = 2
            else:
                wacc += a.wrate; n = int(wacc + 1e-9); wacc -= n
            took = []
            while n > 0 and ca < min(ia, len(astr)):
                it = astr[ca]
                if it[0] == "W" and it[1] % 7 == 6 and it[1] // 7 >= 2 and ckprev < 4 * (it[1] // 7 - 1):
                    break
                took.append(it); ca += 1; n -= 1
                if it[0] == "X":
                    P["A"]["act"].append(("X", it[1])); xread = it[1] + 1
                    if it[1] == 6: pend += [3, 4, 5]
                else:
                    P["A"]["act"].append(("W", it[1], slot[it])); pend.append(slot[it])
                    if it[1] % 7 == 6:
                        cq = it[1] // 7
                        if a.lag == 0 or cq in a.qdrain:
                            P["A"]["act"].append(("drain",)); qwritten = cq; break
                        else: qdefer = cq
            if qdefer is not None and took[-1] != ("W", 7 * qdefer + 6):
                qwritten = qdefer; qdefer = None; P["A"]["act"].append(("flushw",))
            if took: P["A"]["need"] = took[-1]
            if not a.alt1 or tick < 8 or tick % 2 == 1: issueA(P, a.la)
            if qready == 3 and not vinit:
                P["A"]["act"].append(("initv",)); vinit = True
            if qready < 0 and npark < a.park and npark < ik and tick - kage[npark] >= 2:
                P["B"]["act"].append(("Kpark", npark)); parked_free.append(slot[("K", npark)]); self.parked.add(npark); npark += 1
            if qwritten == 0 and qready < 0 and 0 not in self.parked: P["B"]["act"].append(("Kpre", 0))
            issued = False
            n = a.kmax if (ca == len(astr) and not took) or tick >= a.kmax_from else 1
            last = ik == 16 and qready == 3 and 16 - ck <= a.kburn
            while ck < ik and ck // 4 <= qready and (last or (n > 0 and tick - kage[ck] >= a.klag)):
                sl = slot[("K", ck)]
                P["B"]["act"].append(("S", ck, sl)); self.sinfo[ck] = (tick, qready); ck += 1; n -= 1
                if ck - 1 in self.parked:
                    n += a.parkfast if len([x for x in P["B"]["act"] if x[0] == "S"]) < 2 else 0
                    continue
                if a.alt1 and ia < len(astr):
                    if tick % 2 == 0 and ik < 16 and (kfree or tick == 8):
                        if kfree:
                            k2_ = kfree.pop(0); slot[("K", ik)] = k2_; P["B"]["issue"].append((("K", ik), k2_)); kage[ik] = tick; ik += 1
                        if ik < 16:
                            slot[("K", ik)] = sl; P["B"]["act"].append(("issue", ("K", ik), sl)); kage[ik] = tick; ik += 1
                        else: kfree.append(sl)
                    else: kfree.append(sl)
                    issued = True
                elif ik < 16 and not issued and not kfree:
                    slot[("K", ik)] = sl; P["B"]["act"].append(("issue", ("K", ik), sl)); kage[ik] = tick; ik += 1; issued = True
                else:
                    kfree.append(sl)
            if not issued and ik < 16 and (tick in a.kticks or tick >= 8):
                cand = [x for x in kfree if not any(ac[0] == "S" and ac[2] == x and ac[1] not in self.parked for ac in P["B"]["act"])]
                if cand:
                    kfree.remove(cand[0]); slot[("K", ik)] = cand[0]; P["B"]["issue"].append((("K", ik), cand[0])); kage[ik] = tick; ik += 1
            while tick >= 8 and len(kfree) > min(16 - ik, a.kkeep):
                k = kfree.pop(0); pend += [k, k + 1]
            if ia == len(astr) and tick >= a.oe_from:
                n = a.oe_rate
                while n > 0 and io < a.oearly and [x for x in free if x not in WONLY]:
                    sl = [x for x in free if x not in WONLY][-1]; free.remove(sl)
                    slot[("O", io)] = sl; P["B"]["issue"].append((("O", io), sl)); self.oage[("O", io)] = -9; io += 1; n -= 1
            if ik == 16 and kage[15] < tick and ia == len(astr):
                issueV(P, a.vtr0 if last else 2)
            assert tick < 100
        assert vinit
        self.kage = kage; self.kslot = {i: slot[("K", i)] for i in range(16)}
        P["B"]["act"].append(("maxw",))
        P = newtick()
        free += pend; pend = []; free.sort()
        assert not kfree and all(x in free for x in WONLY)
        for x in sorted(WONLY): free.remove(x)
        WONLY.clear()
        P["B"]["act"] += [("maxr",), ("smx", 0)]
        issueV(P, a.vtr1)
        ostr = [("O", i) for i in range(28)]
        co = 0; cv = 0
        pw = 0
        oready = oloaded = owritten = -1
        odefer = None
        t2 = 0
        while cv < 32 or co < 28 or oloaded < 3:
            t2 += 1
            P = newtick()
            free += pend; pend = []; free.sort(); oready = owritten
            if odefer is not None:
                owritten = odefer; odefer = None; P["A"]["act"].append(("flushw",))
            if t2 <= 4:
                P["A"]["act"].append(("pread", t2 - 1))
                if t2 <= 3: P["B"]["act"].append(("smx", t2))
                if t2 == 4: P["B"]["act"].append(("inito",)); pend += [2, 3, 4, 5]
            if t2 == 5: pend += [19]
            if cv < 32:
                if t2 <= 4: nvt = 2
                elif cv >= 32 - a.vend: nvt = 1
                else:
                    nvt = max(2 if iv < 32 or cv + 2 <= 32 - a.vend else 1, min(a.vcmax, iv - a.lc - cv))
                    nvt = min(nvt, 32 - a.vend - cv)
                nvt = min(nvt, iv - cv)
                k = 0
                while k < nvt:
                    if (cv + 1) % 8 == 0 and oloaded < (cv + 1) // 8 - 2: break
                    P["A"]["act"].append(("V", cv, slot[("V", cv)])); pend.append(slot[("V", cv)]); P["A"]["need"] = ("V", cv); cv += 1; k += 1
                    if cv % 8 == 0:
                        if k < nvt and a.lag:
                            P["A"]["act"].append(("flushw",)); owritten = cv // 8 - 1
                        elif a.lag == 0 or cv == 32 or (cv // 8 - 1) in a.odrain:
                            P["A"]["act"].append(("drain",)); owritten = cv // 8 - 1
                        else: odefer = cv // 8 - 1
                if cv >= 32 - a.vend: P["A"]["act"].append(("drain",))
            if oloaded < oready and co == 7 * (oloaded + 1):
                oloaded += 1; P["B"]["act"].append(("oread", oloaded))
            nop = 7 if oloaded == 3 else a.opn
            while nop > 0 and co < 7 * (oloaded + 1) and co < io and (("O", co) in self.oage and t2 - self.oage[("O", co)] >= a.olag or cv >= 32):
                P["B"]["act"].append(("O", co, slot[("O", co)])); pend.append(slot[("O", co)]); P["B"]["need"] = ("O", co); co += 1; nop -= 1
            lv = a.lv0 if t2 <= 4 else a.lv
            if t2 <= 4 or not a.alt2 or t2 % 2 == 0 or io == 28:
                issueV(P, max(0, min(a.vmax0 if t2 <= 4 else a.vmax, cv + lv - iv)))
            if t2 >= a.ostart and (not a.alt2 or t2 % 2 == 1 or iv == 32):
                n = a.omax
                while n > 0 and io < 28 and free and io < co + a.lo and len(free) > (1 if iv < 32 else 0) * a.vres:
                    slot[("O", io)] = free.pop(); P["B"]["issue"].append((("O", io), slot[("O", io)])); self.oage[("O", io)] = t2; io += 1; n -= 1
            assert t2 < 100, "plan stuck"
        self.plan = plan
        if a.verbose:
            f = lambda L: " ".join(str(x[0]) + (str(x[1]) if len(x) > 1 else "") for x in L)
            g = lambda L: " ".join(f"{x[0][0]}{x[0][1]}@{x[1]}" for x in L)
            for i, P in enumerate(plan):
                print(f"{i:2d} A[need {P['A']['need']} iss {g(P['A']['issue'])} act {f(P['A']['act'])}]  B[need {P['B']['need']} iss {g(P['B']['issue'])} act {f(P['B']['act'])}]", file=sys.stderr)

    def prologue(self):
        e = self.e; a = self.a
        e("s_cmp_ge_u32 s2, 256"); e("s_cbranch_scc1 L_end1")
        e("s_load_dwordx16 s[40:55], s[0:1], 0")
        e("s_load_dwordx4 s[56:59], s[0:1], 64")
        e("s_load_dwordx2 s[60:61], s[0:1], 96")
        self.stamp(wait=False)
        if a.padto: e("s_memrealtime s[96:97]")
        e("s_and_b32 s3, s2, 7"); e("s_lshr_b32 s39, s2, 3")
        e(f"s_lshr_b32 {s(S_PP)}, s39, 3"); e("s_lshl_b32 s3, s3, 2"); e(f"s_add_u32 s3, s3, {s(S_PP)}")
        e(f"s_lshr_b32 {s(S_BLK)}, s3, 4"); e(f"s_and_b32 {s(S_H)}, s3, 15"); e(f"s_and_b32 {s(S_B)}, s39, 7")
        e(f"v_lshrrev_b32 {v(T0)}, 6, v0")
        e(f"v_readfirstlane_b32 {s(S_W)}, {v(T0)}")
        e("v_and_b32 v0, 255, v0")
        if a.rot:
            e(f"s_lshr_b32 {s(S_RB)}, {s(S_B)}, 2"); e(f"s_and_b32 {s(S_R4)}, {s(S_B)}, 3")
            e(f"s_mul_i32 {s(S_RB)}, {s(S_RB)}, 3")
            e(f"s_lshl_b32 {s(S_R7)}, {s(S_PP)}, 1"); e(f"s_add_u32 {s(S_R7)}, {s(S_R7)}, {s(S_RB)}")
            e(f"s_cmp_ge_u32 {s(S_R7)}, 7"); e(f"s_cselect_b32 {s(S_TMP)}, 7, 0"); e(f"s_sub_u32 {s(S_R7)}, {s(S_R7)}, {s(S_TMP)}")
        else:
            for r in (S_R7, S_R4, S_RB): e(f"s_mov_b32 {s(r)}, 0")
        e(f"s_and_b32 {s(S_U)}, {s(S_W)}, 3"); e(f"s_lshl_b32 {s(S_M0B)}, {s(S_U)}, 10")
        e(f"s_lshl_b32 s34, {s(S_B)}, 4"); e(f"s_add_u32 s34, s34, {s(S_H)}"); e("s_lshl_b32 s35, s34, 18")
        for S in (S_R0, S_R1, S_R2): e(f"s_mov_b32 {s(S+3)}, 0x20000")
        e(f"s_cmp_ge_u32 {s(S_W)}, 4"); e("s_cbranch_scc1 L_roleB")

    def bar(self, P, R):
        e = self.e
        if P["bar"]:
            need = P[R]["need"]
            if need is not None: e.wait_tag(need, lgkm=0)
            else: e.wait(lgkm=0)
            e.barrier()

    def role_A(self):
        e = self.e; a = self.a
        ACC = 16; LINV = 40; XA = 43; QA = 45
        UB = [4, 48, 56]
        VA0, VA1, OA = 3, 12, 13
        FR = lambda qt, kap: 64 + (kap * 3 + qt) * 4
        e("v_lshrrev_b32 v46, 3, v0"); e("v_and_b32 v47, 7, v0")
        e(f"v_bfe_u32 {v(T0)}, v0, 4, 3"); e(f"v_xor_b32 {v(T0)}, {v(T0)}, v47"); e(f"v_lshlrev_b32 {v(T0)}, 4, {v(T0)}")
        e("v_mul_u32_u24 v1, 896, v46"); e(f"v_add_u32 v1, v1, {v(T0)}")
        e(f"v_bfe_u32 {v(T0)}, v0, 4, 1"); e(f"v_bfe_u32 {v(T1)}, v0, 6, 1"); e(f"v_lshl_add_u32 {v(T0)}, {v(T1)}, 1, {v(T0)}")
        e(f"v_lshlrev_b32 {v(T0)}, 1, {v(T0)}"); e(f"v_xor_b32 {v(T0)}, {v(T0)}, v47"); e(f"v_lshlrev_b32 {v(T0)}, 4, {v(T0)}")
        e(f"v_lshl_add_u32 v2, v46, 13, {v(T0)}")
        e(f"s_lshl_b32 {s(S_A0)}, {s(S_R7)}, 7"); e(f"s_lshl_b32 {s(S_A1)}, {s(S_R7)}, 19"); e(f"s_lshl_b32 {s(S_A2)}, {s(S_R4)}, 7"); e(f"s_mov_b32 {s(S_A3)}, {s(S_A2)}")
        e(f"s_mov_b32 {s(S_R0+2)}, 86016"); e(f"s_mov_b32 {s(S_R1+2)}, {447*8192+512}"); e(f"s_mov_b32 {s(S_R2+2)}, 262144")
        e(f"s_mul_i32 s36, {s(S_B)}, 86016"); e(f"s_lshl_b32 s37, {s(S_H)}, 9")
        e(f"s_cmp_eq_u32 {s(S_BLK)}, 0")
        e.wait(lgkm=0)
        e(f"s_cselect_b64 {s(S_R0,2)}, s[40:41], s[50:51]")
        e(f"s_cselect_b64 {s(S_R1,2)}, s[46:47], s[56:57]")
        e(f"s_cselect_b64 {s(S_R2,2)}, s[44:45], s[54:55]")
        for S, o in ((S_R0, 36), (S_R1, 37), (S_R2, 35)):
            e(f"s_add_u32 {s(S)}, {s(S)}, s{o}"); e(f"s_addc_u32 {s(S+1)}, {s(S+1)}, 0")
        pending = []
        for ti, P in enumerate(self.plan):
            self.bar(P, "A")
            iss = list(P["A"]["issue"])
            acts = P["A"]["act"]
            units = []
            for act in acts:
                if act[0] in "WV": units += [(act[0], act[1], act[2], 0), (act[0], act[1], act[2], 1)]
            def uread(u, b):
                ty, i, sl, k2 = u
                second = 512 if ty == "W" else 1024
                if k2 == 0:
                    e(f"v_add_u32 {v(T0)}, {sl*SLOT}, {v(VA0)}"); e(f"v_add_u32 {v(T1)}, {sl*SLOT}, {v(VA1)}")
                for dt in range(2):
                    e(f"ds_read_b64_tr_b16 {v(b+4*dt,2)}, {v(T0+dt)} offset:{4096*k2}")
                    e(f"ds_read_b64_tr_b16 {v(b+4*dt+2,2)}, {v(T0+dt)} offset:{4096*k2+second}")
            def umfma(u, b):
                ty, i, sl, k2 = u
                kap = 2 * (i % (7 if ty == "W" else 8)) + k2
                for dt in range(2):
                    for qt in range(3):
                        acc = ACC + 12 * dt + 4 * qt
                        c = "0" if kap == 0 else v(acc, 4)
                        e(f"v_mfma_f32_16x16x32_bf16 {v(acc,4)}, {v(b+4*dt,4)}, {v(FR(qt,kap),4)}, {c}")
            for act in acts:
                if act[0] == "init":
                    for it in iss: self.issue(*it)
                    iss = []
                    e(f"v_and_b32 {v(T0)}, 15, v0"); e(f"v_bfe_u32 {v(T1)}, v0, 7, 1"); e(f"v_lshl_add_u32 v46, {v(T1)}, 4, {v(T0)}")
                    e(f"v_bfe_u32 {v(T0)}, v0, 1, 3"); e(f"v_bfe_u32 {v(T1)}, v0, 4, 2"); e(f"v_xor_b32 {v(T1)}, {v(T1)}, {v(T0)}"); e(f"v_lshlrev_b32 {v(T1)}, 4, {v(T1)}")
                    e(f"v_lshl_add_u32 {v(XA)}, v46, 7, {v(T1)}"); e(f"v_xor_b32 {v(XA+1)}, 64, {v(XA)}")
                    e(f"v_bfe_u32 {v(T1)}, v0, 5, 1"); e(f"v_bfe_u32 v47, v0, 6, 1"); e(f"v_lshl_add_u32 {v(T1)}, v47, 2, {v(T1)}")
                    e(f"v_xor_b32 {v(T1)}, {v(T1)}, {v(T0)}"); e(f"v_lshlrev_b32 {v(T1)}, 4, {v(T1)}"); e(f"v_lshl_add_u32 {v(QA)}, v46, 7, {v(T1)}")
                    e(f"v_bfe_u32 {v(T1)}, v0, 4, 1"); e(f"v_lshl_add_u32 {v(QA)}, {v(T1)}, 3, {v(QA)}"); e(f"v_xor_b32 v13, 32, {v(QA)}")
                    e(f"v_bfe_u32 {v(T0)}, v0, 2, 2"); e(f"v_bfe_u32 {v(T1)}, v0, 4, 2")
                    e(f"v_lshl_add_u32 {v(VA0)}, {v(T1)}, 3, {v(T0)}"); e(f"v_lshlrev_b32 {v(VA0)}, 7, {v(VA0)}")
                    e(f"v_bfe_u32 {v(T0)}, v0, 3, 2"); e(f"v_lshlrev_b32 {v(T1)}, 1, v47")
                    e(f"v_xor_b32 {v(T0)}, {v(T0)}, {v(T1)}"); e(f"v_lshl_add_u32 {v(VA0)}, {v(T0)}, 5, {v(VA0)}")
                    e(f"v_and_b32 {v(T0)}, 3, v0"); e(f"v_lshl_add_u32 {v(VA0)}, {v(T0)}, 3, {v(VA0)}")
                    e(f"v_xor_b32 {v(VA1)}, 32, {v(VA0)}")
                elif act[0] == "X":
                    n = act[1]
                    for k2 in range(2):
                        for qt in range(3):
                            e(f"ds_read_b128 {v(FR(qt, 2*n+k2),4)}, {v(XA+k2)} offset:{(n%4)*12288 + qt*4096}")
                elif act[0] == "initv":
                    if a.fused == 3:
                        self.flag_srd()
                        e(f"s_or_b32 {s(S_TMP)}, {s(S_H)}, {s(S_W)}"); e(f"s_cmp_lg_u32 {s(S_TMP)}, 0"); e("s_cbranch_scc1 L_noz")
                        e("v_lshlrev_b32 v46, 13, v0"); e("v_mov_b32 v47, 0")
                        e("buffer_store_dword v47, v46, s[36:39], 0 offen sc1")
                        e.force_wait("vmcnt(0)")
                        e("v_mov_b32 v47, 1")
                        e("buffer_atomic_add v47, v46, s[40:43], s63 offen")
                        e.force_wait("vmcnt(0)")
                        e.label("L_noz")
                    e(f"v_bfe_u32 {v(T0)}, v0, 2, 3"); e(f"v_bfe_u32 {v(T1)}, v0, 5, 1")
                    e(f"v_lshl_add_u32 {v(VA0)}, {v(T1)}, 4, {v(T0)}"); e(f"v_lshlrev_b32 {v(VA0)}, 7, {v(VA0)}")
                    e(f"v_bfe_u32 {v(T0)}, v0, 3, 2"); e(f"v_bfe_u32 {v(T1)}, v0, 6, 1"); e(f"v_lshlrev_b32 {v(T1)}, 1, {v(T1)}")
                    e(f"v_xor_b32 {v(T0)}, {v(T0)}, {v(T1)}"); e(f"v_lshl_add_u32 {v(VA0)}, {v(T0)}, 5, {v(VA0)}")
                    e(f"v_and_b32 {v(T0)}, 3, v0"); e(f"v_lshl_add_u32 {v(VA0)}, {v(T0)}, 3, {v(VA0)}")
                    e(f"v_xor_b32 {v(VA1)}, 32, {v(VA0)}")
                    e(f"v_and_b32 {v(T0)}, 63, v0"); e(f"v_lshlrev_b32 {v(XA)}, 4, {v(T0)}")
                    e(f"v_bfe_u32 {v(T0)}, v0, 7, 1"); e(f"v_lshl_add_u32 {v(XA)}, {v(T0)}, 10, {v(XA)}")
                    e(f"v_bfe_u32 {v(T1)}, v0, 6, 1"); e(f"v_mul_u32_u24 {v(T1)}, 6144, {v(T1)}"); e(f"v_add_u32 {v(OA)}, {v(XA)}, {v(T1)}")
                    e(f"v_and_b32 {v(T1)}, 15, v0"); e(f"v_lshl_add_u32 {v(T0)}, {v(T0)}, 4, {v(T1)}"); e(f"v_lshlrev_b32 {v(T0)}, 5, {v(T0)}")
                    e(f"v_add_u32 {v(XA+1)}, {STAT+4096}, {v(T0)}")
                elif act[0] == "pread":
                    T = act[1]
                    for u in range(4):
                        for qt in range(3):
                            e(f"ds_read_b128 {v(FR(qt, 4*T+u),4)}, {v(XA)} offset:{PBUF[T%2] + u*6144 + qt*2048}")
            def linv(tb):
                for k in range(2): e(f"ds_read_b128 {v(tb+4*k,4)}, {v(XA+1)} offset:{16*k}")
                for qt in range(3):
                    b = tb
                    for k in range(4): e(f"v_add_f32 {v(b+k)}, {v(b+k)}, {v(b+4+k)}")
                    e(f"v_add_f32 {v(b)}, {v(b)}, {v(b+2)}"); e(f"v_add_f32 {v(b+1)}, {v(b+1)}, {v(b+3)}")
                    e(f"v_add_f32 {v(LINV+qt)}, {v(b)}, {v(b+1)}")
                    if qt < 2:
                        for k in range(2): e(f"ds_read_b128 {v(tb+4*k,4)}, {v(XA+1)} offset:{(qt+1)*1024+16*k}")
                    e(f"v_rcp_f32 {v(LINV+qt)}, {v(LINV+qt)}")
            def write_out(ty, c, tb):
                if ty == "W":
                    for qt in range(3):
                        for dt in range(2):
                            acc = ACC + 12 * dt + 4 * qt; tt = tb + 2 * ((2 * qt + dt) % 4)
                            e(f"v_cvt_pk_bf16_f32 {v(tt)}, {v(acc)}, {v(acc+1)}"); e(f"v_cvt_pk_bf16_f32 {v(tt+1)}, {v(acc+2)}, {v(acc+3)}")
                            e(f"ds_write_b64 {v(QA if dt == 0 else 13)}, {v(tt,2)} offset:{QBUF[c%2] + qt*4096}")
                else:
                    if c == 0: linv(tb)
                    for qt in range(3):
                        tt = tb + 4 * (qt % 2)
                        for dt in range(2):
                            acc = ACC + 12 * dt + 4 * qt
                            for k in range(4): e(f"v_mul_f32 {v(acc+k)}, {v(LINV+qt)}, {v(acc+k)}")
                            e(f"v_cvt_pk_bf16_f32 {v(tt+2*dt)}, {v(acc)}, {v(acc+1)}"); e(f"v_cvt_pk_bf16_f32 {v(tt+2*dt+1)}, {v(acc+2)}, {v(acc+3)}")
                        e(f"ds_write_b128 {v(OA)}, {v(tt,4)} offset:{OBUF[c%2] + qt*2048}")
            def pop():
                u, b = pending.pop(0)
                umfma(u, b)
                per = 7 if u[0] == "W" else 8
                if u[1] % per == per - 1 and u[3] == 1:
                    write_out(u[0], u[1] // per, b); return True
                return False
            names = [x[0] for x in acts]
            nis = 0
            wrote = False
            for k, u in enumerate(units):
                while len(pending) >= 3: wrote |= pop()
                b = [x for x in UB if x not in [p[1] for p in pending]][0]
                uread(u, b); pending.append((u, b))
                if len(pending) > a.lag and (a.lag > 0 or k >= min(2, len(units) - 1)) :
                    if nis < a.a_first and iss: self.issue(*iss.pop(0)); nis += 1
                    wrote |= pop()
                if iss and k % 2 == 1: self.issue(*iss.pop(0))
            if "drain" in names or not units or a.lag == 0:
                while pending: wrote |= pop()
            if "flushw" in names:
                while not wrote and pending: wrote |= pop()
            for it in iss: self.issue(*it)
        if a.fused == 3:
            e(f"s_cmp_lg_u32 {s(S_W)}, 0"); e("s_cbranch_scc1 L_red")
            e("v_mov_b32 v6, 0")
            self.poll("L_pc", "buffer_load_dword v10, v6, s[40:43], s63 offen sc1", "v_cmp_le_u32 vcc, 1, v10")
        if a.fused in (1, 3): e("s_branch L_red")
        else:
            if a.fused == 2: self.staged_reduce()
            e("s_endpgm")

    def role_B(self):
        e = self.e; a = self.a
        KA, QA = 4, 8
        KF = 16; QF = 32; M = 56; SUM = 59
        SACC = lambda T, qt: 64 + (T * 3 + qt) * 16
        ACC = lambda cb, q6: 64 + 24 * cb + 4 * q6
        self.ACC = ACC
        OF = lambda k2, q6: 16 + 4 * (6 * k2 + q6)
        WB = [232, 240, 248]
        e(f"v_bfe_u32 {v(T0)}, v0, 3, 3"); e(f"v_lshrrev_b32 {v(T1)}, 6, v0"); e(f"v_lshl_add_u32 {v(T0)}, {v(T1)}, 5, {v(T0)}")
        e("v_and_b32 v12, 7, v0"); e(f"v_bfe_u32 {v(T1)}, v0, 4, 2"); e(f"v_xor_b32 v13, v12, {v(T1)}"); e("v_lshlrev_b32 v13, 4, v13")
        e(f"v_lshl_add_u32 v1, {v(T0)}, 9, v13"); e("v_xor_b32 v2, 64, v1")
        e(f"s_lshl_b32 {s(S_A0)}, {s(S_R4)}, 7"); e(f"s_mul_i32 {s(S_A1)}, {s(S_R4)}, 57344"); e(f"s_lshl_b32 {s(S_A2)}, {s(S_RB)}, 7")
        e(f"s_lshl_b32 {s(S_A3)}, {s(S_U)}, 12"); e(f"s_mul_i32 {s(S_ST)}, {s(S_RB)}, 12288")
        e(f"s_mov_b32 {s(S_R0+2)}, 262144"); e(f"s_mov_b32 {s(S_R1+2)}, 229376"); e(f"s_mov_b32 {s(S_R2+2)}, 86016")
        e(f"s_mul_i32 s36, {s(S_H)}, 229376")
        e(f"s_lshl_b32 s37, {s(S_BLK)}, 7"); e("s_add_u32 s37, s37, s34"); e("s_mul_i32 s37, s37, 86016")
        e(f"s_cmp_eq_u32 {s(S_BLK)}, 0")
        e.wait(lgkm=0)
        e(f"s_cselect_b64 {s(S_R0,2)}, s[42:43], s[52:53]")
        e(f"s_cselect_b64 {s(S_R1,2)}, s[48:49], s[58:59]")
        e(f"s_mov_b64 {s(S_R2,2)}, s[60:61]")
        for S, o in ((S_R0, 35), (S_R1, 36), (S_R2, 37)):
            e(f"s_add_u32 {s(S)}, {s(S)}, s{o}"); e(f"s_addc_u32 {s(S+1)}, {s(S+1)}, 0")
        if a.prio >= 2: e("s_setprio 1")
        kpre = qpre = -1
        def qrd(i, n):
            ks, qt = divmod(n, 3)
            e(f"ds_read_b128 {v(QF+4*(n%6),4)}, {v(QA+ks)} offset:{QBUF[(i//4)%2] + qt*4096}")
        def kreg(i): return SACC(3, i) if i in self.parked else KF
        def kread(i, ks):
            e(f"ds_read_b128 {v(kreg(i)+4*ks,4)}, {v(KA+ks)} offset:{(self.kslot[i]-self.KBASE)*SLOT}")
        phase1 = True
        opend = []
        for ti, P in enumerate(self.plan):
            if any(x[0] == "maxr" for x in P["B"]["act"]): phase1 = False
            if phase1:
                if P["bar"]: e.barrier()
            else: self.bar(P, "B")
            if ti in a.stamp_ticks: self.stamp()
            if a.fused == 2 and ti == 9:
                assert not any(t == "fz" for t, _ in e.vm)
                e("v_lshlrev_b32 v62, 8, v0"); e("v_mov_b32 v63, 1")
                e("buffer_atomic_add v63, v62, s[40:43], s63 offen")
            iss = list(P["B"]["issue"])
            acts = P["B"]["act"]
            for ai, act in enumerate(acts):
                if act[0] == "init":
                    for it in iss: self.issue(*it)
                    iss = []
                    e(f"s_mov_b32 {s(S_C)}, 0x3db8aa3b")
                    if a.fused == 2:
                        self.flag_srd()
                        e(f"s_lshl_b32 s62, {s(S_H)}, 2"); e(f"s_add_u32 s62, s62, {s(S_U)}"); e("s_lshl_b32 s62, s62, 7")
                        e("v_and_b32 v62, 63, v0"); e("v_lshlrev_b32 v62, 13, v62"); e("v_mov_b32 v63, 0")
                        e("buffer_store_dword v63, v62, s[36:39], s62 offen sc1", tag="fz")
                    e(f"v_lshlrev_b32 {v(T1)}, 1, {v(T1)}"); e(f"v_xor_b32 {v(T1)}, {v(T1)}, v12"); e(f"v_lshlrev_b32 {v(T1)}, 4, {v(T1)}")
                    e("v_lshrrev_b32 v3, 3, v0"); e("v_mul_u32_u24 v3, 896, v3"); e(f"v_add_u32 v3, v3, {v(T1)}")
                    e(f"v_and_b32 {v(T0)}, 31, v0"); e(f"v_bfe_u32 {v(T1)}, v0, 1, 3"); e("v_bfe_u32 v12, v0, 5, 1"); e(f"v_xor_b32 {v(T1)}, {v(T1)}, v12")
                    e(f"v_lshlrev_b32 {v(T1)}, 4, {v(T1)}"); e(f"v_lshl_add_u32 {v(QA)}, {v(T0)}, 7, {v(T1)}")
                    for ks in range(1, 4): e(f"v_xor_b32 {v(QA+ks)}, {32*ks}, {v(QA)}")
                    e(f"s_add_u32 {s(S_TMP)}, {s(S_A3)}, {self.KBASE*SLOT}")
                    for ks in range(4): e(f"v_add_u32 {v(KA+ks)}, {s(S_TMP)}, {v(QA+ks)}")
                    e(f"v_lshlrev_b32 {v(T0)}, 5, {v(T0)}"); e(f"v_add_u32 v13, {STAT}, {v(T0)}")
                    e(f"v_lshrrev_b32 {v(T1)}, 5, v0"); e(f"v_lshl_add_u32 v12, {v(T1)}, 2, v13")
                elif act[0] == "Kpark":
                    for it in iss: self.issue(*it)
                    iss = []
                    e.wait_tag(("K", act[1]))
                    for ks in range(4): kread(act[1], ks)
                    e.wait(lgkm=0)
                elif act[0] == "Kpre":
                    e.wait_tag(("K", 0))
                    for ks in range(4): kread(0, ks)
                    kpre = 0; qpre = -1
                elif act[0] == "S":
                    _, i, sl = act
                    c, T = divmod(i, 4)
                    seq = [(ks, qt) for ks in range(4) for qt in range(3)]
                    dma = []
                    for it in iss: dma += self.issue_parts(*it)
                    iss = []
                    if qpre != i:
                        for n in range(3): qrd(i, n)
                    if kpre != i and i not in self.parked:
                        while dma: dma.pop(0)()
                        e.wait_tag(("K", i))
                        for ks in range(4): kread(i, ks)
                    if qpre != i:
                        for n in range(3, 6): qrd(i, n)
                    own = []
                    if ai + 1 < len(acts) and acts[ai + 1][0] == "issue": own = self.issue_parts(acts[ai + 1][1], acts[ai + 1][2])
                    mode = None; qok = False
                    if i + 1 < 16 and self.kage[i + 1] < ti:
                        mode = "roll" if ti - self.kage[i + 1] >= a.kpre else "after"
                        if i + 1 in self.parked: mode = None
                        qok = (i + 1) // 4 <= self.sinfo[i][1]
                    for n, (ks, qt) in enumerate(seq):
                        cc = "0" if (c == 0 and ks == 0) else v(SACC(T, qt), 16)
                        e(f"v_mfma_f32_32x32x16_bf16 {v(SACC(T,qt),16)}, {v(kreg(i)+4*ks,4)}, {v(QF+4*(n%6),4)}, {cc}")
                        if n + 6 < 12: qrd(i, n + 6)
                        elif qok: qrd(i + 1, n - 6)
                        if mode == "roll" and qt == 2:
                            if ks == 0: e.wait_tag(("K", i + 1))
                            kread(i + 1, ks)
                        if n == 0 and own:
                            e.wait_regs(set(range(KF, KF + 16)))
                            dma += own
                        if dma and n % 2 == 0: dma.pop(0)()
                        if c == 3 and T > 0 and n >= 3 and (n - 3) < 9:
                            qq, part = divmod(n - 3, 3)
                            self.maxpart(M + qq, SACC(T - 1, qq), part, first=(T == 1))
                    while dma: dma.pop(0)()
                    if mode == "after":
                        e.wait_tag(("K", i + 1))
                        for ks in range(4): kread(i + 1, ks)
                    kpre = i + 1 if mode else -1
                    qpre = i + 1 if qok else -1
                elif act[0] == "maxw":
                    self.stamp()
                    for qt in range(3):
                        for part in range(3): self.maxpart(M + qt, SACC(3, qt), part, first=False)
                        e(f"ds_write_b32 v12, {v(M+qt)} offset:{qt*1024}")
                elif act[0] == "maxr":
                    if a.prio: e("s_setprio 1")
                    for qt in range(3):
                        for k in range(2): e(f"ds_read_b128 {v(16+8*qt+4*k,4)}, v13 offset:{qt*1024+16*k}")
                    e(f"v_and_b32 {v(T0)}, 15, v0"); e(f"v_lshlrev_b32 v4, 4, {v(T0)}")
                    e(f"v_bfe_u32 {v(T0)}, v0, 4, 1"); e(f"v_lshl_add_u32 v4, {v(T0)}, 10, v4")
                    e(f"v_bfe_u32 {v(T0)}, v0, 5, 1"); e(f"v_lshl_add_u32 v4, {v(T0)}, 8, v4")
                    e(f"s_mul_i32 {s(S_TMP)}, {s(S_U)}, 6144"); e(f"v_add_u32 v4, {s(S_TMP)}, v4")
                    for qt in range(3):
                        b = 16 + 8 * qt
                        e(f"v_max3_f32 {v(M+qt)}, {v(b)}, {v(b+1)}, {v(b+2)}")
                        e(f"v_max3_f32 {v(M+qt)}, {v(M+qt)}, {v(b+3)}, {v(b+4)}"); e(f"v_max3_f32 {v(M+qt)}, {v(M+qt)}, {v(b+5)}, {v(b+6)}")
                        e(f"v_max_f32 {v(M+qt)}, {v(M+qt)}, {v(b+7)}")
                        e(f"v_mul_f32 {v(M+qt)}, {s(S_C)}, {v(M+qt)}")
                elif act[0] == "smx":
                    T = act[1]
                    grp = [(qt, hf) for qt in range(3) for hf in range(2)]
                    def fe(g):
                        r = SACC(T, g[0]) + 8 * g[1]
                        for k in range(8): e(f"v_fma_f32 {v(r+k)}, {v(r+k)}, {s(S_C)}, -{v(M+g[0])}")
                        for k in range(8): e(f"v_exp_f32 {v(r+k)}, {v(r+k)}")
                    fe(grp[0])
                    for n, (qt, hf) in enumerate(grp):
                        if n + 1 < 6: fe(grp[n + 1])
                        r = SACC(T, qt) + 8 * hf
                        tt = 16 + 4 * n
                        for k in range(4): e(f"v_cvt_pk_bf16_f32 {v(tt+k)}, {v(r+2*k)}, {v(r+2*k+1)}")
                        e(f"ds_write_b128 v4, {v(tt,4)} offset:{PBUF[T%2] + qt*2048 + hf*512}")
                    if iss and a.b_smx_issue:
                        pass
                    self.defer_sum = (T,)
                    if T == 3 or not a.defer:
                        self.sums(T, SACC, SUM)
                        if T == 3:
                            for qt in range(3): e(f"ds_write_b32 v12, {v(SUM+qt)} offset:{4096+qt*1024}")
                elif act[0] == "inito":
                    self.stamp()
                    if a.prio == 1: e("s_setprio 0")
                    e(f"v_bfe_u32 {v(T0)}, v0, 2, 4"); e(f"v_lshlrev_b32 v5, 7, {v(T0)}")
                    e(f"v_bfe_u32 {v(T0)}, v0, 3, 2"); e(f"v_bfe_u32 {v(T1)}, v0, 6, 2"); e(f"v_xor_b32 {v(T0)}, {v(T0)}, {v(T1)}")
                    e(f"v_lshl_add_u32 v5, {v(T0)}, 5, v5")
                    e(f"v_and_b32 {v(T0)}, 3, v0"); e(f"v_lshl_add_u32 v5, {v(T0)}, 3, v5")
                    e(f"v_and_b32 {v(T0)}, 63, v0"); e(f"v_lshlrev_b32 v6, 4, {v(T0)}")
                    e(f"v_lshlrev_b32 v7, 4, v0")
                    e("v_lshlrev_b32 v8, 9, v6")
            ws = [x for x in acts if x[0] == "O"]
            dma = []
            for it in iss: dma += self.issue_parts(*it)
            def wread(x, b):
                _, i, sl = x
                tt = T0 + (i % 2)
                e(f"v_add_u32 {v(tt)}, {sl*SLOT}, v5")
                for k2 in range(2):
                    e(f"ds_read_b64_tr_b16 {v(b+4*k2,2)}, {v(tt)} offset:{4096*k2}")
                    e(f"ds_read_b64_tr_b16 {v(b+4*k2+2,2)}, {v(tt)} offset:{4096*k2+2048}")
            def ord_(c, k2, q6):
                e(f"ds_read_b128 {v(OF(k2,q6),4)}, v6 offset:{OBUF[c%2] + k2*6144 + q6*1024}")
            def opop(roll=None):
                x, b = opend.pop(0)
                c, cb = divmod(x[1], 7)
                st = self.store_parts(cb - 1) if (c == 3 and cb > 0) else []
                for k2 in range(2):
                    for q6 in range(6):
                        acc = ACC(cb, q6)
                        cc = "0" if (c == 0 and k2 == 0) else v(acc, 4)
                        e(f"v_mfma_f32_16x16x32_bf16 {v(acc,4)}, {v(b+4*k2,4)}, {v(OF(k2,q6),4)}, {cc}")
                        if roll is not None: ord_(roll, k2, q6)
                        if dma and q6 % 3 == 2: dma.pop(0)()
                        if st and (k2 or q6 >= 2):
                            st.pop(0)()
                            if st: st.pop(0)()
                while st: st.pop(0)()
                if c == 3 and a.fused == 2 and cb - 1 - a.flag_lag >= 0: self.flag(cb - 1 - a.flag_lag)
                if c == 3 and cb == 6:
                    for f in self.store_parts(6): f()
                    if a.fused == 2 and 6 - a.flag_lag >= 0: self.flag(6 - a.flag_lag)
            ord_c = [x[1] for x in acts if x[0] == "oread"]
            if ord_c:
                c = ord_c[0]
                if c == 3: self.stamp()
                if ws and len(opend) < 3:
                    b = [x for x in WB if x not in [p[1] for p in opend]][0]
                    first = (ws.pop(0), b); wread(*first)
                else: first = None
                while len(opend) > 1: opop()
                if opend: opop(roll=c)
                else:
                    for k2 in range(2):
                        for q6 in range(6): ord_(c, k2, q6)
                if first: opend.append(first)
            lastt = ti == len(self.plan) - 1
            nows = not ws and not ord_c
            for x in ws:
                while len(opend) >= 3: opop()
                b = [y for y in WB if y not in [p[1] for p in opend]][0]
                wread(x, b); opend.append((x, b))
                if len(opend) > (2 if lastt else max(a.blag, 1)): opop()
            while len(opend) > (0 if (lastt or nows) else a.blag): opop()
            while dma: dma.pop(0)()
        if a.padto and a.padglob:
            e(f"s_cmp_lg_u32 {s(S_W)}, 4"); e("s_cbranch_scc1 L_end1")
            e("s_load_dwordx2 s[98:99], s[0:1], 88"); e.force_wait("vmcnt(0) lgkmcnt(0)")
            e("s_not_b32 s97, s96"); e("v_mov_b32 v10, 240"); e("v_mov_b32 v11, s97"); e("s_mov_b64 s[94:95], s[98:99]")
            e("s_mov_b64 exec, 1")
            e("global_atomic_umax v10, v11, s[94:95]"); e.force_wait("vmcnt(0)")
            e.label("L_pad0")
            e("s_memrealtime s[98:99]"); e.force_wait("lgkmcnt(0)")
            e("s_sub_u32 s98, s98, s96"); e(f"s_cmp_lt_u32 s98, 5000"); e("s_cbranch_scc1 L_pad0")
            e("global_load_dword v12, v10, s[94:95] sc1"); e.force_wait("vmcnt(0)")
            e("v_readfirstlane_b32 s96, v12"); e("s_nop 4"); e("s_not_b32 s96, s96")
            e.label("L_pad")
            e("s_memrealtime s[98:99]"); e.force_wait("lgkmcnt(0)")
            e("s_sub_u32 s98, s98, s96"); e(f"s_cmp_lt_u32 s98, {a.padto*100}"); e("s_cbranch_scc1 L_pad")
            e("s_mov_b64 exec, -1")
        elif a.padto:
            e.label("L_pad")
            e("s_memrealtime s[98:99]"); e.force_wait("lgkmcnt(0)")
            e("s_sub_u32 s98, s98, s96"); e(f"s_cmp_lt_u32 s98, {a.padto*100}"); e("s_cbranch_scc1 L_pad")
        self.stamp()
        if a.fused in (1, 3): self.fused_reduce()
        if a.fused == 2:
            for n in range(7 - a.flag_lag, 7): self.flag(n)
        if a.stamps:
            e.force_wait("vmcnt(0)")
            self.stamp()
            e(f"s_cmp_lg_u32 {s(S_W)}, 4"); e("s_cbranch_scc1 L_end1")
            e(f"s_add_u32 s60, s60, {STAMP_OFF}"); e("s_addc_u32 s61, s61, 0"); e("s_lshl_b32 s33, s2, 7"); e("s_add_u32 s60, s60, s33"); e("s_addc_u32 s61, s61, 0")
            e("v_mov_b32 v10, 0")
            for i in range(self.nst):
                e(f"v_mov_b32 v8, s{64+2*i}"); e(f"v_mov_b32 v9, s{65+2*i}")
                e(f"global_store_dwordx2 v10, v[8:9], s[60:61] offset:{8*i}"); e.nop(2)

    def flag_srd(self):
        e = self.e
        e("s_load_dwordx4 s[44:47], s[0:1], 80")
        e(f"s_lshl_b32 s63, {s(S_BLK)}, 3"); e(f"s_add_u32 s63, s63, {s(S_B)}")
        e(f"s_mul_i32 {s(S_TMP)}, s63, 8192"); e(f"s_add_u32 {s(S_TMP)}, {s(S_TMP)}, {FLAG_OFF}")
        e(f"s_add_u32 s36, s60, {s(S_TMP)}"); e("s_addc_u32 s37, s61, 0"); e("s_mov_b32 s38, 8192"); e("s_mov_b32 s39, 0x20000")
        e("s_lshl_b32 s63, s63, 4")
        e.force_wait("lgkmcnt(0)")
        e("s_mov_b64 s[40:41], s[46:47]"); e("s_mov_b32 s42, 256"); e("s_mov_b32 s43, 0x20000")

    def flag(self, n):
        e = self.e
        e.wait_tag(("st", n))
        e(f"v_mov_b32 v9, {n+1}")
        e("buffer_store_dword v9, v8, s[36:39], s62 offen sc1")

    def poll(self, name, load, cmp):
        e = self.e
        e("s_mov_b32 s51, 0")
        e.label(name)
        e(load); e.force_wait("vmcnt(0)")
        e(cmp)
        e("s_add_u32 s51, s51, 1")
        e("s_cmp_eq_u64 vcc, -1"); e(f"s_cbranch_scc1 {name}_ok")
        e("s_cmp_ge_u32 s51, 200000"); e(f"s_cbranch_scc1 {name}_ok")
        if self.a.psleep: e(f"s_sleep {self.a.psleep}")
        e(f"s_branch {name}")
        e.label(name + "_ok")

    def staged_reduce(self):
        e = self.e; a = self.a
        self.flag_srd()
        e(f"s_lshr_b32 {s(S_TMP)}, s63, 4"); e(f"s_mul_i32 {s(S_TMP)}, {s(S_TMP)}, {16*86016}")
        e(f"s_add_u32 s52, s60, {s(S_TMP)}"); e("s_addc_u32 s53, s61, 0"); e(f"s_mov_b32 s54, {16*86016}"); e("s_mov_b32 s55, 0x20000")
        e("s_mov_b64 s[56:57], s[44:45]"); e(f"s_mov_b32 s58, {8*96*1792}"); e("s_mov_b32 s59, 0x20000")
        e("v_and_b32 v1, 63, v0")
        e(f"s_lshr_b32 {s(S_TMP)}, {s(S_H)}, 2"); e(f"s_mul_i32 {s(S_TMP)}, {s(S_TMP)}, 48"); e(f"v_add_u32 v2, {s(S_TMP)}, v1")
        e("v_lshrrev_b32 v3, 6, v2"); e("v_and_b32 v2, 63, v2"); e("v_lshl_add_u32 v2, v3, 8, v2")
        e(f"s_and_b32 s46, {s(S_H)}, 3"); e(f"s_lshl_b32 {s(S_TMP)}, s46, 6"); e(f"v_add_u32 v2, {s(S_TMP)}, v2")
        e("s_lshl_b32 s46, s46, 7")
        e("v_mov_b32 v4, 0x200000"); e("v_cmp_gt_u32 vcc, 48, v1")
        e("v_lshlrev_b32 v3, 4, v2"); e("v_cndmask_b32 v3, v4, v3, vcc")
        e("v_lshrrev_b32 v7, 8, v2"); e("v_and_b32 v8, 15, v2"); e("v_lshl_add_u32 v8, v7, 5, v8"); e("v_mul_u32_u24 v8, 1792, v8")
        e("v_bfe_u32 v9, v2, 4, 4"); e("v_lshl_add_u32 v8, v9, 3, v8"); e("v_cndmask_b32 v8, v4, v8, vcc")
        e("v_and_b32 v5, 15, v1"); e("v_lshlrev_b32 v5, 9, v5"); e("v_mov_b32 v6, 0")
        e(f"s_mul_i32 s49, {s(S_B)}, {96*1792}"); e(f"s_mul_i32 {s(S_TMP)}, {s(S_BLK)}, 896"); e(f"s_add_u32 s49, s49, {s(S_TMP)}")
        e("s_mov_b32 s50, 0xffff0000")
        self.poll("L_pc", "buffer_load_dword v10, v6, s[40:43], s63 offen sc1", "v_cmp_le_u32 vcc, 16, v10")
        e(f"s_mov_b32 s48, {s(S_U)}")
        e.label("L_stage")
        self.poll("L_pf", "buffer_load_dword v10, v5, s[36:39], s46 offen sc1", "v_cmp_lt_u32 vcc, s48, v10")
        e(f"s_add_u32 s47, s48, {s(S_RB)}"); e("s_cmp_ge_u32 s47, 7"); e(f"s_cselect_b32 {s(S_TMP)}, 7, 0"); e(f"s_sub_u32 s47, s47, {s(S_TMP)}")
        e(f"s_mul_i32 {s(S_SO)}, s47, 12288")
        rp = self.pol(a.frpol)
        for h in range(16):
            e(f"buffer_load_dwordx4 {v(32+4*h,4)}, v3, s[52:55], {s(S_SO)} offen{rp}")
            if h < 15: e(f"s_add_u32 {s(S_SO)}, {s(S_SO)}, 86016")
        e("s_lshl_b32 s47, s47, 7"); e("s_add_u32 s47, s47, s49")
        for h in range(16):
            for k in range(4):
                r = 32 + 4 * h + k
                if h == 0:
                    e(f"v_lshlrev_b32 v{16+2*k}, 16, v{r}"); e(f"v_and_b32 v{17+2*k}, s50, v{r}")
                else:
                    e(f"v_lshlrev_b32 v{24+2*k}, 16, v{r}"); e(f"v_and_b32 v{25+2*k}, s50, v{r}")
                    e(f"v_pk_add_f32 {v(16+2*k,2)}, {v(16+2*k,2)}, {v(24+2*k,2)}")
        for k in range(4): e(f"v_cvt_pk_bf16_f32 v{24+k}, v{16+2*k}, v{17+2*k}")
        e("buffer_store_dwordx2 v[24:25], v8, s[56:59], s47 offen")
        e(f"s_add_u32 s47, s47, {16*1792}")
        e("buffer_store_dwordx2 v[26:27], v8, s[56:59], s47 offen")
        e("s_add_u32 s48, s48, 4"); e("s_cmp_lt_u32 s48, 7"); e("s_cbranch_scc1 L_stage")
        if a.stamps:
            e.force_wait("vmcnt(0)")
            e("s_memrealtime s[64:65]"); e.force_wait("lgkmcnt(0)")
            e(f"s_cmp_lg_u32 {s(S_W)}, 2"); e("s_cbranch_scc1 L_end1")
            e(f"s_add_u32 s60, s60, {STAMP_OFF}"); e("s_addc_u32 s61, s61, 0"); e("s_lshl_b32 s33, s2, 7"); e("s_add_u32 s60, s60, s33"); e("s_addc_u32 s61, s61, 0")
            e("v_mov_b32 v10, 0"); e("v_mov_b32 v8, s64"); e("v_mov_b32 v9, s65")
            e(f"global_store_dwordx2 v10, v[8:9], s[60:61] offset:{8*a.astamp}")

    def fused_reduce(self):
        e = self.e; a = self.a
        e.label("L_red")
        e.nop(12)
        e("s_load_dwordx4 s[40:43], s[0:1], 80")
        e(f"s_lshr_b32 {s(S_TMP)}, {s(S_W)}, 2"); e(f"s_lshl_b32 {s(S_TMP)}, {s(S_TMP)}, 8")
        e(f"v_add_u32 v1, {s(S_TMP)}, v0")
        e(f"s_mul_i32 {s(S_TMP)}, {s(S_H)}, 336")
        e(f"v_add_u32 v2, {s(S_TMP)}, v1")
        e("v_lshlrev_b32 v3, 4, v2")
        e("v_mov_b32 v4, 0x200000")
        e("v_cmp_gt_u32 vcc, 336, v1")
        e("v_cndmask_b32 v3, v4, v3, vcc")
        e(f"s_lshl_b32 s48, {s(S_BLK)}, 3"); e(f"s_add_u32 s48, s48, {s(S_B)}")
        e(f"s_mul_i32 {s(S_TMP)}, s48, {16*86016}")
        e(f"s_add_u32 s44, s60, {s(S_TMP)}"); e("s_addc_u32 s45, s61, 0"); e(f"s_mov_b32 s46, {16*86016}"); e("s_mov_b32 s47, 0x20000")
        e("v_lshrrev_b32 v5, 8, v2"); e("v_mul_u32_u24 v6, 43, v5"); e("v_lshrrev_b32 v6, 7, v6")
        e("v_mul_u32_u24 v7, 3, v6"); e("v_sub_u32 v7, v5, v7")
        e("v_and_b32 v8, 15, v2"); e("v_lshl_add_u32 v8, v7, 5, v8"); e("v_mul_u32_u24 v8, 1792, v8")
        e("v_lshl_add_u32 v8, v6, 7, v8"); e("v_bfe_u32 v9, v2, 4, 4"); e("v_lshl_add_u32 v8, v9, 3, v8")
        e("v_cndmask_b32 v8, v4, v8, vcc")
        e(f"s_mul_i32 s49, {s(S_B)}, {96*1792}"); e(f"s_mul_i32 {s(S_TMP)}, {s(S_BLK)}, 896"); e(f"s_add_u32 s49, s49, {s(S_TMP)}")
        e.force_wait("vmcnt(0) lgkmcnt(0)")
        e("s_mov_b64 s[52:53], s[40:41]"); e(f"s_mov_b32 s54, {8*96*1792}"); e("s_mov_b32 s55, 0x20000")
        e.barrier()
        e(f"s_cmp_lg_u32 {s(S_W)}, 0"); e("s_cbranch_scc1 L_go")
        e("s_lshl_b32 s50, s48, 4")
        if a.fused == 3:
            e("s_mov_b32 s50, 0"); e("s_mov_b64 s[42:43], s[36:37]")
        e("v_mov_b32 v10, s50"); e("v_mov_b32 v11, 1")
        e("s_mov_b64 exec, 1")
        e("global_atomic_add v12, v10, v11, s[42:43] sc0")
        e("s_mov_b32 s51, 0")
        e.force_wait("vmcnt(0)")
        e("v_add_u32 v12, 1, v12")
        e.label("L_poll")
        e("v_readfirstlane_b32 s50, v12")
        e("s_add_u32 s51, s51, 1")
        e("s_cmp_ge_u32 s50, 16"); e("s_cbranch_scc1 L_polled")
        e(f"s_cmp_ge_u32 s51, 200000"); e("s_cbranch_scc1 L_polled")
        if a.psleep: e(f"s_sleep {a.psleep}")
        e("global_load_dword v12, v10, s[42:43] sc1")
        e.force_wait("vmcnt(0)")
        e("s_branch L_poll")
        e.label("L_polled")
        e("s_mov_b64 exec, -1")
        e.label("L_go")
        e.barrier()
        self.stamp()
        e(f"s_cmp_ge_u32 {s(S_W)}, 6"); e("s_cbranch_scc1 L_end1")
        rp = self.pol(a.frpol)
        for h in range(16):
            e(f"s_mov_b32 {s(S_SO)}, {h*86016}")
            e(f"buffer_load_dwordx4 {v(32+4*h,4)}, v3, s[44:47], {s(S_SO)} offen{rp}")
        e("s_mov_b32 s50, 0xffff0000")
        for h in range(16):
            for k in range(4):
                r = 32 + 4 * h + k
                if h == 0:
                    e(f"v_lshlrev_b32 v{16+2*k}, 16, v{r}"); e(f"v_and_b32 v{17+2*k}, s50, v{r}")
                else:
                    e(f"v_lshlrev_b32 v{24+2*k}, 16, v{r}"); e(f"v_and_b32 v{25+2*k}, s50, v{r}")
                    e(f"v_pk_add_f32 {v(16+2*k,2)}, {v(16+2*k,2)}, {v(24+2*k,2)}")
        for k in range(4): e(f"v_cvt_pk_bf16_f32 v{24+k}, v{16+2*k}, v{17+2*k}")
        e("buffer_store_dwordx2 v[24:25], v8, s[52:55], s49 offen")
        e(f"s_add_u32 s49, s49, {16*1792}")
        e("buffer_store_dwordx2 v[26:27], v8, s[52:55], s49 offen")

    def maxpart(self, m, b, part, first):
        e = self.e
        if part == 0:
            if first:
                e(f"v_max3_f32 {v(m)}, {v(b)}, {v(b+1)}, {v(b+1)}")
            else:
                e(f"v_max3_f32 {v(m)}, {v(m)}, {v(b)}, {v(b+1)}")
            e(f"v_max3_f32 {v(m)}, {v(m)}, {v(b+2)}, {v(b+3)}"); e(f"v_max3_f32 {v(m)}, {v(m)}, {v(b+4)}, {v(b+5)}")
        elif part == 1:
            for k in (6, 8, 10): e(f"v_max3_f32 {v(m)}, {v(m)}, {v(b+k)}, {v(b+k+1)}")
        else:
            for k in (12, 14): e(f"v_max3_f32 {v(m)}, {v(m)}, {v(b+k)}, {v(b+k+1)}")

    def sums(self, T, SACC, SUM):
        e = self.e
        for qt in range(3):
            r = SACC(T, qt)
            for k in range(0, 8, 2): e(f"v_pk_add_f32 {v(r+k,2)}, {v(r+k,2)}, {v(r+8+k,2)}")
            for k in range(0, 4, 2): e(f"v_pk_add_f32 {v(r+k,2)}, {v(r+k,2)}, {v(r+4+k,2)}")
            e(f"v_pk_add_f32 {v(r,2)}, {v(r,2)}, {v(r+2,2)}")
            if T == 0: e(f"v_add_f32 {v(SUM+qt)}, {v(r)}, {v(r+1)}")
            else:
                e(f"v_add_f32 {v(r)}, {v(r)}, {v(r+1)}"); e(f"v_add_f32 {v(SUM+qt)}, {v(SUM+qt)}, {v(r)}")

    def store_cb(self, cb):
        e = self.e
        wp = self.pol(self.a.wpol)
        for qt in range(3):
            a0, a1 = self.ACC(cb, 2 * qt), self.ACC(cb, 2 * qt + 1)
            tt = a0
            e(f"v_cvt_pk_bf16_f32 {v(tt)}, {v(a0)}, {v(a0+1)}"); e(f"v_cvt_pk_bf16_f32 {v(tt+1)}, {v(a0+2)}, {v(a0+3)}")
            e(f"v_cvt_pk_bf16_f32 {v(tt+2)}, {v(a1)}, {v(a1+1)}"); e(f"v_cvt_pk_bf16_f32 {v(tt+3)}, {v(a1+2)}, {v(a1+3)}")
            e(f"buffer_store_dwordx4 {v(tt,4)}, v7, {s(S_R2,4)}, {s(S_ST)} offen{wp}", tag=("st", cb))
            if qt < 2: e(f"s_add_u32 {s(S_ST)}, {s(S_ST)}, 4096")
        e(f"s_add_u32 {s(S_ST)}, {s(S_ST)}, 4096"); e(f"s_cmp_eq_u32 {s(S_ST)}, 86016"); e(f"s_cselect_b32 {s(S_ST)}, 0, {s(S_ST)}")

    def kernel1(self):
        e = self.e
        self.oage = {}; self.sinfo = {}; self.parked = set()
        self.build_plan()
        e.label(NAME + "_kernel")
        self.prologue()
        snap = e.snapshot(); nst = self.nst
        self.role_A()
        e.restore(snap); self.nst = nst
        e.label("L_roleB")
        self.role_B()
        e.label("L_end1"); e("s_endpgm")

from gen1 import desc

def reducer2(a):
    per, thr = a.rper, a.rthr
    nwg = 16 * 5376 // per
    assert 5376 % per == 0
    wpg = 5376 // per
    e = Emitter()
    e.label("reduce_kernel")
    e(f"s_cmp_ge_u32 s2, {nwg}"); e("s_cbranch_scc1 L_end2")
    e("s_load_dwordx2 s[4:5], s[0:1], 96")
    e("s_load_dwordx2 s[8:9], s[0:1], 80")
    if a.stamps: e("s_memrealtime s[24:25]")
    e(f"s_mul_hi_u32 s12, s2, {-(-(1<<32)//wpg)}")
    e(f"s_mul_i32 s13, s12, {wpg}"); e("s_sub_u32 s13, s2, s13"); e(f"s_mul_i32 s13, s13, {per}")
    e("v_add_u32 v2, s13, v0")
    e("v_lshlrev_b32 v3, 4, v2")
    if per != thr:
        e("v_mov_b32 v4, 0x200000"); e(f"v_cmp_gt_u32 vcc, {per}, v0"); e("v_cndmask_b32 v3, v4, v3, vcc")
    e(f"s_mul_i32 s16, s12, {16*86016}")
    e(f"s_mov_b32 s6, {16*86016}"); e("s_mov_b32 s7, 0x20000"); e(f"s_mov_b32 s10, {8*96*1792}"); e("s_mov_b32 s11, 0x20000")
    e("s_mov_b32 s18, 0")
    e.wait(lgkm=0)
    if a.stamps: e("s_mov_b64 s[28:29], s[4:5]")
    e("s_add_u32 s4, s4, s16"); e("s_addc_u32 s5, s5, 0")
    rp = (" " + a.rpol) if a.rpol else ""
    for h in range(16):
        e(f"buffer_load_dwordx4 {v(32+4*h,4)}, v3, s[4:7], s18 offen{rp}")
        if h < 15: e("s_add_u32 s18, s18, 86016")
    e("v_lshrrev_b32 v5, 8, v2"); e("v_mul_u32_u24 v6, 43, v5"); e("v_lshrrev_b32 v6, 7, v6")
    e("v_mul_u32_u24 v7, 3, v6"); e("v_sub_u32 v7, v5, v7")
    e("v_and_b32 v8, 15, v2"); e("v_lshl_add_u32 v8, v7, 5, v8"); e("v_mul_u32_u24 v8, 1792, v8")
    e("v_lshl_add_u32 v8, v6, 7, v8"); e("v_bfe_u32 v9, v2, 4, 4"); e("v_lshl_add_u32 v8, v9, 3, v8")
    if per != thr: e("v_cndmask_b32 v8, v4, v8, vcc")
    e("s_and_b32 s19, s12, 7"); e("s_lshr_b32 s20, s12, 3")
    e(f"s_mul_i32 s19, s19, {96*1792}"); e("s_mul_i32 s20, s20, 896"); e("s_add_u32 s19, s19, s20")
    e("s_mov_b32 s22, 0xffff0000")
    for h in range(16):
        for k in range(4):
            r = 32 + 4 * h + k
            if h == 0:
                e(f"v_lshlrev_b32 v{16+2*k}, 16, v{r}"); e(f"v_and_b32 v{17+2*k}, s22, v{r}")
            else:
                e(f"v_lshlrev_b32 v{24+2*k}, 16, v{r}"); e(f"v_and_b32 v{25+2*k}, s22, v{r}")
                e(f"v_pk_add_f32 {v(16+2*k,2)}, {v(16+2*k,2)}, {v(24+2*k,2)}")
    for k in range(4): e(f"v_cvt_pk_bf16_f32 v{24+k}, v{16+2*k}, v{17+2*k}")
    op = (" " + a.opol) if a.opol else ""
    e(f"buffer_store_dwordx2 v[24:25], v8, s[8:11], s19 offen{op}")
    e(f"s_add_u32 s19, s19, {16*1792}")
    e(f"buffer_store_dwordx2 v[26:27], v8, s[8:11], s19 offen{op}")
    if a.stamps:
        e.force_wait("vmcnt(0)")
        e("s_memrealtime s[26:27]"); e.force_wait("lgkmcnt(0)")
        e(f"s_add_u32 s28, s28, {STAMP_OFF + 65536}"); e("s_addc_u32 s29, s29, 0"); e("s_lshl_b32 s13, s2, 4"); e("s_add_u32 s28, s28, s13"); e("s_addc_u32 s29, s29, 0")
        e("v_mov_b32 v10, 0"); e("v_mov_b32 v12, s24"); e("v_mov_b32 v13, s25"); e("v_mov_b32 v14, s26"); e("v_mov_b32 v15, s27")
        e("global_store_dwordx4 v10, v[12:15], s[28:29]")
    e.label("L_end2"); e("s_endpgm")
    return e, nwg

ilist = lambda x: [int(t) for t in x.split(",") if t]

def main(argv=None):
    ap = argparse.ArgumentParser()
    ap.add_argument("-o", default="k3.s")
    ap.add_argument("--stamps", type=int, default=0)
    ap.add_argument("--stamp_ticks", type=ilist, default=[])
    ap.add_argument("--clk", type=int, default=0)
    ap.add_argument("--rot", type=int, default=1)
    ap.add_argument("--nkd", type=int, default=4)
    ap.add_argument("--la", type=float, default=6)
    ap.add_argument("--k0", type=int, default=1)
    ap.add_argument("--kticks", type=ilist, default=[2, 4, 6])
    ap.add_argument("--wrate", type=float, default=2.34)
    ap.add_argument("--alt1", type=int, default=0)
    ap.add_argument("--alt2", type=int, default=0)
    ap.add_argument("--lag", type=int, default=2)
    ap.add_argument("--qdrain", type=ilist, default=[0, 3])
    ap.add_argument("--odrain", type=ilist, default=[0])
    ap.add_argument("--kpre", type=int, default=2)
    ap.add_argument("--blag", type=int, default=1)
    ap.add_argument("--kmax", type=int, default=2)
    ap.add_argument("--kmax_from", type=int, default=99)
    ap.add_argument("--klag", type=int, default=2)
    ap.add_argument("--kburn", type=int, default=1)
    ap.add_argument("--kkeep", type=int, default=1)
    ap.add_argument("--vtr0", type=int, default=2)
    ap.add_argument("--vtr1", type=int, default=3)
    ap.add_argument("--lv0", type=int, default=10)
    ap.add_argument("--vmax0", type=int, default=3)
    ap.add_argument("--prio", type=int, default=0)
    ap.add_argument("--vend", type=int, default=2)
    ap.add_argument("--park", type=int, default=0)
    ap.add_argument("--parkfast", type=int, default=1)
    ap.add_argument("--oearly", type=int, default=0)
    ap.add_argument("--oe_from", type=int, default=16)
    ap.add_argument("--oe_rate", type=int, default=2)
    ap.add_argument("--lv", type=int, default=6)
    ap.add_argument("--lc", type=int, default=9)
    ap.add_argument("--vcmax", type=int, default=3)
    ap.add_argument("--vmax", type=int, default=2)
    ap.add_argument("--lo", type=int, default=9)
    ap.add_argument("--omax", type=int, default=3)
    ap.add_argument("--ostart", type=int, default=4)
    ap.add_argument("--olag", type=int, default=2)
    ap.add_argument("--opn", type=int, default=2)
    ap.add_argument("--vres", type=int, default=0)
    ap.add_argument("--a_first", type=int, default=1)
    ap.add_argument("--b_first", type=int, default=1)
    ap.add_argument("--b_smx_issue", type=int, default=0)
    ap.add_argument("--defer", type=int, default=0)
    ap.add_argument("--kvpol", default="nt")
    ap.add_argument("--spol", default="")
    ap.add_argument("--wpol", default="sc1")
    ap.add_argument("--rpol", default="")
    ap.add_argument("--opol", default="")
    ap.add_argument("--rper", type=int, default=336)
    ap.add_argument("--rthr", type=int, default=384)
    ap.add_argument("--rlds", type=int, default=0)
    ap.add_argument("--fused", type=int, default=0)
    ap.add_argument("--flag_lag", type=int, default=1)
    ap.add_argument("--astamp", type=int, default=8)
    ap.add_argument("--psleep", type=int, default=2)
    ap.add_argument("--frpol", default="sc1")
    ap.add_argument("--skip", default="")
    ap.add_argument("--padto", type=int, default=0)
    ap.add_argument("--padglob", type=int, default=0)
    ap.add_argument("--verbose", action="store_true")
    a = ap.parse_args(argv)
    g = Gen(a); g.kernel1()
    out = HEADER
    if a.fused:
        out += "; @launch grid=(256,1,1) block=(512,1,1) lds=163840\n"
    else:
        out += f"; @launch kernel={NAME}_kernel grid=(256,1,1) block=(512,1,1) lds=163840\n"
        re_, nwg = reducer2(a)
        out += f"; @launch kernel=reduce_kernel grid=({nwg},1,1) block=({a.rthr},1,1) lds={a.rlds}\n"
    out += '.amdgcn_target "amdgcn-amd-amdhsa--gfx950"\n.text\n'
    out += f".globl {NAME}_kernel\n.p2align 8\n.type {NAME}_kernel,@function\n" + g.e.text()
    if not a.fused:
        out += ".globl reduce_kernel\n.p2align 8\n.type reduce_kernel,@function\n" + re_.text()
    out += '.section .rodata,"a"\n.p2align 6\n' + desc(NAME + "_kernel", 256)
    if not a.fused: out += ".p2align 6\n" + desc("reduce_kernel", 96, 32)
    open(a.o, "w").write(out)
    print(f"{a.o}: k1 insts {g.e.ninst} (nops {g.e.nops}), ticks {len(g.plan)}, stamps {g.nst}", file=sys.stderr)

if __name__ == "__main__":
    main()
```

```python
import sys, argparse
from emit import Emitter

NAME = "concat_heads__mha_block_cached__mha_block_cached__near_ridge"
STAMP_OFF = 200 << 20
SLOT = 8192
STAT = 19 * SLOT
HEADER = open("cdna_kernels/" + NAME + ".s.ref").read().split("; Override launch")[0]

def v(a, n=1): return f"v{a}" if n == 1 else f"v[{a}:{a+n-1}]"
def s(a, n=1): return f"s{a}" if n == 1 else f"s[{a}:{a+n-1}]"

T0, T1 = 14, 15
S_R0, S_R1, S_R2 = 4, 8, 12
S_W, S_M0B, S_SO, S_TMP, S_C = 16, 17, 18, 19, 20
S_BLK, S_H, S_B, S_PP, S_U = 21, 22, 23, 24, 25
S_R7, S_R4, S_RB = 26, 27, 28
S_A0, S_A1, S_A2, S_A3, S_ST = 29, 30, 31, 32, 33
FLAG_OFF = 32 << 20
XQ = 7 * 4 * 12288
CSTR = 4352
QBUF = [0, 12288]
PBUF = [0, 24576]
OBUF = [0, 0]

class Gen:
    def __init__(self, a):
        self.a = a
        self.e = Emitter()
        D = dict(mfma=("v_mfma",), ds=("ds_",), valu=("v_exp", "v_fma_f32", "v_max", "v_cvt_pk", "v_pk_", "v_mul_f32", "v_add_f32", "v_rcp"), store=("buffer_store",), dma=("buffer_load",))
        self.e.drop = tuple(x for k in a.skip.split(",") if k for x in D[k])
        self.nst = 0

    def stamp(self, wait=True):
        if self.a.stamps:
            i = self.nst; self.nst += 1
            assert i < 16 or self.a.clk == 2
            if self.a.clk == 2:
                if i >= 15: self.nst -= 1; return
                self.e(f"s_memrealtime {s(64+2*i,2)}"); self.e(f"s_memtime {s(66+2*i,2)}"); self.nst += 1
            else:
                self.e(f"{'s_memtime' if self.a.clk else 's_memrealtime'} {s(64+2*i,2)}")
            if wait: self.e.force_wait("lgkmcnt(0)")

    def pol(self, p): return (" " + p) if p else ""

    def issue(self, item, slot):
        e = self.e; a = self.a
        ty = item[0]
        sh, kv = self.pol(a.spol), self.pol(a.kvpol)
        if ty == "X":
            n = item[1]
            for j in range(3):
                e(f"s_add_u32 m0, {s(S_M0B)}, {(n%4)*12288 + j*4096}")
                e(f"s_add_u32 {s(S_SO)}, {s(S_A0)}, {j*32*896}")
                e(f"buffer_load_dwordx4 v1, {s(S_R0,4)}, {s(S_SO)} offen{sh} lds", tag=item)
            e(f"s_add_u32 {s(S_A0)}, {s(S_A0)}, 128"); e(f"s_cmp_eq_u32 {s(S_A0)}, 896"); e(f"s_cselect_b32 {s(S_A0)}, 0, {s(S_A0)}")
        elif ty == "W":
            c, n = divmod(item[1], 7)
            e(f"s_add_u32 m0, {s(S_M0B)}, {slot*SLOT}")
            e(f"s_add_u32 {s(S_SO)}, {s(S_A1)}, {s(S_A2)}")
            e(f"buffer_load_dwordx4 v2, {s(S_R1,4)}, {s(S_SO)} offen{sh} lds", tag=item)
            e(f"s_add_u32 m0, {s(S_M0B)}, {slot*SLOT+4096}")
            e(f"s_add_u32 {s(S_SO)}, {s(S_SO)}, {32*8192}")
            e(f"buffer_load_dwordx4 v2, {s(S_R1,4)}, {s(S_SO)} offen{sh} lds", tag=item)
            e(f"s_add_u32 {s(S_A1)}, {s(S_A1)}, {64*8192}"); e(f"s_cmp_eq_u32 {s(S_A1)}, {7*64*8192}"); e(f"s_cselect_b32 {s(S_A1)}, 0, {s(S_A1)}")
            if n == 6:
                e(f"s_add_u32 {s(S_A2)}, {s(S_A2)}, 128"); e(f"s_and_b32 {s(S_A2)}, {s(S_A2)}, 511")
        elif ty == "V":
            c, i = divmod(item[1], 8)
            if item[1] == 0: self.setup_dv()
            for j in range(2):
                e(f"s_add_u32 m0, {s(S_M0B)}, {slot*SLOT + j*4096}")
                e(f"s_add_u32 {s(S_SO)}, {s(S_A3)}, {(i*64+j*32)*512}")
                e(f"buffer_load_dwordx4 v1, {s(S_R2,4)}, {s(S_SO)} offen{kv} lds", tag=item)
            if i == 7:
                e(f"s_add_u32 {s(S_A3)}, {s(S_A3)}, 128"); e(f"s_and_b32 {s(S_A3)}, {s(S_A3)}, 511")
        elif ty == "K":
            c, T = divmod(item[1], 4)
            for p in range(4):
                e(f"s_add_u32 m0, {s(S_A3)}, {slot*SLOT + p*1024}")
                e(f"s_add_u32 {s(S_SO)}, {s(S_A0)}, {(128*T+8*p)*512}")
                e(f"buffer_load_dwordx4 v{1+(p&1)}, {s(S_R0,4)}, {s(S_SO)} offen{kv} lds", tag=item)
            if T == 3:
                e(f"s_add_u32 {s(S_A0)}, {s(S_A0)}, 128"); e(f"s_and_b32 {s(S_A0)}, {s(S_A0)}, 511")
        elif ty == "O":
            c, n = divmod(item[1], 7)
            e(f"s_add_u32 m0, {s(S_M0B)}, {slot*SLOT}")
            e(f"s_add_u32 {s(S_SO)}, {s(S_A1)}, {s(S_A2)}")
            e(f"buffer_load_dwordx4 v3, {s(S_R1,4)}, {s(S_SO)} offen{sh} lds", tag=item)
            e(f"s_add_u32 m0, {s(S_M0B)}, {slot*SLOT+4096}")
            e(f"s_add_u32 {s(S_SO)}, {s(S_SO)}, {32*896}")
            e(f"buffer_load_dwordx4 v3, {s(S_R1,4)}, {s(S_SO)} offen{sh} lds", tag=item)
            e(f"s_add_u32 {s(S_A2)}, {s(S_A2)}, 128"); e(f"s_cmp_eq_u32 {s(S_A2)}, 896"); e(f"s_cselect_b32 {s(S_A2)}, 0, {s(S_A2)}")
            if n == 6:
                e(f"s_add_u32 {s(S_A1)}, {s(S_A1)}, 57344"); e(f"s_cmp_eq_u32 {s(S_A1)}, {4*57344}"); e(f"s_cselect_b32 {s(S_A1)}, 0, {s(S_A1)}")

    def issue_parts(self, item, slot):
        class Rec:
            def __init__(s2): s2.l = []
            def __call__(s2, t, tag=None): s2.l.append((t, tag))
        real = self.e; rec = Rec(); self.e = rec
        self.issue(item, slot)
        self.e = real
        parts = []; cur = []
        for t, tag in rec.l:
            cur.append((t, tag))
            if t.startswith("buffer_load"): parts.append(cur); cur = []
        parts[-1] += cur
        return [(lambda p=p: [real(t, tag=tag) for t, tag in p]) for p in parts]

    def store_parts(self, cb):
        class Rec:
            def __init__(s2): s2.l = []
            def __call__(s2, t, tag=None): s2.l.append((t, tag))
        real = self.e; rec = Rec(); self.e = rec
        self.store_cb(cb)
        self.e = real
        L = rec.l
        parts = [[x] for x in L[:-3]]
        parts[-1] += L[-3:]
        return [(lambda p=p: [real(t, tag=tag) for t, tag in p]) for p in parts]

    def setup_dv(self):
        e = self.e
        e(f"v_bfe_u32 v46, v0, 4, 2"); e("v_lshlrev_b32 v46, 1, v46"); e("v_and_b32 v47, 7, v0"); e("v_xor_b32 v46, v46, v47"); e("v_lshlrev_b32 v46, 4, v46")
        e("v_lshrrev_b32 v1, 3, v0"); e("v_lshl_add_u32 v1, v1, 9, v46")

    def build_plan(self):
        a = self.a
        nkd = a.nkd
        kslots = [19 - 2 * (i + 1) for i in range(nkd)]
        self.KBASE = min(kslots)
        free = list(range(6, self.KBASE)) + [19]
        WONLY = {3, 4, 5, 19}
        kfree = sorted(kslots)
        plan = []
        slot = {}
        def newtick(bar=True):
            P = dict(bar=bar, A=dict(need=None, issue=[], act=[]), B=dict(need=None, issue=[], act=[])); plan.append(P); return P
        pend = []
        astr = []
        for n in range(7): astr += [("X", n), ("W", n)]
        astr += [("W", i) for i in range(7, 28)]
        ia = 0; ca = 0; xdone = 0
        ik = 0; ck = 0
        def cost(it): return 1.5 if it[0] == "X" else 1.0
        def issueA(P, la):
            nonlocal ia
            while ia < len(astr) and sum(cost(x) for x in astr[ca:ia + 1]) <= la:
                it = astr[ia]
                if it[0] == "X":
                    if it[1] - 4 >= xdone: break
                    P["A"]["issue"].append((it, None))
                else:
                    if not free: break
                    slot[it] = free.pop(0); P["A"]["issue"].append((it, slot[it]))
                ia += 1
        def issueK(P, n):
            nonlocal ik
            while n > 0 and ik < 16 and kfree:
                slot[("K", ik)] = kfree.pop(0); P["B"]["issue"].append((("K", ik), slot[("K", ik)])); ik += 1; n -= 1
        P = newtick(False); issueA(P, a.la); issueK(P, a.k0)
        P["A"]["act"].append(("init",)); P["B"]["act"].append(("init",))
        qwritten = -1; qready = -1; xread = 0
        tick = 0
        wacc = 0.0
        kage = {i: 0 for i in range(ik)}
        iv = 0
        def issueV(P, n):
            nonlocal iv
            while n > 0 and iv < 32 and [x for x in free if x not in WONLY]:
                slot[("V", iv)] = [x for x in free if x not in WONLY][0]; free.remove(slot[("V", iv)]); P["A"]["issue"].append((("V", iv), slot[("V", iv)])); iv += 1; n -= 1
        ckprev = 0; vinit = False; qdefer = None; io = 0; npark = 0; parked_free = []
        while ck < 16:
            tick += 1
            P = newtick()
            free += pend; pend = []; free.sort(); xdone = xread; qready = qwritten; ckprev = ck
            kfree += parked_free; parked_free = []
            if qdefer is not None:
                qwritten = qdefer; qdefer = None; P["A"]["act"].append(("flushw",))
            if ca < 14: n = 2
            else:
                wacc += a.wrate; n = int(wacc + 1e-9); wacc -= n
            took = []
            while n > 0 and ca < min(ia, len(astr)):
                it = astr[ca]
                if it[0] == "W" and it[1] % 7 == 6 and it[1] // 7 >= 2 and ckprev < 4 * (it[1] // 7 - 1):
                    break
                took.append(it); ca += 1; n -= 1
                if it[0] == "X":
                    P["A"]["act"].append(("X", it[1])); xread = it[1] + 1
                    if it[1] == 6: pend += [3, 4, 5]
                else:
                    P["A"]["act"].append(("W", it[1], slot[it])); pend.append(slot[it])
                    if it[1] % 7 == 6:
                        cq = it[1] // 7
                        if a.lag == 0 or cq in a.qdrain:
                            P["A"]["act"].append(("drain",)); qwritten = cq; break
                        else: qdefer = cq
            if qdefer is not None and took[-1] != ("W", 7 * qdefer + 6):
                qwritten = qdefer; qdefer = None; P["A"]["act"].append(("flushw",))
            if took: P["A"]["need"] = took[-1]
            if not a.alt1 or tick < 8 or tick % 2 == 1: issueA(P, a.la)
            if qready == 3 and not vinit:
                P["A"]["act"].append(("initv",)); vinit = True
            if qready < 0 and npark < a.park and npark < ik and tick - kage[npark] >= 2:
                P["B"]["act"].append(("Kpark", npark)); parked_free.append(slot[("K", npark)]); self.parked.add(npark); npark += 1
            if qwritten == 0 and qready < 0 and 0 not in self.parked: P["B"]["act"].append(("Kpre", 0))
            issued = False
            n = a.kmax if (ca == len(astr) and not took) or tick >= a.kmax_from else 1
            last = ik == 16 and qready == 3 and 16 - ck <= a.kburn
            while ck < ik and ck // 4 <= qready and (last or (n > 0 and tick - kage[ck] >= a.klag)):
                sl = slot[("K", ck)]
                P["B"]["act"].append(("S", ck, sl)); self.sinfo[ck] = (tick, qready); ck += 1; n -= 1
                if ck - 1 in self.parked:
                    n += a.parkfast if len([x for x in P["B"]["act"] if x[0] == "S"]) < 2 else 0
                    continue
                if a.alt1 and ia < len(astr):
                    if tick % 2 == 0 and ik < 16 and (kfree or tick == 8):
                        if kfree:
                            k2_ = kfree.pop(0); slot[("K", ik)] = k2_; P["B"]["issue"].append((("K", ik), k2_)); kage[ik] = tick; ik += 1
                        if ik < 16:
                            slot[("K", ik)] = sl; P["B"]["act"].append(("issue", ("K", ik), sl)); kage[ik] = tick; ik += 1
                        else: kfree.append(sl)
                    else: kfree.append(sl)
                    issued = True
                elif ik < 16 and not issued and not kfree:
                    slot[("K", ik)] = sl; P["B"]["act"].append(("issue", ("K", ik), sl)); kage[ik] = tick; ik += 1; issued = True
                else:
                    kfree.append(sl)
            if not issued and ik < 16 and (tick in a.kticks or tick >= 8):
                cand = [x for x in kfree if not any(ac[0] == "S" and ac[2] == x and ac[1] not in self.parked for ac in P["B"]["act"])]
                if cand:
                    kfree.remove(cand[0]); slot[("K", ik)] = cand[0]; P["B"]["issue"].append((("K", ik), cand[0])); kage[ik] = tick; ik += 1
            while tick >= 8 and len(kfree) > min(16 - ik, a.kkeep):
                k = kfree.pop(0); pend += [k, k + 1]
            if ia == len(astr) and tick >= a.oe_from:
                n = a.oe_rate
                while n > 0 and io < a.oearly and [x for x in free if x not in WONLY]:
                    sl = [x for x in free if x not in WONLY][-1]; free.remove(sl)
                    slot[("O", io)] = sl; P["B"]["issue"].append((("O", io), sl)); self.oage[("O", io)] = -9; io += 1; n -= 1
            if ik == 16 and kage[15] < tick and ia == len(astr):
                issueV(P, a.vtr0 if last else 2)
            assert tick < 100
        assert vinit
        self.kage = kage; self.kslot = {i: slot[("K", i)] for i in range(16)}
        P["B"]["act"].append(("maxw",))
        P = newtick()
        free += pend; pend = []; free.sort()
        assert not kfree and all(x in free for x in WONLY)
        for x in sorted(WONLY): free.remove(x)
        WONLY.clear()
        P["B"]["act"] += [("maxr",), ("smx", 0)]
        issueV(P, a.vtr1)
        ostr = [("O", i) for i in range(28)]
        co = 0; cv = 0
        pw = 0
        oready = oloaded = owritten = -1
        odefer = None
        t2 = 0
        if a.p2:
            spec = [tuple(int(x) for x in t.split(",")) for t in a.p2.split("/")]
            for (vi, vc, oi, oc) in spec:
                t2 += 1
                P = newtick()
                free += pend; pend = []; free.sort(); oready = owritten
                if odefer is not None:
                    owritten = odefer; odefer = None; P["A"]["act"].append(("flushw",))
                if t2 <= 4:
                    P["A"]["act"].append(("pread", t2 - 1))
                    if t2 <= 3: P["B"]["act"].append(("smx", t2))
                    if t2 == 4: P["B"]["act"].append(("inito",)); pend += [2, 3, 4, 5]
                if t2 == 5: pend += [19]
                for k in range(vc):
                    assert cv < iv, f"t2={t2}: V{cv} not issued"
                    assert not ((cv + 1) % 8 == 0 and oloaded < (cv + 1) // 8 - 2), f"t2={t2}: O buffer busy"
                    P["A"]["act"].append(("V", cv, slot[("V", cv)])); pend.append(slot[("V", cv)]); P["A"]["need"] = ("V", cv); cv += 1
                    if cv % 8 == 0:
                        if k + 1 < vc: P["A"]["act"].append(("flushw",)); owritten = cv // 8 - 1
                        elif cv == 32 or (cv // 8 - 1) in a.odrain: P["A"]["act"].append(("drain",)); owritten = cv // 8 - 1
                        else: odefer = cv // 8 - 1
                if oloaded < oready and co == 7 * (oloaded + 1):
                    oloaded += 1; P["B"]["act"].append(("oread", oloaded))
                for k in range(oc):
                    assert co < io and co < 7 * (oloaded + 1), f"t2={t2}: O{co} not consumable"
                    P["B"]["act"].append(("O", co, slot[("O", co)])); pend.append(slot[("O", co)]); P["B"]["need"] = ("O", co); co += 1
                assert len(free) >= vi + oi, f"t2={t2}: slots {free} < {vi+oi}"
                issueV(P, vi)
                for k in range(oi):
                    slot[("O", io)] = free.pop(); P["B"]["issue"].append((("O", io), slot[("O", io)])); io += 1
                P["burst"] = t2 > 4
            assert cv == 32 and co == 28 and oloaded == 3, (cv, co, oloaded)
        while cv < 32 or co < 28 or oloaded < 3:
            t2 += 1
            P = newtick()
            free += pend; pend = []; free.sort(); oready = owritten
            if odefer is not None:
                owritten = odefer; odefer = None; P["A"]["act"].append(("flushw",))
            if t2 <= 4:
                P["A"]["act"].append(("pread", t2 - 1))
                if t2 <= 3: P["B"]["act"].append(("smx", t2))
                if t2 == 4: P["B"]["act"].append(("inito",)); pend += [2, 3, 4, 5]
            if t2 == 5: pend += [19]
            if cv < 32:
                if t2 <= 4: nvt = 2
                elif cv >= 32 - a.vend: nvt = 1
                else:
                    nvt = max(2 if iv < 32 or cv + 2 <= 32 - a.vend else 1, min(a.vcmax, iv - a.lc - cv))
                    nvt = min(nvt, 32 - a.vend - cv)
                nvt = min(nvt, iv - cv)
                k = 0
                while k < nvt:
                    if (cv + 1) % 8 == 0 and oloaded < (cv + 1) // 8 - 2: break
                    P["A"]["act"].append(("V", cv, slot[("V", cv)])); pend.append(slot[("V", cv)]); P["A"]["need"] = ("V", cv); cv += 1; k += 1
                    if cv % 8 == 0:
                        if k < nvt and a.lag:
                            P["A"]["act"].append(("flushw",)); owritten = cv // 8 - 1
                        elif a.lag == 0 or cv == 32 or (cv // 8 - 1) in a.odrain:
                            P["A"]["act"].append(("drain",)); owritten = cv // 8 - 1
                        else: odefer = cv // 8 - 1
                if cv >= 32 - a.vend and a.vdrain: P["A"]["act"].append(("drain",))
            if oloaded < oready and co == 7 * (oloaded + 1):
                oloaded += 1; P["B"]["act"].append(("oread", oloaded))
            nop = 7 if oloaded == 3 else (a.opn_end if (cv > 32 - a.vend and cv < 32) else a.opn)
            while nop > 0 and co < 7 * (oloaded + 1) and co < io and (("O", co) in self.oage and t2 - self.oage[("O", co)] >= a.olag or cv >= 32):
                P["B"]["act"].append(("O", co, slot[("O", co)])); pend.append(slot[("O", co)]); P["B"]["need"] = ("O", co); co += 1; nop -= 1
            lv = a.lv0 if t2 <= 4 else a.lv
            if t2 <= 4 or not a.alt2 or t2 % 2 == 0 or io == 28:
                issueV(P, max(0, min(a.vmax0 if t2 <= 4 else a.vmax, cv + lv - iv)))
            if t2 >= a.ostart and (not a.alt2 or t2 % 2 == 1 or iv == 32):
                n = a.omax
                while n > 0 and io < 28 and free and io < co + a.lo and len(free) > (1 if iv < 32 else 0) * a.vres:
                    slot[("O", io)] = free.pop(); P["B"]["issue"].append((("O", io), slot[("O", io)])); self.oage[("O", io)] = t2; io += 1; n -= 1
            assert t2 < 100, "plan stuck"
        self.plan = plan
        if a.verbose:
            f = lambda L: " ".join(str(x[0]) + (str(x[1]) if len(x) > 1 else "") for x in L)
            g = lambda L: " ".join(f"{x[0][0]}{x[0][1]}@{x[1]}" for x in L)
            for i, P in enumerate(plan):
                print(f"{i:2d} A[need {P['A']['need']} iss {g(P['A']['issue'])} act {f(P['A']['act'])}]  B[need {P['B']['need']} iss {g(P['B']['issue'])} act {f(P['B']['act'])}]", file=sys.stderr)

    def prologue(self):
        e = self.e; a = self.a
        e("s_cmp_ge_u32 s2, 256"); e("s_cbranch_scc1 L_end1")
        e("s_load_dwordx16 s[40:55], s[0:1], 0")
        e("s_load_dwordx4 s[56:59], s[0:1], 64")
        e("s_load_dwordx2 s[60:61], s[0:1], 96")
        self.stamp(wait=False)
        if a.padto: e("s_memrealtime s[96:97]")
        e("s_and_b32 s3, s2, 7"); e("s_lshr_b32 s39, s2, 3")
        e(f"s_lshr_b32 {s(S_PP)}, s39, 3"); e("s_lshl_b32 s3, s3, 2"); e(f"s_add_u32 s3, s3, {s(S_PP)}")
        e(f"s_lshr_b32 {s(S_BLK)}, s3, 4"); e(f"s_and_b32 {s(S_H)}, s3, 15"); e(f"s_and_b32 {s(S_B)}, s39, 7")
        e(f"v_lshrrev_b32 {v(T0)}, 6, v0")
        e(f"v_readfirstlane_b32 {s(S_W)}, {v(T0)}")
        e("v_and_b32 v0, 255, v0")
        if a.rot:
            e(f"s_lshr_b32 {s(S_RB)}, {s(S_B)}, 2"); e(f"s_and_b32 {s(S_R4)}, {s(S_B)}, 3")
            e(f"s_mul_i32 {s(S_RB)}, {s(S_RB)}, 3")
            e(f"s_lshl_b32 {s(S_R7)}, {s(S_PP)}, 1"); e(f"s_add_u32 {s(S_R7)}, {s(S_R7)}, {s(S_RB)}")
            e(f"s_cmp_ge_u32 {s(S_R7)}, 7"); e(f"s_cselect_b32 {s(S_TMP)}, 7, 0"); e(f"s_sub_u32 {s(S_R7)}, {s(S_R7)}, {s(S_TMP)}")
        else:
            for r in (S_R7, S_R4, S_RB): e(f"s_mov_b32 {s(r)}, 0")
        if a.fused == 6:
            e(f"s_lshl_b32 {s(S_TMP)}, {s(S_PP)}, 1"); e(f"s_add_u32 {s(S_TMP)}, {s(S_TMP)}, 2"); e(f"s_and_b32 {s(S_TMP)}, {s(S_TMP)}, 7")
            e(f"s_add_u32 {s(S_RB)}, {s(S_RB)}, {s(S_TMP)}")
            e(f"s_cmp_ge_u32 {s(S_RB)}, 7"); e(f"s_cselect_b32 {s(S_TMP)}, 7, 0"); e(f"s_sub_u32 {s(S_RB)}, {s(S_RB)}, {s(S_TMP)}")
        e(f"s_and_b32 {s(S_U)}, {s(S_W)}, 3"); e(f"s_lshl_b32 {s(S_M0B)}, {s(S_U)}, 10")
        e(f"s_lshl_b32 s34, {s(S_B)}, 4"); e(f"s_add_u32 s34, s34, {s(S_H)}"); e("s_lshl_b32 s35, s34, 18")
        for S in (S_R0, S_R1, S_R2): e(f"s_mov_b32 {s(S+3)}, 0x20000")
        e(f"s_cmp_ge_u32 {s(S_W)}, 4"); e("s_cbranch_scc1 L_roleB")

    def bar(self, P, R):
        e = self.e
        if P["bar"]:
            need = P[R]["need"]
            if need is not None: e.wait_tag(need, lgkm=0)
            else: e.wait(lgkm=0)
            e.barrier()

    def role_A(self):
        e = self.e; a = self.a
        ACC = 16; LINV = 40; XA = 43; QA = 45
        UB = [4, 48, 56]
        VA0, VA1, OA = 3, 12, 13
        FR = lambda qt, kap: 64 + (kap * 3 + qt) * 4
        e("v_lshrrev_b32 v46, 3, v0"); e("v_and_b32 v47, 7, v0")
        e(f"v_bfe_u32 {v(T0)}, v0, 4, 3"); e(f"v_xor_b32 {v(T0)}, {v(T0)}, v47"); e(f"v_lshlrev_b32 {v(T0)}, 4, {v(T0)}")
        e("v_mul_u32_u24 v1, 896, v46"); e(f"v_add_u32 v1, v1, {v(T0)}")
        e(f"v_bfe_u32 {v(T0)}, v0, 4, 1"); e(f"v_bfe_u32 {v(T1)}, v0, 6, 1"); e(f"v_lshl_add_u32 {v(T0)}, {v(T1)}, 1, {v(T0)}")
        e(f"v_lshlrev_b32 {v(T0)}, 1, {v(T0)}"); e(f"v_xor_b32 {v(T0)}, {v(T0)}, v47"); e(f"v_lshlrev_b32 {v(T0)}, 4, {v(T0)}")
        e(f"v_lshl_add_u32 v2, v46, 13, {v(T0)}")
        e(f"s_lshl_b32 {s(S_A0)}, {s(S_R7)}, 7"); e(f"s_lshl_b32 {s(S_A1)}, {s(S_R7)}, 19"); e(f"s_lshl_b32 {s(S_A2)}, {s(S_R4)}, 7"); e(f"s_mov_b32 {s(S_A3)}, {s(S_A2)}")
        e(f"s_mov_b32 {s(S_R0+2)}, 86016"); e(f"s_mov_b32 {s(S_R1+2)}, {447*8192+512}"); e(f"s_mov_b32 {s(S_R2+2)}, 262144")
        e(f"s_mul_i32 s36, {s(S_B)}, 86016"); e(f"s_lshl_b32 s37, {s(S_H)}, 9")
        e(f"s_cmp_eq_u32 {s(S_BLK)}, 0")
        e.wait(lgkm=0)
        e(f"s_cselect_b64 {s(S_R0,2)}, s[40:41], s[50:51]")
        e(f"s_cselect_b64 {s(S_R1,2)}, s[46:47], s[56:57]")
        e(f"s_cselect_b64 {s(S_R2,2)}, s[44:45], s[54:55]")
        for S, o in ((S_R0, 36), (S_R1, 37), (S_R2, 35)):
            e(f"s_add_u32 {s(S)}, {s(S)}, s{o}"); e(f"s_addc_u32 {s(S+1)}, {s(S+1)}, 0")
        pending = []
        for ti, P in enumerate(self.plan):
            self.bar(P, "A")
            iss = list(P["A"]["issue"])
            acts = P["A"]["act"]
            units = []
            for act in acts:
                if act[0] in "WV": units += [(act[0], act[1], act[2], 0), (act[0], act[1], act[2], 1)]
            def uread(u, b):
                ty, i, sl, k2 = u
                second = 512 if ty == "W" else 1024
                if k2 == 0:
                    e(f"v_add_u32 {v(T0)}, {sl*SLOT}, {v(VA0)}"); e(f"v_add_u32 {v(T1)}, {sl*SLOT}, {v(VA1)}")
                for dt in range(2):
                    e(f"ds_read_b64_tr_b16 {v(b+4*dt,2)}, {v(T0+dt)} offset:{4096*k2}")
                    e(f"ds_read_b64_tr_b16 {v(b+4*dt+2,2)}, {v(T0+dt)} offset:{4096*k2+second}")
            def umfma(u, b):
                ty, i, sl, k2 = u
                kap = 2 * (i % (7 if ty == "W" else 8)) + k2
                for dt in range(2):
                    for qt in range(3):
                        acc = ACC + 12 * dt + 4 * qt
                        c = "0" if kap == 0 else v(acc, 4)
                        e(f"v_mfma_f32_16x16x32_bf16 {v(acc,4)}, {v(b+4*dt,4)}, {v(FR(qt,kap),4)}, {c}")
            for act in acts:
                if act[0] == "init":
                    for it in iss: self.issue(*it)
                    iss = []
                    e(f"v_and_b32 {v(T0)}, 15, v0"); e(f"v_bfe_u32 {v(T1)}, v0, 7, 1"); e(f"v_lshl_add_u32 v46, {v(T1)}, 4, {v(T0)}")
                    e(f"v_bfe_u32 {v(T0)}, v0, 1, 3"); e(f"v_bfe_u32 {v(T1)}, v0, 4, 2"); e(f"v_xor_b32 {v(T1)}, {v(T1)}, {v(T0)}"); e(f"v_lshlrev_b32 {v(T1)}, 4, {v(T1)}")
                    e(f"v_lshl_add_u32 {v(XA)}, v46, 7, {v(T1)}"); e(f"v_xor_b32 {v(XA+1)}, 64, {v(XA)}")
                    e(f"v_bfe_u32 {v(T1)}, v0, 5, 1"); e(f"v_bfe_u32 v47, v0, 6, 1"); e(f"v_lshl_add_u32 {v(T1)}, v47, 2, {v(T1)}")
                    e(f"v_xor_b32 {v(T1)}, {v(T1)}, {v(T0)}"); e(f"v_lshlrev_b32 {v(T1)}, 4, {v(T1)}"); e(f"v_lshl_add_u32 {v(QA)}, v46, 7, {v(T1)}")
                    e(f"v_bfe_u32 {v(T1)}, v0, 4, 1"); e(f"v_lshl_add_u32 {v(QA)}, {v(T1)}, 3, {v(QA)}"); e(f"v_xor_b32 v13, 32, {v(QA)}")
                    e(f"v_bfe_u32 {v(T0)}, v0, 2, 2"); e(f"v_bfe_u32 {v(T1)}, v0, 4, 2")
                    e(f"v_lshl_add_u32 {v(VA0)}, {v(T1)}, 3, {v(T0)}"); e(f"v_lshlrev_b32 {v(VA0)}, 7, {v(VA0)}")
                    e(f"v_bfe_u32 {v(T0)}, v0, 3, 2"); e(f"v_lshlrev_b32 {v(T1)}, 1, v47")
                    e(f"v_xor_b32 {v(T0)}, {v(T0)}, {v(T1)}"); e(f"v_lshl_add_u32 {v(VA0)}, {v(T0)}, 5, {v(VA0)}")
                    e(f"v_and_b32 {v(T0)}, 3, v0"); e(f"v_lshl_add_u32 {v(VA0)}, {v(T0)}, 3, {v(VA0)}")
                    e(f"v_xor_b32 {v(VA1)}, 32, {v(VA0)}")
                elif act[0] == "X":
                    n = act[1]
                    for k2 in range(2):
                        for qt in range(3):
                            e(f"ds_read_b128 {v(FR(qt, 2*n+k2),4)}, {v(XA+k2)} offset:{(n%4)*12288 + qt*4096}")
                elif act[0] == "initv":
                    if a.fused == 6:
                        assert not e.vm
                        self.srd6()
                        e("v_and_b32 v46, 1, v0"); e(f"s_and_b32 {s(S_TMP)}, s63, 12"); e(f"v_mul_u32_u24 v46, {s(S_TMP)}, v46"); e("v_sub_u32 v46, s63, v46")
                        self.poll("L_pc", "buffer_load_dword v47, v46, s[40:43], 0 offen sc1", "v_lshrrev_b32 v45, 24, v47|v_cmp_le_u32 vcc, 4, v45")
                        e("v_readfirstlane_b32 s48, v47"); e(f"s_lshl_b32 {s(S_TMP)}, 4, s62"); e(f"s_add_u32 {s(S_TMP)}, {s(S_TMP)}, 0x4000000")
                        e(f"s_cmp_eq_u32 s48, {s(S_TMP)}"); e(f"s_cselect_b32 s48, {0 if not a.forceslow else 1}, 1")
                    if a.fused == 4:
                        assert not e.vm
                        self.flag_srd()
                        e("v_mov_b32 v46, 0")
                        self.poll("L_pc", "buffer_load_dword v47, v46, s[40:43], s63 offen sc1", "v_cmp_le_u32 vcc, 1, v47")
                    if a.fused == 3:
                        self.flag_srd()
                        e(f"s_or_b32 {s(S_TMP)}, {s(S_H)}, {s(S_W)}"); e(f"s_cmp_lg_u32 {s(S_TMP)}, 0"); e("s_cbranch_scc1 L_noz")
                        e("v_lshlrev_b32 v46, 13, v0"); e("v_mov_b32 v47, 0")
                        e("buffer_store_dword v47, v46, s[36:39], 0 offen sc1")
                        e.force_wait("vmcnt(0)")
                        e("v_mov_b32 v47, 1")
                        e("buffer_atomic_add v47, v46, s[40:43], s63 offen")
                        e.force_wait("vmcnt(0)")
                        e.label("L_noz")
                    e(f"v_bfe_u32 {v(T0)}, v0, 2, 3"); e(f"v_bfe_u32 {v(T1)}, v0, 5, 1")
                    e(f"v_lshl_add_u32 {v(VA0)}, {v(T1)}, 4, {v(T0)}"); e(f"v_lshlrev_b32 {v(VA0)}, 7, {v(VA0)}")
                    e(f"v_bfe_u32 {v(T0)}, v0, 3, 2"); e(f"v_bfe_u32 {v(T1)}, v0, 6, 1"); e(f"v_lshlrev_b32 {v(T1)}, 1, {v(T1)}")
                    e(f"v_xor_b32 {v(T0)}, {v(T0)}, {v(T1)}"); e(f"v_lshl_add_u32 {v(VA0)}, {v(T0)}, 5, {v(VA0)}")
                    e(f"v_and_b32 {v(T0)}, 3, v0"); e(f"v_lshl_add_u32 {v(VA0)}, {v(T0)}, 3, {v(VA0)}")
                    e(f"v_xor_b32 {v(VA1)}, 32, {v(VA0)}")
                    e(f"v_and_b32 {v(T0)}, 63, v0"); e(f"v_lshlrev_b32 {v(XA)}, 4, {v(T0)}")
                    e(f"v_bfe_u32 {v(T0)}, v0, 7, 1"); e(f"v_lshl_add_u32 {v(XA)}, {v(T0)}, 10, {v(XA)}")
                    e(f"v_bfe_u32 {v(T1)}, v0, 6, 1"); e(f"v_mul_u32_u24 {v(T1)}, 6144, {v(T1)}"); e(f"v_add_u32 {v(OA)}, {v(XA)}, {v(T1)}")
                    e(f"v_and_b32 {v(T1)}, 15, v0"); e(f"v_lshl_add_u32 {v(T0)}, {v(T0)}, 4, {v(T1)}"); e(f"v_lshlrev_b32 {v(T0)}, 5, {v(T0)}")
                    e(f"v_add_u32 {v(XA+1)}, {STAT+4096}, {v(T0)}")
                elif act[0] == "pread":
                    T = act[1]
                    for u in range(4):
                        for qt in range(3):
                            e(f"ds_read_b128 {v(FR(qt, 4*T+u),4)}, {v(XA)} offset:{PBUF[T%2] + u*6144 + qt*2048}")
            def linv(tb):
                for k in range(2): e(f"ds_read_b128 {v(tb+4*k,4)}, {v(XA+1)} offset:{16*k}")
                for qt in range(3):
                    b = tb
                    for k in range(4): e(f"v_add_f32 {v(b+k)}, {v(b+k)}, {v(b+4+k)}")
                    e(f"v_add_f32 {v(b)}, {v(b)}, {v(b+2)}"); e(f"v_add_f32 {v(b+1)}, {v(b+1)}, {v(b+3)}")
                    e(f"v_add_f32 {v(LINV+qt)}, {v(b)}, {v(b+1)}")
                    if qt < 2:
                        for k in range(2): e(f"ds_read_b128 {v(tb+4*k,4)}, {v(XA+1)} offset:{(qt+1)*1024+16*k}")
                    e(f"v_rcp_f32 {v(LINV+qt)}, {v(LINV+qt)}")
            def write_out(ty, c, tb):
                if ty == "W":
                    for qt in range(3):
                        for dt in range(2):
                            acc = ACC + 12 * dt + 4 * qt; tt = tb + 2 * ((2 * qt + dt) % 4)
                            e(f"v_cvt_pk_bf16_f32 {v(tt)}, {v(acc)}, {v(acc+1)}"); e(f"v_cvt_pk_bf16_f32 {v(tt+1)}, {v(acc+2)}, {v(acc+3)}")
                            e(f"ds_write_b64 {v(QA if dt == 0 else 13)}, {v(tt,2)} offset:{QBUF[c%2] + qt*4096}")
                else:
                    if c == 0 and not a.defer: linv(tb)
                    for qt in range(3):
                        tt = tb + 4 * (qt % 2)
                        for dt in range(2):
                            acc = ACC + 12 * dt + 4 * qt
                            for k in range(4 if not a.defer else 0): e(f"v_mul_f32 {v(acc+k)}, {v(LINV+qt)}, {v(acc+k)}")
                            e(f"v_cvt_pk_bf16_f32 {v(tt+2*dt)}, {v(acc)}, {v(acc+1)}"); e(f"v_cvt_pk_bf16_f32 {v(tt+2*dt+1)}, {v(acc+2)}, {v(acc+3)}")
                        e(f"ds_write_b128 {v(OA)}, {v(tt,4)} offset:{OBUF[c%2] + qt*2048}")
            light = []
            heavy = []
            def umfma_l(u, b):
                ty, i, sl, k2 = u
                kap = 2 * (i % (7 if ty == "W" else 8)) + k2
                L = []
                for dt in range(2):
                    for qt in range(3):
                        acc = ACC + 12 * dt + 4 * qt
                        c = "0" if kap == 0 else v(acc, 4)
                        L.append(f"v_mfma_f32_16x16x32_bf16 {v(acc,4)}, {v(b+4*dt,4)}, {v(FR(qt,kap),4)}, {c}")
                return L
            def uread_l(u, b):
                ty, i, sl, k2 = u
                second = 512 if ty == "W" else 1024
                L = []
                for dt in range(2):
                    if k2 == 0: L.append(f"v_add_u32 {v(T0+dt)}, {sl*SLOT}, {v(VA0 if dt == 0 else VA1)}")
                    L.append(f"ds_read_b64_tr_b16 {v(b+4*dt,2)}, {v(T0+dt)} offset:{4096*k2}")
                    L.append(f"ds_read_b64_tr_b16 {v(b+4*dt+2,2)}, {v(T0+dt)} offset:{4096*k2+second}")
                return L
            def pop(nh=1):
                u, b = pending.pop(0)
                for n, m in enumerate(umfma_l(u, b)):
                    e(m)
                    if P.get("burst") and heavy and n % a.bgap == 0: heavy.pop(0)()
                    if light:
                        for _ in range(a.wv):
                            if light: e(light.pop(0))
                    elif heavy and nh > 0 and n < 5 and not P.get("burst"):
                        heavy.pop(0)(); nh -= 1
                while light: e(light.pop(0))
                per = 7 if u[0] == "W" else 8
                if u[1] % per == per - 1 and u[3] == 1:
                    write_out(u[0], u[1] // per, b); return True
                return False
            names = [x[0] for x in acts]
            if a.fused == 5 and any(x[0] == "V" and x[1] == 12 for x in acts):
                e("v_mov_b32 v45, 12288"); e("v_mov_b32 v46, 0"); e("v_mov_b32 v47, 0"); e("ds_write_b64 v45, v[46:47]")
            for it in iss: heavy += self.issue_parts(*it)
            iss = []
            wrote = False
            for k, u in enumerate(units):
                while len(pending) >= 3: wrote |= pop()
                b = [x for x in UB if x not in [p[1] for p in pending]][0]
                light += uread_l(u, b)
                if len(pending) >= a.lag and pending:
                    left = len(units) - k
                    wrote |= pop(nh=-(-len(heavy) // left))
                else:
                    while light: e(light.pop(0))
                    if heavy: heavy.pop(0)()
                pending.append((u, b))
            if "drain" in names or not units or a.lag == 0:
                while pending: wrote |= pop(nh=2)
            if "flushw" in names:
                while not wrote and pending: wrote |= pop()
            while heavy: heavy.pop(0)()
            for it in iss: self.issue(*it)
        if a.fused == 3:
            e(f"s_cmp_lg_u32 {s(S_W)}, 0"); e("s_cbranch_scc1 L_red")
            e("v_mov_b32 v6, 0")
            self.poll("L_pc", "buffer_load_dword v10, v6, s[40:43], s63 offen sc1", "v_cmp_le_u32 vcc, 1, v10")
        if a.fused in (1, 3): e("s_branch L_red")
        else:
            if a.fused == 2: self.staged_reduce()
            if a.fused == 4: self.staged_reduce4()
            if a.fused == 5: self.reduce5()
            if a.fused == 6: self.tail6_A()
            e("s_endpgm")

    def role_B(self):
        e = self.e; a = self.a
        KA, QA = 4, 8
        KF = 16; QF = 32; M = 56; SUM = 59
        SACC = lambda T, qt: 64 + (T * 3 + qt) * 16
        ACC = lambda cb, q6: 64 + 24 * cb + 4 * q6
        self.ACC = ACC
        OF = lambda k2, q6: 16 + 4 * (6 * k2 + q6)
        WB = [232, 240, 248]
        e(f"v_bfe_u32 {v(T0)}, v0, 3, 3"); e(f"v_lshrrev_b32 {v(T1)}, 6, v0"); e(f"v_lshl_add_u32 {v(T0)}, {v(T1)}, 5, {v(T0)}")
        e("v_and_b32 v12, 7, v0"); e(f"v_bfe_u32 {v(T1)}, v0, 4, 2"); e(f"v_xor_b32 v13, v12, {v(T1)}"); e("v_lshlrev_b32 v13, 4, v13")
        e(f"v_lshl_add_u32 v1, {v(T0)}, 9, v13"); e("v_xor_b32 v2, 64, v1")
        e(f"s_lshl_b32 {s(S_A0)}, {s(S_R4)}, 7"); e(f"s_mul_i32 {s(S_A1)}, {s(S_R4)}, 57344"); e(f"s_lshl_b32 {s(S_A2)}, {s(S_RB)}, 7")
        e(f"s_lshl_b32 {s(S_A3)}, {s(S_U)}, 12"); e(f"s_mul_i32 {s(S_ST)}, {s(S_RB)}, 12288")
        e(f"s_mov_b32 {s(S_R0+2)}, 262144"); e(f"s_mov_b32 {s(S_R1+2)}, 229376"); e(f"s_mov_b32 {s(S_R2+2)}, 86016")
        e(f"s_mul_i32 s36, {s(S_H)}, 229376")
        e(f"s_lshl_b32 s37, {s(S_BLK)}, 7"); e("s_add_u32 s37, s37, s34"); e("s_mul_i32 s37, s37, 86016")
        if a.fused == 6:
            e("s_and_b32 s37, s2, 63"); e(f"s_mul_i32 s37, s37, {XQ}"); e(f"s_mov_b32 {s(S_R2+2)}, {XQ}")
            e(f"s_lshl_b32 {s(S_ST)}, {s(S_RB)}, 2"); e(f"s_add_u32 {s(S_ST)}, {s(S_ST)}, {s(S_PP)}"); e(f"s_mul_i32 {s(S_ST)}, {s(S_ST)}, 12288")
        e(f"s_cmp_eq_u32 {s(S_BLK)}, 0")
        e.wait(lgkm=0)
        e(f"s_cselect_b64 {s(S_R0,2)}, s[42:43], s[52:53]")
        e(f"s_cselect_b64 {s(S_R1,2)}, s[48:49], s[58:59]")
        e(f"s_mov_b64 {s(S_R2,2)}, s[60:61]")
        for S, o in ((S_R0, 35), (S_R1, 36), (S_R2, 37)):
            e(f"s_add_u32 {s(S)}, {s(S)}, s{o}"); e(f"s_addc_u32 {s(S+1)}, {s(S+1)}, 0")
        if a.prio >= 2: e("s_setprio 1")
        kpre = qpre = -1
        def qrd(i, n):
            ks, qt = divmod(n, 3)
            e(f"ds_read_b128 {v(QF+4*(n%6),4)}, {v(QA+ks)} offset:{QBUF[(i//4)%2] + qt*4096}")
        def kreg(i): return SACC(3, i) if i in self.parked else KF
        def kread(i, ks):
            e(f"ds_read_b128 {v(kreg(i)+4*ks,4)}, {v(KA+ks)} offset:{(self.kslot[i]-self.KBASE)*SLOT}")
        phase1 = True
        opend = []
        for ti, P in enumerate(self.plan):
            if any(x[0] == "maxr" for x in P["B"]["act"]): phase1 = False
            if phase1:
                if P["bar"]: e.barrier()
            else: self.bar(P, "B")
            if ti in a.stamp_ticks: self.stamp()
            if ti == a.opf:
                e(f"s_mul_i32 {s(S_TMP)}, {s(S_B)}, 28672"); e("v_min_u32 v62, 223, v0"); e("v_lshlrev_b32 v62, 7, v62")
                e(f"buffer_load_dword v63, v62, {s(S_R1,4)}, {s(S_TMP)} offen")
            if a.fused == 6 and ti == 9:
                assert not any(t == "fz" for t, _ in e.vm)
                e(f"s_lshl_b32 {s(S_TMP)}, 1, s62"); e(f"s_add_u32 {s(S_TMP)}, {s(S_TMP)}, 0x1000000")
                e("v_lshlrev_b32 v62, 8, v0"); e(f"v_mov_b32 v63, {s(S_TMP)}")
                e("buffer_atomic_add v63, v62, s[40:43], s63 offen")
            if a.fused == 4 and ti == 9:
                assert not any(t == "fz" for t, _ in e.vm)
                e(f"s_lshl_b32 {s(S_TMP)}, {s(S_H)}, 8"); e(f"s_add_u32 {s(S_TMP)}, {s(S_TMP)}, s63")
                e("v_lshlrev_b32 v62, 8, v0"); e("v_mov_b32 v63, 1")
                e(f"buffer_atomic_add v63, v62, s[40:43], {s(S_TMP)} offen")
            if a.fused in (2, 5) and ti == 9:
                assert not any(t == "fz" for t, _ in e.vm)
                e("v_lshlrev_b32 v62, 8, v0"); e("v_mov_b32 v63, 1")
                e("buffer_atomic_add v63, v62, s[40:43], s63 offen")
            iss = list(P["B"]["issue"])
            acts = P["B"]["act"]
            for ai, act in enumerate(acts):
                if act[0] == "init":
                    for it in iss: self.issue(*it)
                    iss = []
                    e(f"s_mov_b32 {s(S_C)}, 0x3db8aa3b")
                    if a.codepf:
                        e("s_getpc_b64 s[92:93]")
                        e.label("L_pc0")
                        e(f"s_sub_u32 s92, s92, L_pc0-{NAME}_kernel"); e("s_subb_u32 s93, s93, 0")
                        e("s_lshr_b32 s94, s2, 3"); e("s_cmp_ge_u32 s94, 24"); e("s_cselect_b32 s95, 24, 0"); e("s_sub_u32 s94, s94, s95")
                        e("s_cmp_ge_u32 s94, 12"); e("s_cselect_b32 s95, 12, 0"); e("s_sub_u32 s94, s94, s95"); e("s_lshl_b32 s94, s94, 12")
                        e("v_lshlrev_b32 v62, 4, v0"); e("v_add_u32 v62, s94, v62")
                        e("global_load_dword v63, v62, s[92:93]")
                    if a.fused == 6:
                        self.srd6()
                        e("v_lshlrev_b32 v62, 20, v0"); e("v_mov_b32 v63, 0")
                        e(f"s_cmp_eq_u32 {s(S_PP)}, 0"); e(f"s_cselect_b32 {s(S_TMP)}, s46, 0x100000")
                        e(f"buffer_store_dword v63, v62, s[36:39], {s(S_TMP)} offen sc1")
                        e(f"s_cmp_lt_u32 {s(S_H)}, 4"); e(f"s_cselect_b32 {s(S_TMP)}, s47, 0x100000")
                        e(f"buffer_store_dword v63, v62, s[36:39], {s(S_TMP)} offen sc1", tag="fz")
                    if a.fused == 5:
                        self.flag_srd()
                        e(f"s_lshl_b32 s62, {s(S_H)}, 9")
                        e("v_lshlrev_b32 v62, 13, v0"); e("v_mov_b32 v63, 0")
                        e(f"buffer_store_dword v63, v62, s[36:39], s62 offen sc1", tag="fz")
                    if a.fused == 4:
                        self.flag_srd()
                        e(f"s_lshl_b32 s62, {s(S_U)}, 7")
                        e(f"s_lshl_b32 {s(S_TMP)}, {s(S_H)}, 13"); e(f"s_add_u32 {s(S_TMP)}, {s(S_TMP)}, s62")
                        e("v_and_b32 v62, 63, v0"); e("v_lshlrev_b32 v62, 13, v62"); e("v_mov_b32 v63, 0")
                        e(f"buffer_store_dword v63, v62, s[36:39], {s(S_TMP)} offen sc1", tag="fz")
                    if a.fused == 2:
                        self.flag_srd()
                        e(f"s_lshl_b32 s62, {s(S_H)}, 2"); e(f"s_add_u32 s62, s62, {s(S_U)}"); e("s_lshl_b32 s62, s62, 7")
                        e("v_and_b32 v62, 63, v0"); e("v_lshlrev_b32 v62, 13, v62"); e("v_mov_b32 v63, 0")
                        e("buffer_store_dword v63, v62, s[36:39], s62 offen sc1", tag="fz")
                    e(f"v_lshlrev_b32 {v(T1)}, 1, {v(T1)}"); e(f"v_xor_b32 {v(T1)}, {v(T1)}, v12"); e(f"v_lshlrev_b32 {v(T1)}, 4, {v(T1)}")
                    e("v_lshrrev_b32 v3, 3, v0"); e("v_mul_u32_u24 v3, 896, v3"); e(f"v_add_u32 v3, v3, {v(T1)}")
                    e(f"v_and_b32 {v(T0)}, 31, v0"); e(f"v_bfe_u32 {v(T1)}, v0, 1, 3"); e("v_bfe_u32 v12, v0, 5, 1"); e(f"v_xor_b32 {v(T1)}, {v(T1)}, v12")
                    e(f"v_lshlrev_b32 {v(T1)}, 4, {v(T1)}"); e(f"v_lshl_add_u32 {v(QA)}, {v(T0)}, 7, {v(T1)}")
                    for ks in range(1, 4): e(f"v_xor_b32 {v(QA+ks)}, {32*ks}, {v(QA)}")
                    e(f"s_add_u32 {s(S_TMP)}, {s(S_A3)}, {self.KBASE*SLOT}")
                    for ks in range(4): e(f"v_add_u32 {v(KA+ks)}, {s(S_TMP)}, {v(QA+ks)}")
                    e(f"v_lshlrev_b32 {v(T0)}, 5, {v(T0)}"); e(f"v_add_u32 v13, {STAT}, {v(T0)}")
                    e(f"v_lshrrev_b32 {v(T1)}, 5, v0"); e(f"v_lshl_add_u32 v12, {v(T1)}, 2, v13")
                elif act[0] == "Kpark":
                    for it in iss: self.issue(*it)
                    iss = []
                    e.wait_tag(("K", act[1]))
                    for ks in range(4): kread(act[1], ks)
                    e.wait(lgkm=0)
                elif act[0] == "Kpre":
                    e.wait_tag(("K", 0))
                    for ks in range(4): kread(0, ks)
                    kpre = 0; qpre = -1
                elif act[0] == "S":
                    _, i, sl = act
                    c, T = divmod(i, 4)
                    seq = [(ks, qt) for ks in range(4) for qt in range(3)]
                    dma = []
                    for it in iss: dma += self.issue_parts(*it)
                    iss = []
                    if qpre != i:
                        for n in range(3): qrd(i, n)
                    if kpre != i and i not in self.parked:
                        while dma: dma.pop(0)()
                        e.wait_tag(("K", i))
                        for ks in range(4): kread(i, ks)
                    if qpre != i:
                        for n in range(3, 6): qrd(i, n)
                    own = []
                    if ai + 1 < len(acts) and acts[ai + 1][0] == "issue": own = self.issue_parts(acts[ai + 1][1], acts[ai + 1][2])
                    mode = None; qok = False
                    if i + 1 < 16 and self.kage[i + 1] < ti:
                        mode = "roll" if ti - self.kage[i + 1] >= a.kpre else "after"
                        if i + 1 in self.parked: mode = None
                        qok = (i + 1) // 4 <= self.sinfo[i][1]
                    for n, (ks, qt) in enumerate(seq):
                        cc = "0" if (c == 0 and ks == 0) else v(SACC(T, qt), 16)
                        if a.s16hack:
                            for hh in range(2):
                                r = SACC(T, qt) + 4 * (2 * (ks & 1) + hh)
                                e(f"v_mfma_f32_16x16x32_bf16 {v(r,4)}, {v(kreg(i)+4*(ks ^ hh),4)}, {v(QF+4*(n%6),4)}, {'0' if (c == 0 and ks < 2) else v(r,4)}")
                        else:
                            e(f"v_mfma_f32_32x32x16_bf16 {v(SACC(T,qt),16)}, {v(kreg(i)+4*ks,4)}, {v(QF+4*(n%6),4)}, {cc}")
                        if n + 6 < 12: qrd(i, n + 6)
                        elif qok: qrd(i + 1, n - 6)
                        if mode == "roll" and qt == 2 and not a.s16hack:
                            if ks == 0: e.wait_tag(("K", i + 1))
                            kread(i + 1, ks)
                        if mode == "roll" and qt == 2 and a.s16hack and ks & 1:
                            if ks == 1: e.wait_tag(("K", i + 1))
                            kread(i + 1, ks - 1); kread(i + 1, ks)
                        if n == 0 and own:
                            e.wait_regs(set(range(KF, KF + 16)))
                            dma += own
                        if dma and n % 2 == 0: dma.pop(0)()
                        if c == 3 and T > 0 and n >= 3 and (n - 3) < 9:
                            qq, part = divmod(n - 3, 3)
                            self.maxpart(M + qq, SACC(T - 1, qq), part, first=(T == 1))
                    while dma: dma.pop(0)()
                    if mode == "after":
                        e.wait_tag(("K", i + 1))
                        for ks in range(4): kread(i + 1, ks)
                    kpre = i + 1 if mode else -1
                    qpre = i + 1 if qok else -1
                elif act[0] == "maxw":
                    self.stamp()
                    for qt in range(3):
                        for part in range(3): self.maxpart(M + qt, SACC(3, qt), part, first=False)
                        e(f"ds_write_b32 v12, {v(M+qt)} offset:{qt*1024}")
                elif act[0] == "maxr":
                    if a.prio: e("s_setprio 1")
                    for qt in range(3):
                        for k in range(2): e(f"ds_read_b128 {v(16+8*qt+4*k,4)}, v13 offset:{qt*1024+16*k}")
                    e(f"v_and_b32 {v(T0)}, 15, v0"); e(f"v_lshlrev_b32 v4, 4, {v(T0)}")
                    e(f"v_bfe_u32 {v(T0)}, v0, 4, 1"); e(f"v_lshl_add_u32 v4, {v(T0)}, 10, v4")
                    e(f"v_bfe_u32 {v(T0)}, v0, 5, 1"); e(f"v_lshl_add_u32 v4, {v(T0)}, 8, v4")
                    e(f"s_mul_i32 {s(S_TMP)}, {s(S_U)}, 6144"); e(f"v_add_u32 v4, {s(S_TMP)}, v4")
                    for qt in range(3):
                        b = 16 + 8 * qt
                        e(f"v_max3_f32 {v(M+qt)}, {v(b)}, {v(b+1)}, {v(b+2)}")
                        e(f"v_max3_f32 {v(M+qt)}, {v(M+qt)}, {v(b+3)}, {v(b+4)}"); e(f"v_max3_f32 {v(M+qt)}, {v(M+qt)}, {v(b+5)}, {v(b+6)}")
                        e(f"v_max_f32 {v(M+qt)}, {v(M+qt)}, {v(b+7)}")
                        e(f"v_mul_f32 {v(M+qt)}, {s(S_C)}, {v(M+qt)}")
                        if a.pkfma: e(f"v_sub_f32 {v(40+2*qt)}, 0, {v(M+qt)}")
                elif act[0] == "smx":
                    T = act[1]
                    grp = [(qt, hf) for qt in range(3) for hf in range(2)]
                    def fe(g):
                        r = SACC(T, g[0]) + 8 * g[1]
                        if a.pkfma:
                            for k in range(0, 8, 2):
                                e(f"v_pk_fma_f32 {v(r+k,2)}, {v(r+k,2)}, {s(S_C,2)}, {v(40+2*g[0],2)} op_sel_hi:[1,0,0]")
                        else:
                            for k in range(8): e(f"v_fma_f32 {v(r+k)}, {v(r+k)}, {s(S_C)}, -{v(M+g[0])}")
                        for k in range(8): e(f"v_exp_f32 {v(r+k)}, {v(r+k)}")
                    fe(grp[0])
                    for n, (qt, hf) in enumerate(grp):
                        if n + 1 < 6: fe(grp[n + 1])
                        r = SACC(T, qt) + 8 * hf
                        tt = 16 + 4 * n
                        for k in range(4): e(f"v_cvt_pk_bf16_f32 {v(tt+k)}, {v(r+2*k)}, {v(r+2*k+1)}")
                        e(f"ds_write_b128 v4, {v(tt,4)} offset:{PBUF[T%2] + qt*2048 + hf*512}")
                    if iss and a.b_smx_issue:
                        pass
                    self.defer_sum = (T,)
                    if not a.defer:
                        self.sums(T, SACC, SUM)
                        if T == 3:
                            for qt in range(3): e(f"ds_write_b32 v12, {v(SUM+qt)} offset:{4096+qt*1024}")
                elif act[0] == "inito":
                    self.stamp()
                    if a.prio == 1: e("s_setprio 0")
                    if a.defer:
                        for T in range(4): self.sums(T, SACC, SUM)
                        for qt in range(3): e(f"ds_write_b32 v12, {v(SUM+qt)} offset:{4096+qt*1024}")
                    e(f"v_bfe_u32 {v(T0)}, v0, 2, 4"); e(f"v_lshlrev_b32 v5, 7, {v(T0)}")
                    e(f"v_bfe_u32 {v(T0)}, v0, 3, 2"); e(f"v_bfe_u32 {v(T1)}, v0, 6, 2"); e(f"v_xor_b32 {v(T0)}, {v(T0)}, {v(T1)}")
                    e(f"v_lshl_add_u32 v5, {v(T0)}, 5, v5")
                    e(f"v_and_b32 {v(T0)}, 3, v0"); e(f"v_lshl_add_u32 v5, {v(T0)}, 3, v5")
                    e(f"v_and_b32 {v(T0)}, 63, v0"); e(f"v_lshlrev_b32 v6, 4, {v(T0)}")
                    e(f"v_lshlrev_b32 v7, 4, v0")
                    if a.fused == 4:
                        e(f"s_mul_i32 {s(S_ST)}, {s(S_U)}, 21504"); e("v_mov_b32 v7, v6")
                    e("v_lshlrev_b32 v8, 9, v6")
            if a.defer and ti > 0 and any(x[0] == "inito" for x in self.plan[ti - 1]["B"]["act"]):
                e(f"v_and_b32 {v(T0)}, 15, v0"); e(f"v_lshlrev_b32 {v(T0)}, 5, {v(T0)}"); e(f"v_add_u32 {v(T0)}, {STAT+4096}, {v(T0)}")
                for q6 in range(6):
                    for k in range(2): e(f"ds_read_b128 {v(64+8*q6+4*k,4)}, {v(T0)} offset:{q6*512+16*k}")
                for q6 in range(6):
                    b = 64 + 8 * q6
                    e(f"v_pk_add_f32 {v(b,2)}, {v(b,2)}, {v(b+4,2)}"); e(f"v_pk_add_f32 {v(b+2,2)}, {v(b+2,2)}, {v(b+6,2)}")
                    e(f"v_pk_add_f32 {v(b,2)}, {v(b,2)}, {v(b+2,2)}"); e(f"v_add_f32 {v(b)}, {v(b)}, {v(b+1)}")
                    e(f"v_rcp_f32 {v(8+q6)}, {v(b)}")
            ws = [x for x in acts if x[0] == "O"]
            dma = []
            for it in iss: dma += self.issue_parts(*it)
            blight = []
            def wread(x, b, defer=False):
                _, i, sl = x
                tt = T0 + (i % 2)
                L = [f"v_add_u32 {v(tt)}, {sl*SLOT}, v5"]
                for k2 in range(2):
                    L.append(f"ds_read_b64_tr_b16 {v(b+4*k2,2)}, {v(tt)} offset:{4096*k2}")
                    L.append(f"ds_read_b64_tr_b16 {v(b+4*k2+2,2)}, {v(tt)} offset:{4096*k2+2048}")
                if defer: blight.extend(L)
                else:
                    for t in L: e(t)
            def ord_(c, k2, q6):
                e(f"ds_read_b128 {v(OF(k2,q6),4)}, v6 offset:{OBUF[c%2] + k2*6144 + q6*1024}")
            def opop(roll=None):
                x, b = opend.pop(0)
                c, cb = divmod(x[1], 7)
                st = self.store_parts(cb - 1) if (c == 3 and cb > 0) else []
                for k2 in range(2):
                    for q6 in range(6):
                        acc = ACC(cb, q6)
                        cc = "0" if (c == 0 and k2 == 0) else v(acc, 4)
                        e(f"v_mfma_f32_16x16x32_bf16 {v(acc,4)}, {v(b+4*k2,4)}, {v(OF(k2,q6),4)}, {cc}")
                        if roll is not None: ord_(roll, k2, q6)
                        if blight:
                            for _ in range(a.wv):
                                if blight: e(blight.pop(0))
                        elif dma and q6 % 3 == 2 and not P.get("burst"): dma.pop(0)()
                        if dma and P.get("burst") and q6 % a.bgap == 0: dma.pop(0)()
                        if st and (k2 or q6 >= 2):
                            for _ in range(4 if a.defer else 2):
                                if st: st.pop(0)()
                while st: st.pop(0)()
                if c == 3 and a.fused == 4: self.sig4(3 * cb)
                if c == 3 and a.fused == 2 and cb - 1 - a.flag_lag >= 0: self.flag(cb - 1 - a.flag_lag)
                if c == 3 and cb == 6 and a.fused != 6:
                    for f in self.store_parts(6): f()
                    if a.fused == 2 and 6 - a.flag_lag >= 0: self.flag(6 - a.flag_lag)
            ord_c = [x[1] for x in acts if x[0] == "oread"]
            if ord_c:
                c = ord_c[0]
                if c == 3: self.stamp()
                if ws and len(opend) < 3:
                    b = [x for x in WB if x not in [p[1] for p in opend]][0]
                    first = (ws.pop(0), b); wread(*first)
                else: first = None
                while len(opend) > 1: opop()
                if opend: opop(roll=c)
                else:
                    for k2 in range(2):
                        for q6 in range(6): ord_(c, k2, q6)
                if first: opend.append(first)
            lastt = ti == len(self.plan) - 1
            nows = not ws and not ord_c
            for x in ws:
                while len(opend) >= 3: opop()
                b = [y for y in WB if y not in [p[1] for p in opend]][0]
                go = len(opend) + 1 > (2 if lastt else max(a.blag, 1))
                wread(x, b, defer=go and a.wv > 0); opend.append((x, b))
                if go: opop()
            while len(opend) > (0 if (lastt or nows) else a.blag): opop()
            while dma: dma.pop(0)()
        if a.padto and a.padglob:
            e(f"s_cmp_lg_u32 {s(S_W)}, 4"); e("s_cbranch_scc1 L_end1")
            e("s_load_dwordx2 s[98:99], s[0:1], 88"); e.force_wait("vmcnt(0) lgkmcnt(0)")
            e("s_not_b32 s97, s96"); e("v_mov_b32 v10, 240"); e("v_mov_b32 v11, s97"); e("s_mov_b64 s[94:95], s[98:99]")
            e("s_mov_b64 exec, 1")
            e("global_atomic_umax v10, v11, s[94:95]"); e.force_wait("vmcnt(0)")
            e.label("L_pad0")
            e("s_memrealtime s[98:99]"); e.force_wait("lgkmcnt(0)")
            e("s_sub_u32 s98, s98, s96"); e(f"s_cmp_lt_u32 s98, 5000"); e("s_cbranch_scc1 L_pad0")
            e("global_load_dword v12, v10, s[94:95] sc1"); e.force_wait("vmcnt(0)")
            e("v_readfirstlane_b32 s96, v12"); e("s_nop 4"); e("s_not_b32 s96, s96")
            e.label("L_pad")
            e("s_memrealtime s[98:99]"); e.force_wait("lgkmcnt(0)")
            e("s_sub_u32 s98, s98, s96"); e(f"s_cmp_lt_u32 s98, {a.padto*100}"); e("s_cbranch_scc1 L_pad")
            e("s_mov_b64 exec, -1")
        elif a.padto:
            e.label("L_pad")
            e("s_memrealtime s[98:99]"); e.force_wait("lgkmcnt(0)")
            e("s_sub_u32 s98, s98, s96"); e(f"s_cmp_lt_u32 s98, {a.padto*100}"); e("s_cbranch_scc1 L_pad")
        self.stamp()
        if a.fused in (1, 3): self.fused_reduce()
        if a.fused == 5:
            e("v_mov_b32 v9, 12292"); e("v_mov_b32 v10, 1")
            e.force_wait("vmcnt(0)")
            e("s_mov_b64 exec, 1")
            e("ds_add_rtn_u32 v11, v9, v10"); e.force_wait("lgkmcnt(0)")
            e("v_readfirstlane_b32 s50, v11"); e("s_mov_b64 exec, -1")
            e("s_cmp_lg_u32 s50, 3"); e("s_cbranch_scc1 L_nosig")
            e("buffer_store_dword v10, v8, s[36:39], s62 offen sc1")
            e.label("L_nosig")
        if a.fused == 6: self.tail6_B()
        if a.fused == 4: self.sig4(99)
        if a.fused == 2:
            for n in range(7 - a.flag_lag, 7): self.flag(n)
        if a.stamps:
            e.force_wait("vmcnt(0)")
            self.stamp()
            e(f"s_cmp_lg_u32 {s(S_W)}, 4"); e("s_cbranch_scc1 L_end1")
            e(f"s_add_u32 s60, s60, {STAMP_OFF}"); e("s_addc_u32 s61, s61, 0"); e("s_lshl_b32 s33, s2, 7"); e("s_add_u32 s60, s60, s33"); e("s_addc_u32 s61, s61, 0")
            e("v_mov_b32 v10, 0")
            for i in range(self.nst):
                e(f"v_mov_b32 v8, s{64+2*i}"); e(f"v_mov_b32 v9, s{65+2*i}")
                e(f"global_store_dwordx2 v10, v[8:9], s[60:61] offset:{8*i}"); e.nop(2)

    def flag_srd(self):
        e = self.e
        e("s_load_dwordx4 s[44:47], s[0:1], 80")
        e(f"s_lshl_b32 s63, {s(S_BLK)}, 3"); e(f"s_add_u32 s63, s63, {s(S_B)}")
        e(f"s_mul_i32 {s(S_TMP)}, s63, 8192"); e(f"s_add_u32 {s(S_TMP)}, {s(S_TMP)}, {FLAG_OFF}")
        e(f"s_add_u32 s36, s60, {s(S_TMP)}"); e("s_addc_u32 s37, s61, 0"); e("s_mov_b32 s38, 8192"); e("s_mov_b32 s39, 0x20000")
        e("s_lshl_b32 s63, s63, 4")
        e.force_wait("lgkmcnt(0)")
        e("s_mov_b64 s[40:41], s[46:47]"); e("s_mov_b32 s42, 256"); e("s_mov_b32 s43, 0x20000")

    def flag(self, n):
        e = self.e
        e.wait_tag(("st", n))
        e(f"v_mov_b32 v9, {n+1}")
        e("buffer_store_dword v9, v8, s[36:39], s62 offen sc1")

    def srd6(self):
        e = self.e
        e("s_load_dwordx4 s[44:47], s[0:1], 80")
        e(f"s_add_u32 s36, s60, {FLAG_OFF}"); e("s_addc_u32 s37, s61, 0"); e(f"s_mov_b32 s38, {128*CSTR}"); e("s_mov_b32 s39, 0x20000")
        e("s_getreg_b32 s62, hwreg(HW_REG_XCC_ID, 0, 3)"); e("s_mul_i32 s62, s62, 3")
        e("s_and_b32 s63, s2, 63")
        e.force_wait("lgkmcnt(0)")
        e("s_mov_b64 s[40:41], s[46:47]"); e("s_mov_b32 s42, 256"); e("s_mov_b32 s43, 0x20000")
        e(f"s_mul_i32 s46, s63, {CSTR}")
        e("s_andn2_b32 s47, s63, 3"); e(f"s_add_u32 s47, s47, {s(S_PP)}"); e("s_add_u32 s47, s47, 64"); e(f"s_mul_i32 s47, s47, {CSTR}")
        e("s_lshl_b32 s63, s63, 2")

    def arrive(self, name, off):
        e = self.e
        e("v_mov_b32 v10, 0"); e("v_mov_b32 v12, 1")
        e("s_mov_b64 exec, 1")
        e(f"buffer_atomic_add v12, v10, s[36:39], {off} offen sc0")
        e("s_mov_b32 s51, 0")
        e.force_wait("vmcnt(0)")
        e("v_add_u32 v12, 1, v12")
        e.label(name)
        e("v_readfirstlane_b32 s50, v12")
        e("s_add_u32 s51, s51, 1")
        e("s_cmp_ge_u32 s50, 4"); e(f"s_cbranch_scc1 {name}_ok")
        e("s_cmp_ge_u32 s51, 200000"); e(f"s_cbranch_scc1 {name}_ok")
        if self.a.psleep: e(f"s_sleep {self.a.psleep}")
        e(f"buffer_load_dword v12, v10, s[36:39], {off} offen sc1")
        e.force_wait("vmcnt(0)")
        e(f"s_branch {name}")
        e.label(name + "_ok")
        e("s_mov_b64 exec, -1")

    def final6_setup(self):
        e = self.e
        e(f"s_lshr_b32 {s(S_TMP)}, {s(S_W)}, 2"); e(f"s_lshl_b32 {s(S_TMP)}, {s(S_TMP)}, 8"); e(f"v_add_u32 v1, {s(S_TMP)}, v0")
        e("v_cmp_le_u32 vcc, 192, v1"); e("v_subrev_u32 v2, 192, v1"); e("v_min_u32 v2, v2, v1")
        e(f"s_lshr_b32 {s(S_TMP)}, {s(S_H)}, 2"); e(f"s_mul_i32 {s(S_TMP)}, {s(S_TMP)}, 192"); e(f"v_add_u32 v2, {s(S_TMP)}, v2")
        e(f"s_add_u32 {s(S_TMP)}, {s(S_RB)}, 5"); e(f"v_mov_b32 v5, {s(S_TMP)}"); e("v_addc_co_u32 v5, vcc, 0, v5, vcc")
        e("v_subrev_u32 v6, 7, v5"); e("v_min_u32 v5, v5, v6")
        e(f"s_add_u32 {s(S_TMP)}, {s(S_PP)}, {self.a.yslot}"); e(f"s_and_b32 {s(S_TMP)}, {s(S_TMP)}, 3")
        e(f"v_lshl_add_u32 v6, v5, 2, {s(S_TMP)}"); e("v_mul_u32_u24 v6, 12288, v6"); e("v_lshl_add_u32 v3, v2, 4, v6")
        e("v_lshrrev_b32 v7, 8, v2"); e("v_and_b32 v8, 15, v2"); e("v_lshl_add_u32 v8, v7, 5, v8"); e("v_mul_u32_u24 v8, 1792, v8")
        e("v_lshl_add_u32 v8, v5, 7, v8"); e("v_bfe_u32 v9, v2, 4, 4"); e("v_lshl_add_u32 v8, v9, 3, v8")
        e(f"s_cmp_eq_u32 {s(S_PP)}, 3"); e(f"s_cselect_b32 {s(S_TMP)}, 192, 0"); e(f"v_subrev_u32 v9, {s(S_TMP)}, v1")
        e(f"s_sub_u32 {s(S_TMP)}, 384, {s(S_TMP)}"); e(f"v_cmp_gt_u32 vcc, {s(S_TMP)}, v9"); e("v_mov_b32 v4, 0x200000")
        e("v_cndmask_b32 v3, v4, v3, vcc"); e("v_cndmask_b32 v8, v4, v8, vcc")
        e("s_and_b32 s52, s2, 60"); e(f"s_mul_i32 {s(S_TMP)}, s52, {XQ}")
        e(f"s_add_u32 s52, s60, {s(S_TMP)}"); e("s_addc_u32 s53, s61, 0"); e(f"s_mov_b32 s54, {4*XQ}"); e("s_mov_b32 s55, 0x20000")
        e("s_mov_b64 s[56:57], s[44:45]"); e(f"s_mov_b32 s58, {8*96*1792}"); e("s_mov_b32 s59, 0x20000")
        e(f"s_mul_i32 s49, {s(S_B)}, {96*1792}"); e(f"s_mul_i32 {s(S_TMP)}, {s(S_BLK)}, 896"); e(f"s_add_u32 s49, s49, {s(S_TMP)}")

    def tail6_A(self):
        e = self.e; a = self.a
        self.final6_setup()
        e.barrier()
        e(f"s_cmp_lg_u32 {s(S_W)}, 0"); e("s_cbranch_scc1 L_a1")
        e("s_cmp_eq_u32 s48, 0"); e("s_cbranch_scc1 L_a0")
        e("buffer_wbl2 sc1"); e.force_wait("vmcnt(0)")
        e.label("L_a0")
        self.arrive("L_p1", "s46")
        e.label("L_a1")
        e.barrier()
        if a.junk == 1:
            e(f"s_cmp_lg_u32 {s(S_W)}, 1"); e("s_cbranch_scc1 L_j1"); e(f"s_cmp_ge_u32 s2, {a.junkn}"); e("s_cbranch_scc1 L_j1")
            e("buffer_wbl2 sc1")
            e.label("L_j1")
        e.barrier()
        if a.junk == 2:
            e(f"s_cmp_lg_u32 {s(S_W)}, 7"); e("s_cbranch_scc1 L_j1"); e.label("L_j1")
        e(f"s_cmp_lg_u32 {s(S_W)}, 0"); e("s_cbranch_scc1 L_fin")
        self.arrive("L_p2", "s47")
        e("s_branch L_fin")

    def tail6_B(self):
        e = self.e; a = self.a
        ACC = self.ACC
        e.force_wait("vmcnt(0)")
        e.barrier()
        for pi, pos in enumerate((5, 6)):
            e(f"s_add_u32 s{50+pi}, {s(S_RB)}, {pos}"); e(f"s_cmp_ge_u32 s{50+pi}, 7"); e(f"s_cselect_b32 {s(S_TMP)}, 7, 0"); e(f"s_sub_u32 s{50+pi}, s{50+pi}, {s(S_TMP)}")
            e(f"s_mul_i32 s{50+pi}, s{50+pi}, {4*12288}")
        e(f"s_cmp_eq_u32 {s(S_PP)}, 3"); e("s_cselect_b32 s50, 0x100000, s50")
        for j in range(0, 4):
            e(f"s_add_u32 s{91+j}, {s(S_PP)}, {j}"); e(f"s_and_b32 s{91+j}, s{91+j}, 3"); e(f"s_mul_i32 s{91+j}, s{91+j}, 12288")
        e("v_add_u32 v9, 4096, v7"); e("v_add_u32 v10, 8192, v7"); e("s_mov_b32 s95, 0xffff0000")
        self.stamp()
        e.barrier()
        self.stamp()
        VQ = [7, 9, 10]
        L = lambda pi, qt, j: 64 + 4 * ((pi * 3 + qt) * 3 + (j - 1))
        for pi in range(2):
            for qt in range(3):
                for j in range(1, 4):
                    e(f"s_add_u32 {s(S_SO)}, s{50+pi}, s{91+j}")
                    e(f"buffer_load_dwordx4 {v(L(pi,qt,j),4)}, v{VQ[qt]}, {s(S_R2,4)}, {s(S_SO)} offen{self.pol(a.xlpol)}")
        if a.stamps > 1:
            e.force_wait("vmcnt(0)"); self.stamp()
        for pi, pos in enumerate((5, 6)):
            for qt in range(3):
                a0 = ACC(pos, 2 * qt)
                for j in range(1, 4):
                    for k in range(4):
                        r = L(pi, qt, j) + k; t = 16 + 2 * ((j * 4 + k) % 8)
                        e(f"v_lshlrev_b32 v{t}, 16, v{r}"); e(f"v_and_b32 v{t+1}, s95, v{r}")
                        e(f"v_pk_add_f32 {v(a0+2*k,2)}, {v(a0+2*k,2)}, {v(t,2)}")
                for k in range(4): e(f"v_cvt_pk_bf16_f32 v{a0+k}, v{a0+2*k}, v{a0+2*k+1}")
                e(f"s_add_u32 {s(S_SO)}, s{50+pi}, s{91+a.yslot}")
                e(f"buffer_store_dwordx4 {v(a0,4)}, v{VQ[qt]}, {s(S_R2,4)}, {s(S_SO)} offen sc1")
        if a.stamps > 1: self.stamp()
        self.final6_setup()
        e.force_wait("vmcnt(0)")
        self.stamp()
        e.barrier()
        if a.junk == 2:
            e(f"s_cmp_lg_u32 {s(S_W)}, 7"); e("s_cbranch_scc1 L_fin"); e(f"s_cmp_ge_u32 s2, {a.junkn}"); e("s_cbranch_scc1 L_fin")
            e("buffer_wbl2 sc1")
        e.label("L_fin")
        e.barrier()
        self.stamp()
        e(f"s_cmp_ge_u32 {s(S_W)}, 6"); e("s_cbranch_scc1 L_end1")
        e(f"s_mov_b32 {s(S_SO)}, 0"); e("s_mov_b32 s50, 0xffff0000")
        for j in range(4):
            e(f"buffer_load_dwordx4 {v(32+4*j,4)}, v3, s[52:55], {s(S_SO)} offen sc1")
            if j < 3: e(f"s_add_u32 {s(S_SO)}, {s(S_SO)}, {XQ}")
        for h in range(4):
            for k in range(4):
                r = 32 + 4 * h + k
                if h == 0:
                    e(f"v_lshlrev_b32 v{16+2*k}, 16, v{r}"); e(f"v_and_b32 v{17+2*k}, s50, v{r}")
                else:
                    e(f"v_lshlrev_b32 v{24+2*k}, 16, v{r}"); e(f"v_and_b32 v{25+2*k}, s50, v{r}")
                    e(f"v_pk_add_f32 {v(16+2*k,2)}, {v(16+2*k,2)}, {v(24+2*k,2)}")
        for k in range(4): e(f"v_cvt_pk_bf16_f32 v{24+k}, v{16+2*k}, v{17+2*k}")
        e("buffer_store_dwordx2 v[24:25], v8, s[56:59], s49 offen")
        e(f"s_add_u32 s49, s49, {16*1792}")
        e("buffer_store_dwordx2 v[26:27], v8, s[56:59], s49 offen")

    def reduce5(self):
        e = self.e; a = self.a
        self.flag_srd()
        e("v_and_b32 v1, 63, v0"); e("v_mov_b32 v11, 12288")
        e(f"s_cmp_lg_u32 {s(S_W)}, 3"); e("s_cbranch_scc1 L_cons")
        e("v_mov_b32 v6, 0")
        self.poll("L_pc", "buffer_load_dword v10, v6, s[40:43], s63 offen sc1", "v_cmp_le_u32 vcc, 16, v10")
        e("v_and_b32 v5, 15, v1"); e("v_lshlrev_b32 v5, 9, v5")
        e("s_mov_b32 s51, 0")
        e.label("L_pl")
        e("buffer_load_dword v10, v5, s[36:39], 0 offen sc1"); e.force_wait("vmcnt(0)")
        e("v_cmp_ne_u32 vcc, 0, v10")
        e("s_add_u32 s51, s51, 1")
        e("s_and_b32 s50, vcc_lo, 0xffff")
        e("s_cmp_ge_u32 s51, 200000"); e("s_cselect_b32 s50, 0xffff, s50")
        e("v_mov_b32 v12, s50"); e("ds_write_b32 v11, v12")
        e("s_cmp_eq_u32 s50, 0xffff"); e("s_cbranch_scc1 L_end1")
        if a.psleep: e(f"s_sleep {a.psleep}")
        e("s_branch L_pl")
        e.label("L_cons")
        e(f"s_lshr_b32 {s(S_TMP)}, s63, 4"); e(f"s_mul_i32 {s(S_TMP)}, {s(S_TMP)}, {16*86016}")
        e(f"s_add_u32 s52, s60, {s(S_TMP)}"); e("s_addc_u32 s53, s61, 0"); e(f"s_mov_b32 s54, {16*86016}"); e("s_mov_b32 s55, 0x20000")
        e("s_mov_b64 s[56:57], s[44:45]"); e(f"s_mov_b32 s58, {8*96*1792}"); e("s_mov_b32 s59, 0x20000")
        e(f"s_mul_i32 {s(S_TMP)}, {s(S_H)}, 336"); e(f"s_mul_i32 s46, {s(S_U)}, 112"); e(f"s_add_u32 {s(S_TMP)}, {s(S_TMP)}, s46")
        e(f"v_add_u32 v2, {s(S_TMP)}, v1"); e("v_add_u32 v3, 64, v2"); e("v_mov_b32 v4, 0x200000")
        e("v_cmp_gt_u32 s[48:49], 48, v1")
        e(f"s_mul_i32 s47, {s(S_B)}, {96*1792}"); e(f"s_mul_i32 {s(S_TMP)}, {s(S_BLK)}, 896"); e(f"s_add_u32 s47, s47, {s(S_TMP)}")
        for E, LD, OUT in ((2, 6, 8), (3, 7, 9)):
            e(f"v_lshlrev_b32 v{LD}, 4, v{E}")
            e(f"v_lshrrev_b32 v10, 8, v{E}"); e("v_mul_u32_u24 v12, 43, v10"); e("v_lshrrev_b32 v12, 7, v12")
            e("v_mul_u32_u24 v13, 3, v12"); e("v_sub_u32 v13, v10, v13")
            e(f"v_and_b32 v{OUT}, 15, v{E}"); e(f"v_lshl_add_u32 v{OUT}, v13, 5, v{OUT}"); e(f"v_mul_u32_u24 v{OUT}, 1792, v{OUT}")
            e(f"v_lshl_add_u32 v{OUT}, v12, 7, v{OUT}"); e(f"v_bfe_u32 v13, v{E}, 4, 4"); e(f"v_lshl_add_u32 v{OUT}, v13, 3, v{OUT}")
        e("v_cndmask_b32 v7, v4, v7, s[48:49]"); e("v_cndmask_b32 v9, v4, v9, s[48:49]")
        e("s_mov_b32 s50, 0xffff0000"); e("s_mov_b32 s48, 0")
        rp = self.pol(a.frpol)
        e.label("L_cl")
        e("ds_read_b32 v10, v11"); e.force_wait("lgkmcnt(0)")
        e("v_readfirstlane_b32 s49, v10")
        e("s_andn2_b32 s46, s49, s48")
        e("s_cbranch_scc1 L_cn")
        e("s_sleep 1"); e("s_branch L_cl")
        e.label("L_cn")
        for h in range(16):
            e(f"s_bitcmp1_b32 s46, {h}"); e(f"s_cbranch_scc0 L_ch{h}")
            e(f"s_mov_b32 {s(S_SO)}, {h*86016}")
            e(f"buffer_load_dwordx4 {v(32+4*h,4)}, v6, s[52:55], {s(S_SO)} offen{rp}")
            e(f"buffer_load_dwordx4 {v(96+4*h,4)}, v7, s[52:55], {s(S_SO)} offen{rp}")
            e.label(f"L_ch{h}")
        e("s_or_b32 s48, s48, s46"); e("s_cmp_lg_u32 s48, 0xffff"); e("s_cbranch_scc1 L_cl")
        e.force_wait("vmcnt(0)")
        for base, OUT in ((32, 8), (96, 9)):
            for h in range(16):
                for k in range(4):
                    r = base + 4 * h + k
                    if h == 0:
                        e(f"v_lshlrev_b32 v{16+2*k}, 16, v{r}"); e(f"v_and_b32 v{17+2*k}, s50, v{r}")
                    else:
                        e(f"v_lshlrev_b32 v{24+2*k}, 16, v{r}"); e(f"v_and_b32 v{25+2*k}, s50, v{r}")
                        e(f"v_pk_add_f32 {v(16+2*k,2)}, {v(16+2*k,2)}, {v(24+2*k,2)}")
            for k in range(4): e(f"v_cvt_pk_bf16_f32 v{base+k}, v{16+2*k}, v{17+2*k}")
            e(f"buffer_store_dwordx2 {v(base,2)}, v{OUT}, s[56:59], s47 offen")
            e(f"s_add_u32 {s(S_TMP)}, s47, {16*1792}")
            e(f"buffer_store_dwordx2 {v(base+2,2)}, v{OUT}, s[56:59], {s(S_TMP)} offen")
        if a.stamps:
            e.force_wait("vmcnt(0)")
            e("s_memrealtime s[64:65]"); e.force_wait("lgkmcnt(0)")
            e(f"s_cmp_lg_u32 {s(S_W)}, 2"); e("s_cbranch_scc1 L_end1")
            e(f"s_add_u32 s60, s60, {STAMP_OFF}"); e("s_addc_u32 s61, s61, 0"); e("s_lshl_b32 s33, s2, 7"); e("s_add_u32 s60, s60, s33"); e("s_addc_u32 s61, s61, 0")
            e("v_mov_b32 v10, 0"); e("v_mov_b32 v8, s64"); e("v_mov_b32 v9, s65")
            e(f"global_store_dwordx2 v10, v[8:9], s[60:61] offset:{8*a.astamp}")

    def sig4(self, issued):
        e = self.e
        ends = [7, 15, 20]
        while self.nsig < 3 and issued - 1 - ends[self.nsig] >= self.a.sig_lag:
            e.wait_tag(("sp", ends[self.nsig]))
            e(f"v_mov_b32 v9, {1 << (8 * self.nsig)}")
            e("buffer_atomic_add v9, v8, s[36:39], s62 offen")
            self.nsig += 1

    def staged_reduce4(self):
        e = self.e; a = self.a
        e(f"s_lshr_b32 {s(S_TMP)}, s63, 4"); e(f"s_mul_i32 {s(S_TMP)}, {s(S_TMP)}, {16*86016}")
        e(f"s_add_u32 s52, s60, {s(S_TMP)}"); e("s_addc_u32 s53, s61, 0"); e(f"s_mov_b32 s54, {16*86016}"); e("s_mov_b32 s55, 0x20000")
        e("s_mov_b64 s[56:57], s[44:45]"); e(f"s_mov_b32 s58, {8*96*1792}"); e("s_mov_b32 s59, 0x20000")
        e(f"s_lshl_b32 s62, {s(S_U)}, 7")
        e("v_and_b32 v1, 63, v0"); e("v_mov_b32 v4, 0x200000")
        e("v_lshrrev_b32 v2, 5, v1"); e("v_lshlrev_b32 v2, 9, v2"); e("v_and_b32 v3, 31, v1"); e("v_add_u32 v2, v2, v3")
        e(f"s_lshl_b32 {s(S_TMP)}, {s(S_H)}, 5"); e(f"v_add_u32 v2, {s(S_TMP)}, v2")
        e(f"s_lshl_b32 {s(S_TMP)}, {s(S_H)}, 4"); e(f"s_add_u32 {s(S_TMP)}, {s(S_TMP)}, 1024"); e(f"v_add_u32 v3, {s(S_TMP)}, v1")
        e(f"s_lshl_b32 {s(S_TMP)}, {s(S_H)}, 3"); e(f"s_add_u32 {s(S_TMP)}, {s(S_TMP)}, 1264"); e(f"v_add_u32 v5, {s(S_TMP)}, v1")
        e("v_cmp_gt_u32 vcc, 16, v1"); e("v_cndmask_b32 v3, v5, v3, vcc")
        e(f"s_cmp_lt_u32 {s(S_H)}, 8"); e("s_cselect_b32 s46, 24, 16")
        e("v_cmp_gt_u32 s[48:49], s46, v1")
        e(f"s_mul_i32 s47, {s(S_B)}, {96*1792}"); e(f"s_mul_i32 {s(S_TMP)}, {s(S_BLK)}, 896"); e(f"s_add_u32 s47, s47, {s(S_TMP)}")
        e(f"s_lshl_b32 {s(S_TMP)}, {s(S_U)}, 5"); e(f"s_add_u32 s47, s47, {s(S_TMP)}")
        for E, LD, OUT in ((2, 6, 8), (3, 7, 9)):
            e(f"v_lshlrev_b32 v{LD}, 4, v{E}")
            e(f"v_lshrrev_b32 v10, 6, v{E}"); e("v_mul_u32_u24 v11, 43, v10"); e("v_lshrrev_b32 v11, 7, v11")
            e("v_mul_u32_u24 v12, 3, v11"); e("v_sub_u32 v12, v10, v12")
            e(f"v_add_u32 v11, {s(S_RB)}, v11"); e("v_subrev_u32 v13, 7, v11"); e("v_min_u32 v11, v11, v13")
            e(f"v_and_b32 v{OUT}, 15, v{E}"); e(f"v_lshl_add_u32 v{OUT}, v12, 5, v{OUT}"); e(f"v_mul_u32_u24 v{OUT}, 1792, v{OUT}")
            e(f"v_lshl_add_u32 v{OUT}, v11, 7, v{OUT}"); e(f"v_bfe_u32 v13, v{E}, 4, 2"); e(f"v_lshl_add_u32 v{OUT}, v13, 3, v{OUT}")
        e("v_cndmask_b32 v7, v4, v7, s[48:49]"); e("v_cndmask_b32 v9, v4, v9, s[48:49]")
        e("v_mov_b32 v5, 0"); e("s_mov_b32 s50, 0xffff0000")
        rp = self.pol(a.frpol)
        def summ(base, OUT):
            for h in range(16):
                for k in range(4):
                    r = base + 4 * h + k
                    if h == 0:
                        e(f"v_lshlrev_b32 v{16+2*k}, 16, v{r}"); e(f"v_and_b32 v{17+2*k}, s50, v{r}")
                    else:
                        e(f"v_lshlrev_b32 v{24+2*k}, 16, v{r}"); e(f"v_and_b32 v{25+2*k}, s50, v{r}")
                        e(f"v_pk_add_f32 {v(16+2*k,2)}, {v(16+2*k,2)}, {v(24+2*k,2)}")
            for k in range(4): e(f"v_cvt_pk_bf16_f32 v{24+k}, v{16+2*k}, v{17+2*k}")
            e(f"buffer_store_dwordx2 v[24:25], v{OUT}, s[56:59], s47 offen")
            e(f"s_add_u32 {s(S_TMP)}, s47, {16*1792}")
            e(f"buffer_store_dwordx2 v[26:27], v{OUT}, s[56:59], {s(S_TMP)} offen")
        for st in range(3):
            self.poll(f"L_pf{st}", "buffer_load_dword v10, v5, s[36:39], s62 offen sc1", f"v_bfe_u32 v10, v10, {8*st}, 8|v_cmp_le_u32 vcc, 16, v10")
            if st == 0: e("s_mov_b32 exec_hi, 0")
            if st == 1: e("s_mov_b32 exec_lo, 0")
            e(f"s_mul_i32 {s(S_SO)}, {s(S_U)}, 21504")
            for h in range(16):
                e(f"buffer_load_dwordx4 {v((32 if st < 2 else 96)+4*h,4)}, v{6 if st < 2 else 7}, s[52:55], {s(S_SO)} offen{rp}")
                if h < 15: e(f"s_add_u32 {s(S_SO)}, {s(S_SO)}, 86016")
            e("s_mov_b64 exec, -1")
        summ(32, 8)
        summ(96, 9)
        if a.stamps:
            e.force_wait("vmcnt(0)")
            e("s_memrealtime s[64:65]"); e.force_wait("lgkmcnt(0)")
            e(f"s_cmp_lg_u32 {s(S_W)}, 2"); e("s_cbranch_scc1 L_end1")
            e(f"s_add_u32 s60, s60, {STAMP_OFF}"); e("s_addc_u32 s61, s61, 0"); e("s_lshl_b32 s33, s2, 7"); e("s_add_u32 s60, s60, s33"); e("s_addc_u32 s61, s61, 0")
            e("v_mov_b32 v10, 0"); e("v_mov_b32 v8, s64"); e("v_mov_b32 v9, s65")
            e(f"global_store_dwordx2 v10, v[8:9], s[60:61] offset:{8*a.astamp}")

    def poll(self, name, load, cmp):
        e = self.e
        e("s_mov_b32 s51, 0")
        e.label(name)
        e(load); e.force_wait("vmcnt(0)")
        for cc in cmp.split("|"): e(cc)
        e("s_add_u32 s51, s51, 1")
        e("s_cmp_eq_u64 vcc, -1"); e(f"s_cbranch_scc1 {name}_ok")
        e("s_cmp_ge_u32 s51, 200000"); e(f"s_cbranch_scc1 {name}_ok")
        if self.a.psleep: e(f"s_sleep {self.a.psleep}")
        e(f"s_branch {name}")
        e.label(name + "_ok")

    def staged_reduce(self):
        e = self.e; a = self.a
        self.flag_srd()
        e(f"s_lshr_b32 {s(S_TMP)}, s63, 4"); e(f"s_mul_i32 {s(S_TMP)}, {s(S_TMP)}, {16*86016}")
        e(f"s_add_u32 s52, s60, {s(S_TMP)}"); e("s_addc_u32 s53, s61, 0"); e(f"s_mov_b32 s54, {16*86016}"); e("s_mov_b32 s55, 0x20000")
        e("s_mov_b64 s[56:57], s[44:45]"); e(f"s_mov_b32 s58, {8*96*1792}"); e("s_mov_b32 s59, 0x20000")
        e("v_and_b32 v1, 63, v0")
        e(f"s_lshr_b32 {s(S_TMP)}, {s(S_H)}, 2"); e(f"s_mul_i32 {s(S_TMP)}, {s(S_TMP)}, 48"); e(f"v_add_u32 v2, {s(S_TMP)}, v1")
        e("v_lshrrev_b32 v3, 6, v2"); e("v_and_b32 v2, 63, v2"); e("v_lshl_add_u32 v2, v3, 8, v2")
        e(f"s_and_b32 s46, {s(S_H)}, 3"); e(f"s_lshl_b32 {s(S_TMP)}, s46, 6"); e(f"v_add_u32 v2, {s(S_TMP)}, v2")
        e("s_lshl_b32 s46, s46, 7")
        e("v_mov_b32 v4, 0x200000"); e("v_cmp_gt_u32 vcc, 48, v1")
        e("v_lshlrev_b32 v3, 4, v2"); e("v_cndmask_b32 v3, v4, v3, vcc")
        e("v_lshrrev_b32 v7, 8, v2"); e("v_and_b32 v8, 15, v2"); e("v_lshl_add_u32 v8, v7, 5, v8"); e("v_mul_u32_u24 v8, 1792, v8")
        e("v_bfe_u32 v9, v2, 4, 4"); e("v_lshl_add_u32 v8, v9, 3, v8"); e("v_cndmask_b32 v8, v4, v8, vcc")
        e("v_and_b32 v5, 15, v1"); e("v_lshlrev_b32 v5, 9, v5"); e("v_mov_b32 v6, 0")
        e(f"s_mul_i32 s49, {s(S_B)}, {96*1792}"); e(f"s_mul_i32 {s(S_TMP)}, {s(S_BLK)}, 896"); e(f"s_add_u32 s49, s49, {s(S_TMP)}")
        e("s_mov_b32 s50, 0xffff0000")
        self.poll("L_pc", "buffer_load_dword v10, v6, s[40:43], s63 offen sc1", "v_cmp_le_u32 vcc, 16, v10")
        e(f"s_mov_b32 s48, {s(S_U)}")
        e.label("L_stage")
        self.poll("L_pf", "buffer_load_dword v10, v5, s[36:39], s46 offen sc1", "v_cmp_lt_u32 vcc, s48, v10")
        e(f"s_add_u32 s47, s48, {s(S_RB)}"); e("s_cmp_ge_u32 s47, 7"); e(f"s_cselect_b32 {s(S_TMP)}, 7, 0"); e(f"s_sub_u32 s47, s47, {s(S_TMP)}")
        e(f"s_mul_i32 {s(S_SO)}, s47, 12288")
        rp = self.pol(a.frpol)
        for h in range(16):
            e(f"buffer_load_dwordx4 {v(32+4*h,4)}, v3, s[52:55], {s(S_SO)} offen{rp}")
            if h < 15: e(f"s_add_u32 {s(S_SO)}, {s(S_SO)}, 86016")
        e("s_lshl_b32 s47, s47, 7"); e("s_add_u32 s47, s47, s49")
        for h in range(16):
            for k in range(4):
                r = 32 + 4 * h + k
                if h == 0:
                    e(f"v_lshlrev_b32 v{16+2*k}, 16, v{r}"); e(f"v_and_b32 v{17+2*k}, s50, v{r}")
                else:
                    e(f"v_lshlrev_b32 v{24+2*k}, 16, v{r}"); e(f"v_and_b32 v{25+2*k}, s50, v{r}")
                    e(f"v_pk_add_f32 {v(16+2*k,2)}, {v(16+2*k,2)}, {v(24+2*k,2)}")
        for k in range(4): e(f"v_cvt_pk_bf16_f32 v{24+k}, v{16+2*k}, v{17+2*k}")
        e("buffer_store_dwordx2 v[24:25], v8, s[56:59], s47 offen")
        e(f"s_add_u32 s47, s47, {16*1792}")
        e("buffer_store_dwordx2 v[26:27], v8, s[56:59], s47 offen")
        e("s_add_u32 s48, s48, 4"); e("s_cmp_lt_u32 s48, 7"); e("s_cbranch_scc1 L_stage")
        if a.stamps:
            e.force_wait("vmcnt(0)")
            e("s_memrealtime s[64:65]"); e.force_wait("lgkmcnt(0)")
            e(f"s_cmp_lg_u32 {s(S_W)}, 2"); e("s_cbranch_scc1 L_end1")
            e(f"s_add_u32 s60, s60, {STAMP_OFF}"); e("s_addc_u32 s61, s61, 0"); e("s_lshl_b32 s33, s2, 7"); e("s_add_u32 s60, s60, s33"); e("s_addc_u32 s61, s61, 0")
            e("v_mov_b32 v10, 0"); e("v_mov_b32 v8, s64"); e("v_mov_b32 v9, s65")
            e(f"global_store_dwordx2 v10, v[8:9], s[60:61] offset:{8*a.astamp}")

    def fused_reduce(self):
        e = self.e; a = self.a
        e.label("L_red")
        e.nop(12)
        e("s_load_dwordx4 s[40:43], s[0:1], 80")
        e(f"s_lshr_b32 {s(S_TMP)}, {s(S_W)}, 2"); e(f"s_lshl_b32 {s(S_TMP)}, {s(S_TMP)}, 8")
        e(f"v_add_u32 v1, {s(S_TMP)}, v0")
        e(f"s_mul_i32 {s(S_TMP)}, {s(S_H)}, 336")
        e(f"v_add_u32 v2, {s(S_TMP)}, v1")
        e("v_lshlrev_b32 v3, 4, v2")
        e("v_mov_b32 v4, 0x200000")
        e("v_cmp_gt_u32 vcc, 336, v1")
        e("v_cndmask_b32 v3, v4, v3, vcc")
        e(f"s_lshl_b32 s48, {s(S_BLK)}, 3"); e(f"s_add_u32 s48, s48, {s(S_B)}")
        e(f"s_mul_i32 {s(S_TMP)}, s48, {16*86016}")
        e(f"s_add_u32 s44, s60, {s(S_TMP)}"); e("s_addc_u32 s45, s61, 0"); e(f"s_mov_b32 s46, {16*86016}"); e("s_mov_b32 s47, 0x20000")
        e("v_lshrrev_b32 v5, 8, v2"); e("v_mul_u32_u24 v6, 43, v5"); e("v_lshrrev_b32 v6, 7, v6")
        e("v_mul_u32_u24 v7, 3, v6"); e("v_sub_u32 v7, v5, v7")
        e("v_and_b32 v8, 15, v2"); e("v_lshl_add_u32 v8, v7, 5, v8"); e("v_mul_u32_u24 v8, 1792, v8")
        e("v_lshl_add_u32 v8, v6, 7, v8"); e("v_bfe_u32 v9, v2, 4, 4"); e("v_lshl_add_u32 v8, v9, 3, v8")
        e("v_cndmask_b32 v8, v4, v8, vcc")
        e(f"s_mul_i32 s49, {s(S_B)}, {96*1792}"); e(f"s_mul_i32 {s(S_TMP)}, {s(S_BLK)}, 896"); e(f"s_add_u32 s49, s49, {s(S_TMP)}")
        e.force_wait("vmcnt(0) lgkmcnt(0)")
        e("s_mov_b64 s[52:53], s[40:41]"); e(f"s_mov_b32 s54, {8*96*1792}"); e("s_mov_b32 s55, 0x20000")
        e.barrier()
        e(f"s_cmp_lg_u32 {s(S_W)}, 0"); e("s_cbranch_scc1 L_go")
        e("s_lshl_b32 s50, s48, 4")
        if a.fused == 3:
            e("s_mov_b32 s50, 0"); e("s_mov_b64 s[42:43], s[36:37]")
        e("v_mov_b32 v10, s50"); e("v_mov_b32 v11, 1")
        e("s_mov_b64 exec, 1")
        e("global_atomic_add v12, v10, v11, s[42:43] sc0")
        e("s_mov_b32 s51, 0")
        e.force_wait("vmcnt(0)")
        e("v_add_u32 v12, 1, v12")
        e.label("L_poll")
        e("v_readfirstlane_b32 s50, v12")
        e("s_add_u32 s51, s51, 1")
        e("s_cmp_ge_u32 s50, 16"); e("s_cbranch_scc1 L_polled")
        e(f"s_cmp_ge_u32 s51, 200000"); e("s_cbranch_scc1 L_polled")
        if a.psleep: e(f"s_sleep {a.psleep}")
        e("global_load_dword v12, v10, s[42:43] sc1")
        e.force_wait("vmcnt(0)")
        e("s_branch L_poll")
        e.label("L_polled")
        e("s_mov_b64 exec, -1")
        e.label("L_go")
        e.barrier()
        self.stamp()
        e(f"s_cmp_ge_u32 {s(S_W)}, 6"); e("s_cbranch_scc1 L_end1")
        rp = self.pol(a.frpol)
        for h in range(16):
            e(f"s_mov_b32 {s(S_SO)}, {h*86016}")
            e(f"buffer_load_dwordx4 {v(32+4*h,4)}, v3, s[44:47], {s(S_SO)} offen{rp}")
        e("s_mov_b32 s50, 0xffff0000")
        for h in range(16):
            for k in range(4):
                r = 32 + 4 * h + k
                if h == 0:
                    e(f"v_lshlrev_b32 v{16+2*k}, 16, v{r}"); e(f"v_and_b32 v{17+2*k}, s50, v{r}")
                else:
                    e(f"v_lshlrev_b32 v{24+2*k}, 16, v{r}"); e(f"v_and_b32 v{25+2*k}, s50, v{r}")
                    e(f"v_pk_add_f32 {v(16+2*k,2)}, {v(16+2*k,2)}, {v(24+2*k,2)}")
        for k in range(4): e(f"v_cvt_pk_bf16_f32 v{24+k}, v{16+2*k}, v{17+2*k}")
        e("buffer_store_dwordx2 v[24:25], v8, s[52:55], s49 offen")
        e(f"s_add_u32 s49, s49, {16*1792}")
        e("buffer_store_dwordx2 v[26:27], v8, s[52:55], s49 offen")

    def maxpart(self, m, b, part, first):
        e = self.e
        if part == 0:
            if first:
                e(f"v_max3_f32 {v(m)}, {v(b)}, {v(b+1)}, {v(b+1)}")
            else:
                e(f"v_max3_f32 {v(m)}, {v(m)}, {v(b)}, {v(b+1)}")
            e(f"v_max3_f32 {v(m)}, {v(m)}, {v(b+2)}, {v(b+3)}"); e(f"v_max3_f32 {v(m)}, {v(m)}, {v(b+4)}, {v(b+5)}")
        elif part == 1:
            for k in (6, 8, 10): e(f"v_max3_f32 {v(m)}, {v(m)}, {v(b+k)}, {v(b+k+1)}")
        else:
            for k in (12, 14): e(f"v_max3_f32 {v(m)}, {v(m)}, {v(b+k)}, {v(b+k+1)}")

    def sums(self, T, SACC, SUM):
        e = self.e
        for qt in range(3):
            r = SACC(T, qt)
            for k in range(0, 8, 2): e(f"v_pk_add_f32 {v(r+k,2)}, {v(r+k,2)}, {v(r+8+k,2)}")
            for k in range(0, 4, 2): e(f"v_pk_add_f32 {v(r+k,2)}, {v(r+k,2)}, {v(r+4+k,2)}")
            e(f"v_pk_add_f32 {v(r,2)}, {v(r,2)}, {v(r+2,2)}")
            if T == 0: e(f"v_add_f32 {v(SUM+qt)}, {v(r)}, {v(r+1)}")
            else:
                e(f"v_add_f32 {v(r)}, {v(r)}, {v(r+1)}"); e(f"v_add_f32 {v(SUM+qt)}, {v(SUM+qt)}, {v(r)}")

    def store_cb(self, cb):
        e = self.e
        wp = self.pol(self.a.wpol)
        for qt in range(3):
            a0, a1 = self.ACC(cb, 2 * qt), self.ACC(cb, 2 * qt + 1)
            tt = a0
            if self.a.fused == 6:
                wp = self.pol(self.a.xpol)
                if cb == 5:
                    tt = self.ACC(3, 2 * qt)
                    if qt == 0:
                        e(f"s_cmp_eq_u32 {s(S_PP)}, 3"); e(f"s_cselect_b32 {s(S_ST)}, {s(S_ST)}, 0x100000")
            if self.a.defer:
                assert self.a.fused in (0, 1, 3, 7)
                for k in range(4): e(f"v_mul_f32 {v(a0+k)}, {v(8+2*qt)}, {v(a0+k)}")
                for k in range(4): e(f"v_mul_f32 {v(a1+k)}, {v(9+2*qt)}, {v(a1+k)}")
            e(f"v_cvt_pk_bf16_f32 {v(tt)}, {v(a0)}, {v(a0+1)}"); e(f"v_cvt_pk_bf16_f32 {v(tt+1)}, {v(a0+2)}, {v(a0+3)}")
            e(f"v_cvt_pk_bf16_f32 {v(tt+2)}, {v(a1)}, {v(a1+1)}"); e(f"v_cvt_pk_bf16_f32 {v(tt+3)}, {v(a1+2)}, {v(a1+3)}")
            if self.a.fused == 4:
                e(f"buffer_store_dwordx4 {v(tt,4)}, v7, {s(S_R2,4)}, {s(S_ST)} offen offset:{qt*1024}{wp}", tag=("sp", 3 * cb + qt))
                if qt == 2:
                    e(f"s_add_u32 {s(S_ST)}, {s(S_ST)}, 3072"); e("s_nop 0"); e("s_nop 0")
                    return
                continue
            e(f"buffer_store_dwordx4 {v(tt,4)}, v7, {s(S_R2,4)}, {s(S_ST)} offen{wp}", tag=("st", cb))
            if qt < 2: e(f"s_add_u32 {s(S_ST)}, {s(S_ST)}, 4096")
        if self.a.fused == 6:
            e(f"s_add_u32 {s(S_ST)}, {s(S_ST)}, {4096 + 3*12288 - XQ & 0xffffffff}"); e(f"s_cselect_b32 {s(S_TMP)}, 0, {XQ}"); e(f"s_add_u32 {s(S_ST)}, {s(S_ST)}, {s(S_TMP)}")
            return
        e(f"s_add_u32 {s(S_ST)}, {s(S_ST)}, 4096"); e(f"s_cmp_eq_u32 {s(S_ST)}, 86016"); e(f"s_cselect_b32 {s(S_ST)}, 0, {s(S_ST)}")

    def kernel1(self):
        e = self.e
        self.oage = {}; self.sinfo = {}; self.parked = set(); self.nsig = 0
        self.build_plan()
        e.label(NAME + "_kernel")
        self.prologue()
        snap = e.snapshot(); nst = self.nst
        self.role_A()
        e.restore(snap); self.nst = nst
        e.label("L_roleB")
        self.role_B()
        e.label("L_end1"); e("s_endpgm")

from gen1 import desc

def reducer2(a):
    per, thr = a.rper, a.rthr
    nwg = 16 * 5376 // per
    assert 5376 % per == 0
    wpg = 5376 // per
    e = Emitter()
    e.label("reduce_kernel")
    e(f"s_cmp_ge_u32 s2, {nwg}"); e("s_cbranch_scc1 L_end2")
    e("s_load_dwordx2 s[4:5], s[0:1], 96")
    e("s_load_dwordx2 s[8:9], s[0:1], 80")
    if a.stamps: e("s_memrealtime s[24:25]")
    e(f"s_mul_hi_u32 s12, s2, {-(-(1<<32)//wpg)}")
    e(f"s_mul_i32 s13, s12, {wpg}"); e("s_sub_u32 s13, s2, s13"); e(f"s_mul_i32 s13, s13, {per}")
    e("v_add_u32 v2, s13, v0")
    e("v_lshlrev_b32 v3, 4, v2")
    if per != thr:
        e("v_mov_b32 v4, 0x200000"); e(f"v_cmp_gt_u32 vcc, {per}, v0"); e("v_cndmask_b32 v3, v4, v3, vcc")
    e(f"s_mul_i32 s16, s12, {16*86016}")
    e(f"s_mov_b32 s6, {16*86016}"); e("s_mov_b32 s7, 0x20000"); e(f"s_mov_b32 s10, {8*96*1792}"); e("s_mov_b32 s11, 0x20000")
    e("s_mov_b32 s18, 0")
    e.wait(lgkm=0)
    if a.stamps: e("s_mov_b64 s[28:29], s[4:5]")
    e("s_add_u32 s4, s4, s16"); e("s_addc_u32 s5, s5, 0")
    rp = (" " + a.rpol) if a.rpol else ""
    for h in range(16):
        e(f"buffer_load_dwordx4 {v(32+4*h,4)}, v3, s[4:7], s18 offen{rp}")
        if h < 15: e("s_add_u32 s18, s18, 86016")
    e("v_lshrrev_b32 v5, 8, v2"); e("v_mul_u32_u24 v6, 43, v5"); e("v_lshrrev_b32 v6, 7, v6")
    e("v_mul_u32_u24 v7, 3, v6"); e("v_sub_u32 v7, v5, v7")
    e("v_and_b32 v8, 15, v2"); e("v_lshl_add_u32 v8, v7, 5, v8"); e("v_mul_u32_u24 v8, 1792, v8")
    e("v_lshl_add_u32 v8, v6, 7, v8"); e("v_bfe_u32 v9, v2, 4, 4"); e("v_lshl_add_u32 v8, v9, 3, v8")
    if per != thr: e("v_cndmask_b32 v8, v4, v8, vcc")
    e("s_and_b32 s19, s12, 7"); e("s_lshr_b32 s20, s12, 3")
    e(f"s_mul_i32 s19, s19, {96*1792}"); e("s_mul_i32 s20, s20, 896"); e("s_add_u32 s19, s19, s20")
    e("s_mov_b32 s22, 0xffff0000")
    for h in range(16):
        for k in range(4):
            r = 32 + 4 * h + k
            if h == 0:
                e(f"v_lshlrev_b32 v{16+2*k}, 16, v{r}"); e(f"v_and_b32 v{17+2*k}, s22, v{r}")
            else:
                e(f"v_lshlrev_b32 v{24+2*k}, 16, v{r}"); e(f"v_and_b32 v{25+2*k}, s22, v{r}")
                e(f"v_pk_add_f32 {v(16+2*k,2)}, {v(16+2*k,2)}, {v(24+2*k,2)}")
    for k in range(4): e(f"v_cvt_pk_bf16_f32 v{24+k}, v{16+2*k}, v{17+2*k}")
    op = (" " + a.opol) if a.opol else ""
    e(f"buffer_store_dwordx2 v[24:25], v8, s[8:11], s19 offen{op}")
    e(f"s_add_u32 s19, s19, {16*1792}")
    e(f"buffer_store_dwordx2 v[26:27], v8, s[8:11], s19 offen{op}")
    if a.stamps:
        e.force_wait("vmcnt(0)")
        e("s_memrealtime s[26:27]"); e.force_wait("lgkmcnt(0)")
        e(f"s_add_u32 s28, s28, {STAMP_OFF + 65536}"); e("s_addc_u32 s29, s29, 0"); e("s_lshl_b32 s13, s2, 4"); e("s_add_u32 s28, s28, s13"); e("s_addc_u32 s29, s29, 0")
        e("v_mov_b32 v10, 0"); e("v_mov_b32 v12, s24"); e("v_mov_b32 v13, s25"); e("v_mov_b32 v14, s26"); e("v_mov_b32 v15, s27")
        e("global_store_dwordx4 v10, v[12:15], s[28:29]")
    e.label("L_end2"); e("s_endpgm")
    return e, nwg

ilist = lambda x: [int(t) for t in x.split(",") if t]

def main(argv=None):
    ap = argparse.ArgumentParser()
    ap.add_argument("-o", default="k3.s")
    ap.add_argument("--stamps", type=int, default=0)
    ap.add_argument("--stamp_ticks", type=ilist, default=[])
    ap.add_argument("--clk", type=int, default=0)
    ap.add_argument("--rot", type=int, default=1)
    ap.add_argument("--nkd", type=int, default=4)
    ap.add_argument("--la", type=float, default=6)
    ap.add_argument("--k0", type=int, default=1)
    ap.add_argument("--kticks", type=ilist, default=[4, 6, 7])
    ap.add_argument("--wrate", type=float, default=2.0)
    ap.add_argument("--alt1", type=int, default=0)
    ap.add_argument("--alt2", type=int, default=0)
    ap.add_argument("--opf", type=int, default=-1)
    ap.add_argument("--p2", default="")
    ap.add_argument("--bgap", type=int, default=1)
    ap.add_argument("--wv", type=int, default=1)
    ap.add_argument("--lag", type=int, default=2)
    ap.add_argument("--qdrain", type=ilist, default=[0, 3])
    ap.add_argument("--odrain", type=ilist, default=[0])
    ap.add_argument("--kpre", type=int, default=2)
    ap.add_argument("--blag", type=int, default=1)
    ap.add_argument("--kmax", type=int, default=2)
    ap.add_argument("--kmax_from", type=int, default=99)
    ap.add_argument("--klag", type=int, default=2)
    ap.add_argument("--kburn", type=int, default=1)
    ap.add_argument("--kkeep", type=int, default=1)
    ap.add_argument("--vtr0", type=int, default=2)
    ap.add_argument("--vtr1", type=int, default=3)
    ap.add_argument("--lv0", type=int, default=10)
    ap.add_argument("--vmax0", type=int, default=3)
    ap.add_argument("--prio", type=int, default=0)
    ap.add_argument("--vend", type=int, default=2)
    ap.add_argument("--vdrain", type=int, default=1)
    ap.add_argument("--opn_end", type=int, default=2)
    ap.add_argument("--park", type=int, default=0)
    ap.add_argument("--parkfast", type=int, default=1)
    ap.add_argument("--oearly", type=int, default=0)
    ap.add_argument("--oe_from", type=int, default=16)
    ap.add_argument("--oe_rate", type=int, default=2)
    ap.add_argument("--lv", type=int, default=6)
    ap.add_argument("--lc", type=int, default=9)
    ap.add_argument("--vcmax", type=int, default=3)
    ap.add_argument("--vmax", type=int, default=2)
    ap.add_argument("--lo", type=int, default=9)
    ap.add_argument("--omax", type=int, default=3)
    ap.add_argument("--ostart", type=int, default=4)
    ap.add_argument("--olag", type=int, default=2)
    ap.add_argument("--opn", type=int, default=2)
    ap.add_argument("--vres", type=int, default=0)
    ap.add_argument("--a_first", type=int, default=1)
    ap.add_argument("--b_first", type=int, default=1)
    ap.add_argument("--b_smx_issue", type=int, default=0)
    ap.add_argument("--defer", type=int, default=0)
    ap.add_argument("--pkfma", type=int, default=0)
    ap.add_argument("--kvpol", default="nt")
    ap.add_argument("--spol", default="")
    ap.add_argument("--wpol", default="sc1")
    ap.add_argument("--rpol", default="")
    ap.add_argument("--opol", default="")
    ap.add_argument("--rper", type=int, default=336)
    ap.add_argument("--rthr", type=int, default=384)
    ap.add_argument("--rlds", type=int, default=0)
    ap.add_argument("--fused", type=int, default=0)
    ap.add_argument("--xpol", default="")
    ap.add_argument("--xlpol", default="sc1")
    ap.add_argument("--yslot", type=int, default=0)
    ap.add_argument("--junk", type=int, default=0)
    ap.add_argument("--junkn", type=int, default=8)
    ap.add_argument("--forceslow", type=int, default=0)
    ap.add_argument("--sig_lag", type=int, default=4)
    ap.add_argument("--flag_lag", type=int, default=1)
    ap.add_argument("--astamp", type=int, default=8)
    ap.add_argument("--psleep", type=int, default=0)
    ap.add_argument("--frpol", default="sc1")
    ap.add_argument("--s16hack", type=int, default=0)
    ap.add_argument("--codepf", type=int, default=0)
    ap.add_argument("--skip", default="")
    ap.add_argument("--padto", type=int, default=0)
    ap.add_argument("--padglob", type=int, default=0)
    ap.add_argument("--verbose", action="store_true")
    a = ap.parse_args(argv)
    g = Gen(a); g.kernel1()
    out = HEADER
    if a.fused:
        out += "; @launch grid=(256,1,1) block=(512,1,1) lds=163840\n"
    else:
        out += f"; @launch kernel={NAME}_kernel grid=(256,1,1) block=(512,1,1) lds=163840\n"
        re_, nwg = reducer2(a)
        out += f"; @launch kernel=reduce_kernel grid=({nwg},1,1) block=({a.rthr},1,1) lds={a.rlds}\n"
    out += '.amdgcn_target "amdgcn-amd-amdhsa--gfx950"\n.text\n'
    out += f".globl {NAME}_kernel\n.p2align 8\n.type {NAME}_kernel,@function\n" + g.e.text()
    if not a.fused:
        out += ".globl reduce_kernel\n.p2align 8\n.type reduce_kernel,@function\n" + re_.text()
    if a.codepf: out += f".fill (49152 - (. - {NAME}_kernel)) / 4, 4, 0xbf810000\n"
    out += '.section .rodata,"a"\n.p2align 6\n' + desc(NAME + "_kernel", 256)
    if not a.fused: out += ".p2align 6\n" + desc("reduce_kernel", 96, 32)
    open(a.o, "w").write(out)
    print(f"{a.o}: k1 insts {g.e.ninst} (nops {g.e.nops}), ticks {len(g.plan)}, stamps {g.nst}", file=sys.stderr)

if __name__ == "__main__":
    main()
```

```python
import sys, argparse
from emit import Emitter

NAME = "concat_heads__mha_block_cached__mha_block_cached__near_ridge"
STAMP_OFF = 200 << 20
SLOT = 8192
STAT = 19 * SLOT
HEADER = open("cdna_kernels/" + NAME + ".s.ref").read().split("; Override launch")[0]

def v(a, n=1): return f"v{a}" if n == 1 else f"v[{a}:{a+n-1}]"
def s(a, n=1): return f"s{a}" if n == 1 else f"s[{a}:{a+n-1}]"

T0, T1 = 14, 15
S_R0, S_R1, S_R2 = 4, 8, 12
S_W, S_M0B, S_SO, S_TMP, S_C = 16, 17, 18, 19, 20
S_BLK, S_H, S_B, S_PP, S_U = 21, 22, 23, 24, 25
S_R7, S_R4, S_RB = 26, 27, 28
S_A0, S_A1, S_A2, S_A3, S_ST = 29, 30, 31, 32, 33
FLAG_OFF = 32 << 20
XQ = 7 * 4 * 12288
CSTR = 4352
QBUF = [0, 12288]
PBUF = [0, 24576]
OBUF = [0, 0]

class Gen:
    def __init__(self, a):
        self.a = a
        self.e = Emitter()
        D = dict(mfma=("v_mfma",), m32=("v_mfma_f32_32",), m16=("v_mfma_f32_16",), ds=("ds_",), valu=("v_exp", "v_fma_f32", "v_max", "v_cvt_pk", "v_pk_", "v_mul_f32", "v_add_f32", "v_rcp"), store=("buffer_store",), dma=("buffer_load",))
        self.e.drop = tuple(x for k in a.skip.split(",") if k for x in D[k])
        self.nst = 0

    def stamp(self, wait=True):
        if self.a.stamps:
            i = self.nst; self.nst += 1
            assert i < 16 or self.a.clk == 2
            if self.a.clk == 2:
                if i >= 15: self.nst -= 1; return
                self.e(f"s_memrealtime {s(64+2*i,2)}"); self.e(f"s_memtime {s(66+2*i,2)}"); self.nst += 1
            else:
                self.e(f"{'s_memtime' if self.a.clk else 's_memrealtime'} {s(64+2*i,2)}")
            if wait: self.e.force_wait("lgkmcnt(0)")

    def pol(self, p): return (" " + p) if p else ""

    def issue(self, item, slot):
        e = self.e; a = self.a
        ty = item[0]
        sh, kv = self.pol(a.spol), self.pol(a.kvpol)
        if ty == "X":
            n = item[1]
            for j in range(3):
                e(f"s_add_u32 m0, {s(S_M0B)}, {(n%4)*12288 + j*4096}")
                e(f"s_add_u32 {s(S_SO)}, {s(S_A0)}, {j*32*896}")
                e(f"buffer_load_dwordx4 v1, {s(S_R0,4)}, {s(S_SO)} offen{sh} lds", tag=item)
            e(f"s_add_u32 {s(S_A0)}, {s(S_A0)}, 128"); e(f"s_cmp_eq_u32 {s(S_A0)}, 896"); e(f"s_cselect_b32 {s(S_A0)}, 0, {s(S_A0)}")
        elif ty == "W":
            c, n = divmod(item[1], 7)
            e(f"s_add_u32 m0, {s(S_M0B)}, {slot*SLOT}")
            e(f"s_add_u32 {s(S_SO)}, {s(S_A1)}, {s(S_A2)}")
            e(f"buffer_load_dwordx4 v2, {s(S_R1,4)}, {s(S_SO)} offen{sh} lds", tag=item)
            e(f"s_add_u32 m0, {s(S_M0B)}, {slot*SLOT+4096}")
            e(f"s_add_u32 {s(S_SO)}, {s(S_SO)}, {32*8192}")
            e(f"buffer_load_dwordx4 v2, {s(S_R1,4)}, {s(S_SO)} offen{sh} lds", tag=item)
            e(f"s_add_u32 {s(S_A1)}, {s(S_A1)}, {64*8192}"); e(f"s_cmp_eq_u32 {s(S_A1)}, {7*64*8192}"); e(f"s_cselect_b32 {s(S_A1)}, 0, {s(S_A1)}")
            if n == 6:
                e(f"s_add_u32 {s(S_A2)}, {s(S_A2)}, 128"); e(f"s_and_b32 {s(S_A2)}, {s(S_A2)}, 511")
        elif ty == "V":
            c, i = divmod(item[1], 8)
            if item[1] == 0: self.setup_dv()
            for j in range(2):
                e(f"s_add_u32 m0, {s(S_M0B)}, {slot*SLOT + j*4096}")
                e(f"s_add_u32 {s(S_SO)}, {s(S_A3)}, {(i*64+j*32)*512}")
                e(f"buffer_load_dwordx4 v1, {s(S_R2,4)}, {s(S_SO)} offen{kv} lds", tag=item)
            if i == 7:
                e(f"s_add_u32 {s(S_A3)}, {s(S_A3)}, 128"); e(f"s_and_b32 {s(S_A3)}, {s(S_A3)}, 511")
        elif ty == "K":
            c, T = divmod(item[1], 4)
            for p in range(4):
                e(f"s_add_u32 m0, {s(S_A3)}, {slot*SLOT + p*1024}")
                e(f"s_add_u32 {s(S_SO)}, {s(S_A0)}, {(128*T+8*p)*512}")
                e(f"buffer_load_dwordx4 v{1+(p&1)}, {s(S_R0,4)}, {s(S_SO)} offen{kv} lds", tag=item)
            if T == 3:
                e(f"s_add_u32 {s(S_A0)}, {s(S_A0)}, 128"); e(f"s_and_b32 {s(S_A0)}, {s(S_A0)}, 511")
        elif ty == "O":
            c, n = divmod(item[1], 7)
            e(f"s_add_u32 m0, {s(S_M0B)}, {slot*SLOT}")
            e(f"s_add_u32 {s(S_SO)}, {s(S_A1)}, {s(S_A2)}")
            e(f"buffer_load_dwordx4 v3, {s(S_R1,4)}, {s(S_SO)} offen{sh} lds", tag=item)
            e(f"s_add_u32 m0, {s(S_M0B)}, {slot*SLOT+4096}")
            e(f"s_add_u32 {s(S_SO)}, {s(S_SO)}, {32*896}")
            e(f"buffer_load_dwordx4 v3, {s(S_R1,4)}, {s(S_SO)} offen{sh} lds", tag=item)
            e(f"s_add_u32 {s(S_A2)}, {s(S_A2)}, 128"); e(f"s_cmp_eq_u32 {s(S_A2)}, 896"); e(f"s_cselect_b32 {s(S_A2)}, 0, {s(S_A2)}")
            if n == 6:
                e(f"s_add_u32 {s(S_A1)}, {s(S_A1)}, 57344"); e(f"s_cmp_eq_u32 {s(S_A1)}, {4*57344}"); e(f"s_cselect_b32 {s(S_A1)}, 0, {s(S_A1)}")

    def issue_parts(self, item, slot):
        class Rec:
            def __init__(s2): s2.l = []
            def __call__(s2, t, tag=None): s2.l.append((t, tag))
        real = self.e; rec = Rec(); self.e = rec
        self.issue(item, slot)
        self.e = real
        parts = []; cur = []
        for t, tag in rec.l:
            cur.append((t, tag))
            if t.startswith("buffer_load"): parts.append(cur); cur = []
        parts[-1] += cur
        return [(lambda p=p: [real(t, tag=tag) for t, tag in p]) for p in parts]

    def store_parts(self, cb):
        class Rec:
            def __init__(s2): s2.l = []
            def __call__(s2, t, tag=None): s2.l.append((t, tag))
        real = self.e; rec = Rec(); self.e = rec
        self.store_cb(cb)
        self.e = real
        L = rec.l
        parts = []; grp = None
        for x in L[:-3]:
            if x[0] == "#BEGIN": grp = []
            elif x[0] == "#END": parts.append(grp); grp = None
            elif grp is not None: grp.append(x)
            else: parts.append([x])
        parts[-1] += L[-3:]
        def run(p):
            for t, tag in p:
                if t.startswith("#LABEL"): real.label(t.split()[1])
                else: real(t, tag=tag)
        return [(lambda p=p: run(p)) for p in parts]

    def setup_dv(self):
        e = self.e
        e(f"v_bfe_u32 v46, v0, 4, 2"); e("v_lshlrev_b32 v46, 1, v46"); e("v_and_b32 v47, 7, v0"); e("v_xor_b32 v46, v46, v47"); e("v_lshlrev_b32 v46, 4, v46")
        e("v_lshrrev_b32 v1, 3, v0"); e("v_lshl_add_u32 v1, v1, 9, v46")

    def build_plan(self):
        a = self.a
        nkd = a.nkd
        kslots = [19 - 2 * (i + 1) for i in range(nkd)]
        self.KBASE = min(kslots)
        free = list(range(6, self.KBASE)) + [19]
        WONLY = {3, 4, 5, 19}
        kfree = sorted(kslots)
        plan = []
        slot = {}
        def newtick(bar=True):
            P = dict(bar=bar, A=dict(need=None, issue=[], act=[]), B=dict(need=None, issue=[], act=[])); plan.append(P); return P
        pend = []
        astr = []
        for n in range(7): astr += [("X", n), ("W", n)]
        astr += [("W", i) for i in range(7, 28)]
        ia = 0; ca = 0; xdone = 0
        ik = 0; ck = 0
        def cost(it): return 1.5 if it[0] == "X" else 1.0
        def issueA(P, la):
            nonlocal ia
            while ia < len(astr) and sum(cost(x) for x in astr[ca:ia + 1]) <= la:
                it = astr[ia]
                if it[0] == "X":
                    if it[1] - 4 >= xdone: break
                    P["A"]["issue"].append((it, None))
                else:
                    if not free: break
                    slot[it] = free.pop(0); P["A"]["issue"].append((it, slot[it]))
                ia += 1
        def issueK(P, n):
            nonlocal ik
            while n > 0 and ik < 16 and kfree:
                slot[("K", ik)] = kfree.pop(0); P["B"]["issue"].append((("K", ik), slot[("K", ik)])); ik += 1; n -= 1
        P = newtick(False); issueA(P, a.la); issueK(P, a.k0)
        P["A"]["act"].append(("init",)); P["B"]["act"].append(("init",))
        qwritten = -1; qready = -1; xread = 0
        tick = 0
        wacc = 0.0
        kage = {i: 0 for i in range(ik)}
        iv = 0
        def issueV(P, n):
            nonlocal iv
            while n > 0 and iv < 32 and [x for x in free if x not in WONLY]:
                slot[("V", iv)] = [x for x in free if x not in WONLY][0]; free.remove(slot[("V", iv)]); P["A"]["issue"].append((("V", iv), slot[("V", iv)])); iv += 1; n -= 1
        ckprev = 0; vinit = False; qdefer = None; io = 0; npark = 0; parked_free = []
        while ck < 16:
            tick += 1
            P = newtick()
            free += pend; pend = []; free.sort(); xdone = xread; qready = qwritten; ckprev = ck
            kfree += parked_free; parked_free = []
            if qdefer is not None:
                qwritten = qdefer; qdefer = None; P["A"]["act"].append(("flushw",))
            if ca < 14: n = 2
            else:
                wacc += a.wrate; n = int(wacc + 1e-9); wacc -= n
            took = []
            while n > 0 and ca < min(ia, len(astr)):
                it = astr[ca]
                if it[0] == "W" and it[1] % 7 == 6 and it[1] // 7 >= 2 and ckprev < 4 * (it[1] // 7 - 1):
                    break
                took.append(it); ca += 1; n -= 1
                if it[0] == "X":
                    P["A"]["act"].append(("X", it[1])); xread = it[1] + 1
                    if it[1] == 6: pend += [3, 4, 5]
                else:
                    P["A"]["act"].append(("W", it[1], slot[it])); pend.append(slot[it])
                    if it[1] % 7 == 6:
                        cq = it[1] // 7
                        if a.lag == 0 or cq in a.qdrain:
                            P["A"]["act"].append(("drain",)); qwritten = cq; break
                        else: qdefer = cq
            if qdefer is not None and took[-1] != ("W", 7 * qdefer + 6):
                qwritten = qdefer; qdefer = None; P["A"]["act"].append(("flushw",))
            if took: P["A"]["need"] = took[-1]
            if not a.alt1 or tick < 8 or tick % 2 == 1: issueA(P, a.la)
            if qready == 3 and not vinit:
                P["A"]["act"].append(("initv",)); vinit = True
            if qready < 0 and npark < a.park and npark < ik and tick - kage[npark] >= 2:
                P["B"]["act"].append(("Kpark", npark)); parked_free.append(slot[("K", npark)]); self.parked.add(npark); npark += 1
            if qwritten == 0 and qready < 0 and 0 not in self.parked: P["B"]["act"].append(("Kpre", 0))
            issued = False
            n = a.kmax if (ca == len(astr) and not took) or tick >= a.kmax_from else 1
            last = ik == 16 and qready == 3 and 16 - ck <= a.kburn
            while ck < ik and ck // 4 <= qready and (last or (n > 0 and tick - kage[ck] >= a.klag)):
                sl = slot[("K", ck)]
                P["B"]["act"].append(("S", ck, sl)); self.sinfo[ck] = (tick, qready); ck += 1; n -= 1
                if ck - 1 in self.parked:
                    n += a.parkfast if len([x for x in P["B"]["act"] if x[0] == "S"]) < 2 else 0
                    continue
                if a.alt1 and ia < len(astr):
                    if tick % 2 == 0 and ik < 16 and (kfree or tick == 8):
                        if kfree:
                            k2_ = kfree.pop(0); slot[("K", ik)] = k2_; P["B"]["issue"].append((("K", ik), k2_)); kage[ik] = tick; ik += 1
                        if ik < 16:
                            slot[("K", ik)] = sl; P["B"]["act"].append(("issue", ("K", ik), sl)); kage[ik] = tick; ik += 1
                        else: kfree.append(sl)
                    else: kfree.append(sl)
                    issued = True
                elif ik < 16 and not issued and not kfree:
                    slot[("K", ik)] = sl; P["B"]["act"].append(("issue", ("K", ik), sl)); kage[ik] = tick; ik += 1; issued = True
                else:
                    kfree.append(sl)
            if not issued and ik < 16 and (tick in a.kticks or tick >= 8):
                cand = [x for x in kfree if not any(ac[0] == "S" and ac[2] == x and ac[1] not in self.parked for ac in P["B"]["act"])]
                if cand:
                    kfree.remove(cand[0]); slot[("K", ik)] = cand[0]; P["B"]["issue"].append((("K", ik), cand[0])); kage[ik] = tick; ik += 1
            while tick >= 8 and len(kfree) > min(16 - ik, a.kkeep):
                k = kfree.pop(0); pend += [k, k + 1]
            if ia == len(astr) and tick >= a.oe_from:
                n = a.oe_rate
                while n > 0 and io < a.oearly and [x for x in free if x not in WONLY]:
                    sl = [x for x in free if x not in WONLY][-1]; free.remove(sl)
                    slot[("O", io)] = sl; P["B"]["issue"].append((("O", io), sl)); self.oage[("O", io)] = -9; io += 1; n -= 1
            if ik == 16 and kage[15] < tick and ia == len(astr):
                issueV(P, a.vtr0 if last else 2)
            assert tick < 100
        assert vinit
        self.kage = kage; self.kslot = {i: slot[("K", i)] for i in range(16)}
        P["B"]["act"].append(("maxw",))
        P = newtick()
        free += pend; pend = []; free.sort()
        assert not kfree and all(x in free for x in WONLY)
        for x in sorted(WONLY): free.remove(x)
        WONLY.clear()
        P["B"]["act"] += [("maxr",), ("smx", 0)]
        issueV(P, a.vtr1)
        ostr = [("O", i) for i in range(28)]
        co = 0; cv = 0
        pw = 0
        oready = oloaded = owritten = -1
        odefer = None
        t2 = 0
        if a.p2:
            spec = [tuple(int(x) for x in t.split(",")) for t in a.p2.split("/")]
            for (vi, vc, oi, oc) in spec:
                t2 += 1
                P = newtick()
                free += pend; pend = []; free.sort(); oready = owritten
                if odefer is not None:
                    owritten = odefer; odefer = None; P["A"]["act"].append(("flushw",))
                if t2 <= 4:
                    P["A"]["act"].append(("pread", t2 - 1))
                    if t2 <= 3: P["B"]["act"].append(("smx", t2))
                    if t2 == 4: P["B"]["act"].append(("inito",)); pend += [2, 3, 4, 5]
                if t2 == 5: pend += [19]
                for k in range(vc):
                    assert cv < iv, f"t2={t2}: V{cv} not issued"
                    assert not ((cv + 1) % 8 == 0 and oloaded < (cv + 1) // 8 - 2), f"t2={t2}: O buffer busy"
                    P["A"]["act"].append(("V", cv, slot[("V", cv)])); pend.append(slot[("V", cv)]); P["A"]["need"] = ("V", cv); cv += 1
                    if cv % 8 == 0:
                        if k + 1 < vc: P["A"]["act"].append(("flushw",)); owritten = cv // 8 - 1
                        elif cv == 32 or (cv // 8 - 1) in a.odrain: P["A"]["act"].append(("drain",)); owritten = cv // 8 - 1
                        else: odefer = cv // 8 - 1
                if oloaded < oready and co == 7 * (oloaded + 1):
                    oloaded += 1; P["B"]["act"].append(("oread", oloaded))
                for k in range(oc):
                    assert co < io and co < 7 * (oloaded + 1), f"t2={t2}: O{co} not consumable"
                    P["B"]["act"].append(("O", co, slot[("O", co)])); pend.append(slot[("O", co)]); P["B"]["need"] = ("O", co); co += 1
                assert len(free) >= vi + oi, f"t2={t2}: slots {free} < {vi+oi}"
                issueV(P, vi)
                for k in range(oi):
                    slot[("O", io)] = free.pop(); P["B"]["issue"].append((("O", io), slot[("O", io)])); io += 1
                P["burst"] = t2 > 4
            assert cv == 32 and co == 28 and oloaded == 3, (cv, co, oloaded)
        while cv < 32 or co < 28 or oloaded < 3:
            t2 += 1
            P = newtick()
            free += pend; pend = []; free.sort(); oready = owritten
            if odefer is not None:
                owritten = odefer; odefer = None; P["A"]["act"].append(("flushw",))
            if t2 <= 4:
                P["A"]["act"].append(("pread", t2 - 1))
                if t2 <= 3: P["B"]["act"].append(("smx", t2))
                if t2 == 4: P["B"]["act"].append(("inito",)); pend += [2, 3, 4, 5]
            if t2 == 5: pend += [19]
            if cv < 32:
                if t2 <= 4: nvt = 2
                elif cv >= 32 - a.vend: nvt = 1
                else:
                    nvt = max(2 if iv < 32 or cv + 2 <= 32 - a.vend else 1, min(a.vcmax, iv - a.lc - cv))
                    nvt = min(nvt, 32 - a.vend - cv)
                nvt = min(nvt, iv - cv)
                k = 0
                while k < nvt:
                    if (cv + 1) % 8 == 0 and oloaded < (cv + 1) // 8 - 2: break
                    P["A"]["act"].append(("V", cv, slot[("V", cv)])); pend.append(slot[("V", cv)]); P["A"]["need"] = ("V", cv); cv += 1; k += 1
                    if cv % 8 == 0:
                        if k < nvt and a.lag:
                            P["A"]["act"].append(("flushw",)); owritten = cv // 8 - 1
                        elif a.lag == 0 or cv == 32 or (cv // 8 - 1) in a.odrain:
                            P["A"]["act"].append(("drain",)); owritten = cv // 8 - 1
                        else: odefer = cv // 8 - 1
                if cv >= 32 - a.vend and a.vdrain: P["A"]["act"].append(("drain",))
            if oloaded < oready and co == 7 * (oloaded + 1):
                oloaded += 1; P["B"]["act"].append(("oread", oloaded))
            nop = 7 if oloaded == 3 else (a.opn_end if (cv > 32 - a.vend and cv < 32) else a.opn)
            while nop > 0 and co < 7 * (oloaded + 1) and co < io and (("O", co) in self.oage and t2 - self.oage[("O", co)] >= a.olag or cv >= 32):
                P["B"]["act"].append(("O", co, slot[("O", co)])); pend.append(slot[("O", co)]); P["B"]["need"] = ("O", co); co += 1; nop -= 1
            lv = a.lv0 if t2 <= 4 else a.lv
            if t2 <= 4 or not a.alt2 or t2 % 2 == 0 or io == 28:
                issueV(P, max(0, min(a.vmax0 if t2 <= 4 else a.vmax, cv + lv - iv)))
            if t2 >= a.ostart and (not a.alt2 or t2 % 2 == 1 or iv == 32):
                n = a.omax
                while n > 0 and io < 28 and free and io < co + a.lo and len(free) > (1 if iv < 32 else 0) * a.vres:
                    slot[("O", io)] = free.pop(); P["B"]["issue"].append((("O", io), slot[("O", io)])); self.oage[("O", io)] = t2; io += 1; n -= 1
            assert t2 < 100, "plan stuck"
        self.plan = plan
        busy = {slot[("O", i)] for i in range(21, 28)}
        self.own_lds = [x for x in range(2, 20) if x not in busy][0] * SLOT
        if a.verbose:
            f = lambda L: " ".join(str(x[0]) + (str(x[1]) if len(x) > 1 else "") for x in L)
            g = lambda L: " ".join(f"{x[0][0]}{x[0][1]}@{x[1]}" for x in L)
            for i, P in enumerate(plan):
                print(f"{i:2d} A[need {P['A']['need']} iss {g(P['A']['issue'])} act {f(P['A']['act'])}]  B[need {P['B']['need']} iss {g(P['B']['issue'])} act {f(P['B']['act'])}]", file=sys.stderr)

    def prologue(self):
        e = self.e; a = self.a
        e("s_cmp_ge_u32 s2, 256"); e("s_cbranch_scc1 L_end1")
        e("s_load_dwordx16 s[40:55], s[0:1], 0")
        e("s_load_dwordx4 s[56:59], s[0:1], 64")
        e("s_load_dwordx2 s[60:61], s[0:1], 96")
        self.stamp(wait=False)
        if a.padto: e("s_memrealtime s[96:97]")
        e("s_and_b32 s3, s2, 7"); e("s_lshr_b32 s39, s2, 3")
        if a.remap == 1:
            e("s_and_b32 s38, s39, 3"); e("s_lshl_b32 s38, s38, 3"); e("s_lshr_b32 s39, s39, 2"); e("s_or_b32 s39, s39, s38")
        if a.remap == 2:
            e("s_xor_b32 s39, s39, 8")
        e(f"s_lshr_b32 {s(S_PP)}, s39, 3"); e("s_lshl_b32 s3, s3, 2"); e(f"s_add_u32 s3, s3, {s(S_PP)}")
        e(f"s_lshr_b32 {s(S_BLK)}, s3, 4"); e(f"s_and_b32 {s(S_H)}, s3, 15"); e(f"s_and_b32 {s(S_B)}, s39, 7")
        e(f"v_lshrrev_b32 {v(T0)}, 6, v0")
        e(f"v_readfirstlane_b32 {s(S_W)}, {v(T0)}")
        e("v_and_b32 v0, 255, v0")
        if a.rot:
            e(f"s_lshr_b32 {s(S_RB)}, {s(S_B)}, 2"); e(f"s_and_b32 {s(S_R4)}, {s(S_B)}, 3")
            e(f"s_mul_i32 {s(S_RB)}, {s(S_RB)}, 3")
            e(f"s_lshl_b32 {s(S_R7)}, {s(S_PP)}, 1"); e(f"s_add_u32 {s(S_R7)}, {s(S_R7)}, {s(S_RB)}")
            e(f"s_cmp_ge_u32 {s(S_R7)}, 7"); e(f"s_cselect_b32 {s(S_TMP)}, 7, 0"); e(f"s_sub_u32 {s(S_R7)}, {s(S_R7)}, {s(S_TMP)}")
        else:
            for r in (S_R7, S_R4, S_RB): e(f"s_mov_b32 {s(r)}, 0")
        if a.fused == 6:
            e(f"s_lshl_b32 {s(S_TMP)}, {s(S_PP)}, 1"); e(f"s_add_u32 {s(S_TMP)}, {s(S_TMP)}, 2"); e(f"s_and_b32 {s(S_TMP)}, {s(S_TMP)}, 7")
            e(f"s_add_u32 {s(S_RB)}, {s(S_RB)}, {s(S_TMP)}")
            e(f"s_cmp_ge_u32 {s(S_RB)}, 7"); e(f"s_cselect_b32 {s(S_TMP)}, 7, 0"); e(f"s_sub_u32 {s(S_RB)}, {s(S_RB)}, {s(S_TMP)}")
        e(f"s_and_b32 {s(S_U)}, {s(S_W)}, 3"); e(f"s_lshl_b32 {s(S_M0B)}, {s(S_U)}, 10")
        e(f"s_lshl_b32 s34, {s(S_B)}, 4"); e(f"s_add_u32 s34, s34, {s(S_H)}"); e("s_lshl_b32 s35, s34, 18")
        if a.diag == 2: e("s_xor_b32 s35, s35, 0x40000")
        for S in (S_R0, S_R1, S_R2): e(f"s_mov_b32 {s(S+3)}, 0x20000")
        e(f"s_cmp_ge_u32 {s(S_W)}, 4"); e("s_cbranch_scc1 L_roleB")

    def bar(self, P, R):
        e = self.e
        if P["bar"]:
            need = P[R]["need"]
            if need is not None: e.wait_tag(need, lgkm=0)
            else: e.wait(lgkm=0)
            e.barrier()

    def role_A(self):
        e = self.e; a = self.a
        ACC = 16; LINV = 40; XA = 43; QA = 45
        UB = [4, 48, 56]
        VA0, VA1, OA = 3, 12, 13
        FR = lambda qt, kap: 64 + (kap * 3 + qt) * 4
        e("v_lshrrev_b32 v46, 3, v0"); e("v_and_b32 v47, 7, v0")
        e(f"v_bfe_u32 {v(T0)}, v0, 4, 3"); e(f"v_xor_b32 {v(T0)}, {v(T0)}, v47"); e(f"v_lshlrev_b32 {v(T0)}, 4, {v(T0)}")
        e("v_mul_u32_u24 v1, 896, v46"); e(f"v_add_u32 v1, v1, {v(T0)}")
        e(f"v_bfe_u32 {v(T0)}, v0, 4, 1"); e(f"v_bfe_u32 {v(T1)}, v0, 6, 1"); e(f"v_lshl_add_u32 {v(T0)}, {v(T1)}, 1, {v(T0)}")
        e(f"v_lshlrev_b32 {v(T0)}, 1, {v(T0)}"); e(f"v_xor_b32 {v(T0)}, {v(T0)}, v47"); e(f"v_lshlrev_b32 {v(T0)}, 4, {v(T0)}")
        e(f"v_lshl_add_u32 v2, v46, 13, {v(T0)}")
        e(f"s_lshl_b32 {s(S_A0)}, {s(S_R7)}, 7"); e(f"s_lshl_b32 {s(S_A1)}, {s(S_R7)}, 19"); e(f"s_lshl_b32 {s(S_A2)}, {s(S_R4)}, 7"); e(f"s_mov_b32 {s(S_A3)}, {s(S_A2)}")
        e(f"s_mov_b32 {s(S_R0+2)}, 86016"); e(f"s_mov_b32 {s(S_R1+2)}, {447*8192+512}"); e(f"s_mov_b32 {s(S_R2+2)}, 262144")
        e(f"s_mul_i32 s36, {s(S_B)}, 86016"); e(f"s_lshl_b32 s37, {s(S_H)}, 9")
        if a.diag == 1: e("s_xor_b32 s37, s37, 512")
        e(f"s_cmp_eq_u32 {s(S_BLK)}, 0")
        e.wait(lgkm=0)
        e(f"s_cselect_b64 {s(S_R0,2)}, s[40:41], s[50:51]")
        e(f"s_cselect_b64 {s(S_R1,2)}, s[46:47], s[56:57]")
        e(f"s_cselect_b64 {s(S_R2,2)}, s[44:45], s[54:55]")
        for S, o in ((S_R0, 36), (S_R1, 37), (S_R2, 35)):
            e(f"s_add_u32 {s(S)}, {s(S)}, s{o}"); e(f"s_addc_u32 {s(S+1)}, {s(S+1)}, 0")
        pending = []
        for ti, P in enumerate(self.plan):
            self.bar(P, "A")
            iss = list(P["A"]["issue"])
            acts = P["A"]["act"]
            units = []
            for act in acts:
                if act[0] in "WV": units += [(act[0], act[1], act[2], 0), (act[0], act[1], act[2], 1)]
            def uread(u, b):
                ty, i, sl, k2 = u
                second = 512 if ty == "W" else 1024
                if k2 == 0:
                    e(f"v_add_u32 {v(T0)}, {sl*SLOT}, {v(VA0)}"); e(f"v_add_u32 {v(T1)}, {sl*SLOT}, {v(VA1)}")
                for dt in range(2):
                    e(f"ds_read_b64_tr_b16 {v(b+4*dt,2)}, {v(T0+dt)} offset:{4096*k2}")
                    e(f"ds_read_b64_tr_b16 {v(b+4*dt+2,2)}, {v(T0+dt)} offset:{4096*k2+second}")
            def umfma(u, b):
                ty, i, sl, k2 = u
                kap = 2 * (i % (7 if ty == "W" else 8)) + k2
                for dt in range(2):
                    for qt in range(3):
                        acc = ACC + 12 * dt + 4 * qt
                        c = "0" if kap == 0 else v(acc, 4)
                        e(f"v_mfma_f32_16x16x32_bf16 {v(acc,4)}, {v(b+4*dt,4)}, {v(FR(qt,kap),4)}, {c}")
            for act in acts:
                if act[0] == "init":
                    for it in iss: self.issue(*it)
                    iss = []
                    e(f"v_and_b32 {v(T0)}, 15, v0"); e(f"v_bfe_u32 {v(T1)}, v0, 7, 1"); e(f"v_lshl_add_u32 v46, {v(T1)}, 4, {v(T0)}")
                    e(f"v_bfe_u32 {v(T0)}, v0, 1, 3"); e(f"v_bfe_u32 {v(T1)}, v0, 4, 2"); e(f"v_xor_b32 {v(T1)}, {v(T1)}, {v(T0)}"); e(f"v_lshlrev_b32 {v(T1)}, 4, {v(T1)}")
                    e(f"v_lshl_add_u32 {v(XA)}, v46, 7, {v(T1)}"); e(f"v_xor_b32 {v(XA+1)}, 64, {v(XA)}")
                    e(f"v_bfe_u32 {v(T1)}, v0, 5, 1"); e(f"v_bfe_u32 v47, v0, 6, 1"); e(f"v_lshl_add_u32 {v(T1)}, v47, 2, {v(T1)}")
                    e(f"v_xor_b32 {v(T1)}, {v(T1)}, {v(T0)}"); e(f"v_lshlrev_b32 {v(T1)}, 4, {v(T1)}"); e(f"v_lshl_add_u32 {v(QA)}, v46, 7, {v(T1)}")
                    e(f"v_bfe_u32 {v(T1)}, v0, 4, 1"); e(f"v_lshl_add_u32 {v(QA)}, {v(T1)}, 3, {v(QA)}"); e(f"v_xor_b32 v13, 32, {v(QA)}")
                    e(f"v_bfe_u32 {v(T0)}, v0, 2, 2"); e(f"v_bfe_u32 {v(T1)}, v0, 4, 2")
                    e(f"v_lshl_add_u32 {v(VA0)}, {v(T1)}, 3, {v(T0)}"); e(f"v_lshlrev_b32 {v(VA0)}, 7, {v(VA0)}")
                    e(f"v_bfe_u32 {v(T0)}, v0, 3, 2"); e(f"v_lshlrev_b32 {v(T1)}, 1, v47")
                    e(f"v_xor_b32 {v(T0)}, {v(T0)}, {v(T1)}"); e(f"v_lshl_add_u32 {v(VA0)}, {v(T0)}, 5, {v(VA0)}")
                    e(f"v_and_b32 {v(T0)}, 3, v0"); e(f"v_lshl_add_u32 {v(VA0)}, {v(T0)}, 3, {v(VA0)}")
                    e(f"v_xor_b32 {v(VA1)}, 32, {v(VA0)}")
                elif act[0] == "X":
                    n = act[1]
                    for k2 in range(2):
                        for qt in range(3):
                            e(f"ds_read_b128 {v(FR(qt, 2*n+k2),4)}, {v(XA+k2)} offset:{(n%4)*12288 + qt*4096}")
                elif act[0] == "initv":
                    if a.fused == 6:
                        assert not e.vm
                        self.srd6()
                        e("v_and_b32 v46, 1, v0"); e(f"s_and_b32 {s(S_TMP)}, s63, 12"); e(f"v_mul_u32_u24 v46, {s(S_TMP)}, v46"); e("v_sub_u32 v46, s63, v46")
                        self.poll("L_pc", "buffer_load_dword v47, v46, s[40:43], 0 offen sc1", "v_lshrrev_b32 v45, 24, v47|v_cmp_le_u32 vcc, 4, v45")
                        e("v_readfirstlane_b32 s48, v47"); e(f"s_lshl_b32 {s(S_TMP)}, 4, s62"); e(f"s_add_u32 {s(S_TMP)}, {s(S_TMP)}, 0x4000000")
                        e(f"s_cmp_eq_u32 s48, {s(S_TMP)}"); e(f"s_cselect_b32 s48, {0 if not a.forceslow else 1}, 1")
                    if a.fused == 4:
                        assert not e.vm
                        self.flag_srd()
                        e("v_mov_b32 v46, 0")
                        self.poll("L_pc", "buffer_load_dword v47, v46, s[40:43], s63 offen sc1", "v_cmp_le_u32 vcc, 1, v47")
                    if a.fused in (3, 7): self.flag_srd()
                    e(f"v_bfe_u32 {v(T0)}, v0, 2, 3"); e(f"v_bfe_u32 {v(T1)}, v0, 5, 1")
                    e(f"v_lshl_add_u32 {v(VA0)}, {v(T1)}, 4, {v(T0)}"); e(f"v_lshlrev_b32 {v(VA0)}, 7, {v(VA0)}")
                    e(f"v_bfe_u32 {v(T0)}, v0, 3, 2"); e(f"v_bfe_u32 {v(T1)}, v0, 6, 1"); e(f"v_lshlrev_b32 {v(T1)}, 1, {v(T1)}")
                    e(f"v_xor_b32 {v(T0)}, {v(T0)}, {v(T1)}"); e(f"v_lshl_add_u32 {v(VA0)}, {v(T0)}, 5, {v(VA0)}")
                    e(f"v_and_b32 {v(T0)}, 3, v0"); e(f"v_lshl_add_u32 {v(VA0)}, {v(T0)}, 3, {v(VA0)}")
                    e(f"v_xor_b32 {v(VA1)}, 32, {v(VA0)}")
                    e(f"v_and_b32 {v(T0)}, 63, v0"); e(f"v_lshlrev_b32 {v(XA)}, 4, {v(T0)}")
                    e(f"v_bfe_u32 {v(T0)}, v0, 7, 1"); e(f"v_lshl_add_u32 {v(XA)}, {v(T0)}, 10, {v(XA)}")
                    e(f"v_bfe_u32 {v(T1)}, v0, 6, 1"); e(f"v_mul_u32_u24 {v(T1)}, 6144, {v(T1)}"); e(f"v_add_u32 {v(OA)}, {v(XA)}, {v(T1)}")
                    e(f"v_and_b32 {v(T1)}, 15, v0"); e(f"v_lshl_add_u32 {v(T0)}, {v(T0)}, 4, {v(T1)}"); e(f"v_lshlrev_b32 {v(T0)}, 5, {v(T0)}")
                    e(f"v_add_u32 {v(XA+1)}, {STAT+4096}, {v(T0)}")
                elif act[0] == "pread":
                    T = act[1]
                    for u in range(4):
                        for qt in range(3):
                            e(f"ds_read_b128 {v(FR(qt, 4*T+u),4)}, {v(XA)} offset:{PBUF[T%2] + u*6144 + qt*2048}")
            def linv(tb):
                for k in range(2): e(f"ds_read_b128 {v(tb+4*k,4)}, {v(XA+1)} offset:{16*k}")
                for qt in range(3):
                    b = tb
                    for k in range(4): e(f"v_add_f32 {v(b+k)}, {v(b+k)}, {v(b+4+k)}")
                    e(f"v_add_f32 {v(b)}, {v(b)}, {v(b+2)}"); e(f"v_add_f32 {v(b+1)}, {v(b+1)}, {v(b+3)}")
                    e(f"v_add_f32 {v(LINV+qt)}, {v(b)}, {v(b+1)}")
                    if qt < 2:
                        for k in range(2): e(f"ds_read_b128 {v(tb+4*k,4)}, {v(XA+1)} offset:{(qt+1)*1024+16*k}")
                    e(f"v_rcp_f32 {v(LINV+qt)}, {v(LINV+qt)}")
            def write_out(ty, c, tb):
                if ty == "W":
                    for qt in range(3):
                        for dt in range(2):
                            acc = ACC + 12 * dt + 4 * qt; tt = tb + 2 * ((2 * qt + dt) % 4)
                            e(f"v_cvt_pk_bf16_f32 {v(tt)}, {v(acc)}, {v(acc+1)}"); e(f"v_cvt_pk_bf16_f32 {v(tt+1)}, {v(acc+2)}, {v(acc+3)}")
                            e(f"ds_write_b64 {v(QA if dt == 0 else 13)}, {v(tt,2)} offset:{QBUF[c%2] + qt*4096}")
                else:
                    if c == 0 and not a.defer: linv(tb)
                    for qt in range(3):
                        tt = tb + 4 * (qt % 2)
                        for dt in range(2):
                            acc = ACC + 12 * dt + 4 * qt
                            for k in range(4 if not a.defer else 0): e(f"v_mul_f32 {v(acc+k)}, {v(LINV+qt)}, {v(acc+k)}")
                            e(f"v_cvt_pk_bf16_f32 {v(tt+2*dt)}, {v(acc)}, {v(acc+1)}"); e(f"v_cvt_pk_bf16_f32 {v(tt+2*dt+1)}, {v(acc+2)}, {v(acc+3)}")
                        e(f"ds_write_b128 {v(OA)}, {v(tt,4)} offset:{OBUF[c%2] + qt*2048}")
            light = []
            heavy = []
            def umfma_l(u, b):
                ty, i, sl, k2 = u
                kap = 2 * (i % (7 if ty == "W" else 8)) + k2
                L = []
                for dt in range(2):
                    for qt in range(3):
                        acc = ACC + 12 * dt + 4 * qt
                        c = "0" if kap == 0 else v(acc, 4)
                        L.append(f"v_mfma_f32_16x16x32_bf16 {v(acc,4)}, {v(b+4*dt,4)}, {v(FR(qt,kap),4)}, {c}")
                return L
            def uread_l(u, b):
                ty, i, sl, k2 = u
                second = 512 if ty == "W" else 1024
                L = []
                for dt in range(2):
                    if k2 == 0: L.append(f"v_add_u32 {v(T0+dt)}, {sl*SLOT}, {v(VA0 if dt == 0 else VA1)}")
                    L.append(f"ds_read_b64_tr_b16 {v(b+4*dt,2)}, {v(T0+dt)} offset:{4096*k2}")
                    L.append(f"ds_read_b64_tr_b16 {v(b+4*dt+2,2)}, {v(T0+dt)} offset:{4096*k2+second}")
                return L
            def pop(nh=1):
                u, b = pending.pop(0)
                for n, m in enumerate(umfma_l(u, b)):
                    e(m)
                    if P.get("burst") and heavy and n % a.bgap == 0: heavy.pop(0)()
                    if light:
                        for _ in range(a.wv):
                            if light: e(light.pop(0))
                    elif heavy and nh > 0 and n < 5 and not P.get("burst"):
                        heavy.pop(0)(); nh -= 1
                while light: e(light.pop(0))
                per = 7 if u[0] == "W" else 8
                if u[1] % per == per - 1 and u[3] == 1:
                    write_out(u[0], u[1] // per, b); return True
                return False
            names = [x[0] for x in acts]
            if a.fused == 7 and any(x[0] == "V" and x[1] == 12 for x in acts):
                e("v_mov_b32 v45, 12288"); e("v_mov_b32 v46, 0"); e("v_mov_b32 v47, 0"); e("ds_write_b64 v45, v[46:47]"); e("ds_write_b64 v45, v[46:47] offset:8")
            if a.fused == 7 and any(x[0] == "V" and x[1] == 20 for x in acts):
                e("v_mov_b32 v45, 0"); e("buffer_load_dword v46, v45, s[40:43], s63 offen sc1")
            if a.fused == 7 and any(x[0] == "V" and x[1] == 28 for x in acts):
                e("v_cmp_le_u32 vcc, 1, v46"); e("s_nop 0"); e("s_cmp_eq_u64 vcc, -1"); e("s_cbranch_scc1 L_pc_ok")
                snapv = list(e.vm)
                self.poll("L_pc", "buffer_load_dword v46, v45, s[40:43], s63 offen sc1", "v_cmp_le_u32 vcc, 1, v46")
                e.vm = snapv
            if a.fused == 5 and any(x[0] == "V" and x[1] == 12 for x in acts):
                e("v_mov_b32 v45, 12288"); e("v_mov_b32 v46, 0"); e("v_mov_b32 v47, 0"); e("ds_write_b64 v45, v[46:47]")
            for it in iss: heavy += self.issue_parts(*it)
            iss = []
            wrote = False
            for k, u in enumerate(units):
                while len(pending) >= 3: wrote |= pop()
                b = [x for x in UB if x not in [p[1] for p in pending]][0]
                light += uread_l(u, b)
                if len(pending) >= a.lag and pending:
                    left = len(units) - k
                    wrote |= pop(nh=-(-len(heavy) // left))
                else:
                    while light: e(light.pop(0))
                    if heavy: heavy.pop(0)()
                pending.append((u, b))
            if "drain" in names or not units or a.lag == 0:
                while pending: wrote |= pop(nh=2)
            if "flushw" in names:
                while not wrote and pending: wrote |= pop()
            while heavy: heavy.pop(0)()
            for it in iss: self.issue(*it)
        if a.fused == 3:
            e(f"s_cmp_lg_u32 {s(S_W)}, 0"); e("s_cbranch_scc1 L_red")
            e("v_mov_b32 v6, 0")
            self.poll("L_pc", "buffer_load_dword v10, v6, s[40:43], s63 offen sc1", "v_cmp_le_u32 vcc, 1, v10")
        if a.fused in (1, 3): e("s_branch L_red")
        else:
            if a.fused == 2: self.staged_reduce()
            if a.fused == 4: self.staged_reduce4()
            if a.fused == 7: self.tail7_A()
            if a.fused == 5: self.reduce5()
            if a.fused == 6: self.tail6_A()
            e("s_endpgm")

    def role_B(self):
        e = self.e; a = self.a
        KA, QA = 4, 8
        KF = 16; QF = 32; M = 56; SUM = 59
        SACC = lambda T, qt: 64 + (T * 3 + qt) * 16
        ACC = lambda cb, q6: 64 + 24 * cb + 4 * q6
        self.ACC = ACC
        OF = lambda k2, q6: 16 + 4 * (6 * k2 + q6)
        WB = [232, 240, 248]
        e(f"v_bfe_u32 {v(T0)}, v0, 3, 3"); e(f"v_lshrrev_b32 {v(T1)}, 6, v0"); e(f"v_lshl_add_u32 {v(T0)}, {v(T1)}, 5, {v(T0)}")
        e("v_and_b32 v12, 7, v0"); e(f"v_bfe_u32 {v(T1)}, v0, 4, 2"); e(f"v_xor_b32 v13, v12, {v(T1)}"); e("v_lshlrev_b32 v13, 4, v13")
        e(f"v_lshl_add_u32 v1, {v(T0)}, 9, v13"); e("v_xor_b32 v2, 64, v1")
        e(f"s_lshl_b32 {s(S_A0)}, {s(S_R4)}, 7"); e(f"s_mul_i32 {s(S_A1)}, {s(S_R4)}, 57344"); e(f"s_lshl_b32 {s(S_A2)}, {s(S_RB)}, 7")
        e(f"s_lshl_b32 {s(S_A3)}, {s(S_U)}, 12"); e(f"s_mul_i32 {s(S_ST)}, {s(S_RB)}, 12288")
        e(f"s_mov_b32 {s(S_R0+2)}, 262144"); e(f"s_mov_b32 {s(S_R1+2)}, 229376"); e(f"s_mov_b32 {s(S_R2+2)}, 86016")
        e(f"s_mul_i32 s36, {s(S_H)}, 229376")
        e(f"s_lshl_b32 s37, {s(S_BLK)}, 7"); e("s_add_u32 s37, s37, s34"); e("s_mul_i32 s37, s37, 86016")
        if a.fused == 6:
            e("s_and_b32 s37, s2, 63"); e(f"s_mul_i32 s37, s37, {XQ}"); e(f"s_mov_b32 {s(S_R2+2)}, {XQ}")
            e(f"s_lshl_b32 {s(S_ST)}, {s(S_RB)}, 2"); e(f"s_add_u32 {s(S_ST)}, {s(S_ST)}, {s(S_PP)}"); e(f"s_mul_i32 {s(S_ST)}, {s(S_ST)}, 12288")
        e(f"s_cmp_eq_u32 {s(S_BLK)}, 0")
        e.wait(lgkm=0)
        e(f"s_cselect_b64 {s(S_R0,2)}, s[42:43], s[52:53]")
        e(f"s_cselect_b64 {s(S_R1,2)}, s[48:49], s[58:59]")
        e(f"s_mov_b64 {s(S_R2,2)}, s[60:61]")
        for S, o in ((S_R0, 35), (S_R1, 36), (S_R2, 37)):
            e(f"s_add_u32 {s(S)}, {s(S)}, s{o}"); e(f"s_addc_u32 {s(S+1)}, {s(S+1)}, 0")
        if a.prio >= 2: e("s_setprio 1")
        kpre = qpre = -1
        def qrd(i, n):
            ks, qt = divmod(n, 3)
            e(f"ds_read_b128 {v(QF+4*(n%6),4)}, {v(QA+ks)} offset:{QBUF[(i//4)%2] + qt*4096}")
        def kreg(i): return SACC(3, i) if i in self.parked else KF
        def kread(i, ks):
            e(f"ds_read_b128 {v(kreg(i)+4*ks,4)}, {v(KA+ks)} offset:{(self.kslot[i]-self.KBASE)*SLOT}")
        phase1 = True
        opend = []
        for ti, P in enumerate(self.plan):
            if any(x[0] == "maxr" for x in P["B"]["act"]): phase1 = False
            if phase1:
                if P["bar"]: e.barrier()
            else: self.bar(P, "B")
            if ti in a.stamp_ticks: self.stamp()
            if ti == a.opf:
                e(f"s_mul_i32 {s(S_TMP)}, {s(S_B)}, 28672"); e("v_min_u32 v62, 223, v0"); e("v_lshlrev_b32 v62, 7, v62")
                e(f"buffer_load_dword v63, v62, {s(S_R1,4)}, {s(S_TMP)} offen")
            if a.fused == 6 and ti == 9:
                assert not any(t == "fz" for t, _ in e.vm)
                e(f"s_lshl_b32 {s(S_TMP)}, 1, s62"); e(f"s_add_u32 {s(S_TMP)}, {s(S_TMP)}, 0x1000000")
                e("v_lshlrev_b32 v62, 8, v0"); e(f"v_mov_b32 v63, {s(S_TMP)}")
                e("buffer_atomic_add v63, v62, s[40:43], s63 offen")
            if a.fused in (3, 4, 7) and ti == 9:
                assert not any(t == "fz" for t, _ in e.vm)
                e(f"s_lshl_b32 {s(S_TMP)}, {s(S_H)}, 8"); e(f"s_add_u32 {s(S_TMP)}, {s(S_TMP)}, s63")
                e("v_lshlrev_b32 v62, 8, v0"); e("v_mov_b32 v63, 1")
                e(f"buffer_atomic_add v63, v62, s[40:43], {s(S_TMP)} offen")
            if a.fused in (2, 5) and ti == 9:
                assert not any(t == "fz" for t, _ in e.vm)
                e("v_lshlrev_b32 v62, 8, v0"); e("v_mov_b32 v63, 1")
                e("buffer_atomic_add v63, v62, s[40:43], s63 offen")
            iss = list(P["B"]["issue"])
            acts = P["B"]["act"]
            for ai, act in enumerate(acts):
                if act[0] == "init":
                    for it in iss: self.issue(*it)
                    iss = []
                    e(f"s_mov_b32 {s(S_C)}, 0x3db8aa3b")
                    if a.codepf:
                        e("s_getpc_b64 s[92:93]")
                        e.label("L_pc0")
                        e(f"s_sub_u32 s92, s92, L_pc0-{NAME}_kernel"); e("s_subb_u32 s93, s93, 0")
                        e("s_lshr_b32 s94, s2, 3"); e("s_cmp_ge_u32 s94, 24"); e("s_cselect_b32 s95, 24, 0"); e("s_sub_u32 s94, s94, s95")
                        e("s_cmp_ge_u32 s94, 12"); e("s_cselect_b32 s95, 12, 0"); e("s_sub_u32 s94, s94, s95"); e("s_lshl_b32 s94, s94, 12")
                        e("v_lshlrev_b32 v62, 4, v0"); e("v_add_u32 v62, s94, v62")
                        e("global_load_dword v63, v62, s[92:93]")
                    if a.fused == 6:
                        self.srd6()
                        e("v_lshlrev_b32 v62, 20, v0"); e("v_mov_b32 v63, 0")
                        e(f"s_cmp_eq_u32 {s(S_PP)}, 0"); e(f"s_cselect_b32 {s(S_TMP)}, s46, 0x100000")
                        e(f"buffer_store_dword v63, v62, s[36:39], {s(S_TMP)} offen sc1")
                        e(f"s_cmp_lt_u32 {s(S_H)}, 4"); e(f"s_cselect_b32 {s(S_TMP)}, s47, 0x100000")
                        e(f"buffer_store_dword v63, v62, s[36:39], {s(S_TMP)} offen sc1", tag="fz")
                    if a.fused == 5:
                        self.flag_srd()
                        e(f"s_lshl_b32 s62, {s(S_H)}, 9")
                        e("v_lshlrev_b32 v62, 13, v0"); e("v_mov_b32 v63, 0")
                        e(f"buffer_store_dword v63, v62, s[36:39], s62 offen sc1", tag="fz")
                    if a.fused in (3, 7):
                        self.flag_srd()
                        e(f"s_lshl_b32 {s(S_TMP)}, {s(S_H)}, 13")
                        e("v_lshlrev_b32 v62, 12, v0"); e("v_mov_b32 v61, 0")
                        e(f"buffer_store_dword v61, v62, s[36:39], {s(S_TMP)} offen sc1", tag="fz")
                    if a.fused == 4:
                        self.flag_srd()
                        e(f"s_lshl_b32 s62, {s(S_U)}, 7")
                        e(f"s_lshl_b32 {s(S_TMP)}, {s(S_H)}, 13"); e(f"s_add_u32 {s(S_TMP)}, {s(S_TMP)}, s62")
                        e("v_and_b32 v62, 63, v0"); e("v_lshlrev_b32 v62, 13, v62"); e("v_mov_b32 v63, 0")
                        e(f"buffer_store_dword v63, v62, s[36:39], {s(S_TMP)} offen sc1", tag="fz")
                    if a.fused == 2:
                        self.flag_srd()
                        e(f"s_lshl_b32 s62, {s(S_H)}, 2"); e(f"s_add_u32 s62, s62, {s(S_U)}"); e("s_lshl_b32 s62, s62, 7")
                        e("v_and_b32 v62, 63, v0"); e("v_lshlrev_b32 v62, 13, v62"); e("v_mov_b32 v63, 0")
                        e("buffer_store_dword v63, v62, s[36:39], s62 offen sc1", tag="fz")
                    e(f"v_lshlrev_b32 {v(T1)}, 1, {v(T1)}"); e(f"v_xor_b32 {v(T1)}, {v(T1)}, v12"); e(f"v_lshlrev_b32 {v(T1)}, 4, {v(T1)}")
                    e("v_lshrrev_b32 v3, 3, v0"); e("v_mul_u32_u24 v3, 896, v3"); e(f"v_add_u32 v3, v3, {v(T1)}")
                    e(f"v_and_b32 {v(T0)}, 31, v0"); e(f"v_bfe_u32 {v(T1)}, v0, 1, 3"); e("v_bfe_u32 v12, v0, 5, 1"); e(f"v_xor_b32 {v(T1)}, {v(T1)}, v12")
                    e(f"v_lshlrev_b32 {v(T1)}, 4, {v(T1)}"); e(f"v_lshl_add_u32 {v(QA)}, {v(T0)}, 7, {v(T1)}")
                    for ks in range(1, 4): e(f"v_xor_b32 {v(QA+ks)}, {32*ks}, {v(QA)}")
                    e(f"s_add_u32 {s(S_TMP)}, {s(S_A3)}, {self.KBASE*SLOT}")
                    for ks in range(4): e(f"v_add_u32 {v(KA+ks)}, {s(S_TMP)}, {v(QA+ks)}")
                    e(f"v_lshlrev_b32 {v(T0)}, 5, {v(T0)}"); e(f"v_add_u32 v13, {STAT}, {v(T0)}")
                    e(f"v_lshrrev_b32 {v(T1)}, 5, v0"); e(f"v_lshl_add_u32 v12, {v(T1)}, 2, v13")
                elif act[0] == "Kpark":
                    for it in iss: self.issue(*it)
                    iss = []
                    e.wait_tag(("K", act[1]))
                    for ks in range(4): kread(act[1], ks)
                    e.wait(lgkm=0)
                elif act[0] == "Kpre":
                    e.wait_tag(("K", 0))
                    for ks in range(4): kread(0, ks)
                    kpre = 0; qpre = -1
                elif act[0] == "S":
                    _, i, sl = act
                    c, T = divmod(i, 4)
                    seq = [(ks, qt) for ks in range(4) for qt in range(3)]
                    dma = []
                    for it in iss: dma += self.issue_parts(*it)
                    iss = []
                    if qpre != i:
                        for n in range(3): qrd(i, n)
                    if kpre != i and i not in self.parked:
                        while dma: dma.pop(0)()
                        e.wait_tag(("K", i))
                        for ks in range(4): kread(i, ks)
                    if qpre != i:
                        for n in range(3, 6): qrd(i, n)
                    own = []
                    if ai + 1 < len(acts) and acts[ai + 1][0] == "issue": own = self.issue_parts(acts[ai + 1][1], acts[ai + 1][2])
                    mode = None; qok = False
                    if i + 1 < 16 and self.kage[i + 1] < ti:
                        mode = "roll" if ti - self.kage[i + 1] >= a.kpre else "after"
                        if i + 1 in self.parked: mode = None
                        qok = (i + 1) // 4 <= self.sinfo[i][1]
                    for n, (ks, qt) in enumerate(seq):
                        cc = "0" if (c == 0 and ks == 0) else v(SACC(T, qt), 16)
                        if a.s16hack:
                            for hh in range(2):
                                r = SACC(T, qt) + 4 * (2 * (ks & 1) + hh)
                                e(f"v_mfma_f32_16x16x32_bf16 {v(r,4)}, {v(kreg(i)+4*(ks ^ hh),4)}, {v(QF+4*(n%6),4)}, {'0' if (c == 0 and ks < 2) else v(r,4)}")
                        else:
                            e(f"v_mfma_f32_32x32x16_bf16 {v(SACC(T,qt),16)}, {v(kreg(i)+4*ks,4)}, {v(QF+4*(n%6),4)}, {cc}")
                        if a.pace: e.nop(a.pace)
                        if n + 6 < 12: qrd(i, n + 6)
                        elif qok: qrd(i + 1, n - 6)
                        if mode == "roll" and qt == 2 and not a.s16hack:
                            if ks == 0: e.wait_tag(("K", i + 1))
                            kread(i + 1, ks)
                        if mode == "roll" and qt == 2 and a.s16hack and ks & 1:
                            if ks == 1: e.wait_tag(("K", i + 1))
                            kread(i + 1, ks - 1); kread(i + 1, ks)
                        if n == 0 and own:
                            e.wait_regs(set(range(KF, KF + 16)))
                            dma += own
                        if dma and n % 2 == 0: dma.pop(0)()
                        if c == 3 and T > 0 and n >= 3 and (n - 3) < 9:
                            qq, part = divmod(n - 3, 3)
                            self.maxpart(M + qq, SACC(T - 1, qq), part, first=(T == 1))
                    while dma: dma.pop(0)()
                    if mode == "after":
                        e.wait_tag(("K", i + 1))
                        for ks in range(4): kread(i + 1, ks)
                    kpre = i + 1 if mode else -1
                    qpre = i + 1 if qok else -1
                elif act[0] == "maxw":
                    self.stamp()
                    for qt in range(3):
                        for part in range(3): self.maxpart(M + qt, SACC(3, qt), part, first=False)
                        e(f"ds_write_b32 v12, {v(M+qt)} offset:{qt*1024}")
                elif act[0] == "maxr":
                    if a.prio: e("s_setprio 1")
                    for qt in range(3):
                        for k in range(2): e(f"ds_read_b128 {v(16+8*qt+4*k,4)}, v13 offset:{qt*1024+16*k}")
                    e(f"v_and_b32 {v(T0)}, 15, v0"); e(f"v_lshlrev_b32 v4, 4, {v(T0)}")
                    e(f"v_bfe_u32 {v(T0)}, v0, 4, 1"); e(f"v_lshl_add_u32 v4, {v(T0)}, 10, v4")
                    e(f"v_bfe_u32 {v(T0)}, v0, 5, 1"); e(f"v_lshl_add_u32 v4, {v(T0)}, 8, v4")
                    e(f"s_mul_i32 {s(S_TMP)}, {s(S_U)}, 6144"); e(f"v_add_u32 v4, {s(S_TMP)}, v4")
                    for qt in range(3):
                        b = 16 + 8 * qt
                        e(f"v_max3_f32 {v(M+qt)}, {v(b)}, {v(b+1)}, {v(b+2)}")
                        e(f"v_max3_f32 {v(M+qt)}, {v(M+qt)}, {v(b+3)}, {v(b+4)}"); e(f"v_max3_f32 {v(M+qt)}, {v(M+qt)}, {v(b+5)}, {v(b+6)}")
                        e(f"v_max_f32 {v(M+qt)}, {v(M+qt)}, {v(b+7)}")
                        e(f"v_mul_f32 {v(M+qt)}, {s(S_C)}, {v(M+qt)}")
                        if a.pkfma: e(f"v_sub_f32 {v(40+2*qt)}, 0, {v(M+qt)}")
                elif act[0] == "smx":
                    T = act[1]
                    grp = [(qt, hf) for qt in range(3) for hf in range(2)]
                    def fe(g):
                        r = SACC(T, g[0]) + 8 * g[1]
                        if a.pkfma:
                            for k in range(0, 8, 2):
                                e(f"v_pk_fma_f32 {v(r+k,2)}, {v(r+k,2)}, {s(S_C,2)}, {v(40+2*g[0],2)} op_sel_hi:[1,0,0]")
                        else:
                            for k in range(8): e(f"v_fma_f32 {v(r+k)}, {v(r+k)}, {s(S_C)}, -{v(M+g[0])}")
                        for k in range(8): e(f"v_exp_f32 {v(r+k)}, {v(r+k)}")
                    fe(grp[0])
                    for n, (qt, hf) in enumerate(grp):
                        if n + 1 < 6: fe(grp[n + 1])
                        r = SACC(T, qt) + 8 * hf
                        tt = 16 + 4 * n
                        for k in range(4): e(f"v_cvt_pk_bf16_f32 {v(tt+k)}, {v(r+2*k)}, {v(r+2*k+1)}")
                        e(f"ds_write_b128 v4, {v(tt,4)} offset:{PBUF[T%2] + qt*2048 + hf*512}")
                    if iss and a.b_smx_issue:
                        pass
                    self.defer_sum = (T,)
                    if not a.defer:
                        self.sums(T, SACC, SUM)
                        if T == 3:
                            for qt in range(3): e(f"ds_write_b32 v12, {v(SUM+qt)} offset:{4096+qt*1024}")
                elif act[0] == "inito":
                    self.stamp()
                    if a.prio == 1: e("s_setprio 0")
                    if a.defer:
                        for T in range(4): self.sums(T, SACC, SUM)
                        for qt in range(3): e(f"ds_write_b32 v12, {v(SUM+qt)} offset:{4096+qt*1024}")
                    e(f"v_bfe_u32 {v(T0)}, v0, 2, 4"); e(f"v_lshlrev_b32 v5, 7, {v(T0)}")
                    e(f"v_bfe_u32 {v(T0)}, v0, 3, 2"); e(f"v_bfe_u32 {v(T1)}, v0, 6, 2"); e(f"v_xor_b32 {v(T0)}, {v(T0)}, {v(T1)}")
                    e(f"v_lshl_add_u32 v5, {v(T0)}, 5, v5")
                    e(f"v_and_b32 {v(T0)}, 3, v0"); e(f"v_lshl_add_u32 v5, {v(T0)}, 3, v5")
                    e(f"v_and_b32 {v(T0)}, 63, v0"); e(f"v_lshlrev_b32 v6, 4, {v(T0)}")
                    e(f"v_lshlrev_b32 v7, 4, v0")
                    if a.own:
                        self.own_range()
                        e(f"s_sub_u32 s94, s94, {s(S_M0B)}")
                    if a.fused == 7: e(f"s_mov_b32 {s(S_ST)}, 0")
                    if a.fused == 4:
                        e(f"s_mul_i32 {s(S_ST)}, {s(S_U)}, 21504"); e("v_mov_b32 v7, v6")
                    e("v_lshlrev_b32 v8, 9, v6")
            if a.defer and ti > 0 and any(x[0] == "inito" for x in self.plan[ti - 1]["B"]["act"]):
                e(f"v_and_b32 {v(T0)}, 15, v0"); e(f"v_lshlrev_b32 {v(T0)}, 5, {v(T0)}"); e(f"v_add_u32 {v(T0)}, {STAT+4096}, {v(T0)}")
                for q6 in range(6):
                    for k in range(2): e(f"ds_read_b128 {v(64+8*q6+4*k,4)}, {v(T0)} offset:{q6*512+16*k}")
                for q6 in range(6):
                    b = 64 + 8 * q6
                    e(f"v_pk_add_f32 {v(b,2)}, {v(b,2)}, {v(b+4,2)}"); e(f"v_pk_add_f32 {v(b+2,2)}, {v(b+2,2)}, {v(b+6,2)}")
                    e(f"v_pk_add_f32 {v(b,2)}, {v(b,2)}, {v(b+2,2)}"); e(f"v_add_f32 {v(b)}, {v(b)}, {v(b+1)}")
                    e(f"v_rcp_f32 {v(8+q6)}, {v(b)}")
            ws = [x for x in acts if x[0] == "O"]
            dma = []
            for it in iss: dma += self.issue_parts(*it)
            blight = []
            def wread(x, b, defer=False):
                _, i, sl = x
                tt = T0 + (i % 2)
                L = [f"v_add_u32 {v(tt)}, {sl*SLOT}, v5"]
                for k2 in range(2):
                    L.append(f"ds_read_b64_tr_b16 {v(b+4*k2,2)}, {v(tt)} offset:{4096*k2}")
                    L.append(f"ds_read_b64_tr_b16 {v(b+4*k2+2,2)}, {v(tt)} offset:{4096*k2+2048}")
                if defer: blight.extend(L)
                else:
                    for t in L: e(t)
            def ord_(c, k2, q6):
                e(f"ds_read_b128 {v(OF(k2,q6),4)}, v6 offset:{OBUF[c%2] + k2*6144 + q6*1024}")
            def opop(roll=None):
                x, b = opend.pop(0)
                c, cb = divmod(x[1], 7)
                st = self.store_parts(cb - 1) if (c == 3 and cb > 0) else []
                for k2 in range(2):
                    for q6 in range(6):
                        acc = ACC(cb, q6)
                        cc = "0" if (c == 0 and k2 == 0) else v(acc, 4)
                        e(f"v_mfma_f32_16x16x32_bf16 {v(acc,4)}, {v(b+4*k2,4)}, {v(OF(k2,q6),4)}, {cc}")
                        if roll is not None: ord_(roll, k2, q6)
                        if blight:
                            for _ in range(a.wv):
                                if blight: e(blight.pop(0))
                        elif dma and q6 % 3 == 2 and not P.get("burst"): dma.pop(0)()
                        if dma and P.get("burst") and q6 % a.bgap == 0: dma.pop(0)()
                        if st and (k2 or q6 >= 2):
                            for _ in range(4 if a.defer else 2):
                                if st: st.pop(0)()
                while st: st.pop(0)()
                if c == 3 and a.fused == 7 and cb - 1 == a.st1 - 1 + a.flag_lag: self.sig7()
                if c == 3 and a.thr >= 0: e.wait(vm=a.thr)
                if c == 3 and a.fused == 4: self.sig4(3 * cb)
                if c == 3 and a.fused == 2 and cb - 1 - a.flag_lag >= 0: self.flag(cb - 1 - a.flag_lag)
                if c == 3 and cb == 6 and a.fused != 6:
                    for f in self.store_parts(6): f()
                    if a.fused == 2 and 6 - a.flag_lag >= 0: self.flag(6 - a.flag_lag)
            ord_c = [x[1] for x in acts if x[0] == "oread"]
            if ord_c:
                c = ord_c[0]
                if c == 3: self.stamp()
                if ws and len(opend) < 3:
                    b = [x for x in WB if x not in [p[1] for p in opend]][0]
                    first = (ws.pop(0), b); wread(*first)
                else: first = None
                while len(opend) > 1: opop()
                if opend: opop(roll=c)
                else:
                    for k2 in range(2):
                        for q6 in range(6): ord_(c, k2, q6)
                if first: opend.append(first)
            lastt = ti == len(self.plan) - 1
            nows = not ws and not ord_c
            for x in ws:
                while len(opend) >= 3: opop()
                b = [y for y in WB if y not in [p[1] for p in opend]][0]
                go = len(opend) + 1 > (2 if lastt else max(a.blag, 1))
                wread(x, b, defer=go and a.wv > 0); opend.append((x, b))
                if go: opop()
            while len(opend) > (0 if (lastt or nows) else a.blag): opop()
            while dma: dma.pop(0)()
        if a.padto and a.padglob:
            e(f"s_cmp_lg_u32 {s(S_W)}, 4"); e("s_cbranch_scc1 L_end1")
            e("s_load_dwordx2 s[98:99], s[0:1], 88"); e.force_wait("vmcnt(0) lgkmcnt(0)")
            e("s_not_b32 s97, s96"); e("v_mov_b32 v10, 240"); e("v_mov_b32 v11, s97"); e("s_mov_b64 s[94:95], s[98:99]")
            e("s_mov_b64 exec, 1")
            e("global_atomic_umax v10, v11, s[94:95]"); e.force_wait("vmcnt(0)")
            e.label("L_pad0")
            e("s_memrealtime s[98:99]"); e.force_wait("lgkmcnt(0)")
            e("s_sub_u32 s98, s98, s96"); e(f"s_cmp_lt_u32 s98, 5000"); e("s_cbranch_scc1 L_pad0")
            e("global_load_dword v12, v10, s[94:95] sc1"); e.force_wait("vmcnt(0)")
            e("v_readfirstlane_b32 s96, v12"); e("s_nop 4"); e("s_not_b32 s96, s96")
            e.label("L_pad")
            e("s_memrealtime s[98:99]"); e.force_wait("lgkmcnt(0)")
            e("s_sub_u32 s98, s98, s96"); e(f"s_cmp_lt_u32 s98, {a.padto*100}"); e("s_cbranch_scc1 L_pad")
            e("s_mov_b64 exec, -1")
        elif a.padto:
            e.label("L_pad")
            e("s_memrealtime s[98:99]"); e.force_wait("lgkmcnt(0)")
            e("s_sub_u32 s98, s98, s96"); e(f"s_cmp_lt_u32 s98, {a.padto*100}"); e("s_cbranch_scc1 L_pad")
        self.stamp()
        if a.fused in (1, 3): self.fused_reduce()
        if a.fused == 5:
            e("v_mov_b32 v9, 12292"); e("v_mov_b32 v10, 1")
            e.force_wait("vmcnt(0)")
            e("s_mov_b64 exec, 1")
            e("ds_add_rtn_u32 v11, v9, v10"); e.force_wait("lgkmcnt(0)")
            e("v_readfirstlane_b32 s50, v11"); e("s_mov_b64 exec, -1")
            e("s_cmp_lg_u32 s50, 3"); e("s_cbranch_scc1 L_nosig")
            e("buffer_store_dword v10, v8, s[36:39], s62 offen sc1")
            e.label("L_nosig")
        if a.fused == 7: self.tail7_B()
        if a.fused == 6: self.tail6_B()
        if a.fused == 4: self.sig4(99)
        if a.fused == 2:
            for n in range(7 - a.flag_lag, 7): self.flag(n)
        if a.stamps:
            e.force_wait("vmcnt(0)")
            self.stamp()
            e(f"s_cmp_lg_u32 {s(S_W)}, 4"); e("s_cbranch_scc1 L_end1")
            e(f"s_add_u32 s60, s60, {STAMP_OFF}"); e("s_addc_u32 s61, s61, 0"); e("s_lshl_b32 s33, s2, 7"); e("s_add_u32 s60, s60, s33"); e("s_addc_u32 s61, s61, 0")
            e("v_mov_b32 v10, 0")
            for i in range(self.nst):
                e(f"v_mov_b32 v8, s{64+2*i}"); e(f"v_mov_b32 v9, s{65+2*i}")
                e(f"global_store_dwordx2 v10, v[8:9], s[60:61] offset:{8*i}"); e.nop(2)

    def own_range(self):
        e = self.e
        e(f"s_mul_i32 s94, {s(S_H)}, 21"); e("s_add_u32 s95, s94, 21"); e("s_lshr_b32 s94, s94, 2"); e("s_lshr_b32 s95, s95, 2")
        e("s_sub_u32 s95, s95, s94"); e("s_lshl_b32 s94, s94, 10"); e("s_lshl_b32 s95, s95, 10")

    def flag_srd(self):
        e = self.e
        e("s_load_dwordx4 s[44:47], s[0:1], 80")
        e(f"s_lshl_b32 s63, {s(S_BLK)}, 3"); e(f"s_add_u32 s63, s63, {s(S_B)}")
        e(f"s_mul_i32 {s(S_TMP)}, s63, {8448 if self.a.fused in (3, 7) else 8192}"); e(f"s_add_u32 {s(S_TMP)}, {s(S_TMP)}, {FLAG_OFF}")
        e(f"s_add_u32 s36, s60, {s(S_TMP)}"); e("s_addc_u32 s37, s61, 0"); e("s_mov_b32 s38, 8192"); e("s_mov_b32 s39, 0x20000")
        e("s_lshl_b32 s63, s63, 4")
        e.force_wait("lgkmcnt(0)")
        e("s_mov_b64 s[40:41], s[46:47]"); e("s_mov_b32 s42, 256"); e("s_mov_b32 s43, 0x20000")

    def flag(self, n):
        e = self.e
        e.wait_tag(("st", n))
        e(f"v_mov_b32 v9, {n+1}")
        e("buffer_store_dword v9, v8, s[36:39], s62 offen sc1")

    def sig7(self):
        e = self.e
        e("v_mov_b32 v4, 12288"); e("v_mov_b32 v3, 1")
        e.wait_tag(("st", self.a.st1 - 1))
        e("ds_add_u32 v4, v3")
        self.sig7_done = True

    def coord7(self, name, cnt_off, line, go_off):
        e = self.e
        e("v_mov_b32 v11, 12288"); e("s_mov_b32 s51, 0")
        e.label(name + "_c")
        e(f"ds_read_b32 v10, v11 offset:{cnt_off}"); e.force_wait("lgkmcnt(0)")
        e("v_readfirstlane_b32 s50, v10")
        if self.a.lsleep: e(f"s_sleep {self.a.lsleep}")
        e("s_cmp_lt_u32 s50, 256"); e(f"s_cbranch_scc1 {name}_c")
        e(f"v_mov_b32 v10, {line}"); e("v_mov_b32 v12, 1")
        e("s_mov_b64 exec, 1")
        e("buffer_atomic_add v12, v10, s[36:39], 0 offen sc0")
        e.force_wait("vmcnt(0)")
        e("v_add_u32 v12, 1, v12")
        e.label(name)
        e("v_readfirstlane_b32 s50, v12")
        e("s_add_u32 s51, s51, 1")
        e("s_cmp_ge_u32 s50, 16"); e(f"s_cbranch_scc1 {name}_ok")
        e("s_cmp_ge_u32 s51, 200000"); e(f"s_cbranch_scc1 {name}_ok")
        e("buffer_load_dword v12, v10, s[36:39], 0 offen sc1")
        e.force_wait("vmcnt(0)")
        e(f"s_branch {name}")
        e.label(name + "_ok")
        e("v_mov_b32 v12, 1")
        e(f"ds_write_b32 v11, v12 offset:{go_off}")
        e("s_endpgm")

    def tail7_A(self):
        e = self.e; a = self.a
        n1 = a.st1 * 768 // 16
        assert n1 % 24 == 0 and n1 // 3 <= 64
        e(f"s_cmp_lg_u32 {s(S_W)}, 0"); e("s_cbranch_scc1 L_a7")
        self.coord7("L_q1", 0, 0, 8)
        e.label("L_a7")
        e(f"s_mul_i32 s46, {s(S_H)}, {n1}"); e(f"s_mul_i32 {s(S_TMP)}, {s(S_U)}, {n1//3}"); e(f"s_add_u32 s46, s46, {s(S_TMP)}"); e(f"s_sub_u32 s46, s46, {n1//3}")
        e(f"s_mov_b32 s47, {n1//3}"); e("v_mov_b32 v11, 12296")
        e("s_branch L_sum")

    def tail7_B(self):
        e = self.e; a = self.a
        if not getattr(self, "sig7_done", False): self.sig7()
        n2 = (7 - a.st1) * 768 // 16
        assert n2 % 24 == 0 and n2 // 3 <= 64
        e.force_wait("vmcnt(0)")
        e("ds_add_u32 v4, v3 offset:4")
        self.stamp()
        e(f"s_cmp_lg_u32 {s(S_W)}, 7"); e("s_cbranch_scc1 L_b7")
        self.coord7("L_q2", 4, 4096, 12)
        e.label("L_b7")
        e(f"s_mul_i32 s46, {s(S_H)}, {n2}"); e(f"s_mul_i32 {s(S_TMP)}, {s(S_U)}, {n2//3}"); e(f"s_add_u32 s46, s46, {s(S_TMP)}"); e(f"s_add_u32 s46, s46, {a.st1*768}")
        e(f"s_mov_b32 s47, {n2//3}"); e("v_mov_b32 v11, 12300")
        e.label("L_sum")
        e("v_and_b32 v1, 63, v0"); e("v_add_u32 v2, s46, v1"); e("v_mov_b32 v4, 0x200000"); e("v_cmp_gt_u32 vcc, s47, v1")
        e("v_lshlrev_b32 v3, 4, v2"); e("v_cndmask_b32 v3, v4, v3, vcc")
        e("v_lshrrev_b32 v5, 8, v2"); e("v_mul_u32_u24 v6, 43, v5"); e("v_lshrrev_b32 v6, 7, v6")
        e("v_mul_u32_u24 v7, 3, v6"); e("v_sub_u32 v7, v5, v7")
        e(f"v_add_u32 v6, {s(S_RB)}, v6"); e("v_subrev_u32 v9, 7, v6"); e("v_min_u32 v6, v6, v9")
        e("v_and_b32 v8, 15, v2"); e("v_lshl_add_u32 v8, v7, 5, v8"); e("v_mul_u32_u24 v8, 1792, v8")
        e("v_lshl_add_u32 v8, v6, 7, v8"); e("v_bfe_u32 v9, v2, 4, 4"); e("v_lshl_add_u32 v8, v9, 3, v8")
        e("v_cndmask_b32 v8, v4, v8, vcc")
        e(f"s_lshr_b32 {s(S_TMP)}, s63, 4"); e(f"s_mul_i32 {s(S_TMP)}, {s(S_TMP)}, {16*86016}")
        e(f"s_add_u32 s52, s60, {s(S_TMP)}"); e("s_addc_u32 s53, s61, 0"); e(f"s_mov_b32 s54, {16*86016}"); e("s_mov_b32 s55, 0x20000")
        e("s_mov_b64 s[56:57], s[44:45]"); e(f"s_mov_b32 s58, {8*96*1792}"); e("s_mov_b32 s59, 0x20000")
        e(f"s_mul_i32 s49, {s(S_B)}, {96*1792}"); e(f"s_mul_i32 {s(S_TMP)}, {s(S_BLK)}, 896"); e(f"s_add_u32 s49, s49, {s(S_TMP)}")
        e(f"s_mov_b32 {s(S_SO)}, 0")
        e.label("L_go7")
        e("ds_read_b32 v10, v11"); e.force_wait("lgkmcnt(0)")
        e("v_readfirstlane_b32 s50, v10")
        if a.lsleep: e(f"s_sleep {a.lsleep}")
        e("s_cmp_eq_u32 s50, 0"); e("s_cbranch_scc1 L_go7")
        self.stamp()
        rp = self.pol(a.frpol)
        for h in range(16):
            e(f"buffer_load_dwordx4 {v(32+4*h,4)}, v3, s[52:55], {s(S_SO)} offen{rp}")
            if h < 15: e(f"s_add_u32 {s(S_SO)}, {s(S_SO)}, 86016")
        e("s_mov_b32 s50, 0xffff0000")
        for h in range(16):
            for k in range(4):
                r = 32 + 4 * h + k
                if h == 0:
                    e(f"v_lshlrev_b32 v{16+2*k}, 16, v{r}"); e(f"v_and_b32 v{17+2*k}, s50, v{r}")
                else:
                    e(f"v_lshlrev_b32 v{24+2*k}, 16, v{r}"); e(f"v_and_b32 v{25+2*k}, s50, v{r}")
                    e(f"v_pk_add_f32 {v(16+2*k,2)}, {v(16+2*k,2)}, {v(24+2*k,2)}")
        for k in range(4): e(f"v_cvt_pk_bf16_f32 v{24+k}, v{16+2*k}, v{17+2*k}")
        e("buffer_store_dwordx2 v[24:25], v8, s[56:59], s49 offen")
        e(f"s_add_u32 s49, s49, {16*1792}")
        e("buffer_store_dwordx2 v[26:27], v8, s[56:59], s49 offen")

    def srd6(self):
        e = self.e
        e("s_load_dwordx4 s[44:47], s[0:1], 80")
        e(f"s_add_u32 s36, s60, {FLAG_OFF}"); e("s_addc_u32 s37, s61, 0"); e(f"s_mov_b32 s38, {128*CSTR}"); e("s_mov_b32 s39, 0x20000")
        e("s_getreg_b32 s62, hwreg(HW_REG_XCC_ID, 0, 3)"); e("s_mul_i32 s62, s62, 3")
        e("s_and_b32 s63, s2, 63")
        e.force_wait("lgkmcnt(0)")
        e("s_mov_b64 s[40:41], s[46:47]"); e("s_mov_b32 s42, 256"); e("s_mov_b32 s43, 0x20000")
        e(f"s_mul_i32 s46, s63, {CSTR}")
        e("s_andn2_b32 s47, s63, 3"); e(f"s_add_u32 s47, s47, {s(S_PP)}"); e("s_add_u32 s47, s47, 64"); e(f"s_mul_i32 s47, s47, {CSTR}")
        e("s_lshl_b32 s63, s63, 2")

    def arrive(self, name, off):
        e = self.e
        e("v_mov_b32 v10, 0"); e("v_mov_b32 v12, 1")
        e("s_mov_b64 exec, 1")
        e(f"buffer_atomic_add v12, v10, s[36:39], {off} offen sc0")
        e("s_mov_b32 s51, 0")
        e.force_wait("vmcnt(0)")
        e("v_add_u32 v12, 1, v12")
        e.label(name)
        e("v_readfirstlane_b32 s50, v12")
        e("s_add_u32 s51, s51, 1")
        e("s_cmp_ge_u32 s50, 4"); e(f"s_cbranch_scc1 {name}_ok")
        e("s_cmp_ge_u32 s51, 200000"); e(f"s_cbranch_scc1 {name}_ok")
        if self.a.psleep: e(f"s_sleep {self.a.psleep}")
        e(f"buffer_load_dword v12, v10, s[36:39], {off} offen sc1")
        e.force_wait("vmcnt(0)")
        e(f"s_branch {name}")
        e.label(name + "_ok")
        e("s_mov_b64 exec, -1")

    def final6_setup(self):
        e = self.e
        e(f"s_lshr_b32 {s(S_TMP)}, {s(S_W)}, 2"); e(f"s_lshl_b32 {s(S_TMP)}, {s(S_TMP)}, 8"); e(f"v_add_u32 v1, {s(S_TMP)}, v0")
        e("v_cmp_le_u32 vcc, 192, v1"); e("v_subrev_u32 v2, 192, v1"); e("v_min_u32 v2, v2, v1")
        e(f"s_lshr_b32 {s(S_TMP)}, {s(S_H)}, 2"); e(f"s_mul_i32 {s(S_TMP)}, {s(S_TMP)}, 192"); e(f"v_add_u32 v2, {s(S_TMP)}, v2")
        e(f"s_add_u32 {s(S_TMP)}, {s(S_RB)}, 5"); e(f"v_mov_b32 v5, {s(S_TMP)}"); e("v_addc_co_u32 v5, vcc, 0, v5, vcc")
        e("v_subrev_u32 v6, 7, v5"); e("v_min_u32 v5, v5, v6")
        e(f"s_add_u32 {s(S_TMP)}, {s(S_PP)}, {self.a.yslot}"); e(f"s_and_b32 {s(S_TMP)}, {s(S_TMP)}, 3")
        e(f"v_lshl_add_u32 v6, v5, 2, {s(S_TMP)}"); e("v_mul_u32_u24 v6, 12288, v6"); e("v_lshl_add_u32 v3, v2, 4, v6")
        e("v_lshrrev_b32 v7, 8, v2"); e("v_and_b32 v8, 15, v2"); e("v_lshl_add_u32 v8, v7, 5, v8"); e("v_mul_u32_u24 v8, 1792, v8")
        e("v_lshl_add_u32 v8, v5, 7, v8"); e("v_bfe_u32 v9, v2, 4, 4"); e("v_lshl_add_u32 v8, v9, 3, v8")
        e(f"s_cmp_eq_u32 {s(S_PP)}, 3"); e(f"s_cselect_b32 {s(S_TMP)}, 192, 0"); e(f"v_subrev_u32 v9, {s(S_TMP)}, v1")
        e(f"s_sub_u32 {s(S_TMP)}, 384, {s(S_TMP)}"); e(f"v_cmp_gt_u32 vcc, {s(S_TMP)}, v9"); e("v_mov_b32 v4, 0x200000")
        e("v_cndmask_b32 v3, v4, v3, vcc"); e("v_cndmask_b32 v8, v4, v8, vcc")
        e("s_and_b32 s52, s2, 60"); e(f"s_mul_i32 {s(S_TMP)}, s52, {XQ}")
        e(f"s_add_u32 s52, s60, {s(S_TMP)}"); e("s_addc_u32 s53, s61, 0"); e(f"s_mov_b32 s54, {4*XQ}"); e("s_mov_b32 s55, 0x20000")
        e("s_mov_b64 s[56:57], s[44:45]"); e(f"s_mov_b32 s58, {8*96*1792}"); e("s_mov_b32 s59, 0x20000")
        e(f"s_mul_i32 s49, {s(S_B)}, {96*1792}"); e(f"s_mul_i32 {s(S_TMP)}, {s(S_BLK)}, 896"); e(f"s_add_u32 s49, s49, {s(S_TMP)}")

    def tail6_A(self):
        e = self.e; a = self.a
        self.final6_setup()
        e.barrier()
        e(f"s_cmp_lg_u32 {s(S_W)}, 0"); e("s_cbranch_scc1 L_a1")
        e("s_cmp_eq_u32 s48, 0"); e("s_cbranch_scc1 L_a0")
        e("buffer_wbl2 sc1"); e.force_wait("vmcnt(0)")
        e.label("L_a0")
        self.arrive("L_p1", "s46")
        e.label("L_a1")
        e.barrier()
        if a.junk == 1:
            e(f"s_cmp_lg_u32 {s(S_W)}, 1"); e("s_cbranch_scc1 L_j1"); e(f"s_cmp_ge_u32 s2, {a.junkn}"); e("s_cbranch_scc1 L_j1")
            e("buffer_wbl2 sc1")
            e.label("L_j1")
        e.barrier()
        if a.junk == 2:
            e(f"s_cmp_lg_u32 {s(S_W)}, 7"); e("s_cbranch_scc1 L_j1"); e.label("L_j1")
        e(f"s_cmp_lg_u32 {s(S_W)}, 0"); e("s_cbranch_scc1 L_fin")
        self.arrive("L_p2", "s47")
        e("s_branch L_fin")

    def tail6_B(self):
        e = self.e; a = self.a
        ACC = self.ACC
        e.force_wait("vmcnt(0)")
        e.barrier()
        for pi, pos in enumerate((5, 6)):
            e(f"s_add_u32 s{50+pi}, {s(S_RB)}, {pos}"); e(f"s_cmp_ge_u32 s{50+pi}, 7"); e(f"s_cselect_b32 {s(S_TMP)}, 7, 0"); e(f"s_sub_u32 s{50+pi}, s{50+pi}, {s(S_TMP)}")
            e(f"s_mul_i32 s{50+pi}, s{50+pi}, {4*12288}")
        e(f"s_cmp_eq_u32 {s(S_PP)}, 3"); e("s_cselect_b32 s50, 0x100000, s50")
        for j in range(0, 4):
            e(f"s_add_u32 s{91+j}, {s(S_PP)}, {j}"); e(f"s_and_b32 s{91+j}, s{91+j}, 3"); e(f"s_mul_i32 s{91+j}, s{91+j}, 12288")
        e("v_add_u32 v9, 4096, v7"); e("v_add_u32 v10, 8192, v7"); e("s_mov_b32 s95, 0xffff0000")
        self.stamp()
        e.barrier()
        self.stamp()
        VQ = [7, 9, 10]
        L = lambda pi, qt, j: 64 + 4 * ((pi * 3 + qt) * 3 + (j - 1))
        for pi in range(2):
            for qt in range(3):
                for j in range(1, 4):
                    e(f"s_add_u32 {s(S_SO)}, s{50+pi}, s{91+j}")
                    e(f"buffer_load_dwordx4 {v(L(pi,qt,j),4)}, v{VQ[qt]}, {s(S_R2,4)}, {s(S_SO)} offen{self.pol(a.xlpol)}")
        if a.stamps > 1:
            e.force_wait("vmcnt(0)"); self.stamp()
        for pi, pos in enumerate((5, 6)):
            for qt in range(3):
                a0 = ACC(pos, 2 * qt)
                for j in range(1, 4):
                    for k in range(4):
                        r = L(pi, qt, j) + k; t = 16 + 2 * ((j * 4 + k) % 8)
                        e(f"v_lshlrev_b32 v{t}, 16, v{r}"); e(f"v_and_b32 v{t+1}, s95, v{r}")
                        e(f"v_pk_add_f32 {v(a0+2*k,2)}, {v(a0+2*k,2)}, {v(t,2)}")
                for k in range(4): e(f"v_cvt_pk_bf16_f32 v{a0+k}, v{a0+2*k}, v{a0+2*k+1}")
                e(f"s_add_u32 {s(S_SO)}, s{50+pi}, s{91+a.yslot}")
                e(f"buffer_store_dwordx4 {v(a0,4)}, v{VQ[qt]}, {s(S_R2,4)}, {s(S_SO)} offen sc1")
        if a.stamps > 1: self.stamp()
        self.final6_setup()
        e.force_wait("vmcnt(0)")
        self.stamp()
        e.barrier()
        if a.junk == 2:
            e(f"s_cmp_lg_u32 {s(S_W)}, 7"); e("s_cbranch_scc1 L_fin"); e(f"s_cmp_ge_u32 s2, {a.junkn}"); e("s_cbranch_scc1 L_fin")
            e("buffer_wbl2 sc1")
        e.label("L_fin")
        e.barrier()
        self.stamp()
        e(f"s_cmp_ge_u32 {s(S_W)}, 6"); e("s_cbranch_scc1 L_end1")
        e(f"s_mov_b32 {s(S_SO)}, 0"); e("s_mov_b32 s50, 0xffff0000")
        for j in range(4):
            e(f"buffer_load_dwordx4 {v(32+4*j,4)}, v3, s[52:55], {s(S_SO)} offen sc1")
            if j < 3: e(f"s_add_u32 {s(S_SO)}, {s(S_SO)}, {XQ}")
        for h in range(4):
            for k in range(4):
                r = 32 + 4 * h + k
                if h == 0:
                    e(f"v_lshlrev_b32 v{16+2*k}, 16, v{r}"); e(f"v_and_b32 v{17+2*k}, s50, v{r}")
                else:
                    e(f"v_lshlrev_b32 v{24+2*k}, 16, v{r}"); e(f"v_and_b32 v{25+2*k}, s50, v{r}")
                    e(f"v_pk_add_f32 {v(16+2*k,2)}, {v(16+2*k,2)}, {v(24+2*k,2)}")
        for k in range(4): e(f"v_cvt_pk_bf16_f32 v{24+k}, v{16+2*k}, v{17+2*k}")
        e("buffer_store_dwordx2 v[24:25], v8, s[56:59], s49 offen")
        e(f"s_add_u32 s49, s49, {16*1792}")
        e("buffer_store_dwordx2 v[26:27], v8, s[56:59], s49 offen")

    def reduce5(self):
        e = self.e; a = self.a
        self.flag_srd()
        e("v_and_b32 v1, 63, v0"); e("v_mov_b32 v11, 12288")
        e(f"s_cmp_lg_u32 {s(S_W)}, 3"); e("s_cbranch_scc1 L_cons")
        e("v_mov_b32 v6, 0")
        self.poll("L_pc", "buffer_load_dword v10, v6, s[40:43], s63 offen sc1", "v_cmp_le_u32 vcc, 16, v10")
        e("v_and_b32 v5, 15, v1"); e("v_lshlrev_b32 v5, 9, v5")
        e("s_mov_b32 s51, 0")
        e.label("L_pl")
        e("buffer_load_dword v10, v5, s[36:39], 0 offen sc1"); e.force_wait("vmcnt(0)")
        e("v_cmp_ne_u32 vcc, 0, v10")
        e("s_add_u32 s51, s51, 1")
        e("s_and_b32 s50, vcc_lo, 0xffff")
        e("s_cmp_ge_u32 s51, 200000"); e("s_cselect_b32 s50, 0xffff, s50")
        e("v_mov_b32 v12, s50"); e("ds_write_b32 v11, v12")
        e("s_cmp_eq_u32 s50, 0xffff"); e("s_cbranch_scc1 L_end1")
        if a.psleep: e(f"s_sleep {a.psleep}")
        e("s_branch L_pl")
        e.label("L_cons")
        e(f"s_lshr_b32 {s(S_TMP)}, s63, 4"); e(f"s_mul_i32 {s(S_TMP)}, {s(S_TMP)}, {16*86016}")
        e(f"s_add_u32 s52, s60, {s(S_TMP)}"); e("s_addc_u32 s53, s61, 0"); e(f"s_mov_b32 s54, {16*86016}"); e("s_mov_b32 s55, 0x20000")
        e("s_mov_b64 s[56:57], s[44:45]"); e(f"s_mov_b32 s58, {8*96*1792}"); e("s_mov_b32 s59, 0x20000")
        e(f"s_mul_i32 {s(S_TMP)}, {s(S_H)}, 336"); e(f"s_mul_i32 s46, {s(S_U)}, 112"); e(f"s_add_u32 {s(S_TMP)}, {s(S_TMP)}, s46")
        e(f"v_add_u32 v2, {s(S_TMP)}, v1"); e("v_add_u32 v3, 64, v2"); e("v_mov_b32 v4, 0x200000")
        e("v_cmp_gt_u32 s[48:49], 48, v1")
        e(f"s_mul_i32 s47, {s(S_B)}, {96*1792}"); e(f"s_mul_i32 {s(S_TMP)}, {s(S_BLK)}, 896"); e(f"s_add_u32 s47, s47, {s(S_TMP)}")
        for E, LD, OUT in ((2, 6, 8), (3, 7, 9)):
            e(f"v_lshlrev_b32 v{LD}, 4, v{E}")
            e(f"v_lshrrev_b32 v10, 8, v{E}"); e("v_mul_u32_u24 v12, 43, v10"); e("v_lshrrev_b32 v12, 7, v12")
            e("v_mul_u32_u24 v13, 3, v12"); e("v_sub_u32 v13, v10, v13")
            e(f"v_and_b32 v{OUT}, 15, v{E}"); e(f"v_lshl_add_u32 v{OUT}, v13, 5, v{OUT}"); e(f"v_mul_u32_u24 v{OUT}, 1792, v{OUT}")
            e(f"v_lshl_add_u32 v{OUT}, v12, 7, v{OUT}"); e(f"v_bfe_u32 v13, v{E}, 4, 4"); e(f"v_lshl_add_u32 v{OUT}, v13, 3, v{OUT}")
        e("v_cndmask_b32 v7, v4, v7, s[48:49]"); e("v_cndmask_b32 v9, v4, v9, s[48:49]")
        e("s_mov_b32 s50, 0xffff0000"); e("s_mov_b32 s48, 0")
        rp = self.pol(a.frpol)
        e.label("L_cl")
        e("ds_read_b32 v10, v11"); e.force_wait("lgkmcnt(0)")
        e("v_readfirstlane_b32 s49, v10")
        e("s_andn2_b32 s46, s49, s48")
        e("s_cbranch_scc1 L_cn")
        e("s_sleep 1"); e("s_branch L_cl")
        e.label("L_cn")
        for h in range(16):
            e(f"s_bitcmp1_b32 s46, {h}"); e(f"s_cbranch_scc0 L_ch{h}")
            e(f"s_mov_b32 {s(S_SO)}, {h*86016}")
            e(f"buffer_load_dwordx4 {v(32+4*h,4)}, v6, s[52:55], {s(S_SO)} offen{rp}")
            e(f"buffer_load_dwordx4 {v(96+4*h,4)}, v7, s[52:55], {s(S_SO)} offen{rp}")
            e.label(f"L_ch{h}")
        e("s_or_b32 s48, s48, s46"); e("s_cmp_lg_u32 s48, 0xffff"); e("s_cbranch_scc1 L_cl")
        e.force_wait("vmcnt(0)")
        for base, OUT in ((32, 8), (96, 9)):
            for h in range(16):
                for k in range(4):
                    r = base + 4 * h + k
                    if h == 0:
                        e(f"v_lshlrev_b32 v{16+2*k}, 16, v{r}"); e(f"v_and_b32 v{17+2*k}, s50, v{r}")
                    else:
                        e(f"v_lshlrev_b32 v{24+2*k}, 16, v{r}"); e(f"v_and_b32 v{25+2*k}, s50, v{r}")
                        e(f"v_pk_add_f32 {v(16+2*k,2)}, {v(16+2*k,2)}, {v(24+2*k,2)}")
            for k in range(4): e(f"v_cvt_pk_bf16_f32 v{base+k}, v{16+2*k}, v{17+2*k}")
            e(f"buffer_store_dwordx2 {v(base,2)}, v{OUT}, s[56:59], s47 offen")
            e(f"s_add_u32 {s(S_TMP)}, s47, {16*1792}")
            e(f"buffer_store_dwordx2 {v(base+2,2)}, v{OUT}, s[56:59], {s(S_TMP)} offen")
        if a.stamps:
            e.force_wait("vmcnt(0)")
            e("s_memrealtime s[64:65]"); e.force_wait("lgkmcnt(0)")
            e(f"s_cmp_lg_u32 {s(S_W)}, 2"); e("s_cbranch_scc1 L_end1")
            e(f"s_add_u32 s60, s60, {STAMP_OFF}"); e("s_addc_u32 s61, s61, 0"); e("s_lshl_b32 s33, s2, 7"); e("s_add_u32 s60, s60, s33"); e("s_addc_u32 s61, s61, 0")
            e("v_mov_b32 v10, 0"); e("v_mov_b32 v8, s64"); e("v_mov_b32 v9, s65")
            e(f"global_store_dwordx2 v10, v[8:9], s[60:61] offset:{8*a.astamp}")

    def sig4(self, issued):
        e = self.e
        ends = [7, 15, 20]
        while self.nsig < 3 and issued - 1 - ends[self.nsig] >= self.a.sig_lag:
            e.wait_tag(("sp", ends[self.nsig]))
            e(f"v_mov_b32 v9, {1 << (8 * self.nsig)}")
            e("buffer_atomic_add v9, v8, s[36:39], s62 offen")
            self.nsig += 1

    def staged_reduce4(self):
        e = self.e; a = self.a
        e(f"s_lshr_b32 {s(S_TMP)}, s63, 4"); e(f"s_mul_i32 {s(S_TMP)}, {s(S_TMP)}, {16*86016}")
        e(f"s_add_u32 s52, s60, {s(S_TMP)}"); e("s_addc_u32 s53, s61, 0"); e(f"s_mov_b32 s54, {16*86016}"); e("s_mov_b32 s55, 0x20000")
        e("s_mov_b64 s[56:57], s[44:45]"); e(f"s_mov_b32 s58, {8*96*1792}"); e("s_mov_b32 s59, 0x20000")
        e(f"s_lshl_b32 s62, {s(S_U)}, 7")
        e("v_and_b32 v1, 63, v0"); e("v_mov_b32 v4, 0x200000")
        e("v_lshrrev_b32 v2, 5, v1"); e("v_lshlrev_b32 v2, 9, v2"); e("v_and_b32 v3, 31, v1"); e("v_add_u32 v2, v2, v3")
        e(f"s_lshl_b32 {s(S_TMP)}, {s(S_H)}, 5"); e(f"v_add_u32 v2, {s(S_TMP)}, v2")
        e(f"s_lshl_b32 {s(S_TMP)}, {s(S_H)}, 4"); e(f"s_add_u32 {s(S_TMP)}, {s(S_TMP)}, 1024"); e(f"v_add_u32 v3, {s(S_TMP)}, v1")
        e(f"s_lshl_b32 {s(S_TMP)}, {s(S_H)}, 3"); e(f"s_add_u32 {s(S_TMP)}, {s(S_TMP)}, 1264"); e(f"v_add_u32 v5, {s(S_TMP)}, v1")
        e("v_cmp_gt_u32 vcc, 16, v1"); e("v_cndmask_b32 v3, v5, v3, vcc")
        e(f"s_cmp_lt_u32 {s(S_H)}, 8"); e("s_cselect_b32 s46, 24, 16")
        e("v_cmp_gt_u32 s[48:49], s46, v1")
        e(f"s_mul_i32 s47, {s(S_B)}, {96*1792}"); e(f"s_mul_i32 {s(S_TMP)}, {s(S_BLK)}, 896"); e(f"s_add_u32 s47, s47, {s(S_TMP)}")
        e(f"s_lshl_b32 {s(S_TMP)}, {s(S_U)}, 5"); e(f"s_add_u32 s47, s47, {s(S_TMP)}")
        for E, LD, OUT in ((2, 6, 8), (3, 7, 9)):
            e(f"v_lshlrev_b32 v{LD}, 4, v{E}")
            e(f"v_lshrrev_b32 v10, 6, v{E}"); e("v_mul_u32_u24 v11, 43, v10"); e("v_lshrrev_b32 v11, 7, v11")
            e("v_mul_u32_u24 v12, 3, v11"); e("v_sub_u32 v12, v10, v12")
            e(f"v_add_u32 v11, {s(S_RB)}, v11"); e("v_subrev_u32 v13, 7, v11"); e("v_min_u32 v11, v11, v13")
            e(f"v_and_b32 v{OUT}, 15, v{E}"); e(f"v_lshl_add_u32 v{OUT}, v12, 5, v{OUT}"); e(f"v_mul_u32_u24 v{OUT}, 1792, v{OUT}")
            e(f"v_lshl_add_u32 v{OUT}, v11, 7, v{OUT}"); e(f"v_bfe_u32 v13, v{E}, 4, 2"); e(f"v_lshl_add_u32 v{OUT}, v13, 3, v{OUT}")
        e("v_cndmask_b32 v7, v4, v7, s[48:49]"); e("v_cndmask_b32 v9, v4, v9, s[48:49]")
        e("v_mov_b32 v5, 0"); e("s_mov_b32 s50, 0xffff0000")
        rp = self.pol(a.frpol)
        def summ(base, OUT):
            for h in range(16):
                for k in range(4):
                    r = base + 4 * h + k
                    if h == 0:
                        e(f"v_lshlrev_b32 v{16+2*k}, 16, v{r}"); e(f"v_and_b32 v{17+2*k}, s50, v{r}")
                    else:
                        e(f"v_lshlrev_b32 v{24+2*k}, 16, v{r}"); e(f"v_and_b32 v{25+2*k}, s50, v{r}")
                        e(f"v_pk_add_f32 {v(16+2*k,2)}, {v(16+2*k,2)}, {v(24+2*k,2)}")
            for k in range(4): e(f"v_cvt_pk_bf16_f32 v{24+k}, v{16+2*k}, v{17+2*k}")
            e(f"buffer_store_dwordx2 v[24:25], v{OUT}, s[56:59], s47 offen")
            e(f"s_add_u32 {s(S_TMP)}, s47, {16*1792}")
            e(f"buffer_store_dwordx2 v[26:27], v{OUT}, s[56:59], {s(S_TMP)} offen")
        for st in range(3):
            self.poll(f"L_pf{st}", "buffer_load_dword v10, v5, s[36:39], s62 offen sc1", f"v_bfe_u32 v10, v10, {8*st}, 8|v_cmp_le_u32 vcc, 16, v10")
            if st == 0: e("s_mov_b32 exec_hi, 0")
            if st == 1: e("s_mov_b32 exec_lo, 0")
            e(f"s_mul_i32 {s(S_SO)}, {s(S_U)}, 21504")
            for h in range(16):
                e(f"buffer_load_dwordx4 {v((32 if st < 2 else 96)+4*h,4)}, v{6 if st < 2 else 7}, s[52:55], {s(S_SO)} offen{rp}")
                if h < 15: e(f"s_add_u32 {s(S_SO)}, {s(S_SO)}, 86016")
            e("s_mov_b64 exec, -1")
        summ(32, 8)
        summ(96, 9)
        if a.stamps:
            e.force_wait("vmcnt(0)")
            e("s_memrealtime s[64:65]"); e.force_wait("lgkmcnt(0)")
            e(f"s_cmp_lg_u32 {s(S_W)}, 2"); e("s_cbranch_scc1 L_end1")
            e(f"s_add_u32 s60, s60, {STAMP_OFF}"); e("s_addc_u32 s61, s61, 0"); e("s_lshl_b32 s33, s2, 7"); e("s_add_u32 s60, s60, s33"); e("s_addc_u32 s61, s61, 0")
            e("v_mov_b32 v10, 0"); e("v_mov_b32 v8, s64"); e("v_mov_b32 v9, s65")
            e(f"global_store_dwordx2 v10, v[8:9], s[60:61] offset:{8*a.astamp}")

    def poll(self, name, load, cmp):
        e = self.e
        e("s_mov_b32 s51, 0")
        e.label(name)
        e(load); e.force_wait("vmcnt(0)")
        for cc in cmp.split("|"): e(cc)
        e("s_add_u32 s51, s51, 1")
        e("s_cmp_eq_u64 vcc, -1"); e(f"s_cbranch_scc1 {name}_ok")
        e("s_cmp_ge_u32 s51, 200000"); e(f"s_cbranch_scc1 {name}_ok")
        if self.a.psleep: e(f"s_sleep {self.a.psleep}")
        e(f"s_branch {name}")
        e.label(name + "_ok")

    def staged_reduce(self):
        e = self.e; a = self.a
        self.flag_srd()
        e(f"s_lshr_b32 {s(S_TMP)}, s63, 4"); e(f"s_mul_i32 {s(S_TMP)}, {s(S_TMP)}, {16*86016}")
        e(f"s_add_u32 s52, s60, {s(S_TMP)}"); e("s_addc_u32 s53, s61, 0"); e(f"s_mov_b32 s54, {16*86016}"); e("s_mov_b32 s55, 0x20000")
        e("s_mov_b64 s[56:57], s[44:45]"); e(f"s_mov_b32 s58, {8*96*1792}"); e("s_mov_b32 s59, 0x20000")
        e("v_and_b32 v1, 63, v0")
        e(f"s_lshr_b32 {s(S_TMP)}, {s(S_H)}, 2"); e(f"s_mul_i32 {s(S_TMP)}, {s(S_TMP)}, 48"); e(f"v_add_u32 v2, {s(S_TMP)}, v1")
        e("v_lshrrev_b32 v3, 6, v2"); e("v_and_b32 v2, 63, v2"); e("v_lshl_add_u32 v2, v3, 8, v2")
        e(f"s_and_b32 s46, {s(S_H)}, 3"); e(f"s_lshl_b32 {s(S_TMP)}, s46, 6"); e(f"v_add_u32 v2, {s(S_TMP)}, v2")
        e("s_lshl_b32 s46, s46, 7")
        e("v_mov_b32 v4, 0x200000"); e("v_cmp_gt_u32 vcc, 48, v1")
        e("v_lshlrev_b32 v3, 4, v2"); e("v_cndmask_b32 v3, v4, v3, vcc")
        e("v_lshrrev_b32 v7, 8, v2"); e("v_and_b32 v8, 15, v2"); e("v_lshl_add_u32 v8, v7, 5, v8"); e("v_mul_u32_u24 v8, 1792, v8")
        e("v_bfe_u32 v9, v2, 4, 4"); e("v_lshl_add_u32 v8, v9, 3, v8"); e("v_cndmask_b32 v8, v4, v8, vcc")
        e("v_and_b32 v5, 15, v1"); e("v_lshlrev_b32 v5, 9, v5"); e("v_mov_b32 v6, 0")
        e(f"s_mul_i32 s49, {s(S_B)}, {96*1792}"); e(f"s_mul_i32 {s(S_TMP)}, {s(S_BLK)}, 896"); e(f"s_add_u32 s49, s49, {s(S_TMP)}")
        e("s_mov_b32 s50, 0xffff0000")
        self.poll("L_pc", "buffer_load_dword v10, v6, s[40:43], s63 offen sc1", "v_cmp_le_u32 vcc, 16, v10")
        e(f"s_mov_b32 s48, {s(S_U)}")
        e.label("L_stage")
        self.poll("L_pf", "buffer_load_dword v10, v5, s[36:39], s46 offen sc1", "v_cmp_lt_u32 vcc, s48, v10")
        e(f"s_add_u32 s47, s48, {s(S_RB)}"); e("s_cmp_ge_u32 s47, 7"); e(f"s_cselect_b32 {s(S_TMP)}, 7, 0"); e(f"s_sub_u32 s47, s47, {s(S_TMP)}")
        e(f"s_mul_i32 {s(S_SO)}, s47, 12288")
        rp = self.pol(a.frpol)
        for h in range(16):
            e(f"buffer_load_dwordx4 {v(32+4*h,4)}, v3, s[52:55], {s(S_SO)} offen{rp}")
            if h < 15: e(f"s_add_u32 {s(S_SO)}, {s(S_SO)}, 86016")
        e("s_lshl_b32 s47, s47, 7"); e("s_add_u32 s47, s47, s49")
        for h in range(16):
            for k in range(4):
                r = 32 + 4 * h + k
                if h == 0:
                    e(f"v_lshlrev_b32 v{16+2*k}, 16, v{r}"); e(f"v_and_b32 v{17+2*k}, s50, v{r}")
                else:
                    e(f"v_lshlrev_b32 v{24+2*k}, 16, v{r}"); e(f"v_and_b32 v{25+2*k}, s50, v{r}")
                    e(f"v_pk_add_f32 {v(16+2*k,2)}, {v(16+2*k,2)}, {v(24+2*k,2)}")
        for k in range(4): e(f"v_cvt_pk_bf16_f32 v{24+k}, v{16+2*k}, v{17+2*k}")
        e("buffer_store_dwordx2 v[24:25], v8, s[56:59], s47 offen")
        e(f"s_add_u32 s47, s47, {16*1792}")
        e("buffer_store_dwordx2 v[26:27], v8, s[56:59], s47 offen")
        e("s_add_u32 s48, s48, 4"); e("s_cmp_lt_u32 s48, 7"); e("s_cbranch_scc1 L_stage")
        if a.stamps:
            e.force_wait("vmcnt(0)")
            e("s_memrealtime s[64:65]"); e.force_wait("lgkmcnt(0)")
            e(f"s_cmp_lg_u32 {s(S_W)}, 2"); e("s_cbranch_scc1 L_end1")
            e(f"s_add_u32 s60, s60, {STAMP_OFF}"); e("s_addc_u32 s61, s61, 0"); e("s_lshl_b32 s33, s2, 7"); e("s_add_u32 s60, s60, s33"); e("s_addc_u32 s61, s61, 0")
            e("v_mov_b32 v10, 0"); e("v_mov_b32 v8, s64"); e("v_mov_b32 v9, s65")
            e(f"global_store_dwordx2 v10, v[8:9], s[60:61] offset:{8*a.astamp}")

    def fused_reduce(self):
        e = self.e; a = self.a
        e.label("L_red")
        e.nop(12)
        e("s_load_dwordx4 s[40:43], s[0:1], 80")
        e(f"s_lshr_b32 {s(S_TMP)}, {s(S_W)}, 2"); e(f"s_lshl_b32 {s(S_TMP)}, {s(S_TMP)}, 8")
        e(f"v_add_u32 v1, {s(S_TMP)}, v0")
        if a.own:
            self.own_range()
            e(f"s_lshr_b32 {s(S_TMP)}, s94, 4"); e("s_lshr_b32 s95, s95, 4")
        else:
            e(f"s_mul_i32 {s(S_TMP)}, {s(S_H)}, 336"); e("s_mov_b32 s95, 336")
        e(f"v_add_u32 v2, {s(S_TMP)}, v1")
        e("v_lshlrev_b32 v3, 4, v2")
        e("v_mov_b32 v4, 0x200000")
        e("v_cmp_gt_u32 vcc, s95, v1")
        e("v_cndmask_b32 v3, v4, v3, vcc")
        e(f"s_lshl_b32 s48, {s(S_BLK)}, 3"); e(f"s_add_u32 s48, s48, {s(S_B)}")
        e(f"s_mul_i32 {s(S_TMP)}, s48, {16*86016}")
        e(f"s_add_u32 s44, s60, {s(S_TMP)}"); e("s_addc_u32 s45, s61, 0"); e(f"s_mov_b32 s46, {16*86016}"); e("s_mov_b32 s47, 0x20000")
        e("v_lshrrev_b32 v5, 8, v2"); e("v_mul_u32_u24 v6, 43, v5"); e("v_lshrrev_b32 v6, 7, v6")
        e("v_mul_u32_u24 v7, 3, v6"); e("v_sub_u32 v7, v5, v7")
        e("v_and_b32 v8, 15, v2"); e("v_lshl_add_u32 v8, v7, 5, v8"); e("v_mul_u32_u24 v8, 1792, v8")
        e("v_lshl_add_u32 v8, v6, 7, v8"); e("v_bfe_u32 v9, v2, 4, 4"); e("v_lshl_add_u32 v8, v9, 3, v8")
        e("v_cndmask_b32 v8, v4, v8, vcc")
        e(f"s_mul_i32 s49, {s(S_B)}, {96*1792}"); e(f"s_mul_i32 {s(S_TMP)}, {s(S_BLK)}, 896"); e(f"s_add_u32 s49, s49, {s(S_TMP)}")
        e.force_wait("vmcnt(0) lgkmcnt(0)")
        e("s_mov_b64 s[52:53], s[40:41]"); e(f"s_mov_b32 s54, {8*96*1792}"); e("s_mov_b32 s55, 0x20000")
        e.barrier()
        e(f"s_cmp_lg_u32 {s(S_W)}, 0"); e("s_cbranch_scc1 L_go")
        e("s_lshl_b32 s50, s48, 4")
        if a.fused == 3:
            e("s_mov_b32 s50, 0"); e("s_mov_b64 s[42:43], s[36:37]")
        e("v_mov_b32 v10, s50"); e("v_mov_b32 v11, 1")
        e("s_mov_b64 exec, 1")
        e("global_atomic_add v12, v10, v11, s[42:43] sc0")
        e("s_mov_b32 s51, 0")
        e.force_wait("vmcnt(0)")
        e("v_add_u32 v12, 1, v12")
        e.label("L_poll")
        e("v_readfirstlane_b32 s50, v12")
        e("s_add_u32 s51, s51, 1")
        e("s_cmp_ge_u32 s50, 16"); e("s_cbranch_scc1 L_polled")
        e(f"s_cmp_ge_u32 s51, 200000"); e("s_cbranch_scc1 L_polled")
        if a.psleep: e(f"s_sleep {a.psleep}")
        e("global_load_dword v12, v10, s[42:43] sc1")
        e.force_wait("vmcnt(0)")
        e("s_branch L_poll")
        e.label("L_polled")
        e("s_mov_b64 exec, -1")
        e.label("L_go")
        e.barrier()
        self.stamp()
        e(f"s_cmp_ge_u32 {s(S_W)}, 6"); e("s_cbranch_scc1 L_end1")
        rp = self.pol(a.frpol)
        if a.own:
            e(f"s_mul_i32 {s(S_SO)}, {s(S_H)}, 86016")
            for h in range(15):
                e(f"s_add_u32 {s(S_SO)}, {s(S_SO)}, 86016"); e(f"s_cmp_eq_u32 {s(S_SO)}, {16*86016}"); e(f"s_cselect_b32 {s(S_SO)}, 0, {s(S_SO)}")
                e(f"buffer_load_dwordx4 {v(36+4*h,4)}, v3, s[44:47], {s(S_SO)} offen{rp}")
            e("v_lshlrev_b32 v1, 4, v1"); e(f"v_add_u32 v1, {self.own_lds}, v1"); e("ds_read_b128 v[32:35], v1")
        for h in range(16 if not a.own else 0):
            e(f"s_mov_b32 {s(S_SO)}, {h*86016}")
            e(f"buffer_load_dwordx4 {v(32+4*h,4)}, v3, s[44:47], {s(S_SO)} offen{rp}")
        e("s_mov_b32 s50, 0xffff0000")
        for h in range(16):
            for k in range(4):
                r = 32 + 4 * h + k
                if h == 0:
                    e(f"v_lshlrev_b32 v{16+2*k}, 16, v{r}"); e(f"v_and_b32 v{17+2*k}, s50, v{r}")
                else:
                    e(f"v_lshlrev_b32 v{24+2*k}, 16, v{r}"); e(f"v_and_b32 v{25+2*k}, s50, v{r}")
                    e(f"v_pk_add_f32 {v(16+2*k,2)}, {v(16+2*k,2)}, {v(24+2*k,2)}")
        for k in range(4): e(f"v_cvt_pk_bf16_f32 v{24+k}, v{16+2*k}, v{17+2*k}")
        e("buffer_store_dwordx2 v[24:25], v8, s[52:55], s49 offen")
        e(f"s_add_u32 s49, s49, {16*1792}")
        e("buffer_store_dwordx2 v[26:27], v8, s[52:55], s49 offen")

    def maxpart(self, m, b, part, first):
        e = self.e
        if part == 0:
            if first:
                e(f"v_max3_f32 {v(m)}, {v(b)}, {v(b+1)}, {v(b+1)}")
            else:
                e(f"v_max3_f32 {v(m)}, {v(m)}, {v(b)}, {v(b+1)}")
            e(f"v_max3_f32 {v(m)}, {v(m)}, {v(b+2)}, {v(b+3)}"); e(f"v_max3_f32 {v(m)}, {v(m)}, {v(b+4)}, {v(b+5)}")
        elif part == 1:
            for k in (6, 8, 10): e(f"v_max3_f32 {v(m)}, {v(m)}, {v(b+k)}, {v(b+k+1)}")
        else:
            for k in (12, 14): e(f"v_max3_f32 {v(m)}, {v(m)}, {v(b+k)}, {v(b+k+1)}")

    def sums(self, T, SACC, SUM):
        e = self.e
        for qt in range(3):
            r = SACC(T, qt)
            for k in range(0, 8, 2): e(f"v_pk_add_f32 {v(r+k,2)}, {v(r+k,2)}, {v(r+8+k,2)}")
            for k in range(0, 4, 2): e(f"v_pk_add_f32 {v(r+k,2)}, {v(r+k,2)}, {v(r+4+k,2)}")
            e(f"v_pk_add_f32 {v(r,2)}, {v(r,2)}, {v(r+2,2)}")
            if T == 0: e(f"v_add_f32 {v(SUM+qt)}, {v(r)}, {v(r+1)}")
            else:
                e(f"v_add_f32 {v(r)}, {v(r)}, {v(r+1)}"); e(f"v_add_f32 {v(SUM+qt)}, {v(SUM+qt)}, {v(r)}")

    def store_cb(self, cb):
        e = self.e
        wp = self.pol(self.a.wpol)
        for qt in range(3):
            a0, a1 = self.ACC(cb, 2 * qt), self.ACC(cb, 2 * qt + 1)
            tt = a0
            if self.a.fused == 6:
                wp = self.pol(self.a.xpol)
                if cb == 5:
                    tt = self.ACC(3, 2 * qt)
                    if qt == 0:
                        e(f"s_cmp_eq_u32 {s(S_PP)}, 3"); e(f"s_cselect_b32 {s(S_ST)}, {s(S_ST)}, 0x100000")
            if self.a.defer:
                assert self.a.fused in (0, 1, 3, 7)
                for k in range(4): e(f"v_mul_f32 {v(a0+k)}, {v(8+2*qt)}, {v(a0+k)}")
                for k in range(4): e(f"v_mul_f32 {v(a1+k)}, {v(9+2*qt)}, {v(a1+k)}")
            e(f"v_cvt_pk_bf16_f32 {v(tt)}, {v(a0)}, {v(a0+1)}"); e(f"v_cvt_pk_bf16_f32 {v(tt+1)}, {v(a0+2)}, {v(a0+3)}")
            e(f"v_cvt_pk_bf16_f32 {v(tt+2)}, {v(a1)}, {v(a1+1)}"); e(f"v_cvt_pk_bf16_f32 {v(tt+3)}, {v(a1+2)}, {v(a1+3)}")
            if self.a.fused == 4:
                e(f"buffer_store_dwordx4 {v(tt,4)}, v7, {s(S_R2,4)}, {s(S_ST)} offen offset:{qt*1024}{wp}", tag=("sp", 3 * cb + qt))
                if qt == 2:
                    e(f"s_add_u32 {s(S_ST)}, {s(S_ST)}, 3072"); e("s_nop 0"); e("s_nop 0")
                    return
                continue
            if self.a.own:
                lab = f"L_ow{cb}_{qt}"
                e("#BEGIN")
                e(f"s_sub_u32 {s(S_TMP)}, {s(S_ST)}, s94"); e(f"s_cmp_lt_u32 {s(S_TMP)}, s95"); e(f"s_cbranch_scc1 {lab}")
                e(f"buffer_store_dwordx4 {v(tt,4)}, v7, {s(S_R2,4)}, {s(S_ST)} offen{wp}", tag=("st", cb))
                e(f"#LABEL {lab}_r")
                e("#END")
                self.own_blocks.append((lab, tt))
            else:
                e(f"buffer_store_dwordx4 {v(tt,4)}, v7, {s(S_R2,4)}, {s(S_ST)} offen{wp}", tag=("st", cb))
            if qt < 2: e(f"s_add_u32 {s(S_ST)}, {s(S_ST)}, 4096")
        if self.a.fused == 6:
            e(f"s_add_u32 {s(S_ST)}, {s(S_ST)}, {4096 + 3*12288 - XQ & 0xffffffff}"); e(f"s_cselect_b32 {s(S_TMP)}, 0, {XQ}"); e(f"s_add_u32 {s(S_ST)}, {s(S_ST)}, {s(S_TMP)}")
            return
        e(f"s_add_u32 {s(S_ST)}, {s(S_ST)}, 4096"); e(f"s_cmp_eq_u32 {s(S_ST)}, 86016"); e(f"s_cselect_b32 {s(S_ST)}, 0, {s(S_ST)}")

    def kernel1(self):
        e = self.e
        self.oage = {}; self.sinfo = {}; self.parked = set(); self.nsig = 0; self.own_blocks = []
        self.build_plan()
        e.label(NAME + "_kernel")
        self.prologue()
        snap = e.snapshot(); nst = self.nst
        self.role_A()
        e.restore(snap); self.nst = nst
        e.label("L_roleB")
        self.role_B()
        e.label("L_end1"); e("s_endpgm")
        for lab, tt in self.own_blocks:
            e.label(lab)
            e.raw(f"    v_add_u32 v4, {s(S_TMP)}, v6")
            e.raw(f"    v_add_u32 v4, {self.own_lds}, v4")
            e.raw(f"    ds_write_b128 v4, {v(tt,4)}")
            e.raw(f"    s_waitcnt lgkmcnt(0)")
            e.raw(f"    s_branch {lab}_r")

from gen1 import desc

def reducer2(a):
    per, thr = a.rper, a.rthr
    nwg = 16 * 5376 // per
    assert 5376 % per == 0
    wpg = 5376 // per
    e = Emitter()
    e.label("reduce_kernel")
    e(f"s_cmp_ge_u32 s2, {nwg}"); e("s_cbranch_scc1 L_end2")
    e("s_load_dwordx2 s[4:5], s[0:1], 96")
    e("s_load_dwordx2 s[8:9], s[0:1], 80")
    if a.stamps: e("s_memrealtime s[24:25]")
    e(f"s_mul_hi_u32 s12, s2, {-(-(1<<32)//wpg)}")
    e(f"s_mul_i32 s13, s12, {wpg}"); e("s_sub_u32 s13, s2, s13"); e(f"s_mul_i32 s13, s13, {per}")
    e("v_add_u32 v2, s13, v0")
    e("v_lshlrev_b32 v3, 4, v2")
    if per != thr:
        e("v_mov_b32 v4, 0x200000"); e(f"v_cmp_gt_u32 vcc, {per}, v0"); e("v_cndmask_b32 v3, v4, v3, vcc")
    e(f"s_mul_i32 s16, s12, {16*86016}")
    e(f"s_mov_b32 s6, {16*86016}"); e("s_mov_b32 s7, 0x20000"); e(f"s_mov_b32 s10, {8*96*1792}"); e("s_mov_b32 s11, 0x20000")
    e("s_mov_b32 s18, 0")
    e.wait(lgkm=0)
    if a.stamps: e("s_mov_b64 s[28:29], s[4:5]")
    e("s_add_u32 s4, s4, s16"); e("s_addc_u32 s5, s5, 0")
    rp = (" " + a.rpol) if a.rpol else ""
    for h in range(16):
        e(f"buffer_load_dwordx4 {v(32+4*h,4)}, v3, s[4:7], s18 offen{rp}")
        if h < 15: e("s_add_u32 s18, s18, 86016")
    e("v_lshrrev_b32 v5, 8, v2"); e("v_mul_u32_u24 v6, 43, v5"); e("v_lshrrev_b32 v6, 7, v6")
    e("v_mul_u32_u24 v7, 3, v6"); e("v_sub_u32 v7, v5, v7")
    e("v_and_b32 v8, 15, v2"); e("v_lshl_add_u32 v8, v7, 5, v8"); e("v_mul_u32_u24 v8, 1792, v8")
    e("v_lshl_add_u32 v8, v6, 7, v8"); e("v_bfe_u32 v9, v2, 4, 4"); e("v_lshl_add_u32 v8, v9, 3, v8")
    if per != thr: e("v_cndmask_b32 v8, v4, v8, vcc")
    e("s_and_b32 s19, s12, 7"); e("s_lshr_b32 s20, s12, 3")
    e(f"s_mul_i32 s19, s19, {96*1792}"); e("s_mul_i32 s20, s20, 896"); e("s_add_u32 s19, s19, s20")
    e("s_mov_b32 s22, 0xffff0000")
    for h in range(16):
        for k in range(4):
            r = 32 + 4 * h + k
            if h == 0:
                e(f"v_lshlrev_b32 v{16+2*k}, 16, v{r}"); e(f"v_and_b32 v{17+2*k}, s22, v{r}")
            else:
                e(f"v_lshlrev_b32 v{24+2*k}, 16, v{r}"); e(f"v_and_b32 v{25+2*k}, s22, v{r}")
                e(f"v_pk_add_f32 {v(16+2*k,2)}, {v(16+2*k,2)}, {v(24+2*k,2)}")
    for k in range(4): e(f"v_cvt_pk_bf16_f32 v{24+k}, v{16+2*k}, v{17+2*k}")
    op = (" " + a.opol) if a.opol else ""
    e(f"buffer_store_dwordx2 v[24:25], v8, s[8:11], s19 offen{op}")
    e(f"s_add_u32 s19, s19, {16*1792}")
    e(f"buffer_store_dwordx2 v[26:27], v8, s[8:11], s19 offen{op}")
    if a.stamps:
        e.force_wait("vmcnt(0)")
        e("s_memrealtime s[26:27]"); e.force_wait("lgkmcnt(0)")
        e(f"s_add_u32 s28, s28, {STAMP_OFF + 65536}"); e("s_addc_u32 s29, s29, 0"); e("s_lshl_b32 s13, s2, 4"); e("s_add_u32 s28, s28, s13"); e("s_addc_u32 s29, s29, 0")
        e("v_mov_b32 v10, 0"); e("v_mov_b32 v12, s24"); e("v_mov_b32 v13, s25"); e("v_mov_b32 v14, s26"); e("v_mov_b32 v15, s27")
        e("global_store_dwordx4 v10, v[12:15], s[28:29]")
    e.label("L_end2"); e("s_endpgm")
    return e, nwg

ilist = lambda x: [int(t) for t in x.split(",") if t]

def main(argv=None):
    ap = argparse.ArgumentParser()
    ap.add_argument("-o", default="k3.s")
    ap.add_argument("--stamps", type=int, default=0)
    ap.add_argument("--stamp_ticks", type=ilist, default=[])
    ap.add_argument("--clk", type=int, default=0)
    ap.add_argument("--rot", type=int, default=1)
    ap.add_argument("--nkd", type=int, default=4)
    ap.add_argument("--la", type=float, default=6)
    ap.add_argument("--k0", type=int, default=1)
    ap.add_argument("--kticks", type=ilist, default=[4, 6, 7])
    ap.add_argument("--wrate", type=float, default=2.0)
    ap.add_argument("--alt1", type=int, default=0)
    ap.add_argument("--alt2", type=int, default=0)
    ap.add_argument("--opf", type=int, default=-1)
    ap.add_argument("--thr", type=int, default=-1)
    ap.add_argument("--remap", type=int, default=0)
    ap.add_argument("--diag", type=int, default=0)
    ap.add_argument("--st1", type=int, default=4)
    ap.add_argument("--lsleep", type=int, default=0)
    ap.add_argument("--own", type=int, default=0)
    ap.add_argument("--pace", type=int, default=0)
    ap.add_argument("--p2", default="")
    ap.add_argument("--bgap", type=int, default=1)
    ap.add_argument("--wv", type=int, default=1)
    ap.add_argument("--lag", type=int, default=2)
    ap.add_argument("--qdrain", type=ilist, default=[0, 3])
    ap.add_argument("--odrain", type=ilist, default=[0])
    ap.add_argument("--kpre", type=int, default=2)
    ap.add_argument("--blag", type=int, default=1)
    ap.add_argument("--kmax", type=int, default=2)
    ap.add_argument("--kmax_from", type=int, default=99)
    ap.add_argument("--klag", type=int, default=2)
    ap.add_argument("--kburn", type=int, default=1)
    ap.add_argument("--kkeep", type=int, default=1)
    ap.add_argument("--vtr0", type=int, default=2)
    ap.add_argument("--vtr1", type=int, default=3)
    ap.add_argument("--lv0", type=int, default=10)
    ap.add_argument("--vmax0", type=int, default=3)
    ap.add_argument("--prio", type=int, default=0)
    ap.add_argument("--vend", type=int, default=2)
    ap.add_argument("--vdrain", type=int, default=1)
    ap.add_argument("--opn_end", type=int, default=2)
    ap.add_argument("--park", type=int, default=0)
    ap.add_argument("--parkfast", type=int, default=1)
    ap.add_argument("--oearly", type=int, default=0)
    ap.add_argument("--oe_from", type=int, default=16)
    ap.add_argument("--oe_rate", type=int, default=2)
    ap.add_argument("--lv", type=int, default=6)
    ap.add_argument("--lc", type=int, default=9)
    ap.add_argument("--vcmax", type=int, default=3)
    ap.add_argument("--vmax", type=int, default=2)
    ap.add_argument("--lo", type=int, default=9)
    ap.add_argument("--omax", type=int, default=3)
    ap.add_argument("--ostart", type=int, default=4)
    ap.add_argument("--olag", type=int, default=2)
    ap.add_argument("--opn", type=int, default=2)
    ap.add_argument("--vres", type=int, default=0)
    ap.add_argument("--a_first", type=int, default=1)
    ap.add_argument("--b_first", type=int, default=1)
    ap.add_argument("--b_smx_issue", type=int, default=0)
    ap.add_argument("--defer", type=int, default=0)
    ap.add_argument("--pkfma", type=int, default=0)
    ap.add_argument("--kvpol", default="nt")
    ap.add_argument("--spol", default="")
    ap.add_argument("--wpol", default="sc1")
    ap.add_argument("--rpol", default="")
    ap.add_argument("--opol", default="")
    ap.add_argument("--rper", type=int, default=336)
    ap.add_argument("--rthr", type=int, default=384)
    ap.add_argument("--rlds", type=int, default=0)
    ap.add_argument("--fused", type=int, default=0)
    ap.add_argument("--xpol", default="")
    ap.add_argument("--xlpol", default="sc1")
    ap.add_argument("--yslot", type=int, default=0)
    ap.add_argument("--junk", type=int, default=0)
    ap.add_argument("--junkn", type=int, default=8)
    ap.add_argument("--forceslow", type=int, default=0)
    ap.add_argument("--sig_lag", type=int, default=4)
    ap.add_argument("--flag_lag", type=int, default=1)
    ap.add_argument("--astamp", type=int, default=8)
    ap.add_argument("--psleep", type=int, default=0)
    ap.add_argument("--frpol", default="sc1")
    ap.add_argument("--s16hack", type=int, default=0)
    ap.add_argument("--codepf", type=int, default=0)
    ap.add_argument("--skip", default="")
    ap.add_argument("--padto", type=int, default=0)
    ap.add_argument("--padglob", type=int, default=0)
    ap.add_argument("--verbose", action="store_true")
    a = ap.parse_args(argv)
    g = Gen(a); g.kernel1()
    out = HEADER
    if a.fused:
        out += "; @launch grid=(256,1,1) block=(512,1,1) lds=163840\n"
    else:
        out += f"; @launch kernel={NAME}_kernel grid=(256,1,1) block=(512,1,1) lds=163840\n"
        re_, nwg = reducer2(a)
        out += f"; @launch kernel=reduce_kernel grid=({nwg},1,1) block=({a.rthr},1,1) lds={a.rlds}\n"
    out += '.amdgcn_target "amdgcn-amd-amdhsa--gfx950"\n.text\n'
    out += f".globl {NAME}_kernel\n.p2align 8\n.type {NAME}_kernel,@function\n" + g.e.text()
    if not a.fused:
        out += ".globl reduce_kernel\n.p2align 8\n.type reduce_kernel,@function\n" + re_.text()
    if a.codepf: out += f".fill (49152 - (. - {NAME}_kernel)) / 4, 4, 0xbf810000\n"
    out += '.section .rodata,"a"\n.p2align 6\n' + desc(NAME + "_kernel", 256)
    if not a.fused: out += ".p2align 6\n" + desc("reduce_kernel", 96, 32)
    open(a.o, "w").write(out)
    print(f"{a.o}: k1 insts {g.e.ninst} (nops {g.e.nops}), ticks {len(g.plan)}, stamps {g.nst}", file=sys.stderr)

if __name__ == "__main__":
    main()
```

```python
import sys, argparse
from emit import Emitter

NAME = "concat_heads__mha_block_cached__mha_block_cached__near_ridge"
STAMP_OFF = 200 << 20
SLOT = 8192
STAT = 19 * SLOT
HEADER = open("cdna_kernels/" + NAME + ".s.ref").read().split("; Override launch")[0]

def v(a, n=1): return f"v{a}" if n == 1 else f"v[{a}:{a+n-1}]"
def s(a, n=1): return f"s{a}" if n == 1 else f"s[{a}:{a+n-1}]"

T0, T1 = 14, 15
S_R0, S_R1, S_R2 = 4, 8, 12
S_W, S_M0B, S_SO, S_TMP, S_C = 16, 17, 18, 19, 20
S_BLK, S_H, S_B, S_PP, S_U = 21, 22, 23, 24, 25
S_R7, S_R4, S_RB = 26, 27, 28
S_A0, S_A1, S_A2, S_A3, S_ST = 29, 30, 31, 32, 33
FLAG_OFF = 32 << 20
XQ = 7 * 4 * 12288
CSTR = 4352
QBUF = [0, 12288]
PBUF = [0, 24576]
OBUF = [0, 0]

class Gen:
    def __init__(self, a):
        self.a = a
        self.e = Emitter()
        D = dict(mfma=("v_mfma",), m32=("v_mfma_f32_32",), m16=("v_mfma_f32_16",), ds=("ds_",), valu=("v_exp", "v_fma_f32", "v_max", "v_cvt_pk", "v_pk_", "v_mul_f32", "v_add_f32", "v_rcp"), store=("buffer_store",), dma=("buffer_load",))
        self.e.drop = tuple(x for k in a.skip.split(",") if k for x in D[k])
        self.nst = 0

    def stamp(self, wait=True):
        if self.a.stamps:
            i = self.nst; self.nst += 1
            assert i < 16 or self.a.clk == 2
            if self.a.clk == 2:
                if i >= 15: self.nst -= 1; return
                self.e(f"s_memrealtime {s(64+2*i,2)}"); self.e(f"s_memtime {s(66+2*i,2)}"); self.nst += 1
            else:
                self.e(f"{'s_memtime' if self.a.clk else 's_memrealtime'} {s(64+2*i,2)}")
            if wait: self.e.force_wait("lgkmcnt(0)")

    def obuf(self, c): return 12288 if (self.a.nd and c % 2 == 1) else 0

    def pol(self, p): return (" " + p) if p else ""

    def issue(self, item, slot):
        e = self.e; a = self.a
        ty = item[0]
        sh, kv = self.pol(a.spol), self.pol(a.kvpol)
        if ty == "X":
            n = item[1]
            for j in range(3):
                e(f"s_add_u32 m0, {s(S_M0B)}, {(n%4)*12288 + j*4096}")
                e(f"s_add_u32 {s(S_SO)}, {s(S_A0)}, {j*32*896}")
                e(f"buffer_load_dwordx4 v1, {s(S_R0,4)}, {s(S_SO)} offen{sh} lds", tag=item)
            e(f"s_add_u32 {s(S_A0)}, {s(S_A0)}, 128"); e(f"s_cmp_eq_u32 {s(S_A0)}, 896"); e(f"s_cselect_b32 {s(S_A0)}, 0, {s(S_A0)}")
        elif ty == "W":
            c, n = divmod(item[1], 7)
            e(f"s_add_u32 m0, {s(S_M0B)}, {slot*SLOT}")
            e(f"s_add_u32 {s(S_SO)}, {s(S_A1)}, {s(S_A2)}")
            e(f"buffer_load_dwordx4 v2, {s(S_R1,4)}, {s(S_SO)} offen{sh} lds", tag=item)
            e(f"s_add_u32 m0, {s(S_M0B)}, {slot*SLOT+4096}")
            e(f"s_add_u32 {s(S_SO)}, {s(S_SO)}, {32*8192}")
            e(f"buffer_load_dwordx4 v2, {s(S_R1,4)}, {s(S_SO)} offen{sh} lds", tag=item)
            e(f"s_add_u32 {s(S_A1)}, {s(S_A1)}, {64*8192}"); e(f"s_cmp_eq_u32 {s(S_A1)}, {7*64*8192}"); e(f"s_cselect_b32 {s(S_A1)}, 0, {s(S_A1)}")
            if n == 6:
                e(f"s_add_u32 {s(S_A2)}, {s(S_A2)}, 128"); e(f"s_and_b32 {s(S_A2)}, {s(S_A2)}, 511")
        elif ty == "V":
            c, i = divmod(item[1], 8)
            if item[1] == 0: self.setup_dv()
            for j in range(2):
                e(f"s_add_u32 m0, {s(S_M0B)}, {slot*SLOT + j*4096}")
                e(f"s_add_u32 {s(S_SO)}, {s(S_A3)}, {(i*64+j*32)*512}")
                e(f"buffer_load_dwordx4 v1, {s(S_R2,4)}, {s(S_SO)} offen{kv} lds", tag=item)
            if i == 7:
                e(f"s_add_u32 {s(S_A3)}, {s(S_A3)}, 128"); e(f"s_and_b32 {s(S_A3)}, {s(S_A3)}, 511")
        elif ty == "K":
            c, T = divmod(item[1], 4)
            for p in range(4):
                e(f"s_add_u32 m0, {s(S_A3)}, {slot*SLOT + p*1024}")
                e(f"s_add_u32 {s(S_SO)}, {s(S_A0)}, {(128*T+8*p)*512}")
                e(f"buffer_load_dwordx4 v{1+(p&1)}, {s(S_R0,4)}, {s(S_SO)} offen{kv} lds", tag=item)
            if T == 3:
                e(f"s_add_u32 {s(S_A0)}, {s(S_A0)}, 128"); e(f"s_and_b32 {s(S_A0)}, {s(S_A0)}, 511")
        elif ty == "O":
            c, n = divmod(item[1], 7)
            e(f"s_add_u32 m0, {s(S_M0B)}, {slot*SLOT}")
            e(f"s_add_u32 {s(S_SO)}, {s(S_A1)}, {s(S_A2)}")
            e(f"buffer_load_dwordx4 v3, {s(S_R1,4)}, {s(S_SO)} offen{sh} lds", tag=item)
            e(f"s_add_u32 m0, {s(S_M0B)}, {slot*SLOT+4096}")
            e(f"s_add_u32 {s(S_SO)}, {s(S_SO)}, {32*896}")
            e(f"buffer_load_dwordx4 v3, {s(S_R1,4)}, {s(S_SO)} offen{sh} lds", tag=item)
            e(f"s_add_u32 {s(S_A2)}, {s(S_A2)}, 128"); e(f"s_cmp_eq_u32 {s(S_A2)}, 896"); e(f"s_cselect_b32 {s(S_A2)}, 0, {s(S_A2)}")
            if n == 6:
                e(f"s_add_u32 {s(S_A1)}, {s(S_A1)}, 57344"); e(f"s_cmp_eq_u32 {s(S_A1)}, {4*57344}"); e(f"s_cselect_b32 {s(S_A1)}, 0, {s(S_A1)}")

    def issue_parts(self, item, slot):
        class Rec:
            def __init__(s2): s2.l = []
            def __call__(s2, t, tag=None): s2.l.append((t, tag))
        real = self.e; rec = Rec(); self.e = rec
        self.issue(item, slot)
        self.e = real
        parts = []; cur = []
        for t, tag in rec.l:
            cur.append((t, tag))
            if t.startswith("buffer_load"): parts.append(cur); cur = []
        parts[-1] += cur
        return [(lambda p=p: [real(t, tag=tag) for t, tag in p]) for p in parts]

    def store_parts(self, cb):
        class Rec:
            def __init__(s2): s2.l = []
            def __call__(s2, t, tag=None): s2.l.append((t, tag))
        real = self.e; rec = Rec(); self.e = rec
        self.store_cb(cb)
        self.e = real
        L = rec.l
        parts = []; grp = None
        for x in L[:-3]:
            if x[0] == "#BEGIN": grp = []
            elif x[0] == "#END": parts.append(grp); grp = None
            elif grp is not None: grp.append(x)
            else: parts.append([x])
        parts[-1] += L[-3:]
        def run(p):
            for t, tag in p:
                if t.startswith("#LABEL"): real.label(t.split()[1])
                else: real(t, tag=tag)
        return [(lambda p=p: run(p)) for p in parts]

    def setup_dv(self):
        e = self.e
        e(f"v_bfe_u32 v46, v0, 4, 2"); e("v_lshlrev_b32 v46, 1, v46"); e("v_and_b32 v47, 7, v0"); e("v_xor_b32 v46, v46, v47"); e("v_lshlrev_b32 v46, 4, v46")
        e("v_lshrrev_b32 v1, 3, v0"); e("v_lshl_add_u32 v1, v1, 9, v46")

    def build_plan(self):
        a = self.a
        nkd = a.nkd
        kslots = [19 - 2 * (i + 1) for i in range(nkd)]
        self.KBASE = min(kslots)
        free = list(range(6, self.KBASE)) + [19]
        WONLY = {3, 4, 5, 19}
        kfree = sorted(kslots)
        plan = []
        slot = {}
        def newtick(bar=True):
            P = dict(bar=bar, A=dict(need=None, issue=[], act=[]), B=dict(need=None, issue=[], act=[])); plan.append(P); return P
        pend = []
        astr = []
        for n in range(7): astr += [("X", n), ("W", n)]
        astr += [("W", i) for i in range(7, 28)]
        ia = 0; ca = 0; xdone = 0
        ik = 0; ck = 0
        def cost(it): return 1.5 if it[0] == "X" else 1.0
        def issueA(P, la):
            nonlocal ia
            while ia < len(astr) and sum(cost(x) for x in astr[ca:ia + 1]) <= la:
                it = astr[ia]
                if it[0] == "X":
                    if it[1] - 4 >= xdone: break
                    P["A"]["issue"].append((it, None))
                else:
                    if not free: break
                    slot[it] = free.pop(0); P["A"]["issue"].append((it, slot[it]))
                ia += 1
        def issueK(P, n):
            nonlocal ik
            while n > 0 and ik < 16 and kfree:
                slot[("K", ik)] = kfree.pop(0); P["B"]["issue"].append((("K", ik), slot[("K", ik)])); ik += 1; n -= 1
        P = newtick(False); issueA(P, a.la); issueK(P, a.k0)
        P["A"]["act"].append(("init",)); P["B"]["act"].append(("init",))
        qwritten = -1; qready = -1; xread = 0
        tick = 0
        wacc = 0.0
        kage = {i: 0 for i in range(ik)}
        iv = 0
        def issueV(P, n):
            nonlocal iv
            while n > 0 and iv < 32 and [x for x in free if x not in WONLY]:
                slot[("V", iv)] = [x for x in free if x not in WONLY][0]; free.remove(slot[("V", iv)]); P["A"]["issue"].append((("V", iv), slot[("V", iv)])); iv += 1; n -= 1
        ckprev = 0; vinit = False; qdefer = None; io = 0; npark = 0; parked_free = []
        while ck < 16:
            tick += 1
            P = newtick()
            free += pend; pend = []; free.sort(); xdone = xread; qready = qwritten; ckprev = ck
            kfree += parked_free; parked_free = []
            if qdefer is not None:
                qwritten = qdefer; qdefer = None; P["A"]["act"].append(("flushw",))
            if ca < 14: n = 2
            else:
                wacc += a.wrate; n = int(wacc + 1e-9); wacc -= n
            took = []
            while n > 0 and ca < min(ia, len(astr)):
                it = astr[ca]
                if it[0] == "W" and it[1] % 7 == 6 and it[1] // 7 >= 2 and ckprev < 4 * (it[1] // 7 - 1):
                    break
                took.append(it); ca += 1; n -= 1
                if it[0] == "X":
                    P["A"]["act"].append(("X", it[1])); xread = it[1] + 1
                    if it[1] == 6: pend += [3, 4, 5]
                else:
                    P["A"]["act"].append(("W", it[1], slot[it])); pend.append(slot[it])
                    if it[1] % 7 == 6:
                        cq = it[1] // 7
                        if a.lag == 0 or cq in a.qdrain:
                            P["A"]["act"].append(("drain",)); qwritten = cq; break
                        else: qdefer = cq
            if qdefer is not None and took[-1] != ("W", 7 * qdefer + 6):
                qwritten = qdefer; qdefer = None; P["A"]["act"].append(("flushw",))
            if took: P["A"]["need"] = took[-1]
            if not a.alt1 or tick < 8 or tick % 2 == 1: issueA(P, a.la)
            if qready == 3 and not vinit:
                P["A"]["act"].append(("initv",)); vinit = True
            if qready < 0 and npark < a.park and npark < ik and tick - kage[npark] >= 2:
                P["B"]["act"].append(("Kpark", npark)); parked_free.append(slot[("K", npark)]); self.parked.add(npark); npark += 1
            if qwritten == 0 and qready < 0 and 0 not in self.parked: P["B"]["act"].append(("Kpre", 0))
            issued = False
            n = a.kmax if (ca == len(astr) and not took) or tick >= a.kmax_from else 1
            last = ik == 16 and qready == 3 and 16 - ck <= a.kburn
            while ck < ik and ck // 4 <= qready and (last or (n > 0 and tick - kage[ck] >= a.klag)):
                sl = slot[("K", ck)]
                P["B"]["act"].append(("S", ck, sl)); self.sinfo[ck] = (tick, qready); ck += 1; n -= 1
                if ck - 1 in self.parked:
                    n += a.parkfast if len([x for x in P["B"]["act"] if x[0] == "S"]) < 2 else 0
                    continue
                if a.alt1 and ia < len(astr):
                    if tick % 2 == 0 and ik < 16 and (kfree or tick == 8):
                        if kfree:
                            k2_ = kfree.pop(0); slot[("K", ik)] = k2_; P["B"]["issue"].append((("K", ik), k2_)); kage[ik] = tick; ik += 1
                        if ik < 16:
                            slot[("K", ik)] = sl; P["B"]["act"].append(("issue", ("K", ik), sl)); kage[ik] = tick; ik += 1
                        else: kfree.append(sl)
                    else: kfree.append(sl)
                    issued = True
                elif ik < 16 and not issued and not kfree:
                    slot[("K", ik)] = sl; P["B"]["act"].append(("issue", ("K", ik), sl)); kage[ik] = tick; ik += 1; issued = True
                else:
                    kfree.append(sl)
            if not issued and ik < 16 and (tick in a.kticks or tick >= 8):
                cand = [x for x in kfree if not any(ac[0] == "S" and ac[2] == x and ac[1] not in self.parked for ac in P["B"]["act"])]
                if cand:
                    kfree.remove(cand[0]); slot[("K", ik)] = cand[0]; P["B"]["issue"].append((("K", ik), cand[0])); kage[ik] = tick; ik += 1
            while tick >= 8 and len(kfree) > min(16 - ik, a.kkeep):
                k = kfree.pop(0); pend += [k, k + 1]
            if ia == len(astr) and tick >= a.oe_from:
                n = a.oe_rate
                while n > 0 and io < a.oearly and [x for x in free if x not in WONLY]:
                    sl = [x for x in free if x not in WONLY][-1]; free.remove(sl)
                    slot[("O", io)] = sl; P["B"]["issue"].append((("O", io), sl)); self.oage[("O", io)] = -9; io += 1; n -= 1
            if ik == 16 and kage[15] < tick and ia == len(astr):
                issueV(P, a.vtr0 if last else 2)
            assert tick < 100
        assert vinit
        self.kage = kage; self.kslot = {i: slot[("K", i)] for i in range(16)}
        P["B"]["act"].append(("maxw",))
        P = newtick()
        free += pend; pend = []; free.sort()
        assert not kfree and all(x in free for x in WONLY)
        for x in sorted(WONLY): free.remove(x)
        WONLY.clear()
        P["B"]["act"] += [("maxr",), ("smx", 0)]
        issueV(P, a.vtr1)
        ostr = [("O", i) for i in range(28)]
        co = 0; cv = 0
        pw = 0
        oready = oloaded = owritten = -1
        odefer = None; oacc = 0.0
        t2 = 0
        if a.p2:
            spec = [tuple(int(x) for x in t.split(",")) for t in a.p2.split("/")]
            for (vi, vc, oi, oc) in spec:
                t2 += 1
                P = newtick()
                free += pend; pend = []; free.sort(); oready = owritten
                if odefer is not None:
                    owritten = odefer; odefer = None; P["A"]["act"].append(("flushw",))
                if t2 <= 4:
                    P["A"]["act"].append(("pread", t2 - 1))
                    if t2 <= 3: P["B"]["act"].append(("smx", t2))
                    if t2 == 4: P["B"]["act"].append(("inito",)); pend += [2, 3, 4, 5]
                if t2 == 5: pend += [19]
                for k in range(vc):
                    assert cv < iv, f"t2={t2}: V{cv} not issued"
                    assert not ((cv + 1) % 8 == 0 and oloaded < (cv + 1) // 8 - 2), f"t2={t2}: O buffer busy"
                    P["A"]["act"].append(("V", cv, slot[("V", cv)])); pend.append(slot[("V", cv)]); P["A"]["need"] = ("V", cv); cv += 1
                    if cv % 8 == 0:
                        if k + 1 < vc: P["A"]["act"].append(("flushw",)); owritten = cv // 8 - 1
                        elif cv == 32 or (cv // 8 - 1) in a.odrain: P["A"]["act"].append(("drain",)); owritten = cv // 8 - 1
                        else: odefer = cv // 8 - 1
                if oloaded < oready and co == 7 * (oloaded + 1):
                    oloaded += 1; P["B"]["act"].append(("oread", oloaded))
                for k in range(oc):
                    assert co < io and co < 7 * (oloaded + 1), f"t2={t2}: O{co} not consumable"
                    P["B"]["act"].append(("O", co, slot[("O", co)])); pend.append(slot[("O", co)]); P["B"]["need"] = ("O", co); co += 1
                assert len(free) >= vi + oi, f"t2={t2}: slots {free} < {vi+oi}"
                issueV(P, vi)
                for k in range(oi):
                    slot[("O", io)] = free.pop(); P["B"]["issue"].append((("O", io), slot[("O", io)])); io += 1
                P["burst"] = t2 > 4
            assert cv == 32 and co == 28 and oloaded == 3, (cv, co, oloaded)
        while cv < 32 or co < 28 or oloaded < 3:
            t2 += 1
            P = newtick()
            free += pend; pend = []; free.sort(); oready = owritten
            if odefer is not None:
                owritten = odefer; odefer = None; P["A"]["act"].append(("flushw",))
            if t2 <= 4:
                P["A"]["act"].append(("pread", t2 - 1))
                if t2 <= 3: P["B"]["act"].append(("smx", t2))
                if t2 == 4: P["B"]["act"].append(("inito",)); pend += [3, 4, 5] if a.nd else [2, 3, 4, 5]
            if t2 == 5: pend += [19]
            if a.nd and oready == 3 and co == 21 - a.nd and io == 28:
                f0 = 7 - a.nd
                seqf = [21 + k for k in range(f0)]
                rest2 = list(range(f0, 7))
                lead = max(0, 4 - f0)
                seqf += [21 + k for k in rest2[:lead]] + [14 + k for k in rest2[:lead]]
                for k in rest2[lead:]: seqf += [21 + k, 14 + k]
                P["B"]["act"].append(("oread", 3))
                for i in seqf: P["B"]["act"].append(("O", i, slot[("O", i)]))
                P["B"]["need"] = ("O", 27)
                break
            if cv < 32:
                if t2 <= 4: nvt = 2
                elif cv >= 32 - a.vend: nvt = 1
                else:
                    nvt = max(2 if iv < 32 or cv + 2 <= 32 - a.vend else 1, min(a.vcmax, iv - a.lc - cv))
                    nvt = min(nvt, 32 - a.vend - cv)
                nvt = min(nvt, iv - cv)
                k = 0
                while k < nvt:
                    if (cv + 1) % 8 == 0 and oloaded < (cv + 1) // 8 - (3 if a.nd else 2): break
                    P["A"]["act"].append(("V", cv, slot[("V", cv)])); pend.append(slot[("V", cv)]); P["A"]["need"] = ("V", cv); cv += 1; k += 1
                    if cv % 8 == 0:
                        if k < nvt and a.lag:
                            P["A"]["act"].append(("flushw",)); owritten = cv // 8 - 1
                        elif a.lag == 0 or cv == 32 or (cv // 8 - 1) in a.odrain:
                            P["A"]["act"].append(("drain",)); owritten = cv // 8 - 1
                        else: odefer = cv // 8 - 1
                if cv >= 32 - a.vend and a.vdrain: P["A"]["act"].append(("drain",))
            if oloaded < oready and co == 7 * (oloaded + 1):
                oloaded += 1; P["B"]["act"].append(("oread", oloaded))
            nop = 7 if oloaded == 3 else (a.opn_end if (cv > 32 - a.vend and cv < 32) else a.opn)
            if a.opr and oloaded >= 0 and cv < 32:
                oacc = min(oacc + a.opr, 2.0); nop = int(oacc + 1e-9); oacc -= nop
            while nop > 0 and co < 7 * (oloaded + 1) and (not a.nd or co < 21 - a.nd) and co < io and (("O", co) in self.oage and t2 - self.oage[("O", co)] >= a.olag or cv >= 32):
                P["B"]["act"].append(("O", co, slot[("O", co)])); pend.append(slot[("O", co)]); P["B"]["need"] = ("O", co); co += 1; nop -= 1
            lv = a.lv0 if t2 <= 4 else a.lv
            if t2 <= 4 or not a.alt2 or t2 % 2 == 0 or io == 28:
                issueV(P, max(0, min(a.vmax0 if t2 <= 4 else a.vmax, cv + lv - iv)))
            if t2 >= a.ostart and (not a.alt2 or t2 % 2 == 1 or iv == 32):
                n = a.omax
                while n > 0 and io < 28 and free and io < co + a.lo and len(free) > (1 if iv < 32 else 0) * a.vres:
                    slot[("O", io)] = free.pop(); P["B"]["issue"].append((("O", io), slot[("O", io)])); self.oage[("O", io)] = t2; io += 1; n -= 1
            assert t2 < 100, "plan stuck"
        self.plan = plan
        busy = {slot[("O", i)] for i in range(21 - a.nd, 28)}
        self.own_lds = [x for x in range(3, 20) if x not in busy][0] * SLOT
        if a.verbose:
            f = lambda L: " ".join(str(x[0]) + (str(x[1]) if len(x) > 1 else "") for x in L)
            g = lambda L: " ".join(f"{x[0][0]}{x[0][1]}@{x[1]}" for x in L)
            for i, P in enumerate(plan):
                print(f"{i:2d} A[need {P['A']['need']} iss {g(P['A']['issue'])} act {f(P['A']['act'])}]  B[need {P['B']['need']} iss {g(P['B']['issue'])} act {f(P['B']['act'])}]", file=sys.stderr)

    def prologue(self):
        e = self.e; a = self.a
        e("s_cmp_ge_u32 s2, 256"); e("s_cbranch_scc1 L_end1")
        e("s_load_dwordx16 s[40:55], s[0:1], 0")
        e("s_load_dwordx4 s[56:59], s[0:1], 64")
        e("s_load_dwordx2 s[60:61], s[0:1], 96")
        self.stamp(wait=False)
        if a.padto: e("s_memrealtime s[96:97]")
        e("s_and_b32 s3, s2, 7"); e("s_lshr_b32 s39, s2, 3")
        if a.remap == 1:
            e("s_and_b32 s38, s39, 3"); e("s_lshl_b32 s38, s38, 3"); e("s_lshr_b32 s39, s39, 2"); e("s_or_b32 s39, s39, s38")
        if a.remap == 2:
            e("s_xor_b32 s39, s39, 8")
        e(f"s_lshr_b32 {s(S_PP)}, s39, 3"); e("s_lshl_b32 s3, s3, 2"); e(f"s_add_u32 s3, s3, {s(S_PP)}")
        e(f"s_lshr_b32 {s(S_BLK)}, s3, 4"); e(f"s_and_b32 {s(S_H)}, s3, 15"); e(f"s_and_b32 {s(S_B)}, s39, 7")
        if a.stag:
            e(f"s_bitcmp1_b32 {s(S_B)}, {a.stagbit}"); e("s_cbranch_scc0 L_nostag")
            for _ in range(a.stag): e("s_sleep 16")
            e.label("L_nostag")
        e(f"v_lshrrev_b32 {v(T0)}, 6, v0")
        e(f"v_readfirstlane_b32 {s(S_W)}, {v(T0)}")
        e("v_and_b32 v0, 255, v0")
        if a.rot:
            e(f"s_lshr_b32 {s(S_RB)}, {s(S_B)}, 2"); e(f"s_and_b32 {s(S_R4)}, {s(S_B)}, 3")
            e(f"s_mul_i32 {s(S_RB)}, {s(S_RB)}, 3")
            e(f"s_lshl_b32 {s(S_R7)}, {s(S_PP)}, 1"); e(f"s_add_u32 {s(S_R7)}, {s(S_R7)}, {s(S_RB)}")
            e(f"s_cmp_ge_u32 {s(S_R7)}, 7"); e(f"s_cselect_b32 {s(S_TMP)}, 7, 0"); e(f"s_sub_u32 {s(S_R7)}, {s(S_R7)}, {s(S_TMP)}")
        else:
            for r in (S_R7, S_R4, S_RB): e(f"s_mov_b32 {s(r)}, 0")
        if a.fused == 6:
            e(f"s_lshl_b32 {s(S_TMP)}, {s(S_PP)}, 1"); e(f"s_add_u32 {s(S_TMP)}, {s(S_TMP)}, 2"); e(f"s_and_b32 {s(S_TMP)}, {s(S_TMP)}, 7")
            e(f"s_add_u32 {s(S_RB)}, {s(S_RB)}, {s(S_TMP)}")
            e(f"s_cmp_ge_u32 {s(S_RB)}, 7"); e(f"s_cselect_b32 {s(S_TMP)}, 7, 0"); e(f"s_sub_u32 {s(S_RB)}, {s(S_RB)}, {s(S_TMP)}")
        e(f"s_and_b32 {s(S_U)}, {s(S_W)}, 3"); e(f"s_lshl_b32 {s(S_M0B)}, {s(S_U)}, 10")
        e(f"s_lshl_b32 s34, {s(S_B)}, 4"); e(f"s_add_u32 s34, s34, {s(S_H)}"); e("s_lshl_b32 s35, s34, 18")
        if a.diag == 2: e("s_xor_b32 s35, s35, 0x40000")
        for S in (S_R0, S_R1, S_R2): e(f"s_mov_b32 {s(S+3)}, 0x20000")
        e(f"s_cmp_ge_u32 {s(S_W)}, 4"); e("s_cbranch_scc1 L_roleB")

    def bar(self, P, R):
        e = self.e
        if P["bar"]:
            need = P[R]["need"]
            if need is not None: e.wait_tag(need, lgkm=0)
            else: e.wait(lgkm=0)
            e.barrier()

    def role_A(self):
        e = self.e; a = self.a
        ACC = 16; LINV = 40; XA = 43; QA = 45
        UB = [4, 48, 56]
        VA0, VA1, OA = 3, 12, 13
        FR = lambda qt, kap: 64 + (kap * 3 + qt) * 4
        e("v_lshrrev_b32 v46, 3, v0"); e("v_and_b32 v47, 7, v0")
        e(f"v_bfe_u32 {v(T0)}, v0, 4, 3"); e(f"v_xor_b32 {v(T0)}, {v(T0)}, v47"); e(f"v_lshlrev_b32 {v(T0)}, 4, {v(T0)}")
        e("v_mul_u32_u24 v1, 896, v46"); e(f"v_add_u32 v1, v1, {v(T0)}")
        e(f"v_bfe_u32 {v(T0)}, v0, 4, 1"); e(f"v_bfe_u32 {v(T1)}, v0, 6, 1"); e(f"v_lshl_add_u32 {v(T0)}, {v(T1)}, 1, {v(T0)}")
        e(f"v_lshlrev_b32 {v(T0)}, 1, {v(T0)}"); e(f"v_xor_b32 {v(T0)}, {v(T0)}, v47"); e(f"v_lshlrev_b32 {v(T0)}, 4, {v(T0)}")
        e(f"v_lshl_add_u32 v2, v46, 13, {v(T0)}")
        e(f"s_lshl_b32 {s(S_A0)}, {s(S_R7)}, 7"); e(f"s_lshl_b32 {s(S_A1)}, {s(S_R7)}, 19"); e(f"s_lshl_b32 {s(S_A2)}, {s(S_R4)}, 7"); e(f"s_mov_b32 {s(S_A3)}, {s(S_A2)}")
        e(f"s_mov_b32 {s(S_R0+2)}, 86016"); e(f"s_mov_b32 {s(S_R1+2)}, {447*8192+512}"); e(f"s_mov_b32 {s(S_R2+2)}, 262144")
        e(f"s_mul_i32 s36, {s(S_B)}, 86016"); e(f"s_lshl_b32 s37, {s(S_H)}, 9")
        if a.diag == 1: e("s_xor_b32 s37, s37, 512")
        e(f"s_cmp_eq_u32 {s(S_BLK)}, 0")
        e.wait(lgkm=0)
        e(f"s_cselect_b64 {s(S_R0,2)}, s[40:41], s[50:51]")
        e(f"s_cselect_b64 {s(S_R1,2)}, s[46:47], s[56:57]")
        e(f"s_cselect_b64 {s(S_R2,2)}, s[44:45], s[54:55]")
        for S, o in ((S_R0, 36), (S_R1, 37), (S_R2, 35)):
            e(f"s_add_u32 {s(S)}, {s(S)}, s{o}"); e(f"s_addc_u32 {s(S+1)}, {s(S+1)}, 0")
        pending = []
        for ti, P in enumerate(self.plan):
            self.bar(P, "A")
            iss = list(P["A"]["issue"])
            acts = P["A"]["act"]
            units = []
            for act in acts:
                if act[0] in "WV": units += [(act[0], act[1], act[2], 0), (act[0], act[1], act[2], 1)]
            def uread(u, b):
                ty, i, sl, k2 = u
                second = 512 if ty == "W" else 1024
                if k2 == 0:
                    e(f"v_add_u32 {v(T0)}, {sl*SLOT}, {v(VA0)}"); e(f"v_add_u32 {v(T1)}, {sl*SLOT}, {v(VA1)}")
                for dt in range(2):
                    e(f"ds_read_b64_tr_b16 {v(b+4*dt,2)}, {v(T0+dt)} offset:{4096*k2}")
                    e(f"ds_read_b64_tr_b16 {v(b+4*dt+2,2)}, {v(T0+dt)} offset:{4096*k2+second}")
            def umfma(u, b):
                ty, i, sl, k2 = u
                kap = 2 * (i % (7 if ty == "W" else 8)) + k2
                for dt in range(2):
                    for qt in range(3):
                        acc = ACC + 12 * dt + 4 * qt
                        c = "0" if kap == 0 else v(acc, 4)
                        e(f"v_mfma_f32_16x16x32_bf16 {v(acc,4)}, {v(b+4*dt,4)}, {v(FR(qt,kap),4)}, {c}")
            for act in acts:
                if act[0] == "init":
                    for it in iss: self.issue(*it)
                    iss = []
                    e(f"v_and_b32 {v(T0)}, 15, v0"); e(f"v_bfe_u32 {v(T1)}, v0, 7, 1"); e(f"v_lshl_add_u32 v46, {v(T1)}, 4, {v(T0)}")
                    e(f"v_bfe_u32 {v(T0)}, v0, 1, 3"); e(f"v_bfe_u32 {v(T1)}, v0, 4, 2"); e(f"v_xor_b32 {v(T1)}, {v(T1)}, {v(T0)}"); e(f"v_lshlrev_b32 {v(T1)}, 4, {v(T1)}")
                    e(f"v_lshl_add_u32 {v(XA)}, v46, 7, {v(T1)}"); e(f"v_xor_b32 {v(XA+1)}, 64, {v(XA)}")
                    e(f"v_bfe_u32 {v(T1)}, v0, 5, 1"); e(f"v_bfe_u32 v47, v0, 6, 1"); e(f"v_lshl_add_u32 {v(T1)}, v47, 2, {v(T1)}")
                    e(f"v_xor_b32 {v(T1)}, {v(T1)}, {v(T0)}"); e(f"v_lshlrev_b32 {v(T1)}, 4, {v(T1)}"); e(f"v_lshl_add_u32 {v(QA)}, v46, 7, {v(T1)}")
                    e(f"v_bfe_u32 {v(T1)}, v0, 4, 1"); e(f"v_lshl_add_u32 {v(QA)}, {v(T1)}, 3, {v(QA)}"); e(f"v_xor_b32 v13, 32, {v(QA)}")
                    e(f"v_bfe_u32 {v(T0)}, v0, 2, 2"); e(f"v_bfe_u32 {v(T1)}, v0, 4, 2")
                    e(f"v_lshl_add_u32 {v(VA0)}, {v(T1)}, 3, {v(T0)}"); e(f"v_lshlrev_b32 {v(VA0)}, 7, {v(VA0)}")
                    e(f"v_bfe_u32 {v(T0)}, v0, 3, 2"); e(f"v_lshlrev_b32 {v(T1)}, 1, v47")
                    e(f"v_xor_b32 {v(T0)}, {v(T0)}, {v(T1)}"); e(f"v_lshl_add_u32 {v(VA0)}, {v(T0)}, 5, {v(VA0)}")
                    e(f"v_and_b32 {v(T0)}, 3, v0"); e(f"v_lshl_add_u32 {v(VA0)}, {v(T0)}, 3, {v(VA0)}")
                    e(f"v_xor_b32 {v(VA1)}, 32, {v(VA0)}")
                elif act[0] == "X":
                    n = act[1]
                    for k2 in range(2):
                        for qt in range(3):
                            e(f"ds_read_b128 {v(FR(qt, 2*n+k2),4)}, {v(XA+k2)} offset:{(n%4)*12288 + qt*4096}")
                elif act[0] == "initv":
                    if a.fused == 6:
                        assert not e.vm
                        self.srd6()
                        e("v_and_b32 v46, 1, v0"); e(f"s_and_b32 {s(S_TMP)}, s63, 12"); e(f"v_mul_u32_u24 v46, {s(S_TMP)}, v46"); e("v_sub_u32 v46, s63, v46")
                        self.poll("L_pc", "buffer_load_dword v47, v46, s[40:43], 0 offen sc1", "v_lshrrev_b32 v45, 24, v47|v_cmp_le_u32 vcc, 4, v45")
                        e("v_readfirstlane_b32 s48, v47"); e(f"s_lshl_b32 {s(S_TMP)}, 4, s62"); e(f"s_add_u32 {s(S_TMP)}, {s(S_TMP)}, 0x4000000")
                        e(f"s_cmp_eq_u32 s48, {s(S_TMP)}"); e(f"s_cselect_b32 s48, {0 if not a.forceslow else 1}, 1")
                    if a.fused == 4:
                        assert not e.vm
                        self.flag_srd()
                        e("v_mov_b32 v46, 0")
                        self.poll("L_pc", "buffer_load_dword v47, v46, s[40:43], s63 offen sc1", "v_cmp_le_u32 vcc, 1, v47")
                    if a.fused in (3, 7): self.flag_srd()
                    if a.s16:
                        e(f"v_bfe_u32 {v(T0)}, v0, 2, 4"); e(f"v_lshlrev_b32 {v(VA0)}, 7, {v(T0)}")
                    else:
                        e(f"v_bfe_u32 {v(T0)}, v0, 2, 3"); e(f"v_bfe_u32 {v(T1)}, v0, 5, 1")
                        e(f"v_lshl_add_u32 {v(VA0)}, {v(T1)}, 4, {v(T0)}"); e(f"v_lshlrev_b32 {v(VA0)}, 7, {v(VA0)}")
                    e(f"v_bfe_u32 {v(T0)}, v0, 3, 2"); e(f"v_bfe_u32 {v(T1)}, v0, 6, 1"); e(f"v_lshlrev_b32 {v(T1)}, 1, {v(T1)}")
                    e(f"v_xor_b32 {v(T0)}, {v(T0)}, {v(T1)}"); e(f"v_lshl_add_u32 {v(VA0)}, {v(T0)}, 5, {v(VA0)}")
                    e(f"v_and_b32 {v(T0)}, 3, v0"); e(f"v_lshl_add_u32 {v(VA0)}, {v(T0)}, 3, {v(VA0)}")
                    e(f"v_xor_b32 {v(VA1)}, 32, {v(VA0)}")
                    e(f"v_and_b32 {v(T0)}, 63, v0"); e(f"v_lshlrev_b32 {v(XA)}, 4, {v(T0)}")
                    e(f"v_bfe_u32 {v(T0)}, v0, 7, 1"); e(f"v_lshl_add_u32 {v(XA)}, {v(T0)}, 10, {v(XA)}")
                    e(f"v_bfe_u32 {v(T1)}, v0, 6, 1"); e(f"v_mul_u32_u24 {v(T1)}, 6144, {v(T1)}"); e(f"v_add_u32 {v(OA)}, {v(XA)}, {v(T1)}")
                    e(f"v_and_b32 {v(T1)}, 15, v0"); e(f"v_lshl_add_u32 {v(T0)}, {v(T0)}, 4, {v(T1)}"); e(f"v_lshlrev_b32 {v(T0)}, {6 if a.s16 else 5}, {v(T0)}")
                    e(f"v_add_u32 {v(XA+1)}, {STAT+(2048 if a.s16 else 4096)}, {v(T0)}")
                elif act[0] == "pread":
                    T = act[1]
                    for u in range(4):
                        for qt in range(3):
                            e(f"ds_read_b128 {v(FR(qt, 4*T+u),4)}, {v(XA)} offset:{PBUF[T%2] + u*6144 + qt*2048}")
            def linv(tb):
                if a.s16:
                    for qt in range(3):
                        for hf in range(2):
                            for k in range(2): e(f"ds_read_b128 {v(tb+4*k,4)}, {v(XA+1)} offset:{qt*2048+32*hf+16*k}")
                            e(f"v_pk_add_f32 {v(tb,2)}, {v(tb,2)}, {v(tb+4,2)}"); e(f"v_pk_add_f32 {v(tb+2,2)}, {v(tb+2,2)}, {v(tb+6,2)}")
                            e(f"v_pk_add_f32 {v(tb,2)}, {v(tb,2)}, {v(tb+2,2)}")
                            if hf == 0: e(f"v_add_f32 {v(LINV+qt)}, {v(tb)}, {v(tb+1)}")
                            else:
                                e(f"v_add_f32 {v(tb)}, {v(tb)}, {v(tb+1)}"); e(f"v_add_f32 {v(LINV+qt)}, {v(LINV+qt)}, {v(tb)}")
                        e(f"v_rcp_f32 {v(LINV+qt)}, {v(LINV+qt)}")
                    return
                for k in range(2): e(f"ds_read_b128 {v(tb+4*k,4)}, {v(XA+1)} offset:{16*k}")
                for qt in range(3):
                    b = tb
                    for k in range(4): e(f"v_add_f32 {v(b+k)}, {v(b+k)}, {v(b+4+k)}")
                    e(f"v_add_f32 {v(b)}, {v(b)}, {v(b+2)}"); e(f"v_add_f32 {v(b+1)}, {v(b+1)}, {v(b+3)}")
                    e(f"v_add_f32 {v(LINV+qt)}, {v(b)}, {v(b+1)}")
                    if qt < 2:
                        for k in range(2): e(f"ds_read_b128 {v(tb+4*k,4)}, {v(XA+1)} offset:{(qt+1)*1024+16*k}")
                    e(f"v_rcp_f32 {v(LINV+qt)}, {v(LINV+qt)}")
            def write_out(ty, c, tb):
                if ty == "W":
                    for qt in range(3):
                        for dt in range(2):
                            acc = ACC + 12 * dt + 4 * qt; tt = tb + 2 * ((2 * qt + dt) % 4)
                            e(f"v_cvt_pk_bf16_f32 {v(tt)}, {v(acc)}, {v(acc+1)}"); e(f"v_cvt_pk_bf16_f32 {v(tt+1)}, {v(acc+2)}, {v(acc+3)}")
                            e(f"ds_write_b64 {v(QA if dt == 0 else 13)}, {v(tt,2)} offset:{QBUF[c%2] + qt*4096}")
                else:
                    if c == 0 and not a.defer: linv(tb)
                    for qt in range(3):
                        tt = tb + 4 * (qt % 2)
                        for dt in range(2):
                            acc = ACC + 12 * dt + 4 * qt
                            for k in range(4 if not a.defer else 0): e(f"v_mul_f32 {v(acc+k)}, {v(LINV+qt)}, {v(acc+k)}")
                            e(f"v_cvt_pk_bf16_f32 {v(tt+2*dt)}, {v(acc)}, {v(acc+1)}"); e(f"v_cvt_pk_bf16_f32 {v(tt+2*dt+1)}, {v(acc+2)}, {v(acc+3)}")
                        e(f"ds_write_b128 {v(OA)}, {v(tt,4)} offset:{self.obuf(c) + qt*2048}")
            light = []
            heavy = []
            def umfma_l(u, b):
                ty, i, sl, k2 = u
                kap = 2 * (i % (7 if ty == "W" else 8)) + k2
                L = []
                for dt, qt in ([(d, q) for d in range(2) for q in range(3)] if not a.aord else [(0, 0), (1, 0), (1, 1), (0, 1), (0, 2), (1, 2)] if a.aord == 1 else [(0, 0), (0, 1), (0, 2), (1, 2), (1, 1), (1, 0)]):
                    if True:
                        acc = ACC + 12 * dt + 4 * qt
                        c = "0" if kap == 0 else v(acc, 4)
                        L.append(f"v_mfma_f32_16x16x32_bf16 {v(acc,4)}, {v(b+4*dt,4)}, {v(FR(qt,kap),4)}, {c}")
                return L
            def uread_l(u, b):
                ty, i, sl, k2 = u
                second = 512 if ty == "W" else (2048 if a.s16 else 1024)
                L = []
                for dt in range(2):
                    if k2 == 0: L.append(f"v_add_u32 {v(T0+dt)}, {sl*SLOT}, {v(VA0 if dt == 0 else VA1)}")
                    L.append(f"ds_read_b64_tr_b16 {v(b+4*dt,2)}, {v(T0+dt)} offset:{4096*k2}")
                    L.append(f"ds_read_b64_tr_b16 {v(b+4*dt+2,2)}, {v(T0+dt)} offset:{4096*k2+second}")
                return L
            def pop(nh=1):
                u, b = pending.pop(0)
                for n, m in enumerate(umfma_l(u, b)):
                    e(m)
                    if a.paceA and u[0] == "W": e.nop(a.paceA)
                    if a.paceV and u[0] == "V" and u[1] < 28: e.nop(a.paceV)
                    if P.get("burst") and heavy and n % a.bgap == 0: heavy.pop(0)()
                    if light:
                        for _ in range(a.wv):
                            if light: e(light.pop(0))
                    elif heavy and nh > 0 and n < 5 and not P.get("burst"):
                        heavy.pop(0)(); nh -= 1
                while light: e(light.pop(0))
                per = 7 if u[0] == "W" else 8
                if u[1] % per == per - 1 and u[3] == 1:
                    write_out(u[0], u[1] // per, b); return True
                return False
            names = [x[0] for x in acts]
            if a.fused == 7 and any(x[0] == "V" and x[1] == 12 for x in acts):
                e("v_mov_b32 v45, 12288"); e("v_mov_b32 v46, 0"); e("v_mov_b32 v47, 0"); e("ds_write_b64 v45, v[46:47]"); e("ds_write_b64 v45, v[46:47] offset:8")
            if a.fused == 7 and any(x[0] == "V" and x[1] == 20 for x in acts):
                e("v_mov_b32 v45, 0"); e("buffer_load_dword v46, v45, s[40:43], s63 offen sc1")
            if a.fused == 7 and any(x[0] == "V" and x[1] == 28 for x in acts):
                e("v_cmp_le_u32 vcc, 1, v46"); e("s_nop 0"); e("s_cmp_eq_u64 vcc, -1"); e("s_cbranch_scc1 L_pc_ok")
                snapv = list(e.vm)
                self.poll("L_pc", "buffer_load_dword v46, v45, s[40:43], s63 offen sc1", "v_cmp_le_u32 vcc, 1, v46")
                e.vm = snapv
            if a.fused == 5 and any(x[0] == "V" and x[1] == 12 for x in acts):
                e("v_mov_b32 v45, 12288"); e("v_mov_b32 v46, 0"); e("v_mov_b32 v47, 0"); e("ds_write_b64 v45, v[46:47]")
            for it in iss: heavy += self.issue_parts(*it)
            iss = []
            wrote = False
            for k, u in enumerate(units):
                while len(pending) >= 3: wrote |= pop()
                b = [x for x in UB if x not in [p[1] for p in pending]][0]
                light += uread_l(u, b)
                if len(pending) >= a.lag and pending:
                    left = len(units) - k
                    wrote |= pop(nh=-(-len(heavy) // left))
                else:
                    while light: e(light.pop(0))
                    if heavy: heavy.pop(0)()
                pending.append((u, b))
            if "drain" in names or not units or a.lag == 0:
                while pending: wrote |= pop(nh=2)
            if "flushw" in names:
                while not wrote and pending: wrote |= pop()
            while heavy: heavy.pop(0)()
            for it in iss: self.issue(*it)
        if a.fused == 3:
            e(f"s_cmp_lg_u32 {s(S_W)}, 0"); e("s_cbranch_scc1 L_red")
            e("v_mov_b32 v6, 0")
            self.poll("L_pc", "buffer_load_dword v10, v6, s[40:43], s63 offen sc1", "v_cmp_le_u32 vcc, 1, v10")
        if a.fused in (1, 3): e("s_branch L_red")
        else:
            if a.fused == 2: self.staged_reduce()
            if a.fused == 4: self.staged_reduce4()
            if a.fused == 7: self.tail7_A()
            if a.fused == 5: self.reduce5()
            if a.fused == 6: self.tail6_A()
            e("s_endpgm")

    def role_B(self):
        e = self.e; a = self.a
        KA, QA = 4, 8
        KF = 16; QF = 32; M = 56; SUM = 59
        SACC = lambda T, qt: 64 + (T * 3 + qt) * 16
        S16 = lambda T, q6: 64 + (T * 6 + q6) * 8
        ACC = lambda cb, q6: 64 + 24 * cb + 4 * q6
        self.ACC = ACC
        OF = lambda k2, q6: 16 + 4 * (6 * k2 + q6)
        WB = [232, 240, 248]
        e(f"v_bfe_u32 {v(T0)}, v0, 3, 3"); e(f"v_lshrrev_b32 {v(T1)}, 6, v0"); e(f"v_lshl_add_u32 {v(T0)}, {v(T1)}, 5, {v(T0)}")
        e("v_and_b32 v12, 7, v0"); e(f"v_bfe_u32 {v(T1)}, v0, 4, 2"); e(f"v_xor_b32 v13, v12, {v(T1)}"); e("v_lshlrev_b32 v13, 4, v13")
        e(f"v_lshl_add_u32 v1, {v(T0)}, 9, v13"); e("v_xor_b32 v2, 64, v1")
        e(f"s_lshl_b32 {s(S_A0)}, {s(S_R4)}, 7"); e(f"s_mul_i32 {s(S_A1)}, {s(S_R4)}, 57344"); e(f"s_lshl_b32 {s(S_A2)}, {s(S_RB)}, 7")
        e(f"s_lshl_b32 {s(S_A3)}, {s(S_U)}, 12"); e(f"s_mul_i32 {s(S_ST)}, {s(S_RB)}, 12288")
        e(f"s_mov_b32 {s(S_R0+2)}, 262144"); e(f"s_mov_b32 {s(S_R1+2)}, 229376"); e(f"s_mov_b32 {s(S_R2+2)}, 86016")
        e(f"s_mul_i32 s36, {s(S_H)}, 229376")
        e(f"s_lshl_b32 s37, {s(S_BLK)}, 7"); e("s_add_u32 s37, s37, s34"); e("s_mul_i32 s37, s37, 86016")
        if a.fused == 6:
            e("s_and_b32 s37, s2, 63"); e(f"s_mul_i32 s37, s37, {XQ}"); e(f"s_mov_b32 {s(S_R2+2)}, {XQ}")
            e(f"s_lshl_b32 {s(S_ST)}, {s(S_RB)}, 2"); e(f"s_add_u32 {s(S_ST)}, {s(S_ST)}, {s(S_PP)}"); e(f"s_mul_i32 {s(S_ST)}, {s(S_ST)}, 12288")
        e(f"s_cmp_eq_u32 {s(S_BLK)}, 0")
        e.wait(lgkm=0)
        e(f"s_cselect_b64 {s(S_R0,2)}, s[42:43], s[52:53]")
        e(f"s_cselect_b64 {s(S_R1,2)}, s[48:49], s[58:59]")
        e(f"s_mov_b64 {s(S_R2,2)}, s[60:61]")
        for S, o in ((S_R0, 35), (S_R1, 36), (S_R2, 37)):
            e(f"s_add_u32 {s(S)}, {s(S)}, s{o}"); e(f"s_addc_u32 {s(S+1)}, {s(S+1)}, 0")
        if a.prio in (2, 3): e("s_setprio 1")
        kpre = qpre = -1
        def qrd(i, n):
            if a.qhalf and i % a.qhalf != 0: return
            if a.s16:
                k2, q6 = divmod(n, 6)
                e(f"ds_read_b128 {v(QF+4*(n%6),4)}, {v(QA+k2)} offset:{QBUF[(i//4)%2] + q6*2048}"); return
            ks, qt = divmod(n, 3)
            e(f"ds_read_b128 {v(QF+4*(n%6),4)}, {v(QA+ks)} offset:{QBUF[(i//4)%2] + qt*4096}")
        def kreg(i): return SACC(3, i) if i in self.parked else KF
        def kread(i, ks):
            if a.s16:
                e(f"ds_read_b128 {v(kreg(i)+4*ks,4)}, {v(KA+(ks>>1))} offset:{(self.kslot[i]-self.KBASE)*SLOT + (ks&1)*2048}"); return
            e(f"ds_read_b128 {v(kreg(i)+4*ks,4)}, {v(KA+ks)} offset:{(self.kslot[i]-self.KBASE)*SLOT}")
        phase1 = True
        opend = []; done_cb = []
        for ti, P in enumerate(self.plan):
            if any(x[0] == "maxr" for x in P["B"]["act"]): phase1 = False
            if phase1:
                if getattr(self, "need_lgkm", False):
                    e.wait(lgkm=0); self.need_lgkm = False; self.maxinit_ok = True
                if P["bar"]: e.barrier()
            else: self.bar(P, "B")
            if ti in a.stamp_ticks: self.stamp()
            if ti == a.opf:
                e(f"s_mul_i32 {s(S_TMP)}, {s(S_B)}, 28672"); e("v_min_u32 v62, 223, v0"); e("v_lshlrev_b32 v62, 7, v62")
                e(f"buffer_load_dword v63, v62, {s(S_R1,4)}, {s(S_TMP)} offen")
            if a.fused == 6 and ti == 9:
                assert not any(t == "fz" for t, _ in e.vm)
                e(f"s_lshl_b32 {s(S_TMP)}, 1, s62"); e(f"s_add_u32 {s(S_TMP)}, {s(S_TMP)}, 0x1000000")
                e("v_lshlrev_b32 v62, 8, v0"); e(f"v_mov_b32 v63, {s(S_TMP)}")
                e("buffer_atomic_add v63, v62, s[40:43], s63 offen")
            if a.fused in (3, 4, 7) and ti == 9:
                assert not any(t == "fz" for t, _ in e.vm)
                e(f"s_lshl_b32 {s(S_TMP)}, {s(S_H)}, 8"); e(f"s_add_u32 {s(S_TMP)}, {s(S_TMP)}, s63")
                e("v_lshlrev_b32 v62, 8, v0"); e("v_mov_b32 v63, 1")
                e(f"buffer_atomic_add v63, v62, s[40:43], {s(S_TMP)} offen")
            if a.fused in (2, 5) and ti == 9:
                assert not any(t == "fz" for t, _ in e.vm)
                e("v_lshlrev_b32 v62, 8, v0"); e("v_mov_b32 v63, 1")
                e("buffer_atomic_add v63, v62, s[40:43], s63 offen")
            iss = list(P["B"]["issue"])
            acts = P["B"]["act"]
            for ai, act in enumerate(acts):
                if act[0] == "init":
                    for it in iss: self.issue(*it)
                    iss = []
                    e(f"s_mov_b32 {s(S_C)}, 0x3db8aa3b")
                    if a.codepf:
                        e("s_getpc_b64 s[92:93]")
                        e.label("L_pc0")
                        e(f"s_sub_u32 s92, s92, L_pc0-{NAME}_kernel"); e("s_subb_u32 s93, s93, 0")
                        e("s_lshr_b32 s94, s2, 3"); e("s_cmp_ge_u32 s94, 24"); e("s_cselect_b32 s95, 24, 0"); e("s_sub_u32 s94, s94, s95")
                        e("s_cmp_ge_u32 s94, 12"); e("s_cselect_b32 s95, 12, 0"); e("s_sub_u32 s94, s94, s95"); e("s_lshl_b32 s94, s94, 12")
                        e("v_lshlrev_b32 v62, 4, v0"); e("v_add_u32 v62, s94, v62")
                        e("global_load_dword v63, v62, s[92:93]")
                    if a.fused == 6:
                        self.srd6()
                        e("v_lshlrev_b32 v62, 20, v0"); e("v_mov_b32 v63, 0")
                        e(f"s_cmp_eq_u32 {s(S_PP)}, 0"); e(f"s_cselect_b32 {s(S_TMP)}, s46, 0x100000")
                        e(f"buffer_store_dword v63, v62, s[36:39], {s(S_TMP)} offen sc1")
                        e(f"s_cmp_lt_u32 {s(S_H)}, 4"); e(f"s_cselect_b32 {s(S_TMP)}, s47, 0x100000")
                        e(f"buffer_store_dword v63, v62, s[36:39], {s(S_TMP)} offen sc1", tag="fz")
                    if a.fused == 5:
                        self.flag_srd()
                        e(f"s_lshl_b32 s62, {s(S_H)}, 9")
                        e("v_lshlrev_b32 v62, 13, v0"); e("v_mov_b32 v63, 0")
                        e(f"buffer_store_dword v63, v62, s[36:39], s62 offen sc1", tag="fz")
                    if a.fused in (3, 7):
                        self.flag_srd()
                        e(f"s_lshl_b32 {s(S_TMP)}, {s(S_H)}, 13")
                        e("v_lshlrev_b32 v62, 12, v0"); e("v_mov_b32 v61, 0")
                        e(f"buffer_store_dword v61, v62, s[36:39], {s(S_TMP)} offen sc1", tag="fz")
                    if a.fused == 4:
                        self.flag_srd()
                        e(f"s_lshl_b32 s62, {s(S_U)}, 7")
                        e(f"s_lshl_b32 {s(S_TMP)}, {s(S_H)}, 13"); e(f"s_add_u32 {s(S_TMP)}, {s(S_TMP)}, s62")
                        e("v_and_b32 v62, 63, v0"); e("v_lshlrev_b32 v62, 13, v62"); e("v_mov_b32 v63, 0")
                        e(f"buffer_store_dword v63, v62, s[36:39], {s(S_TMP)} offen sc1", tag="fz")
                    if a.fused == 2:
                        self.flag_srd()
                        e(f"s_lshl_b32 s62, {s(S_H)}, 2"); e(f"s_add_u32 s62, s62, {s(S_U)}"); e("s_lshl_b32 s62, s62, 7")
                        e("v_and_b32 v62, 63, v0"); e("v_lshlrev_b32 v62, 13, v62"); e("v_mov_b32 v63, 0")
                        e("buffer_store_dword v63, v62, s[36:39], s62 offen sc1", tag="fz")
                    e(f"v_lshlrev_b32 {v(T1)}, 1, {v(T1)}"); e(f"v_xor_b32 {v(T1)}, {v(T1)}, v12"); e(f"v_lshlrev_b32 {v(T1)}, 4, {v(T1)}")
                    e("v_lshrrev_b32 v3, 3, v0"); e("v_mul_u32_u24 v3, 896, v3"); e(f"v_add_u32 v3, v3, {v(T1)}")
                    if a.s16:
                        e(f"v_and_b32 {v(T0)}, 15, v0"); e(f"v_bfe_u32 {v(T1)}, v0, 1, 3"); e("v_bfe_u32 v12, v0, 4, 2"); e(f"v_xor_b32 {v(T1)}, {v(T1)}, v12")
                        e(f"v_lshlrev_b32 {v(T1)}, 4, {v(T1)}"); e(f"v_lshl_add_u32 {v(QA)}, {v(T0)}, 7, {v(T1)}"); e(f"v_xor_b32 {v(QA+1)}, 64, {v(QA)}")
                        e(f"s_add_u32 {s(S_TMP)}, {s(S_A3)}, {self.KBASE*SLOT}")
                        for k2 in range(2): e(f"v_add_u32 {v(KA+k2)}, {s(S_TMP)}, {v(QA+k2)}")
                        e(f"v_lshlrev_b32 v13, 2, {v(T0)}"); e(f"v_add_u32 v13, {STAT}, v13")
                        e(f"v_lshlrev_b32 {v(T0)}, 6, {v(T0)}"); e(f"v_lshrrev_b32 {v(T1)}, 4, v0"); e(f"v_lshl_add_u32 v12, {v(T1)}, 2, {v(T0)}"); e(f"v_add_u32 v12, {STAT+2048}, v12")
                        e(f"v_and_b32 {v(T0)}, 63, v0"); e(f"s_mul_i32 {s(S_TMP)}, {s(S_U)}, 6144"); e(f"v_lshlrev_b32 v10, 4, {v(T0)}"); e(f"v_add_u32 v10, {s(S_TMP)}, v10")
                    else:
                        e(f"v_and_b32 {v(T0)}, 31, v0"); e(f"v_bfe_u32 {v(T1)}, v0, 1, 3"); e("v_bfe_u32 v12, v0, 5, 1"); e(f"v_xor_b32 {v(T1)}, {v(T1)}, v12")
                        e(f"v_lshlrev_b32 {v(T1)}, 4, {v(T1)}"); e(f"v_lshl_add_u32 {v(QA)}, {v(T0)}, 7, {v(T1)}")
                        for ks in range(1, 4): e(f"v_xor_b32 {v(QA+ks)}, {32*ks}, {v(QA)}")
                        e(f"s_add_u32 {s(S_TMP)}, {s(S_A3)}, {self.KBASE*SLOT}")
                        for ks in range(4): e(f"v_add_u32 {v(KA+ks)}, {s(S_TMP)}, {v(QA+ks)}")
                        e(f"v_lshlrev_b32 {v(T0)}, 5, {v(T0)}"); e(f"v_add_u32 v13, {STAT}, {v(T0)}")
                        e(f"v_lshrrev_b32 {v(T1)}, 5, v0"); e(f"v_lshl_add_u32 v12, {v(T1)}, 2, v13")
                elif act[0] == "Kpark":
                    for it in iss: self.issue(*it)
                    iss = []
                    e.wait_tag(("K", act[1]))
                    for ks in range(4): kread(act[1], ks)
                    e.wait(lgkm=0)
                elif act[0] == "Kpre":
                    e.wait_tag(("K", 0))
                    for ks in range(4): kread(0, ks)
                    kpre = 0; qpre = -1
                elif act[0] == "S":
                    _, i, sl = act
                    c, T = divmod(i, 4)
                    seq = [(ks, qt) for ks in range(4) for qt in range(3)]
                    dma = []
                    for it in iss: dma += self.issue_parts(*it)
                    iss = []
                    if qpre != i:
                        for n in range(3): qrd(i, n)
                    if kpre != i and i not in self.parked:
                        while dma: dma.pop(0)()
                        e.wait_tag(("K", i))
                        for ks in range(4): kread(i, ks)
                    if qpre != i:
                        for n in range(3, 6): qrd(i, n)
                    own = []
                    if ai + 1 < len(acts) and acts[ai + 1][0] == "issue": own = self.issue_parts(acts[ai + 1][1], acts[ai + 1][2])
                    mode = None; qok = False
                    if i + 1 < 16 and self.kage[i + 1] < ti:
                        mode = "roll" if ti - self.kage[i + 1] >= a.kpre else "after"
                        if i + 1 in self.parked: mode = None
                        qok = (i + 1) // 4 <= self.sinfo[i][1]
                    if a.s16 and i == 12:
                        e("v_mov_b32 v11, 0xff800000")
                        for q6 in range(6): e(f"ds_write_b32 v13, v11 offset:{64*q6}")
                        self.need_lgkm = True
                    for n in range(12 if a.s16 else 0):
                        k2, q6 = divmod(n, 6)
                        for kt in range(2):
                            r = S16(T, q6) + 4 * kt
                            e(f"v_mfma_f32_16x16x32_bf16 {v(r,4)}, {v(kreg(i)+4*(2*k2+kt),4)}, {v(QF+4*(n%6),4)}, {'0' if (c == 0 and k2 == 0) else v(r,4)}")
                            if kt == 0 and c == 3 and T > 0 and n >= 2 and n < 8:
                                self.max8(M + n - 2, S16(T - 1, n - 2), first=(T == 1))
                            if kt == 0 and dma and n % 2 == 1: dma.pop(0)()
                            if a.pace: e.nop(a.pace)
                        if n + 6 < 12: qrd(i, n + 6)
                        elif qok: qrd(i + 1, n - 6)
                        if mode == "roll" and q6 == 5:
                            if k2 == 0: e.wait_tag(("K", i + 1))
                            kread(i + 1, 2 * k2); kread(i + 1, 2 * k2 + 1)
                        if n == 0 and own:
                            e.wait_regs(set(range(KF, KF + 16)))
                            dma += own
                    for n, (ks, qt) in enumerate(seq if not a.s16 else []):
                        cc = "0" if (c == 0 and ks == 0) else v(SACC(T, qt), 16)
                        if a.s16hack:
                            for hh in range(2):
                                r = SACC(T, qt) + 4 * (2 * (ks & 1) + hh)
                                e(f"v_mfma_f32_16x16x32_bf16 {v(r,4)}, {v(kreg(i)+4*(ks ^ hh),4)}, {v(QF+4*(n%6),4)}, {'0' if (c == 0 and ks < 2) else v(r,4)}")
                        else:
                            e(f"v_mfma_f32_32x32x16_bf16 {v(SACC(T,qt),16)}, {v(kreg(i)+4*ks,4)}, {v(QF+4*(n%6),4)}, {cc}")
                        if a.pace: e.nop(a.pace)
                        if n + 6 < 12: qrd(i, n + 6)
                        elif qok: qrd(i + 1, n - 6)
                        if mode == "roll" and qt == 2 and not a.s16hack:
                            if ks == 0: e.wait_tag(("K", i + 1))
                            kread(i + 1, ks)
                        if mode == "roll" and qt == 2 and a.s16hack and ks & 1:
                            if ks == 1: e.wait_tag(("K", i + 1))
                            kread(i + 1, ks - 1); kread(i + 1, ks)
                        if n == 0 and own:
                            e.wait_regs(set(range(KF, KF + 16)))
                            dma += own
                        if dma and n % 2 == 0: dma.pop(0)()
                        if c == 3 and T > 0 and n >= 3 and (n - 3) < 9:
                            qq, part = divmod(n - 3, 3)
                            self.maxpart(M + qq, SACC(T - 1, qq), part, first=(T == 1))
                    while dma: dma.pop(0)()
                    if mode == "after":
                        e.wait_tag(("K", i + 1))
                        for ks in range(4): kread(i + 1, ks)
                    kpre = i + 1 if mode else -1
                    qpre = i + 1 if qok else -1
                elif act[0] == "maxw" and a.s16:
                    self.stamp()
                    assert getattr(self, "maxinit_ok", False)
                    for q6 in range(6):
                        self.max8(M + q6, S16(3, q6), first=False)
                        e(f"ds_max_f32 v13, {v(M+q6)} offset:{64*q6}")
                elif act[0] == "maxr" and a.s16:
                    if a.prio: e("s_setprio 1")
                    for q6 in range(6): e(f"ds_read_b32 {v(M+q6)}, v13 offset:{64*q6}")
                    for q6 in range(6):
                        e(f"v_mul_f32 {v(M+q6)}, {s(S_C)}, {v(M+q6)}")
                        if a.pkfma: e(f"v_sub_f32 {v(40+2*q6)}, 0, {v(M+q6)}")
                elif act[0] == "smx" and a.s16:
                    T = act[1]
                    def fe6(q6):
                        r = S16(T, q6)
                        if a.pkfma:
                            for k in range(0, 8, 2):
                                e(f"v_pk_fma_f32 {v(r+k,2)}, {v(r+k,2)}, {s(S_C,2)}, {v(40+2*q6,2)} op_sel_hi:[1,0,0]")
                        else:
                            for k in range(8): e(f"v_fma_f32 {v(r+k)}, {v(r+k)}, {s(S_C)}, -{v(M+q6)}")
                        for k in range(8): e(f"v_exp_f32 {v(r+k)}, {v(r+k)}")
                    fe6(0)
                    for q6 in range(6):
                        if q6 + 1 < 6: fe6(q6 + 1)
                        r = S16(T, q6); tt = 16 + 4 * q6
                        for k in range(4): e(f"v_cvt_pk_bf16_f32 {v(tt+k)}, {v(r+2*k)}, {v(r+2*k+1)}")
                        e(f"ds_write_b128 v10, {v(tt,4)} offset:{PBUF[T%2] + q6*1024}")
                    if not a.defer:
                        self.sums16(T, S16)
                        if T == 3: self.sumw16(S16)
                elif act[0] == "maxw":
                    self.stamp()
                    for qt in range(3):
                        for part in range(3): self.maxpart(M + qt, SACC(3, qt), part, first=False)
                        e(f"ds_write_b32 v12, {v(M+qt)} offset:{qt*1024}")
                elif act[0] == "maxr":
                    if a.prio: e("s_setprio 1")
                    for qt in range(3):
                        for k in range(2): e(f"ds_read_b128 {v(16+8*qt+4*k,4)}, v13 offset:{qt*1024+16*k}")
                    e(f"v_and_b32 {v(T0)}, 15, v0"); e(f"v_lshlrev_b32 v4, 4, {v(T0)}")
                    e(f"v_bfe_u32 {v(T0)}, v0, 4, 1"); e(f"v_lshl_add_u32 v4, {v(T0)}, 10, v4")
                    e(f"v_bfe_u32 {v(T0)}, v0, 5, 1"); e(f"v_lshl_add_u32 v4, {v(T0)}, 8, v4")
                    e(f"s_mul_i32 {s(S_TMP)}, {s(S_U)}, 6144"); e(f"v_add_u32 v4, {s(S_TMP)}, v4")
                    for qt in range(3):
                        b = 16 + 8 * qt
                        e(f"v_max3_f32 {v(M+qt)}, {v(b)}, {v(b+1)}, {v(b+2)}")
                        e(f"v_max3_f32 {v(M+qt)}, {v(M+qt)}, {v(b+3)}, {v(b+4)}"); e(f"v_max3_f32 {v(M+qt)}, {v(M+qt)}, {v(b+5)}, {v(b+6)}")
                        e(f"v_max_f32 {v(M+qt)}, {v(M+qt)}, {v(b+7)}")
                        e(f"v_mul_f32 {v(M+qt)}, {s(S_C)}, {v(M+qt)}")
                        if a.pkfma: e(f"v_sub_f32 {v(40+2*qt)}, 0, {v(M+qt)}")
                elif act[0] == "smx":
                    T = act[1]
                    grp = [(qt, hf) for qt in range(3) for hf in range(2)]
                    def fe(g):
                        r = SACC(T, g[0]) + 8 * g[1]
                        if a.pkfma:
                            for k in range(0, 8, 2):
                                e(f"v_pk_fma_f32 {v(r+k,2)}, {v(r+k,2)}, {s(S_C,2)}, {v(40+2*g[0],2)} op_sel_hi:[1,0,0]")
                        else:
                            for k in range(8): e(f"v_fma_f32 {v(r+k)}, {v(r+k)}, {s(S_C)}, -{v(M+g[0])}")
                        for k in range(8): e(f"v_exp_f32 {v(r+k)}, {v(r+k)}")
                    fe(grp[0])
                    for n, (qt, hf) in enumerate(grp):
                        if n + 1 < 6: fe(grp[n + 1])
                        r = SACC(T, qt) + 8 * hf
                        tt = 16 + 4 * n
                        for k in range(4): e(f"v_cvt_pk_bf16_f32 {v(tt+k)}, {v(r+2*k)}, {v(r+2*k+1)}")
                        e(f"ds_write_b128 v4, {v(tt,4)} offset:{PBUF[T%2] + qt*2048 + hf*512}")
                    if iss and a.b_smx_issue:
                        pass
                    self.defer_sum = (T,)
                    if not a.defer:
                        self.sums(T, SACC, SUM)
                        if T == 3:
                            for qt in range(3): e(f"ds_write_b32 v12, {v(SUM+qt)} offset:{4096+qt*1024}")
                elif act[0] == "inito":
                    self.stamp()
                    if a.prio in (1, 3): e("s_setprio 0")
                    if a.defer and a.s16:
                        for T in range(4): self.sums16(T, S16)
                        self.sumw16(S16)
                    elif a.defer:
                        for T in range(4): self.sums(T, SACC, SUM)
                        for qt in range(3): e(f"ds_write_b32 v12, {v(SUM+qt)} offset:{4096+qt*1024}")
                    e(f"v_bfe_u32 {v(T0)}, v0, 2, 4"); e(f"v_lshlrev_b32 v5, 7, {v(T0)}")
                    e(f"v_bfe_u32 {v(T0)}, v0, 3, 2"); e(f"v_bfe_u32 {v(T1)}, v0, 6, 2"); e(f"v_xor_b32 {v(T0)}, {v(T0)}, {v(T1)}")
                    e(f"v_lshl_add_u32 v5, {v(T0)}, 5, v5")
                    e(f"v_and_b32 {v(T0)}, 3, v0"); e(f"v_lshl_add_u32 v5, {v(T0)}, 3, v5")
                    e(f"v_and_b32 {v(T0)}, 63, v0"); e(f"v_lshlrev_b32 v6, 4, {v(T0)}")
                    e(f"v_lshlrev_b32 v7, 4, v0")
                    if a.own:
                        self.own_range()
                        e(f"s_sub_u32 s94, s94, {s(S_M0B)}")
                    if a.fused == 7: e(f"s_mov_b32 {s(S_ST)}, 0")
                    if a.fused == 4:
                        e(f"s_mul_i32 {s(S_ST)}, {s(S_U)}, 21504"); e("v_mov_b32 v7, v6")
                    e("v_lshlrev_b32 v8, 9, v6")
            if a.defer and ti > 0 and any(x[0] == "inito" for x in self.plan[ti - 1]["B"]["act"]):
                if a.s16:
                    e(f"v_and_b32 {v(T0)}, 15, v0"); e(f"v_lshlrev_b32 {v(T0)}, 6, {v(T0)}"); e(f"v_add_u32 {v(T0)}, {STAT+2048}, {v(T0)}")
                    for q6 in range(6):
                        for k in range(4): e(f"ds_read_b128 {v(64+16*q6+4*k,4)}, {v(T0)} offset:{q6*1024+16*k}")
                    for q6 in range(6):
                        b = 64 + 16 * q6
                        for k in range(0, 8, 2): e(f"v_pk_add_f32 {v(b+k,2)}, {v(b+k,2)}, {v(b+8+k,2)}")
                else:
                    e(f"v_and_b32 {v(T0)}, 15, v0"); e(f"v_lshlrev_b32 {v(T0)}, 5, {v(T0)}"); e(f"v_add_u32 {v(T0)}, {STAT+4096}, {v(T0)}")
                    for q6 in range(6):
                        for k in range(2): e(f"ds_read_b128 {v(64+8*q6+4*k,4)}, {v(T0)} offset:{q6*512+16*k}")
                for q6 in range(6):
                    b = 64 + (16 if a.s16 else 8) * q6
                    e(f"v_pk_add_f32 {v(b,2)}, {v(b,2)}, {v(b+4,2)}"); e(f"v_pk_add_f32 {v(b+2,2)}, {v(b+2,2)}, {v(b+6,2)}")
                    e(f"v_pk_add_f32 {v(b,2)}, {v(b,2)}, {v(b+2,2)}"); e(f"v_add_f32 {v(b)}, {v(b)}, {v(b+1)}")
                    e(f"v_rcp_f32 {v(8+q6)}, {v(b)}")
            ws = [x for x in acts if x[0] == "O"]
            dma = []
            for it in iss: dma += self.issue_parts(*it)
            blight = []
            def wread(x, b, defer=False):
                _, i, sl = x
                tt = T0 + (i % 2)
                L = [f"v_add_u32 {v(tt)}, {sl*SLOT}, v5"]
                for k2 in range(2):
                    L.append(f"ds_read_b64_tr_b16 {v(b+4*k2,2)}, {v(tt)} offset:{4096*k2}")
                    L.append(f"ds_read_b64_tr_b16 {v(b+4*k2+2,2)}, {v(tt)} offset:{4096*k2+2048}")
                if defer: blight.extend(L)
                else:
                    for t in L: e(t)
            def ord_(c, k2, q6):
                e(f"ds_read_b128 {v(OF(k2,q6),4)}, v6 offset:{self.obuf(c) + k2*6144 + q6*1024}")
            lastt = ti == len(self.plan) - 1
            remain = {}
            if lastt:
                for x in ws: remain[x[1] % 7] = remain.get(x[1] % 7, 0) + 1
            OF2 = lambda k2, q6: 64 + 4 * (6 * k2 + q6)
            def opop(roll=None):
                x, b = opend.pop(0)
                c, cb = divmod(x[1], 7)
                final = lastt and x in acts
                st = []; stcb = None
                if done_cb:
                    stcb = done_cb.pop(0); st = self.store_parts(stcb)
                of = OF2 if (final and c == 2) else OF
                for k2 in range(2):
                    for q6 in range(6):
                        acc = ACC(cb, q6)
                        cc = "0" if (c == 0 and k2 == 0) else v(acc, 4)
                        rep = 1
                        if a.op2hack and cb >= 2: rep = 0 if 3 - a.op2hack <= c < 3 else (1 + a.op2hack if c == 3 else 1)
                        for r_ in range(rep):
                            e(f"v_mfma_f32_16x16x32_bf16 {v(acc,4)}, {v(b+4*(k2 ^ (r_ & 1)),4)}, {v(of(k2,q6),4)}, {cc}")
                        if a.paceO and not final: e.nop(a.paceO)
                        if roll is not None: ord_(roll, k2, q6)
                        if blight:
                            for _ in range(a.wv):
                                if blight: e(blight.pop(0))
                        elif dma and q6 % 3 == 2 and not P.get("burst"): dma.pop(0)()
                        if dma and P.get("burst") and q6 % a.bgap == 0: dma.pop(0)()
                        if st and (k2 or q6 >= 2):
                            for _ in range(4 if a.defer else 2):
                                if st: st.pop(0)()
                while st: st.pop(0)()
                if a.nd and stcb in (0, 1):
                    e.nop(2)
                    for q6 in range(6): e(f"ds_read_b128 {v(OF2(stcb,q6),4)}, v6 offset:{self.obuf(2) + stcb*6144 + q6*1024}")
                if final:
                    assert a.fused in (0, 1, 3)
                    remain[cb] -= 1
                    if remain[cb] == 0: done_cb.append(cb)
                    if not any(remain.values()):
                        while done_cb:
                            for f in self.store_parts(done_cb.pop(0)): f()
            ord_c = [x[1] for x in acts if x[0] == "oread"]
            if ord_c:
                c = ord_c[0]
                if c == 3: self.stamp()
                if ws and len(opend) < 3:
                    b = [x for x in WB if x not in [p[1] for p in opend]][0]
                    first = (ws.pop(0), b); wread(*first)
                else: first = None
                while len(opend) > 1: opop()
                if opend: opop(roll=c)
                else:
                    for k2 in range(2):
                        for q6 in range(6): ord_(c, k2, q6)
                if first: opend.append(first)
            nows = not ws and not ord_c
            for x in ws:
                while len(opend) >= 3: opop()
                b = [y for y in WB if y not in [p[1] for p in opend]][0]
                go = len(opend) + 1 > (2 if lastt else max(a.blag, 1))
                wread(x, b, defer=go and a.wv > 0); opend.append((x, b))
                if go: opop()
            while len(opend) > (0 if (lastt or nows) else a.blag): opop()
            while dma: dma.pop(0)()
        if a.padto and a.padglob:
            e(f"s_cmp_lg_u32 {s(S_W)}, 4"); e("s_cbranch_scc1 L_end1")
            e("s_load_dwordx2 s[98:99], s[0:1], 88"); e.force_wait("vmcnt(0) lgkmcnt(0)")
            e("s_not_b32 s97, s96"); e("v_mov_b32 v10, 240"); e("v_mov_b32 v11, s97"); e("s_mov_b64 s[94:95], s[98:99]")
            e("s_mov_b64 exec, 1")
            e("global_atomic_umax v10, v11, s[94:95]"); e.force_wait("vmcnt(0)")
            e.label("L_pad0")
            e("s_memrealtime s[98:99]"); e.force_wait("lgkmcnt(0)")
            e("s_sub_u32 s98, s98, s96"); e(f"s_cmp_lt_u32 s98, 5000"); e("s_cbranch_scc1 L_pad0")
            e("global_load_dword v12, v10, s[94:95] sc1"); e.force_wait("vmcnt(0)")
            e("v_readfirstlane_b32 s96, v12"); e("s_nop 4"); e("s_not_b32 s96, s96")
            e.label("L_pad")
            e("s_memrealtime s[98:99]"); e.force_wait("lgkmcnt(0)")
            e("s_sub_u32 s98, s98, s96"); e(f"s_cmp_lt_u32 s98, {a.padto*100}"); e("s_cbranch_scc1 L_pad")
            e("s_mov_b64 exec, -1")
        elif a.padto:
            e.label("L_pad")
            e("s_memrealtime s[98:99]"); e.force_wait("lgkmcnt(0)")
            e("s_sub_u32 s98, s98, s96"); e(f"s_cmp_lt_u32 s98, {a.padto*100}"); e("s_cbranch_scc1 L_pad")
        self.stamp()
        if a.fused in (1, 3): self.fused_reduce()
        if a.fused == 5:
            e("v_mov_b32 v9, 12292"); e("v_mov_b32 v10, 1")
            e.force_wait("vmcnt(0)")
            e("s_mov_b64 exec, 1")
            e("ds_add_rtn_u32 v11, v9, v10"); e.force_wait("lgkmcnt(0)")
            e("v_readfirstlane_b32 s50, v11"); e("s_mov_b64 exec, -1")
            e("s_cmp_lg_u32 s50, 3"); e("s_cbranch_scc1 L_nosig")
            e("buffer_store_dword v10, v8, s[36:39], s62 offen sc1")
            e.label("L_nosig")
        if a.fused == 7: self.tail7_B()
        if a.fused == 6: self.tail6_B()
        if a.fused == 4: self.sig4(99)
        if a.fused == 2:
            for n in range(7 - a.flag_lag, 7): self.flag(n)
        if a.stamps:
            e.force_wait("vmcnt(0)")
            self.stamp()
            e(f"s_cmp_lg_u32 {s(S_W)}, 4"); e("s_cbranch_scc1 L_end1")
            e(f"s_add_u32 s60, s60, {STAMP_OFF}"); e("s_addc_u32 s61, s61, 0"); e("s_lshl_b32 s33, s2, 7"); e("s_add_u32 s60, s60, s33"); e("s_addc_u32 s61, s61, 0")
            e("v_mov_b32 v10, 0")
            for i in range(self.nst):
                e(f"v_mov_b32 v8, s{64+2*i}"); e(f"v_mov_b32 v9, s{65+2*i}")
                e(f"global_store_dwordx2 v10, v[8:9], s[60:61] offset:{8*i}"); e.nop(2)

    def own_range(self):
        e = self.e
        e(f"s_mul_i32 s94, {s(S_H)}, 21"); e("s_add_u32 s95, s94, 21"); e("s_lshr_b32 s94, s94, 2"); e("s_lshr_b32 s95, s95, 2")
        e("s_sub_u32 s95, s95, s94"); e("s_lshl_b32 s94, s94, 10"); e("s_lshl_b32 s95, s95, 10")

    def flag_srd(self):
        e = self.e
        e("s_load_dwordx4 s[44:47], s[0:1], 80")
        e(f"s_lshl_b32 s63, {s(S_BLK)}, 3"); e(f"s_add_u32 s63, s63, {s(S_B)}")
        e(f"s_mul_i32 {s(S_TMP)}, s63, {8448 if self.a.fused in (3, 7) else 8192}"); e(f"s_add_u32 {s(S_TMP)}, {s(S_TMP)}, {FLAG_OFF}")
        e(f"s_add_u32 s36, s60, {s(S_TMP)}"); e("s_addc_u32 s37, s61, 0"); e("s_mov_b32 s38, 8192"); e("s_mov_b32 s39, 0x20000")
        e("s_lshl_b32 s63, s63, 4")
        e.force_wait("lgkmcnt(0)")
        e("s_mov_b64 s[40:41], s[46:47]"); e("s_mov_b32 s42, 256"); e("s_mov_b32 s43, 0x20000")

    def flag(self, n):
        e = self.e
        e.wait_tag(("st", n))
        e(f"v_mov_b32 v9, {n+1}")
        e("buffer_store_dword v9, v8, s[36:39], s62 offen sc1")

    def sig7(self):
        e = self.e
        e("v_mov_b32 v4, 12288"); e("v_mov_b32 v3, 1")
        e.wait_tag(("st", self.a.st1 - 1))
        e("ds_add_u32 v4, v3")
        self.sig7_done = True

    def coord7(self, name, cnt_off, line, go_off):
        e = self.e
        e("v_mov_b32 v11, 12288"); e("s_mov_b32 s51, 0")
        e.label(name + "_c")
        e(f"ds_read_b32 v10, v11 offset:{cnt_off}"); e.force_wait("lgkmcnt(0)")
        e("v_readfirstlane_b32 s50, v10")
        if self.a.lsleep: e(f"s_sleep {self.a.lsleep}")
        e("s_cmp_lt_u32 s50, 256"); e(f"s_cbranch_scc1 {name}_c")
        e(f"v_mov_b32 v10, {line}"); e("v_mov_b32 v12, 1")
        e("s_mov_b64 exec, 1")
        e("buffer_atomic_add v12, v10, s[36:39], 0 offen sc0")
        e.force_wait("vmcnt(0)")
        e("v_add_u32 v12, 1, v12")
        e.label(name)
        e("v_readfirstlane_b32 s50, v12")
        e("s_add_u32 s51, s51, 1")
        e("s_cmp_ge_u32 s50, 16"); e(f"s_cbranch_scc1 {name}_ok")
        e("s_cmp_ge_u32 s51, 200000"); e(f"s_cbranch_scc1 {name}_ok")
        e("buffer_load_dword v12, v10, s[36:39], 0 offen sc1")
        e.force_wait("vmcnt(0)")
        e(f"s_branch {name}")
        e.label(name + "_ok")
        e("v_mov_b32 v12, 1")
        e(f"ds_write_b32 v11, v12 offset:{go_off}")
        e("s_endpgm")

    def tail7_A(self):
        e = self.e; a = self.a
        n1 = a.st1 * 768 // 16
        assert n1 % 24 == 0 and n1 // 3 <= 64
        e(f"s_cmp_lg_u32 {s(S_W)}, 0"); e("s_cbranch_scc1 L_a7")
        self.coord7("L_q1", 0, 0, 8)
        e.label("L_a7")
        e(f"s_mul_i32 s46, {s(S_H)}, {n1}"); e(f"s_mul_i32 {s(S_TMP)}, {s(S_U)}, {n1//3}"); e(f"s_add_u32 s46, s46, {s(S_TMP)}"); e(f"s_sub_u32 s46, s46, {n1//3}")
        e(f"s_mov_b32 s47, {n1//3}"); e("v_mov_b32 v11, 12296")
        e("s_branch L_sum")

    def tail7_B(self):
        e = self.e; a = self.a
        if not getattr(self, "sig7_done", False): self.sig7()
        n2 = (7 - a.st1) * 768 // 16
        assert n2 % 24 == 0 and n2 // 3 <= 64
        e.force_wait("vmcnt(0)")
        e("ds_add_u32 v4, v3 offset:4")
        self.stamp()
        e(f"s_cmp_lg_u32 {s(S_W)}, 7"); e("s_cbranch_scc1 L_b7")
        self.coord7("L_q2", 4, 4096, 12)
        e.label("L_b7")
        e(f"s_mul_i32 s46, {s(S_H)}, {n2}"); e(f"s_mul_i32 {s(S_TMP)}, {s(S_U)}, {n2//3}"); e(f"s_add_u32 s46, s46, {s(S_TMP)}"); e(f"s_add_u32 s46, s46, {a.st1*768}")
        e(f"s_mov_b32 s47, {n2//3}"); e("v_mov_b32 v11, 12300")
        e.label("L_sum")
        e("v_and_b32 v1, 63, v0"); e("v_add_u32 v2, s46, v1"); e("v_mov_b32 v4, 0x200000"); e("v_cmp_gt_u32 vcc, s47, v1")
        e("v_lshlrev_b32 v3, 4, v2"); e("v_cndmask_b32 v3, v4, v3, vcc")
        e("v_lshrrev_b32 v5, 8, v2"); e("v_mul_u32_u24 v6, 43, v5"); e("v_lshrrev_b32 v6, 7, v6")
        e("v_mul_u32_u24 v7, 3, v6"); e("v_sub_u32 v7, v5, v7")
        e(f"v_add_u32 v6, {s(S_RB)}, v6"); e("v_subrev_u32 v9, 7, v6"); e("v_min_u32 v6, v6, v9")
        e("v_and_b32 v8, 15, v2"); e("v_lshl_add_u32 v8, v7, 5, v8"); e("v_mul_u32_u24 v8, 1792, v8")
        e("v_lshl_add_u32 v8, v6, 7, v8"); e("v_bfe_u32 v9, v2, 4, 4"); e("v_lshl_add_u32 v8, v9, 3, v8")
        e("v_cndmask_b32 v8, v4, v8, vcc")
        e(f"s_lshr_b32 {s(S_TMP)}, s63, 4"); e(f"s_mul_i32 {s(S_TMP)}, {s(S_TMP)}, {16*86016}")
        e(f"s_add_u32 s52, s60, {s(S_TMP)}"); e("s_addc_u32 s53, s61, 0"); e(f"s_mov_b32 s54, {16*86016}"); e("s_mov_b32 s55, 0x20000")
        e("s_mov_b64 s[56:57], s[44:45]"); e(f"s_mov_b32 s58, {8*96*1792}"); e("s_mov_b32 s59, 0x20000")
        e(f"s_mul_i32 s49, {s(S_B)}, {96*1792}"); e(f"s_mul_i32 {s(S_TMP)}, {s(S_BLK)}, 896"); e(f"s_add_u32 s49, s49, {s(S_TMP)}")
        e(f"s_mov_b32 {s(S_SO)}, 0")
        e.label("L_go7")
        e("ds_read_b32 v10, v11"); e.force_wait("lgkmcnt(0)")
        e("v_readfirstlane_b32 s50, v10")
        if a.lsleep: e(f"s_sleep {a.lsleep}")
        e("s_cmp_eq_u32 s50, 0"); e("s_cbranch_scc1 L_go7")
        self.stamp()
        rp = self.pol(a.frpol)
        for h in range(16):
            e(f"buffer_load_dwordx4 {v(32+4*h,4)}, v3, s[52:55], {s(S_SO)} offen{rp}")
            if h < 15: e(f"s_add_u32 {s(S_SO)}, {s(S_SO)}, 86016")
        e("s_mov_b32 s50, 0xffff0000")
        for h in range(16):
            for k in range(4):
                r = 32 + 4 * h + k
                if h == 0:
                    e(f"v_lshlrev_b32 v{16+2*k}, 16, v{r}"); e(f"v_and_b32 v{17+2*k}, s50, v{r}")
                else:
                    e(f"v_lshlrev_b32 v{24+2*k}, 16, v{r}"); e(f"v_and_b32 v{25+2*k}, s50, v{r}")
                    e(f"v_pk_add_f32 {v(16+2*k,2)}, {v(16+2*k,2)}, {v(24+2*k,2)}")
        for k in range(4): e(f"v_cvt_pk_bf16_f32 v{24+k}, v{16+2*k}, v{17+2*k}")
        e("buffer_store_dwordx2 v[24:25], v8, s[56:59], s49 offen")
        e(f"s_add_u32 s49, s49, {16*1792}")
        e("buffer_store_dwordx2 v[26:27], v8, s[56:59], s49 offen")

    def srd6(self):
        e = self.e
        e("s_load_dwordx4 s[44:47], s[0:1], 80")
        e(f"s_add_u32 s36, s60, {FLAG_OFF}"); e("s_addc_u32 s37, s61, 0"); e(f"s_mov_b32 s38, {128*CSTR}"); e("s_mov_b32 s39, 0x20000")
        e("s_getreg_b32 s62, hwreg(HW_REG_XCC_ID, 0, 3)"); e("s_mul_i32 s62, s62, 3")
        e("s_and_b32 s63, s2, 63")
        e.force_wait("lgkmcnt(0)")
        e("s_mov_b64 s[40:41], s[46:47]"); e("s_mov_b32 s42, 256"); e("s_mov_b32 s43, 0x20000")
        e(f"s_mul_i32 s46, s63, {CSTR}")
        e("s_andn2_b32 s47, s63, 3"); e(f"s_add_u32 s47, s47, {s(S_PP)}"); e("s_add_u32 s47, s47, 64"); e(f"s_mul_i32 s47, s47, {CSTR}")
        e("s_lshl_b32 s63, s63, 2")

    def arrive(self, name, off):
        e = self.e
        e("v_mov_b32 v10, 0"); e("v_mov_b32 v12, 1")
        e("s_mov_b64 exec, 1")
        e(f"buffer_atomic_add v12, v10, s[36:39], {off} offen sc0")
        e("s_mov_b32 s51, 0")
        e.force_wait("vmcnt(0)")
        e("v_add_u32 v12, 1, v12")
        e.label(name)
        e("v_readfirstlane_b32 s50, v12")
        e("s_add_u32 s51, s51, 1")
        e("s_cmp_ge_u32 s50, 4"); e(f"s_cbranch_scc1 {name}_ok")
        e("s_cmp_ge_u32 s51, 200000"); e(f"s_cbranch_scc1 {name}_ok")
        if self.a.psleep: e(f"s_sleep {self.a.psleep}")
        e(f"buffer_load_dword v12, v10, s[36:39], {off} offen sc1")
        e.force_wait("vmcnt(0)")
        e(f"s_branch {name}")
        e.label(name + "_ok")
        e("s_mov_b64 exec, -1")

    def final6_setup(self):
        e = self.e
        e(f"s_lshr_b32 {s(S_TMP)}, {s(S_W)}, 2"); e(f"s_lshl_b32 {s(S_TMP)}, {s(S_TMP)}, 8"); e(f"v_add_u32 v1, {s(S_TMP)}, v0")
        e("v_cmp_le_u32 vcc, 192, v1"); e("v_subrev_u32 v2, 192, v1"); e("v_min_u32 v2, v2, v1")
        e(f"s_lshr_b32 {s(S_TMP)}, {s(S_H)}, 2"); e(f"s_mul_i32 {s(S_TMP)}, {s(S_TMP)}, 192"); e(f"v_add_u32 v2, {s(S_TMP)}, v2")
        e(f"s_add_u32 {s(S_TMP)}, {s(S_RB)}, 5"); e(f"v_mov_b32 v5, {s(S_TMP)}"); e("v_addc_co_u32 v5, vcc, 0, v5, vcc")
        e("v_subrev_u32 v6, 7, v5"); e("v_min_u32 v5, v5, v6")
        e(f"s_add_u32 {s(S_TMP)}, {s(S_PP)}, {self.a.yslot}"); e(f"s_and_b32 {s(S_TMP)}, {s(S_TMP)}, 3")
        e(f"v_lshl_add_u32 v6, v5, 2, {s(S_TMP)}"); e("v_mul_u32_u24 v6, 12288, v6"); e("v_lshl_add_u32 v3, v2, 4, v6")
        e("v_lshrrev_b32 v7, 8, v2"); e("v_and_b32 v8, 15, v2"); e("v_lshl_add_u32 v8, v7, 5, v8"); e("v_mul_u32_u24 v8, 1792, v8")
        e("v_lshl_add_u32 v8, v5, 7, v8"); e("v_bfe_u32 v9, v2, 4, 4"); e("v_lshl_add_u32 v8, v9, 3, v8")
        e(f"s_cmp_eq_u32 {s(S_PP)}, 3"); e(f"s_cselect_b32 {s(S_TMP)}, 192, 0"); e(f"v_subrev_u32 v9, {s(S_TMP)}, v1")
        e(f"s_sub_u32 {s(S_TMP)}, 384, {s(S_TMP)}"); e(f"v_cmp_gt_u32 vcc, {s(S_TMP)}, v9"); e("v_mov_b32 v4, 0x200000")
        e("v_cndmask_b32 v3, v4, v3, vcc"); e("v_cndmask_b32 v8, v4, v8, vcc")
        e("s_and_b32 s52, s2, 60"); e(f"s_mul_i32 {s(S_TMP)}, s52, {XQ}")
        e(f"s_add_u32 s52, s60, {s(S_TMP)}"); e("s_addc_u32 s53, s61, 0"); e(f"s_mov_b32 s54, {4*XQ}"); e("s_mov_b32 s55, 0x20000")
        e("s_mov_b64 s[56:57], s[44:45]"); e(f"s_mov_b32 s58, {8*96*1792}"); e("s_mov_b32 s59, 0x20000")
        e(f"s_mul_i32 s49, {s(S_B)}, {96*1792}"); e(f"s_mul_i32 {s(S_TMP)}, {s(S_BLK)}, 896"); e(f"s_add_u32 s49, s49, {s(S_TMP)}")

    def tail6_A(self):
        e = self.e; a = self.a
        self.final6_setup()
        e.barrier()
        e(f"s_cmp_lg_u32 {s(S_W)}, 0"); e("s_cbranch_scc1 L_a1")
        e("s_cmp_eq_u32 s48, 0"); e("s_cbranch_scc1 L_a0")
        e("buffer_wbl2 sc1"); e.force_wait("vmcnt(0)")
        e.label("L_a0")
        self.arrive("L_p1", "s46")
        e.label("L_a1")
        e.barrier()
        if a.junk == 1:
            e(f"s_cmp_lg_u32 {s(S_W)}, 1"); e("s_cbranch_scc1 L_j1"); e(f"s_cmp_ge_u32 s2, {a.junkn}"); e("s_cbranch_scc1 L_j1")
            e("buffer_wbl2 sc1")
            e.label("L_j1")
        e.barrier()
        if a.junk == 2:
            e(f"s_cmp_lg_u32 {s(S_W)}, 7"); e("s_cbranch_scc1 L_j1"); e.label("L_j1")
        e(f"s_cmp_lg_u32 {s(S_W)}, 0"); e("s_cbranch_scc1 L_fin")
        self.arrive("L_p2", "s47")
        e("s_branch L_fin")

    def tail6_B(self):
        e = self.e; a = self.a
        ACC = self.ACC
        e.force_wait("vmcnt(0)")
        e.barrier()
        for pi, pos in enumerate((5, 6)):
            e(f"s_add_u32 s{50+pi}, {s(S_RB)}, {pos}"); e(f"s_cmp_ge_u32 s{50+pi}, 7"); e(f"s_cselect_b32 {s(S_TMP)}, 7, 0"); e(f"s_sub_u32 s{50+pi}, s{50+pi}, {s(S_TMP)}")
            e(f"s_mul_i32 s{50+pi}, s{50+pi}, {4*12288}")
        e(f"s_cmp_eq_u32 {s(S_PP)}, 3"); e("s_cselect_b32 s50, 0x100000, s50")
        for j in range(0, 4):
            e(f"s_add_u32 s{91+j}, {s(S_PP)}, {j}"); e(f"s_and_b32 s{91+j}, s{91+j}, 3"); e(f"s_mul_i32 s{91+j}, s{91+j}, 12288")
        e("v_add_u32 v9, 4096, v7"); e("v_add_u32 v10, 8192, v7"); e("s_mov_b32 s95, 0xffff0000")
        self.stamp()
        e.barrier()
        self.stamp()
        VQ = [7, 9, 10]
        L = lambda pi, qt, j: 64 + 4 * ((pi * 3 + qt) * 3 + (j - 1))
        for pi in range(2):
            for qt in range(3):
                for j in range(1, 4):
                    e(f"s_add_u32 {s(S_SO)}, s{50+pi}, s{91+j}")
                    e(f"buffer_load_dwordx4 {v(L(pi,qt,j),4)}, v{VQ[qt]}, {s(S_R2,4)}, {s(S_SO)} offen{self.pol(a.xlpol)}")
        if a.stamps > 1:
            e.force_wait("vmcnt(0)"); self.stamp()
        for pi, pos in enumerate((5, 6)):
            for qt in range(3):
                a0 = ACC(pos, 2 * qt)
                for j in range(1, 4):
                    for k in range(4):
                        r = L(pi, qt, j) + k; t = 16 + 2 * ((j * 4 + k) % 8)
                        e(f"v_lshlrev_b32 v{t}, 16, v{r}"); e(f"v_and_b32 v{t+1}, s95, v{r}")
                        e(f"v_pk_add_f32 {v(a0+2*k,2)}, {v(a0+2*k,2)}, {v(t,2)}")
                for k in range(4): e(f"v_cvt_pk_bf16_f32 v{a0+k}, v{a0+2*k}, v{a0+2*k+1}")
                e(f"s_add_u32 {s(S_SO)}, s{50+pi}, s{91+a.yslot}")
                e(f"buffer_store_dwordx4 {v(a0,4)}, v{VQ[qt]}, {s(S_R2,4)}, {s(S_SO)} offen sc1")
        if a.stamps > 1: self.stamp()
        self.final6_setup()
        e.force_wait("vmcnt(0)")
        self.stamp()
        e.barrier()
        if a.junk == 2:
            e(f"s_cmp_lg_u32 {s(S_W)}, 7"); e("s_cbranch_scc1 L_fin"); e(f"s_cmp_ge_u32 s2, {a.junkn}"); e("s_cbranch_scc1 L_fin")
            e("buffer_wbl2 sc1")
        e.label("L_fin")
        e.barrier()
        self.stamp()
        e(f"s_cmp_ge_u32 {s(S_W)}, 6"); e("s_cbranch_scc1 L_end1")
        e(f"s_mov_b32 {s(S_SO)}, 0"); e("s_mov_b32 s50, 0xffff0000")
        for j in range(4):
            e(f"buffer_load_dwordx4 {v(32+4*j,4)}, v3, s[52:55], {s(S_SO)} offen sc1")
            if j < 3: e(f"s_add_u32 {s(S_SO)}, {s(S_SO)}, {XQ}")
        for h in range(4):
            for k in range(4):
                r = 32 + 4 * h + k
                if h == 0:
                    e(f"v_lshlrev_b32 v{16+2*k}, 16, v{r}"); e(f"v_and_b32 v{17+2*k}, s50, v{r}")
                else:
                    e(f"v_lshlrev_b32 v{24+2*k}, 16, v{r}"); e(f"v_and_b32 v{25+2*k}, s50, v{r}")
                    e(f"v_pk_add_f32 {v(16+2*k,2)}, {v(16+2*k,2)}, {v(24+2*k,2)}")
        for k in range(4): e(f"v_cvt_pk_bf16_f32 v{24+k}, v{16+2*k}, v{17+2*k}")
        e("buffer_store_dwordx2 v[24:25], v8, s[56:59], s49 offen")
        e(f"s_add_u32 s49, s49, {16*1792}")
        e("buffer_store_dwordx2 v[26:27], v8, s[56:59], s49 offen")

    def reduce5(self):
        e = self.e; a = self.a
        self.flag_srd()
        e("v_and_b32 v1, 63, v0"); e("v_mov_b32 v11, 12288")
        e(f"s_cmp_lg_u32 {s(S_W)}, 3"); e("s_cbranch_scc1 L_cons")
        e("v_mov_b32 v6, 0")
        self.poll("L_pc", "buffer_load_dword v10, v6, s[40:43], s63 offen sc1", "v_cmp_le_u32 vcc, 16, v10")
        e("v_and_b32 v5, 15, v1"); e("v_lshlrev_b32 v5, 9, v5")
        e("s_mov_b32 s51, 0")
        e.label("L_pl")
        e("buffer_load_dword v10, v5, s[36:39], 0 offen sc1"); e.force_wait("vmcnt(0)")
        e("v_cmp_ne_u32 vcc, 0, v10")
        e("s_add_u32 s51, s51, 1")
        e("s_and_b32 s50, vcc_lo, 0xffff")
        e("s_cmp_ge_u32 s51, 200000"); e("s_cselect_b32 s50, 0xffff, s50")
        e("v_mov_b32 v12, s50"); e("ds_write_b32 v11, v12")
        e("s_cmp_eq_u32 s50, 0xffff"); e("s_cbranch_scc1 L_end1")
        if a.psleep: e(f"s_sleep {a.psleep}")
        e("s_branch L_pl")
        e.label("L_cons")
        e(f"s_lshr_b32 {s(S_TMP)}, s63, 4"); e(f"s_mul_i32 {s(S_TMP)}, {s(S_TMP)}, {16*86016}")
        e(f"s_add_u32 s52, s60, {s(S_TMP)}"); e("s_addc_u32 s53, s61, 0"); e(f"s_mov_b32 s54, {16*86016}"); e("s_mov_b32 s55, 0x20000")
        e("s_mov_b64 s[56:57], s[44:45]"); e(f"s_mov_b32 s58, {8*96*1792}"); e("s_mov_b32 s59, 0x20000")
        e(f"s_mul_i32 {s(S_TMP)}, {s(S_H)}, 336"); e(f"s_mul_i32 s46, {s(S_U)}, 112"); e(f"s_add_u32 {s(S_TMP)}, {s(S_TMP)}, s46")
        e(f"v_add_u32 v2, {s(S_TMP)}, v1"); e("v_add_u32 v3, 64, v2"); e("v_mov_b32 v4, 0x200000")
        e("v_cmp_gt_u32 s[48:49], 48, v1")
        e(f"s_mul_i32 s47, {s(S_B)}, {96*1792}"); e(f"s_mul_i32 {s(S_TMP)}, {s(S_BLK)}, 896"); e(f"s_add_u32 s47, s47, {s(S_TMP)}")
        for E, LD, OUT in ((2, 6, 8), (3, 7, 9)):
            e(f"v_lshlrev_b32 v{LD}, 4, v{E}")
            e(f"v_lshrrev_b32 v10, 8, v{E}"); e("v_mul_u32_u24 v12, 43, v10"); e("v_lshrrev_b32 v12, 7, v12")
            e("v_mul_u32_u24 v13, 3, v12"); e("v_sub_u32 v13, v10, v13")
            e(f"v_and_b32 v{OUT}, 15, v{E}"); e(f"v_lshl_add_u32 v{OUT}, v13, 5, v{OUT}"); e(f"v_mul_u32_u24 v{OUT}, 1792, v{OUT}")
            e(f"v_lshl_add_u32 v{OUT}, v12, 7, v{OUT}"); e(f"v_bfe_u32 v13, v{E}, 4, 4"); e(f"v_lshl_add_u32 v{OUT}, v13, 3, v{OUT}")
        e("v_cndmask_b32 v7, v4, v7, s[48:49]"); e("v_cndmask_b32 v9, v4, v9, s[48:49]")
        e("s_mov_b32 s50, 0xffff0000"); e("s_mov_b32 s48, 0")
        rp = self.pol(a.frpol)
        e.label("L_cl")
        e("ds_read_b32 v10, v11"); e.force_wait("lgkmcnt(0)")
        e("v_readfirstlane_b32 s49, v10")
        e("s_andn2_b32 s46, s49, s48")
        e("s_cbranch_scc1 L_cn")
        e("s_sleep 1"); e("s_branch L_cl")
        e.label("L_cn")
        for h in range(16):
            e(f"s_bitcmp1_b32 s46, {h}"); e(f"s_cbranch_scc0 L_ch{h}")
            e(f"s_mov_b32 {s(S_SO)}, {h*86016}")
            e(f"buffer_load_dwordx4 {v(32+4*h,4)}, v6, s[52:55], {s(S_SO)} offen{rp}")
            e(f"buffer_load_dwordx4 {v(96+4*h,4)}, v7, s[52:55], {s(S_SO)} offen{rp}")
            e.label(f"L_ch{h}")
        e("s_or_b32 s48, s48, s46"); e("s_cmp_lg_u32 s48, 0xffff"); e("s_cbranch_scc1 L_cl")
        e.force_wait("vmcnt(0)")
        for base, OUT in ((32, 8), (96, 9)):
            for h in range(16):
                for k in range(4):
                    r = base + 4 * h + k
                    if h == 0:
                        e(f"v_lshlrev_b32 v{16+2*k}, 16, v{r}"); e(f"v_and_b32 v{17+2*k}, s50, v{r}")
                    else:
                        e(f"v_lshlrev_b32 v{24+2*k}, 16, v{r}"); e(f"v_and_b32 v{25+2*k}, s50, v{r}")
                        e(f"v_pk_add_f32 {v(16+2*k,2)}, {v(16+2*k,2)}, {v(24+2*k,2)}")
            for k in range(4): e(f"v_cvt_pk_bf16_f32 v{base+k}, v{16+2*k}, v{17+2*k}")
            e(f"buffer_store_dwordx2 {v(base,2)}, v{OUT}, s[56:59], s47 offen")
            e(f"s_add_u32 {s(S_TMP)}, s47, {16*1792}")
            e(f"buffer_store_dwordx2 {v(base+2,2)}, v{OUT}, s[56:59], {s(S_TMP)} offen")
        if a.stamps:
            e.force_wait("vmcnt(0)")
            e("s_memrealtime s[64:65]"); e.force_wait("lgkmcnt(0)")
            e(f"s_cmp_lg_u32 {s(S_W)}, 2"); e("s_cbranch_scc1 L_end1")
            e(f"s_add_u32 s60, s60, {STAMP_OFF}"); e("s_addc_u32 s61, s61, 0"); e("s_lshl_b32 s33, s2, 7"); e("s_add_u32 s60, s60, s33"); e("s_addc_u32 s61, s61, 0")
            e("v_mov_b32 v10, 0"); e("v_mov_b32 v8, s64"); e("v_mov_b32 v9, s65")
            e(f"global_store_dwordx2 v10, v[8:9], s[60:61] offset:{8*a.astamp}")

    def sig4(self, issued):
        e = self.e
        ends = [7, 15, 20]
        while self.nsig < 3 and issued - 1 - ends[self.nsig] >= self.a.sig_lag:
            e.wait_tag(("sp", ends[self.nsig]))
            e(f"v_mov_b32 v9, {1 << (8 * self.nsig)}")
            e("buffer_atomic_add v9, v8, s[36:39], s62 offen")
            self.nsig += 1

    def staged_reduce4(self):
        e = self.e; a = self.a
        e(f"s_lshr_b32 {s(S_TMP)}, s63, 4"); e(f"s_mul_i32 {s(S_TMP)}, {s(S_TMP)}, {16*86016}")
        e(f"s_add_u32 s52, s60, {s(S_TMP)}"); e("s_addc_u32 s53, s61, 0"); e(f"s_mov_b32 s54, {16*86016}"); e("s_mov_b32 s55, 0x20000")
        e("s_mov_b64 s[56:57], s[44:45]"); e(f"s_mov_b32 s58, {8*96*1792}"); e("s_mov_b32 s59, 0x20000")
        e(f"s_lshl_b32 s62, {s(S_U)}, 7")
        e("v_and_b32 v1, 63, v0"); e("v_mov_b32 v4, 0x200000")
        e("v_lshrrev_b32 v2, 5, v1"); e("v_lshlrev_b32 v2, 9, v2"); e("v_and_b32 v3, 31, v1"); e("v_add_u32 v2, v2, v3")
        e(f"s_lshl_b32 {s(S_TMP)}, {s(S_H)}, 5"); e(f"v_add_u32 v2, {s(S_TMP)}, v2")
        e(f"s_lshl_b32 {s(S_TMP)}, {s(S_H)}, 4"); e(f"s_add_u32 {s(S_TMP)}, {s(S_TMP)}, 1024"); e(f"v_add_u32 v3, {s(S_TMP)}, v1")
        e(f"s_lshl_b32 {s(S_TMP)}, {s(S_H)}, 3"); e(f"s_add_u32 {s(S_TMP)}, {s(S_TMP)}, 1264"); e(f"v_add_u32 v5, {s(S_TMP)}, v1")
        e("v_cmp_gt_u32 vcc, 16, v1"); e("v_cndmask_b32 v3, v5, v3, vcc")
        e(f"s_cmp_lt_u32 {s(S_H)}, 8"); e("s_cselect_b32 s46, 24, 16")
        e("v_cmp_gt_u32 s[48:49], s46, v1")
        e(f"s_mul_i32 s47, {s(S_B)}, {96*1792}"); e(f"s_mul_i32 {s(S_TMP)}, {s(S_BLK)}, 896"); e(f"s_add_u32 s47, s47, {s(S_TMP)}")
        e(f"s_lshl_b32 {s(S_TMP)}, {s(S_U)}, 5"); e(f"s_add_u32 s47, s47, {s(S_TMP)}")
        for E, LD, OUT in ((2, 6, 8), (3, 7, 9)):
            e(f"v_lshlrev_b32 v{LD}, 4, v{E}")
            e(f"v_lshrrev_b32 v10, 6, v{E}"); e("v_mul_u32_u24 v11, 43, v10"); e("v_lshrrev_b32 v11, 7, v11")
            e("v_mul_u32_u24 v12, 3, v11"); e("v_sub_u32 v12, v10, v12")
            e(f"v_add_u32 v11, {s(S_RB)}, v11"); e("v_subrev_u32 v13, 7, v11"); e("v_min_u32 v11, v11, v13")
            e(f"v_and_b32 v{OUT}, 15, v{E}"); e(f"v_lshl_add_u32 v{OUT}, v12, 5, v{OUT}"); e(f"v_mul_u32_u24 v{OUT}, 1792, v{OUT}")
            e(f"v_lshl_add_u32 v{OUT}, v11, 7, v{OUT}"); e(f"v_bfe_u32 v13, v{E}, 4, 2"); e(f"v_lshl_add_u32 v{OUT}, v13, 3, v{OUT}")
        e("v_cndmask_b32 v7, v4, v7, s[48:49]"); e("v_cndmask_b32 v9, v4, v9, s[48:49]")
        e("v_mov_b32 v5, 0"); e("s_mov_b32 s50, 0xffff0000")
        rp = self.pol(a.frpol)
        def summ(base, OUT):
            for h in range(16):
                for k in range(4):
                    r = base + 4 * h + k
                    if h == 0:
                        e(f"v_lshlrev_b32 v{16+2*k}, 16, v{r}"); e(f"v_and_b32 v{17+2*k}, s50, v{r}")
                    else:
                        e(f"v_lshlrev_b32 v{24+2*k}, 16, v{r}"); e(f"v_and_b32 v{25+2*k}, s50, v{r}")
                        e(f"v_pk_add_f32 {v(16+2*k,2)}, {v(16+2*k,2)}, {v(24+2*k,2)}")
            for k in range(4): e(f"v_cvt_pk_bf16_f32 v{24+k}, v{16+2*k}, v{17+2*k}")
            e(f"buffer_store_dwordx2 v[24:25], v{OUT}, s[56:59], s47 offen")
            e(f"s_add_u32 {s(S_TMP)}, s47, {16*1792}")
            e(f"buffer_store_dwordx2 v[26:27], v{OUT}, s[56:59], {s(S_TMP)} offen")
        for st in range(3):
            self.poll(f"L_pf{st}", "buffer_load_dword v10, v5, s[36:39], s62 offen sc1", f"v_bfe_u32 v10, v10, {8*st}, 8|v_cmp_le_u32 vcc, 16, v10")
            if st == 0: e("s_mov_b32 exec_hi, 0")
            if st == 1: e("s_mov_b32 exec_lo, 0")
            e(f"s_mul_i32 {s(S_SO)}, {s(S_U)}, 21504")
            for h in range(16):
                e(f"buffer_load_dwordx4 {v((32 if st < 2 else 96)+4*h,4)}, v{6 if st < 2 else 7}, s[52:55], {s(S_SO)} offen{rp}")
                if h < 15: e(f"s_add_u32 {s(S_SO)}, {s(S_SO)}, 86016")
            e("s_mov_b64 exec, -1")
        summ(32, 8)
        summ(96, 9)
        if a.stamps:
            e.force_wait("vmcnt(0)")
            e("s_memrealtime s[64:65]"); e.force_wait("lgkmcnt(0)")
            e(f"s_cmp_lg_u32 {s(S_W)}, 2"); e("s_cbranch_scc1 L_end1")
            e(f"s_add_u32 s60, s60, {STAMP_OFF}"); e("s_addc_u32 s61, s61, 0"); e("s_lshl_b32 s33, s2, 7"); e("s_add_u32 s60, s60, s33"); e("s_addc_u32 s61, s61, 0")
            e("v_mov_b32 v10, 0"); e("v_mov_b32 v8, s64"); e("v_mov_b32 v9, s65")
            e(f"global_store_dwordx2 v10, v[8:9], s[60:61] offset:{8*a.astamp}")

    def poll(self, name, load, cmp):
        e = self.e
        e("s_mov_b32 s51, 0")
        e.label(name)
        e(load); e.force_wait("vmcnt(0)")
        for cc in cmp.split("|"): e(cc)
        e("s_add_u32 s51, s51, 1")
        e("s_cmp_eq_u64 vcc, -1"); e(f"s_cbranch_scc1 {name}_ok")
        e("s_cmp_ge_u32 s51, 200000"); e(f"s_cbranch_scc1 {name}_ok")
        if self.a.psleep: e(f"s_sleep {self.a.psleep}")
        e(f"s_branch {name}")
        e.label(name + "_ok")

    def staged_reduce(self):
        e = self.e; a = self.a
        self.flag_srd()
        e(f"s_lshr_b32 {s(S_TMP)}, s63, 4"); e(f"s_mul_i32 {s(S_TMP)}, {s(S_TMP)}, {16*86016}")
        e(f"s_add_u32 s52, s60, {s(S_TMP)}"); e("s_addc_u32 s53, s61, 0"); e(f"s_mov_b32 s54, {16*86016}"); e("s_mov_b32 s55, 0x20000")
        e("s_mov_b64 s[56:57], s[44:45]"); e(f"s_mov_b32 s58, {8*96*1792}"); e("s_mov_b32 s59, 0x20000")
        e("v_and_b32 v1, 63, v0")
        e(f"s_lshr_b32 {s(S_TMP)}, {s(S_H)}, 2"); e(f"s_mul_i32 {s(S_TMP)}, {s(S_TMP)}, 48"); e(f"v_add_u32 v2, {s(S_TMP)}, v1")
        e("v_lshrrev_b32 v3, 6, v2"); e("v_and_b32 v2, 63, v2"); e("v_lshl_add_u32 v2, v3, 8, v2")
        e(f"s_and_b32 s46, {s(S_H)}, 3"); e(f"s_lshl_b32 {s(S_TMP)}, s46, 6"); e(f"v_add_u32 v2, {s(S_TMP)}, v2")
        e("s_lshl_b32 s46, s46, 7")
        e("v_mov_b32 v4, 0x200000"); e("v_cmp_gt_u32 vcc, 48, v1")
        e("v_lshlrev_b32 v3, 4, v2"); e("v_cndmask_b32 v3, v4, v3, vcc")
        e("v_lshrrev_b32 v7, 8, v2"); e("v_and_b32 v8, 15, v2"); e("v_lshl_add_u32 v8, v7, 5, v8"); e("v_mul_u32_u24 v8, 1792, v8")
        e("v_bfe_u32 v9, v2, 4, 4"); e("v_lshl_add_u32 v8, v9, 3, v8"); e("v_cndmask_b32 v8, v4, v8, vcc")
        e("v_and_b32 v5, 15, v1"); e("v_lshlrev_b32 v5, 9, v5"); e("v_mov_b32 v6, 0")
        e(f"s_mul_i32 s49, {s(S_B)}, {96*1792}"); e(f"s_mul_i32 {s(S_TMP)}, {s(S_BLK)}, 896"); e(f"s_add_u32 s49, s49, {s(S_TMP)}")
        e("s_mov_b32 s50, 0xffff0000")
        self.poll("L_pc", "buffer_load_dword v10, v6, s[40:43], s63 offen sc1", "v_cmp_le_u32 vcc, 16, v10")
        e(f"s_mov_b32 s48, {s(S_U)}")
        e.label("L_stage")
        self.poll("L_pf", "buffer_load_dword v10, v5, s[36:39], s46 offen sc1", "v_cmp_lt_u32 vcc, s48, v10")
        e(f"s_add_u32 s47, s48, {s(S_RB)}"); e("s_cmp_ge_u32 s47, 7"); e(f"s_cselect_b32 {s(S_TMP)}, 7, 0"); e(f"s_sub_u32 s47, s47, {s(S_TMP)}")
        e(f"s_mul_i32 {s(S_SO)}, s47, 12288")
        rp = self.pol(a.frpol)
        for h in range(16):
            e(f"buffer_load_dwordx4 {v(32+4*h,4)}, v3, s[52:55], {s(S_SO)} offen{rp}")
            if h < 15: e(f"s_add_u32 {s(S_SO)}, {s(S_SO)}, 86016")
        e("s_lshl_b32 s47, s47, 7"); e("s_add_u32 s47, s47, s49")
        for h in range(16):
            for k in range(4):
                r = 32 + 4 * h + k
                if h == 0:
                    e(f"v_lshlrev_b32 v{16+2*k}, 16, v{r}"); e(f"v_and_b32 v{17+2*k}, s50, v{r}")
                else:
                    e(f"v_lshlrev_b32 v{24+2*k}, 16, v{r}"); e(f"v_and_b32 v{25+2*k}, s50, v{r}")
                    e(f"v_pk_add_f32 {v(16+2*k,2)}, {v(16+2*k,2)}, {v(24+2*k,2)}")
        for k in range(4): e(f"v_cvt_pk_bf16_f32 v{24+k}, v{16+2*k}, v{17+2*k}")
        e("buffer_store_dwordx2 v[24:25], v8, s[56:59], s47 offen")
        e(f"s_add_u32 s47, s47, {16*1792}")
        e("buffer_store_dwordx2 v[26:27], v8, s[56:59], s47 offen")
        e("s_add_u32 s48, s48, 4"); e("s_cmp_lt_u32 s48, 7"); e("s_cbranch_scc1 L_stage")
        if a.stamps:
            e.force_wait("vmcnt(0)")
            e("s_memrealtime s[64:65]"); e.force_wait("lgkmcnt(0)")
            e(f"s_cmp_lg_u32 {s(S_W)}, 2"); e("s_cbranch_scc1 L_end1")
            e(f"s_add_u32 s60, s60, {STAMP_OFF}"); e("s_addc_u32 s61, s61, 0"); e("s_lshl_b32 s33, s2, 7"); e("s_add_u32 s60, s60, s33"); e("s_addc_u32 s61, s61, 0")
            e("v_mov_b32 v10, 0"); e("v_mov_b32 v8, s64"); e("v_mov_b32 v9, s65")
            e(f"global_store_dwordx2 v10, v[8:9], s[60:61] offset:{8*a.astamp}")

    def fused_reduce(self):
        e = self.e; a = self.a
        e.label("L_red")
        e.nop(12)
        e("s_load_dwordx4 s[40:43], s[0:1], 80")
        e(f"s_lshr_b32 {s(S_TMP)}, {s(S_W)}, 2"); e(f"s_lshl_b32 {s(S_TMP)}, {s(S_TMP)}, 8")
        e(f"v_add_u32 v1, {s(S_TMP)}, v0")
        if a.own:
            self.own_range()
            e(f"s_lshr_b32 {s(S_TMP)}, s94, 4"); e("s_lshr_b32 s95, s95, 4")
        else:
            e(f"s_mul_i32 {s(S_TMP)}, {s(S_H)}, 336"); e("s_mov_b32 s95, 336")
        e(f"v_add_u32 v2, {s(S_TMP)}, v1")
        e("v_lshlrev_b32 v3, 4, v2")
        e("v_mov_b32 v4, 0x200000")
        e("v_cmp_gt_u32 vcc, s95, v1")
        e("v_cndmask_b32 v3, v4, v3, vcc")
        e(f"s_lshl_b32 s48, {s(S_BLK)}, 3"); e(f"s_add_u32 s48, s48, {s(S_B)}")
        e(f"s_mul_i32 {s(S_TMP)}, s48, {16*86016}")
        e(f"s_add_u32 s44, s60, {s(S_TMP)}"); e("s_addc_u32 s45, s61, 0"); e(f"s_mov_b32 s46, {16*86016}"); e("s_mov_b32 s47, 0x20000")
        e("v_lshrrev_b32 v5, 8, v2"); e("v_mul_u32_u24 v6, 43, v5"); e("v_lshrrev_b32 v6, 7, v6")
        e("v_mul_u32_u24 v7, 3, v6"); e("v_sub_u32 v7, v5, v7")
        e("v_and_b32 v8, 15, v2"); e("v_lshl_add_u32 v8, v7, 5, v8"); e("v_mul_u32_u24 v8, 1792, v8")
        e("v_lshl_add_u32 v8, v6, 7, v8"); e("v_bfe_u32 v9, v2, 4, 4"); e("v_lshl_add_u32 v8, v9, 3, v8")
        e("v_cndmask_b32 v8, v4, v8, vcc")
        e(f"s_mul_i32 s49, {s(S_B)}, {96*1792}"); e(f"s_mul_i32 {s(S_TMP)}, {s(S_BLK)}, 896"); e(f"s_add_u32 s49, s49, {s(S_TMP)}")
        e.force_wait("vmcnt(0) lgkmcnt(0)")
        e("s_mov_b64 s[52:53], s[40:41]"); e(f"s_mov_b32 s54, {8*96*1792}"); e("s_mov_b32 s55, 0x20000")
        e.barrier()
        e(f"s_cmp_lg_u32 {s(S_W)}, 0"); e("s_cbranch_scc1 L_go")
        e("s_lshl_b32 s50, s48, 4")
        if a.fused == 3:
            e("s_mov_b32 s50, 0"); e("s_mov_b64 s[42:43], s[36:37]")
        e("v_mov_b32 v10, s50"); e("v_mov_b32 v11, 1")
        e("s_mov_b64 exec, 1")
        e("global_atomic_add v12, v10, v11, s[42:43] sc0")
        e("s_mov_b32 s51, 0")
        e.force_wait("vmcnt(0)")
        e("v_add_u32 v12, 1, v12")
        e.label("L_poll")
        e("v_readfirstlane_b32 s50, v12")
        e("s_add_u32 s51, s51, 1")
        e("s_cmp_ge_u32 s50, 16"); e("s_cbranch_scc1 L_polled")
        e(f"s_cmp_ge_u32 s51, 200000"); e("s_cbranch_scc1 L_polled")
        if a.psleep: e(f"s_sleep {a.psleep}")
        e("global_load_dword v12, v10, s[42:43] sc1")
        e.force_wait("vmcnt(0)")
        e("s_branch L_poll")
        e.label("L_polled")
        e("s_mov_b64 exec, -1")
        e.label("L_go")
        e.barrier()
        self.stamp()
        e(f"s_cmp_ge_u32 {s(S_W)}, 6"); e("s_cbranch_scc1 L_end1")
        rp = self.pol(a.frpol)
        if a.own:
            e(f"s_mul_i32 {s(S_SO)}, {s(S_H)}, 86016")
            for h in range(15):
                e(f"s_add_u32 {s(S_SO)}, {s(S_SO)}, 86016"); e(f"s_cmp_eq_u32 {s(S_SO)}, {16*86016}"); e(f"s_cselect_b32 {s(S_SO)}, 0, {s(S_SO)}")
                e(f"buffer_load_dwordx4 {v(36+4*h,4)}, v3, s[44:47], {s(S_SO)} offen{rp}")
            e("v_lshlrev_b32 v1, 4, v1"); e(f"v_add_u32 v1, {self.own_lds}, v1"); e("ds_read_b128 v[32:35], v1")
        for h in range(16 if not a.own else 0):
            e(f"s_mov_b32 {s(S_SO)}, {h*86016}")
            e(f"buffer_load_dwordx4 {v(32+4*h,4)}, v3, s[44:47], {s(S_SO)} offen{rp}")
        e("s_mov_b32 s50, 0xffff0000")
        for h in range(16):
            for k in range(4):
                r = 32 + 4 * h + k
                if h == 0:
                    e(f"v_lshlrev_b32 v{16+2*k}, 16, v{r}"); e(f"v_and_b32 v{17+2*k}, s50, v{r}")
                else:
                    e(f"v_lshlrev_b32 v{24+2*k}, 16, v{r}"); e(f"v_and_b32 v{25+2*k}, s50, v{r}")
                    e(f"v_pk_add_f32 {v(16+2*k,2)}, {v(16+2*k,2)}, {v(24+2*k,2)}")
        for k in range(4): e(f"v_cvt_pk_bf16_f32 v{24+k}, v{16+2*k}, v{17+2*k}")
        e("buffer_store_dwordx2 v[24:25], v8, s[52:55], s49 offen")
        e(f"s_add_u32 s49, s49, {16*1792}")
        e("buffer_store_dwordx2 v[26:27], v8, s[52:55], s49 offen")

    def maxpart(self, m, b, part, first):
        e = self.e
        if part == 0:
            if first:
                e(f"v_max3_f32 {v(m)}, {v(b)}, {v(b+1)}, {v(b+1)}")
            else:
                e(f"v_max3_f32 {v(m)}, {v(m)}, {v(b)}, {v(b+1)}")
            e(f"v_max3_f32 {v(m)}, {v(m)}, {v(b+2)}, {v(b+3)}"); e(f"v_max3_f32 {v(m)}, {v(m)}, {v(b+4)}, {v(b+5)}")
        elif part == 1:
            for k in (6, 8, 10): e(f"v_max3_f32 {v(m)}, {v(m)}, {v(b+k)}, {v(b+k+1)}")
        else:
            for k in (12, 14): e(f"v_max3_f32 {v(m)}, {v(m)}, {v(b+k)}, {v(b+k+1)}")

    def max8(self, m, b, first):
        e = self.e
        if first: e(f"v_max_f32 {v(m)}, {v(b)}, {v(b+1)}")
        else: e(f"v_max3_f32 {v(m)}, {v(m)}, {v(b)}, {v(b+1)}")
        for k in (2, 4, 6): e(f"v_max3_f32 {v(m)}, {v(m)}, {v(b+k)}, {v(b+k+1)}")

    def sums16(self, T, S16):
        e = self.e
        for q6 in range(6):
            r = S16(T, q6)
            e(f"v_pk_add_f32 {v(r,2)}, {v(r,2)}, {v(r+4,2)}"); e(f"v_pk_add_f32 {v(r+2,2)}, {v(r+2,2)}, {v(r+6,2)}")
        for q6 in range(6):
            r = S16(T, q6)
            e(f"v_pk_add_f32 {v(r,2)}, {v(r,2)}, {v(r+2,2)}")
        for q6 in range(6 if T else 0):
            e(f"v_pk_add_f32 {v(S16(0,q6),2)}, {v(S16(0,q6),2)}, {v(S16(T,q6),2)}")

    def sumw16(self, S16):
        e = self.e
        for q6 in range(6):
            r = S16(0, q6)
            e(f"v_add_f32 {v(r)}, {v(r)}, {v(r+1)}")
            e(f"ds_write_b32 v12, {v(r)} offset:{q6*1024}")

    def sums(self, T, SACC, SUM):
        e = self.e
        for qt in range(3):
            r = SACC(T, qt)
            for k in range(0, 8, 2): e(f"v_pk_add_f32 {v(r+k,2)}, {v(r+k,2)}, {v(r+8+k,2)}")
            for k in range(0, 4, 2): e(f"v_pk_add_f32 {v(r+k,2)}, {v(r+k,2)}, {v(r+4+k,2)}")
            e(f"v_pk_add_f32 {v(r,2)}, {v(r,2)}, {v(r+2,2)}")
            if T == 0: e(f"v_add_f32 {v(SUM+qt)}, {v(r)}, {v(r+1)}")
            else:
                e(f"v_add_f32 {v(r)}, {v(r)}, {v(r+1)}"); e(f"v_add_f32 {v(SUM+qt)}, {v(SUM+qt)}, {v(r)}")

    def store_cb(self, cb):
        e = self.e
        wp = self.pol(self.a.wpol)
        for qt in range(3):
            a0, a1 = self.ACC(cb, 2 * qt), self.ACC(cb, 2 * qt + 1)
            tt = a0
            if self.a.fused == 6:
                wp = self.pol(self.a.xpol)
                if cb == 5:
                    tt = self.ACC(3, 2 * qt)
                    if qt == 0:
                        e(f"s_cmp_eq_u32 {s(S_PP)}, 3"); e(f"s_cselect_b32 {s(S_ST)}, {s(S_ST)}, 0x100000")
            if self.a.defer:
                assert self.a.fused in (0, 1, 3, 7)
                for k in range(4): e(f"v_mul_f32 {v(a0+k)}, {v(8+2*qt)}, {v(a0+k)}")
                for k in range(4): e(f"v_mul_f32 {v(a1+k)}, {v(9+2*qt)}, {v(a1+k)}")
            e(f"v_cvt_pk_bf16_f32 {v(tt)}, {v(a0)}, {v(a0+1)}"); e(f"v_cvt_pk_bf16_f32 {v(tt+1)}, {v(a0+2)}, {v(a0+3)}")
            e(f"v_cvt_pk_bf16_f32 {v(tt+2)}, {v(a1)}, {v(a1+1)}"); e(f"v_cvt_pk_bf16_f32 {v(tt+3)}, {v(a1+2)}, {v(a1+3)}")
            if self.a.fused == 4:
                e(f"buffer_store_dwordx4 {v(tt,4)}, v7, {s(S_R2,4)}, {s(S_ST)} offen offset:{qt*1024}{wp}", tag=("sp", 3 * cb + qt))
                if qt == 2:
                    e(f"s_add_u32 {s(S_ST)}, {s(S_ST)}, 3072"); e("s_nop 0"); e("s_nop 0")
                    return
                continue
            if self.a.own:
                lab = f"L_ow{cb}_{qt}"
                e("#BEGIN")
                e(f"s_sub_u32 {s(S_TMP)}, {s(S_ST)}, s94"); e(f"s_cmp_lt_u32 {s(S_TMP)}, s95"); e(f"s_cbranch_scc1 {lab}")
                e(f"buffer_store_dwordx4 {v(tt,4)}, v7, {s(S_R2,4)}, {s(S_ST)} offen{wp}", tag=("st", cb))
                e(f"#LABEL {lab}_r")
                e("#END")
                self.own_blocks.append((lab, tt))
            else:
                e(f"buffer_store_dwordx4 {v(tt,4)}, v7, {s(S_R2,4)}, {s(S_ST)} offen{wp}", tag=("st", cb))
            if qt < 2: e(f"s_add_u32 {s(S_ST)}, {s(S_ST)}, 4096")
        if self.a.fused == 6:
            e(f"s_add_u32 {s(S_ST)}, {s(S_ST)}, {4096 + 3*12288 - XQ & 0xffffffff}"); e(f"s_cselect_b32 {s(S_TMP)}, 0, {XQ}"); e(f"s_add_u32 {s(S_ST)}, {s(S_ST)}, {s(S_TMP)}")
            return
        e(f"s_add_u32 {s(S_ST)}, {s(S_ST)}, 4096"); e(f"s_cmp_eq_u32 {s(S_ST)}, 86016"); e(f"s_cselect_b32 {s(S_ST)}, 0, {s(S_ST)}")

    def kernel1(self):
        e = self.e
        self.oage = {}; self.sinfo = {}; self.parked = set(); self.nsig = 0; self.own_blocks = []
        self.build_plan()
        e.label(NAME + "_kernel")
        self.prologue()
        snap = e.snapshot(); nst = self.nst
        self.role_A()
        e.restore(snap); self.nst = nst
        e.label("L_roleB")
        self.role_B()
        e.label("L_end1"); e("s_endpgm")
        for lab, tt in self.own_blocks:
            e.label(lab)
            e.raw(f"    v_add_u32 v4, {s(S_TMP)}, v6")
            e.raw(f"    v_add_u32 v4, {self.own_lds}, v4")
            e.raw(f"    ds_write_b128 v4, {v(tt,4)}")
            e.raw(f"    s_waitcnt lgkmcnt(0)")
            e.raw(f"    s_branch {lab}_r")

from gen1 import desc

def reducer2(a):
    per, thr = a.rper, a.rthr
    nwg = 16 * 5376 // per
    assert 5376 % per == 0
    wpg = 5376 // per
    e = Emitter()
    e.label("reduce_kernel")
    e(f"s_cmp_ge_u32 s2, {nwg}"); e("s_cbranch_scc1 L_end2")
    e("s_load_dwordx2 s[4:5], s[0:1], 96")
    e("s_load_dwordx2 s[8:9], s[0:1], 80")
    if a.stamps: e("s_memrealtime s[24:25]")
    e(f"s_mul_hi_u32 s12, s2, {-(-(1<<32)//wpg)}")
    e(f"s_mul_i32 s13, s12, {wpg}"); e("s_sub_u32 s13, s2, s13"); e(f"s_mul_i32 s13, s13, {per}")
    e("v_add_u32 v2, s13, v0")
    e("v_lshlrev_b32 v3, 4, v2")
    if per != thr:
        e("v_mov_b32 v4, 0x200000"); e(f"v_cmp_gt_u32 vcc, {per}, v0"); e("v_cndmask_b32 v3, v4, v3, vcc")
    e(f"s_mul_i32 s16, s12, {16*86016}")
    e(f"s_mov_b32 s6, {16*86016}"); e("s_mov_b32 s7, 0x20000"); e(f"s_mov_b32 s10, {8*96*1792}"); e("s_mov_b32 s11, 0x20000")
    e("s_mov_b32 s18, 0")
    e.wait(lgkm=0)
    if a.stamps: e("s_mov_b64 s[28:29], s[4:5]")
    e("s_add_u32 s4, s4, s16"); e("s_addc_u32 s5, s5, 0")
    rp = (" " + a.rpol) if a.rpol else ""
    for h in range(16):
        e(f"buffer_load_dwordx4 {v(32+4*h,4)}, v3, s[4:7], s18 offen{rp}")
        if h < 15: e("s_add_u32 s18, s18, 86016")
    e("v_lshrrev_b32 v5, 8, v2"); e("v_mul_u32_u24 v6, 43, v5"); e("v_lshrrev_b32 v6, 7, v6")
    e("v_mul_u32_u24 v7, 3, v6"); e("v_sub_u32 v7, v5, v7")
    e("v_and_b32 v8, 15, v2"); e("v_lshl_add_u32 v8, v7, 5, v8"); e("v_mul_u32_u24 v8, 1792, v8")
    e("v_lshl_add_u32 v8, v6, 7, v8"); e("v_bfe_u32 v9, v2, 4, 4"); e("v_lshl_add_u32 v8, v9, 3, v8")
    if per != thr: e("v_cndmask_b32 v8, v4, v8, vcc")
    e("s_and_b32 s19, s12, 7"); e("s_lshr_b32 s20, s12, 3")
    e(f"s_mul_i32 s19, s19, {96*1792}"); e("s_mul_i32 s20, s20, 896"); e("s_add_u32 s19, s19, s20")
    e("s_mov_b32 s22, 0xffff0000")
    for h in range(16):
        for k in range(4):
            r = 32 + 4 * h + k
            if h == 0:
                e(f"v_lshlrev_b32 v{16+2*k}, 16, v{r}"); e(f"v_and_b32 v{17+2*k}, s22, v{r}")
            else:
                e(f"v_lshlrev_b32 v{24+2*k}, 16, v{r}"); e(f"v_and_b32 v{25+2*k}, s22, v{r}")
                e(f"v_pk_add_f32 {v(16+2*k,2)}, {v(16+2*k,2)}, {v(24+2*k,2)}")
    for k in range(4): e(f"v_cvt_pk_bf16_f32 v{24+k}, v{16+2*k}, v{17+2*k}")
    op = (" " + a.opol) if a.opol else ""
    e(f"buffer_store_dwordx2 v[24:25], v8, s[8:11], s19 offen{op}")
    e(f"s_add_u32 s19, s19, {16*1792}")
    e(f"buffer_store_dwordx2 v[26:27], v8, s[8:11], s19 offen{op}")
    if a.stamps:
        e.force_wait("vmcnt(0)")
        e("s_memrealtime s[26:27]"); e.force_wait("lgkmcnt(0)")
        e(f"s_add_u32 s28, s28, {STAMP_OFF + 65536}"); e("s_addc_u32 s29, s29, 0"); e("s_lshl_b32 s13, s2, 4"); e("s_add_u32 s28, s28, s13"); e("s_addc_u32 s29, s29, 0")
        e("v_mov_b32 v10, 0"); e("v_mov_b32 v12, s24"); e("v_mov_b32 v13, s25"); e("v_mov_b32 v14, s26"); e("v_mov_b32 v15, s27")
        e("global_store_dwordx4 v10, v[12:15], s[28:29]")
    e.label("L_end2"); e("s_endpgm")
    return e, nwg

ilist = lambda x: [int(t) for t in x.split(",") if t]

def main(argv=None):
    ap = argparse.ArgumentParser()
    ap.add_argument("-o", default="k3.s")
    ap.add_argument("--stamps", type=int, default=0)
    ap.add_argument("--stamp_ticks", type=ilist, default=[])
    ap.add_argument("--clk", type=int, default=0)
    ap.add_argument("--rot", type=int, default=1)
    ap.add_argument("--nkd", type=int, default=4)
    ap.add_argument("--la", type=float, default=6)
    ap.add_argument("--k0", type=int, default=1)
    ap.add_argument("--kticks", type=ilist, default=[4, 6, 7])
    ap.add_argument("--wrate", type=float, default=2.0)
    ap.add_argument("--alt1", type=int, default=0)
    ap.add_argument("--alt2", type=int, default=0)
    ap.add_argument("--opf", type=int, default=-1)
    ap.add_argument("--thr", type=int, default=-1)
    ap.add_argument("--remap", type=int, default=0)
    ap.add_argument("--diag", type=int, default=0)
    ap.add_argument("--st1", type=int, default=4)
    ap.add_argument("--lsleep", type=int, default=0)
    ap.add_argument("--own", type=int, default=0)
    ap.add_argument("--pace", type=int, default=0)
    ap.add_argument("--stag", type=int, default=0)
    ap.add_argument("--stagbit", type=int, default=2)
    ap.add_argument("--qhalf", type=int, default=0)
    ap.add_argument("--paceA", type=int, default=0)
    ap.add_argument("--op2hack", type=int, default=0)
    ap.add_argument("--aord", type=int, default=0)
    ap.add_argument("--s16", type=int, default=0)
    ap.add_argument("--nd", type=int, default=0)
    ap.add_argument("--paceO", type=int, default=0)
    ap.add_argument("--paceV", type=int, default=0)
    ap.add_argument("--opr", type=float, default=0)
    ap.add_argument("--p2", default="")
    ap.add_argument("--bgap", type=int, default=1)
    ap.add_argument("--wv", type=int, default=1)
    ap.add_argument("--lag", type=int, default=2)
    ap.add_argument("--qdrain", type=ilist, default=[0, 3])
    ap.add_argument("--odrain", type=ilist, default=[0])
    ap.add_argument("--kpre", type=int, default=2)
    ap.add_argument("--blag", type=int, default=1)
    ap.add_argument("--kmax", type=int, default=2)
    ap.add_argument("--kmax_from", type=int, default=99)
    ap.add_argument("--klag", type=int, default=2)
    ap.add_argument("--kburn", type=int, default=1)
    ap.add_argument("--kkeep", type=int, default=1)
    ap.add_argument("--vtr0", type=int, default=2)
    ap.add_argument("--vtr1", type=int, default=3)
    ap.add_argument("--lv0", type=int, default=10)
    ap.add_argument("--vmax0", type=int, default=3)
    ap.add_argument("--prio", type=int, default=0)
    ap.add_argument("--vend", type=int, default=2)
    ap.add_argument("--vdrain", type=int, default=1)
    ap.add_argument("--opn_end", type=int, default=2)
    ap.add_argument("--park", type=int, default=0)
    ap.add_argument("--parkfast", type=int, default=1)
    ap.add_argument("--oearly", type=int, default=0)
    ap.add_argument("--oe_from", type=int, default=16)
    ap.add_argument("--oe_rate", type=int, default=2)
    ap.add_argument("--lv", type=int, default=6)
    ap.add_argument("--lc", type=int, default=9)
    ap.add_argument("--vcmax", type=int, default=3)
    ap.add_argument("--vmax", type=int, default=2)
    ap.add_argument("--lo", type=int, default=9)
    ap.add_argument("--omax", type=int, default=3)
    ap.add_argument("--ostart", type=int, default=4)
    ap.add_argument("--olag", type=int, default=2)
    ap.add_argument("--opn", type=int, default=2)
    ap.add_argument("--vres", type=int, default=0)
    ap.add_argument("--a_first", type=int, default=1)
    ap.add_argument("--b_first", type=int, default=1)
    ap.add_argument("--b_smx_issue", type=int, default=0)
    ap.add_argument("--defer", type=int, default=0)
    ap.add_argument("--pkfma", type=int, default=0)
    ap.add_argument("--kvpol", default="nt")
    ap.add_argument("--spol", default="")
    ap.add_argument("--wpol", default="sc1")
    ap.add_argument("--rpol", default="")
    ap.add_argument("--opol", default="")
    ap.add_argument("--rper", type=int, default=336)
    ap.add_argument("--rthr", type=int, default=384)
    ap.add_argument("--rlds", type=int, default=0)
    ap.add_argument("--fused", type=int, default=0)
    ap.add_argument("--xpol", default="")
    ap.add_argument("--xlpol", default="sc1")
    ap.add_argument("--yslot", type=int, default=0)
    ap.add_argument("--junk", type=int, default=0)
    ap.add_argument("--junkn", type=int, default=8)
    ap.add_argument("--forceslow", type=int, default=0)
    ap.add_argument("--sig_lag", type=int, default=4)
    ap.add_argument("--flag_lag", type=int, default=1)
    ap.add_argument("--astamp", type=int, default=8)
    ap.add_argument("--psleep", type=int, default=0)
    ap.add_argument("--frpol", default="sc1")
    ap.add_argument("--s16hack", type=int, default=0)
    ap.add_argument("--codepf", type=int, default=0)
    ap.add_argument("--skip", default="")
    ap.add_argument("--padto", type=int, default=0)
    ap.add_argument("--padglob", type=int, default=0)
    ap.add_argument("--verbose", action="store_true")
    a = ap.parse_args(argv)
    g = Gen(a); g.kernel1()
    out = HEADER
    if a.fused:
        out += "; @launch grid=(256,1,1) block=(512,1,1) lds=163840\n"
    else:
        out += f"; @launch kernel={NAME}_kernel grid=(256,1,1) block=(512,1,1) lds=163840\n"
        re_, nwg = reducer2(a)
        out += f"; @launch kernel=reduce_kernel grid=({nwg},1,1) block=({a.rthr},1,1) lds={a.rlds}\n"
    out += '.amdgcn_target "amdgcn-amd-amdhsa--gfx950"\n.text\n'
    out += f".globl {NAME}_kernel\n.p2align 8\n.type {NAME}_kernel,@function\n" + g.e.text()
    if not a.fused:
        out += ".globl reduce_kernel\n.p2align 8\n.type reduce_kernel,@function\n" + re_.text()
    if a.codepf: out += f".fill (49152 - (. - {NAME}_kernel)) / 4, 4, 0xbf810000\n"
    out += '.section .rodata,"a"\n.p2align 6\n' + desc(NAME + "_kernel", 256)
    if not a.fused: out += ".p2align 6\n" + desc("reduce_kernel", 96, 32)
    open(a.o, "w").write(out)
    print(f"{a.o}: k1 insts {g.e.ninst} (nops {g.e.nops}), ticks {len(g.plan)}, stamps {g.nst}", file=sys.stderr)

if __name__ == "__main__":
    main()
```

```python
import sys, argparse
from emit import Emitter

NAME = "concat_heads__mha_block_cached__mha_block_cached__near_ridge"
STAMP_OFF = 200 << 20
SLOT = 8192
STAT = 19 * SLOT
HEADER = open("cdna_kernels/" + NAME + ".s.ref").read().split("; Override launch")[0]

def v(a, n=1): return f"v{a}" if n == 1 else f"v[{a}:{a+n-1}]"
def s(a, n=1): return f"s{a}" if n == 1 else f"s[{a}:{a+n-1}]"

T0, T1 = 14, 15
S_R0, S_R1, S_R2 = 4, 8, 12
S_W, S_M0B, S_SO, S_TMP, S_C = 16, 17, 18, 19, 20
S_BLK, S_H, S_B, S_PP, S_U = 21, 22, 23, 24, 25
S_R7, S_R4, S_RB = 26, 27, 28
S_A0, S_A1, S_A2, S_A3, S_ST = 29, 30, 31, 32, 33
FLAG_OFF = 32 << 20
XQ = 7 * 4 * 12288
CSTR = 4352
QBUF = [0, 12288]
PBUF = [0, 24576]
OBUF = [0, 0]

class Gen:
    def __init__(self, a):
        self.a = a
        self.e = Emitter()
        D = dict(mfma=("v_mfma",), m32=("v_mfma_f32_32",), m16=("v_mfma_f32_16",), ds=("ds_",), valu=("v_exp", "v_fma_f32", "v_max", "v_cvt_pk", "v_pk_", "v_mul_f32", "v_add_f32", "v_rcp"), store=("buffer_store",), dma=("buffer_load",))
        self.e.drop = tuple(x for k in a.skip.split(",") if k for x in D[k])
        self.nst = 0

    def stamp(self, wait=True):
        if self.a.stamps:
            i = self.nst; self.nst += 1
            assert i < 16 or self.a.clk == 2
            if self.a.clk == 2:
                if i >= 15: self.nst -= 1; return
                self.e(f"s_memrealtime {s(64+2*i,2)}"); self.e(f"s_memtime {s(66+2*i,2)}"); self.nst += 1
            else:
                self.e(f"{'s_memtime' if self.a.clk else 's_memrealtime'} {s(64+2*i,2)}")
            if wait: self.e.force_wait("lgkmcnt(0)")

    def obuf(self, c): return 12288 if (self.a.nd and c % 2 == 1) else 0

    def pol(self, p): return (" " + p) if p else ""

    def issue(self, item, slot):
        e = self.e; a = self.a
        ty = item[0]
        sh, kv = self.pol(a.spol), self.pol(a.kvpol)
        if ty == "X":
            n = item[1]
            for j in range(3):
                e(f"s_add_u32 m0, {s(S_M0B)}, {(n%4)*12288 + j*4096}")
                e(f"s_add_u32 {s(S_SO)}, {s(S_A0)}, {j*32*896}")
                e(f"buffer_load_dwordx4 v1, {s(S_R0,4)}, {s(S_SO)} offen{sh} lds", tag=item)
            e(f"s_add_u32 {s(S_A0)}, {s(S_A0)}, 128"); e(f"s_cmp_eq_u32 {s(S_A0)}, 896"); e(f"s_cselect_b32 {s(S_A0)}, 0, {s(S_A0)}")
        elif ty == "W":
            c, n = divmod(item[1], 7)
            e(f"s_add_u32 m0, {s(S_M0B)}, {slot*SLOT}")
            e(f"s_add_u32 {s(S_SO)}, {s(S_A1)}, {s(S_A2)}")
            e(f"buffer_load_dwordx4 v2, {s(S_R1,4)}, {s(S_SO)} offen{sh} lds", tag=item)
            e(f"s_add_u32 m0, {s(S_M0B)}, {slot*SLOT+4096}")
            e(f"s_add_u32 {s(S_SO)}, {s(S_SO)}, {32*8192}")
            e(f"buffer_load_dwordx4 v2, {s(S_R1,4)}, {s(S_SO)} offen{sh} lds", tag=item)
            e(f"s_add_u32 {s(S_A1)}, {s(S_A1)}, {64*8192}"); e(f"s_cmp_eq_u32 {s(S_A1)}, {7*64*8192}"); e(f"s_cselect_b32 {s(S_A1)}, 0, {s(S_A1)}")
            if n == 6:
                e(f"s_add_u32 {s(S_A2)}, {s(S_A2)}, 128"); e(f"s_and_b32 {s(S_A2)}, {s(S_A2)}, 511")
        elif ty == "V":
            c, i = divmod(item[1], 8)
            if item[1] == 0: self.setup_dv()
            for j in range(2):
                e(f"s_add_u32 m0, {s(S_M0B)}, {slot*SLOT + j*4096}")
                e(f"s_add_u32 {s(S_SO)}, {s(S_A3)}, {(i*64+j*32)*512}")
                e(f"buffer_load_dwordx4 v1, {s(S_R2,4)}, {s(S_SO)} offen{kv} lds", tag=item)
            if i == 7:
                e(f"s_add_u32 {s(S_A3)}, {s(S_A3)}, 128"); e(f"s_and_b32 {s(S_A3)}, {s(S_A3)}, 511")
        elif ty == "K":
            c, T = divmod(item[1], 4)
            for p in range(4):
                e(f"s_add_u32 m0, {s(S_A3)}, {slot*SLOT + p*1024}")
                e(f"s_add_u32 {s(S_SO)}, {s(S_A0)}, {(128*T+8*p)*512}")
                e(f"buffer_load_dwordx4 v{1+(p&1)}, {s(S_R0,4)}, {s(S_SO)} offen{kv} lds", tag=item)
            if T == 3:
                e(f"s_add_u32 {s(S_A0)}, {s(S_A0)}, 128"); e(f"s_and_b32 {s(S_A0)}, {s(S_A0)}, 511")
        elif ty == "O":
            c, n = divmod(item[1], 7)
            e(f"s_add_u32 m0, {s(S_M0B)}, {slot*SLOT}")
            e(f"s_add_u32 {s(S_SO)}, {s(S_A1)}, {s(S_A2)}")
            e(f"buffer_load_dwordx4 v3, {s(S_R1,4)}, {s(S_SO)} offen{sh} lds", tag=item)
            e(f"s_add_u32 m0, {s(S_M0B)}, {slot*SLOT+4096}")
            e(f"s_add_u32 {s(S_SO)}, {s(S_SO)}, {32*896}")
            e(f"buffer_load_dwordx4 v3, {s(S_R1,4)}, {s(S_SO)} offen{sh} lds", tag=item)
            e(f"s_add_u32 {s(S_A2)}, {s(S_A2)}, 128"); e(f"s_cmp_eq_u32 {s(S_A2)}, 896"); e(f"s_cselect_b32 {s(S_A2)}, 0, {s(S_A2)}")
            if n == 6:
                e(f"s_add_u32 {s(S_A1)}, {s(S_A1)}, 57344"); e(f"s_cmp_eq_u32 {s(S_A1)}, {4*57344}"); e(f"s_cselect_b32 {s(S_A1)}, 0, {s(S_A1)}")

    def issue_parts(self, item, slot):
        class Rec:
            def __init__(s2): s2.l = []
            def __call__(s2, t, tag=None): s2.l.append((t, tag))
        real = self.e; rec = Rec(); self.e = rec
        self.issue(item, slot)
        self.e = real
        parts = []; cur = []
        for t, tag in rec.l:
            cur.append((t, tag))
            if t.startswith("buffer_load"): parts.append(cur); cur = []
        parts[-1] += cur
        return [(lambda p=p: [real(t, tag=tag) for t, tag in p]) for p in parts]

    def store_parts(self, cb):
        class Rec:
            def __init__(s2): s2.l = []
            def __call__(s2, t, tag=None): s2.l.append((t, tag))
        real = self.e; rec = Rec(); self.e = rec
        self.store_cb(cb)
        self.e = real
        L = rec.l
        parts = []; grp = None
        for x in L[:-3]:
            if x[0] == "#BEGIN": grp = []
            elif x[0] == "#END": parts.append(grp); grp = None
            elif grp is not None: grp.append(x)
            else: parts.append([x])
        parts[-1] += L[-3:]
        def run(p):
            for t, tag in p:
                if t.startswith("#LABEL"): real.label(t.split()[1])
                else: real(t, tag=tag)
        return [(lambda p=p: run(p)) for p in parts]

    def setup_dv(self):
        e = self.e
        e(f"v_bfe_u32 v46, v0, 4, 2"); e("v_lshlrev_b32 v46, 1, v46"); e("v_and_b32 v47, 7, v0"); e("v_xor_b32 v46, v46, v47"); e("v_lshlrev_b32 v46, 4, v46")
        e("v_lshrrev_b32 v1, 3, v0"); e("v_lshl_add_u32 v1, v1, 9, v46")

    def build_plan(self):
        a = self.a
        nkd = a.nkd
        kslots = [19 - 2 * (i + 1) for i in range(nkd)]
        self.KBASE = min(kslots)
        free = list(range(6, self.KBASE)) + [19]
        WONLY = {3, 4, 5, 19}
        kfree = sorted(kslots)
        plan = []
        slot = {}
        def newtick(bar=True):
            P = dict(bar=bar, A=dict(need=None, issue=[], act=[]), B=dict(need=None, issue=[], act=[])); plan.append(P); return P
        pend = []
        astr = []
        for n in range(7): astr += [("X", n), ("W", n)]
        astr += [("W", i) for i in range(7, 28)]
        ia = 0; ca = 0; xdone = 0
        ik = 0; ck = 0
        def cost(it): return 1.5 if it[0] == "X" else 1.0
        def issueA(P, la):
            nonlocal ia
            while ia < len(astr) and sum(cost(x) for x in astr[ca:ia + 1]) <= la:
                it = astr[ia]
                if it[0] == "X":
                    if it[1] - 4 >= xdone: break
                    P["A"]["issue"].append((it, None))
                else:
                    if not free: break
                    slot[it] = free.pop(0); P["A"]["issue"].append((it, slot[it]))
                ia += 1
        def issueK(P, n):
            nonlocal ik
            while n > 0 and ik < 16 and kfree:
                slot[("K", ik)] = kfree.pop(0); P["B"]["issue"].append((("K", ik), slot[("K", ik)])); ik += 1; n -= 1
        P = newtick(False); issueA(P, a.la); issueK(P, a.k0)
        P["A"]["act"].append(("init",)); P["B"]["act"].append(("init",))
        qwritten = -1; qready = -1; xread = 0
        tick = 0
        wacc = 0.0
        kage = {i: 0 for i in range(ik)}
        iv = 0
        def issueV(P, n):
            nonlocal iv
            while n > 0 and iv < 32 and [x for x in free if x not in WONLY]:
                slot[("V", iv)] = [x for x in free if x not in WONLY][0]; free.remove(slot[("V", iv)]); P["A"]["issue"].append((("V", iv), slot[("V", iv)])); iv += 1; n -= 1
        ckprev = 0; vinit = False; qdefer = None; io = 0; npark = 0; parked_free = []
        while ck < 16:
            tick += 1
            P = newtick()
            free += pend; pend = []; free.sort(); xdone = xread; qready = qwritten; ckprev = ck
            kfree += parked_free; parked_free = []
            if qdefer is not None:
                qwritten = qdefer; qdefer = None; P["A"]["act"].append(("flushw",))
            if ca < 14: n = 2
            else:
                wacc += a.wrate; n = int(wacc + 1e-9); wacc -= n
            took = []
            while n > 0 and ca < min(ia, len(astr)):
                it = astr[ca]
                if it[0] == "W" and it[1] % 7 == 6 and it[1] // 7 >= 2 and ckprev < 4 * (it[1] // 7 - 1):
                    break
                took.append(it); ca += 1; n -= 1
                if it[0] == "X":
                    P["A"]["act"].append(("X", it[1])); xread = it[1] + 1
                    if it[1] == 6: pend += [3, 4, 5]
                else:
                    P["A"]["act"].append(("W", it[1], slot[it])); pend.append(slot[it])
                    if it[1] % 7 == 6:
                        cq = it[1] // 7
                        if a.lag == 0 or cq in a.qdrain:
                            P["A"]["act"].append(("drain",)); qwritten = cq; break
                        else: qdefer = cq
            if qdefer is not None and took[-1] != ("W", 7 * qdefer + 6):
                qwritten = qdefer; qdefer = None; P["A"]["act"].append(("flushw",))
            if took: P["A"]["need"] = took[-1]
            if not a.alt1 or tick < 8 or tick % 2 == 1: issueA(P, a.la)
            if qready == 3 and not vinit:
                P["A"]["act"].append(("initv",)); vinit = True
            if qready < 0 and npark < a.park and npark < ik and tick - kage[npark] >= 2:
                P["B"]["act"].append(("Kpark", npark)); parked_free.append(slot[("K", npark)]); self.parked.add(npark); npark += 1
            if qwritten == 0 and qready < 0 and 0 not in self.parked: P["B"]["act"].append(("Kpre", 0))
            issued = False
            n = a.kmax if (ca == len(astr) and not took) or tick >= a.kmax_from else 1
            last = ik == 16 and qready == 3 and 16 - ck <= a.kburn
            while ck < ik and ck // 4 <= qready and (last or (n > 0 and tick - kage[ck] >= a.klag)):
                sl = slot[("K", ck)]
                P["B"]["act"].append(("S", ck, sl)); self.sinfo[ck] = (tick, qready); ck += 1; n -= 1
                if ck - 1 in self.parked:
                    n += a.parkfast if len([x for x in P["B"]["act"] if x[0] == "S"]) < 2 else 0
                    continue
                if a.alt1 and ia < len(astr):
                    if tick % 2 == 0 and ik < 16 and (kfree or tick == 8):
                        if kfree:
                            k2_ = kfree.pop(0); slot[("K", ik)] = k2_; P["B"]["issue"].append((("K", ik), k2_)); kage[ik] = tick; ik += 1
                        if ik < 16:
                            slot[("K", ik)] = sl; P["B"]["act"].append(("issue", ("K", ik), sl)); kage[ik] = tick; ik += 1
                        else: kfree.append(sl)
                    else: kfree.append(sl)
                    issued = True
                elif ik < 16 and not issued and not kfree:
                    slot[("K", ik)] = sl; P["B"]["act"].append(("issue", ("K", ik), sl)); kage[ik] = tick; ik += 1; issued = True
                else:
                    kfree.append(sl)
            if not issued and ik < 16 and (tick in a.kticks or tick >= 8):
                cand = [x for x in kfree if not any(ac[0] == "S" and ac[2] == x and ac[1] not in self.parked for ac in P["B"]["act"])]
                if cand:
                    kfree.remove(cand[0]); slot[("K", ik)] = cand[0]; P["B"]["issue"].append((("K", ik), cand[0])); kage[ik] = tick; ik += 1
            while tick >= 8 and len(kfree) > min(16 - ik, a.kkeep):
                k = kfree.pop(0); pend += [k, k + 1]
            if ia == len(astr) and tick >= a.oe_from:
                n = a.oe_rate
                while n > 0 and io < a.oearly and [x for x in free if x not in WONLY]:
                    sl = [x for x in free if x not in WONLY][-1]; free.remove(sl)
                    slot[("O", io)] = sl; P["B"]["issue"].append((("O", io), sl)); self.oage[("O", io)] = -9; io += 1; n -= 1
            if ik == 16 and kage[15] < tick and ia == len(astr):
                issueV(P, a.vtr0 if last else 2)
            assert tick < 100
        assert vinit
        self.kage = kage; self.kslot = {i: slot[("K", i)] for i in range(16)}
        P["B"]["act"].append(("maxw",))
        P = newtick()
        free += pend; pend = []; free.sort()
        assert not kfree and all(x in free for x in WONLY)
        for x in sorted(WONLY): free.remove(x)
        WONLY.clear()
        P["B"]["act"] += [("maxr",), ("smx", 0)]
        issueV(P, a.vtr1)
        ostr = [("O", i) for i in range(28)]
        co = 0; cv = 0
        pw = 0
        oready = oloaded = owritten = -1
        odefer = None; oacc = 0.0
        t2 = 0
        if a.p2:
            spec = [tuple(int(x) for x in t.split(",")) for t in a.p2.split("/")]
            for (vi, vc, oi, oc) in spec:
                t2 += 1
                P = newtick()
                free += pend; pend = []; free.sort(); oready = owritten
                if odefer is not None:
                    owritten = odefer; odefer = None; P["A"]["act"].append(("flushw",))
                if t2 <= 4:
                    P["A"]["act"].append(("pread", t2 - 1))
                    if t2 <= 3: P["B"]["act"].append(("smx", t2))
                    if t2 == 4: P["B"]["act"].append(("inito",)); pend += [2, 3, 4, 5]
                if t2 == 5: pend += [19]
                for k in range(vc):
                    assert cv < iv, f"t2={t2}: V{cv} not issued"
                    assert not ((cv + 1) % 8 == 0 and oloaded < (cv + 1) // 8 - 2), f"t2={t2}: O buffer busy"
                    P["A"]["act"].append(("V", cv, slot[("V", cv)])); pend.append(slot[("V", cv)]); P["A"]["need"] = ("V", cv); cv += 1
                    if cv % 8 == 0:
                        if k + 1 < vc: P["A"]["act"].append(("flushw",)); owritten = cv // 8 - 1
                        elif cv == 32 or (cv // 8 - 1) in a.odrain: P["A"]["act"].append(("drain",)); owritten = cv // 8 - 1
                        else: odefer = cv // 8 - 1
                if oloaded < oready and co == 7 * (oloaded + 1):
                    oloaded += 1; P["B"]["act"].append(("oread", oloaded))
                for k in range(oc):
                    assert co < io and co < 7 * (oloaded + 1), f"t2={t2}: O{co} not consumable"
                    P["B"]["act"].append(("O", co, slot[("O", co)])); pend.append(slot[("O", co)]); P["B"]["need"] = ("O", co); co += 1
                assert len(free) >= vi + oi, f"t2={t2}: slots {free} < {vi+oi}"
                issueV(P, vi)
                for k in range(oi):
                    slot[("O", io)] = free.pop(); P["B"]["issue"].append((("O", io), slot[("O", io)])); io += 1
                P["burst"] = t2 > 4
            assert cv == 32 and co == 28 and oloaded == 3, (cv, co, oloaded)
        while cv < 32 or co < 28 or oloaded < 3:
            t2 += 1
            P = newtick()
            free += pend; pend = []; free.sort(); oready = owritten
            if odefer is not None:
                owritten = odefer; odefer = None; P["A"]["act"].append(("flushw",))
            if t2 <= 4:
                P["A"]["act"].append(("pread", t2 - 1))
                if t2 <= 3: P["B"]["act"].append(("smx", t2))
                if t2 == 4: P["B"]["act"].append(("inito",)); pend += [3, 4, 5] if a.nd else [2, 3, 4, 5]
            if t2 == 5: pend += [19]
            if a.nd and oready == 3 and co == 21 - a.nd and io == 28:
                f0 = 7 - a.nd
                seqf = [21 + k for k in range(f0)]
                rest2 = list(range(f0, 7))
                lead = max(0, 4 - f0)
                seqf += [21 + k for k in rest2[:lead]] + [14 + k for k in rest2[:lead]]
                for k in rest2[lead:]: seqf += [21 + k, 14 + k]
                P["B"]["act"].append(("oread", 3))
                for i in seqf: P["B"]["act"].append(("O", i, slot[("O", i)]))
                P["B"]["need"] = ("O", 27)
                break
            if cv < 32:
                if t2 <= 4: nvt = 2
                elif cv >= 32 - a.vend: nvt = 1
                else:
                    nvt = max(2 if iv < 32 or cv + 2 <= 32 - a.vend else 1, min(a.vcmax, iv - a.lc - cv))
                    nvt = min(nvt, 32 - a.vend - cv)
                nvt = min(nvt, iv - cv)
                k = 0
                while k < nvt:
                    if (cv + 1) % 8 == 0 and oloaded < (cv + 1) // 8 - (3 if a.nd else 2): break
                    P["A"]["act"].append(("V", cv, slot[("V", cv)])); pend.append(slot[("V", cv)]); P["A"]["need"] = ("V", cv); cv += 1; k += 1
                    if cv % 8 == 0:
                        if k < nvt and a.lag:
                            P["A"]["act"].append(("flushw",)); owritten = cv // 8 - 1
                        elif a.lag == 0 or cv == 32 or (cv // 8 - 1) in a.odrain:
                            P["A"]["act"].append(("drain",)); owritten = cv // 8 - 1
                        else: odefer = cv // 8 - 1
                if cv >= 32 - a.vend and a.vdrain: P["A"]["act"].append(("drain",))
            if oloaded < oready and co == 7 * (oloaded + 1):
                oloaded += 1; P["B"]["act"].append(("oread", oloaded))
            nop = 7 if oloaded == 3 else (a.opn_end if (cv > 32 - a.vend and cv < 32) else a.opn)
            if a.opr and oloaded >= 0 and cv < 32:
                oacc = min(oacc + a.opr, 2.0); nop = int(oacc + 1e-9); oacc -= nop
            while nop > 0 and co < 7 * (oloaded + 1) and (not a.nd or co < 21 - a.nd) and co < io and (("O", co) in self.oage and t2 - self.oage[("O", co)] >= a.olag or cv >= 32):
                P["B"]["act"].append(("O", co, slot[("O", co)])); pend.append(slot[("O", co)]); P["B"]["need"] = ("O", co); co += 1; nop -= 1
            lv = a.lv0 if t2 <= 4 else a.lv
            if t2 <= 4 or not a.alt2 or t2 % 2 == 0 or io == 28:
                issueV(P, max(0, min(a.vmax0 if t2 <= 4 else a.vmax, cv + lv - iv)))
            if t2 >= a.ostart and (not a.alt2 or t2 % 2 == 1 or iv == 32):
                n = a.omax
                while n > 0 and io < 28 and free and io < co + a.lo and len(free) > (1 if iv < 32 else 0) * a.vres:
                    slot[("O", io)] = free.pop(); P["B"]["issue"].append((("O", io), slot[("O", io)])); self.oage[("O", io)] = t2; io += 1; n -= 1
            assert t2 < 100, "plan stuck"
        self.plan = plan
        busy = {slot[("O", i)] for i in range(21 - a.nd, 28)}
        self.own_lds = [x for x in range(3, 20) if x not in busy][0] * SLOT
        if a.verbose:
            f = lambda L: " ".join(str(x[0]) + (str(x[1]) if len(x) > 1 else "") for x in L)
            g = lambda L: " ".join(f"{x[0][0]}{x[0][1]}@{x[1]}" for x in L)
            for i, P in enumerate(plan):
                print(f"{i:2d} A[need {P['A']['need']} iss {g(P['A']['issue'])} act {f(P['A']['act'])}]  B[need {P['B']['need']} iss {g(P['B']['issue'])} act {f(P['B']['act'])}]", file=sys.stderr)

    def prologue(self):
        e = self.e; a = self.a
        e("s_cmp_ge_u32 s2, 256"); e("s_cbranch_scc1 L_end1")
        e("s_load_dwordx16 s[40:55], s[0:1], 0")
        e("s_load_dwordx4 s[56:59], s[0:1], 64")
        e("s_load_dwordx2 s[60:61], s[0:1], 96")
        self.stamp(wait=False)
        if a.padto: e("s_memrealtime s[96:97]")
        e("s_and_b32 s3, s2, 7"); e("s_lshr_b32 s39, s2, 3")
        if a.remap == 1:
            e("s_and_b32 s38, s39, 3"); e("s_lshl_b32 s38, s38, 3"); e("s_lshr_b32 s39, s39, 2"); e("s_or_b32 s39, s39, s38")
        if a.remap == 2:
            e("s_xor_b32 s39, s39, 8")
        e(f"s_lshr_b32 {s(S_PP)}, s39, 3"); e("s_lshl_b32 s3, s3, 2"); e(f"s_add_u32 s3, s3, {s(S_PP)}")
        e(f"s_lshr_b32 {s(S_BLK)}, s3, 4"); e(f"s_and_b32 {s(S_H)}, s3, 15"); e(f"s_and_b32 {s(S_B)}, s39, 7")
        if a.stag:
            e(f"s_bitcmp1_b32 {s(S_B)}, {a.stagbit}"); e("s_cbranch_scc0 L_nostag")
            for _ in range(a.stag): e("s_sleep 16")
            e.label("L_nostag")
        e(f"v_lshrrev_b32 {v(T0)}, 6, v0")
        e(f"v_readfirstlane_b32 {s(S_W)}, {v(T0)}")
        e("v_and_b32 v0, 255, v0")
        if a.rot:
            e(f"s_lshr_b32 {s(S_RB)}, {s(S_B)}, 2"); e(f"s_and_b32 {s(S_R4)}, {s(S_B)}, 3")
            e(f"s_mul_i32 {s(S_RB)}, {s(S_RB)}, 3")
            e(f"s_lshl_b32 {s(S_R7)}, {s(S_PP)}, 1"); e(f"s_add_u32 {s(S_R7)}, {s(S_R7)}, {s(S_RB)}")
            e(f"s_cmp_ge_u32 {s(S_R7)}, 7"); e(f"s_cselect_b32 {s(S_TMP)}, 7, 0"); e(f"s_sub_u32 {s(S_R7)}, {s(S_R7)}, {s(S_TMP)}")
        else:
            for r in (S_R7, S_R4, S_RB): e(f"s_mov_b32 {s(r)}, 0")
        if a.fused == 6:
            e(f"s_lshl_b32 {s(S_TMP)}, {s(S_PP)}, 1"); e(f"s_add_u32 {s(S_TMP)}, {s(S_TMP)}, 2"); e(f"s_and_b32 {s(S_TMP)}, {s(S_TMP)}, 7")
            e(f"s_add_u32 {s(S_RB)}, {s(S_RB)}, {s(S_TMP)}")
            e(f"s_cmp_ge_u32 {s(S_RB)}, 7"); e(f"s_cselect_b32 {s(S_TMP)}, 7, 0"); e(f"s_sub_u32 {s(S_RB)}, {s(S_RB)}, {s(S_TMP)}")
        e(f"s_and_b32 {s(S_U)}, {s(S_W)}, 3"); e(f"s_lshl_b32 {s(S_M0B)}, {s(S_U)}, 10")
        e(f"s_lshl_b32 s34, {s(S_B)}, 4"); e(f"s_add_u32 s34, s34, {s(S_H)}"); e("s_lshl_b32 s35, s34, 18")
        if a.diag == 2: e("s_xor_b32 s35, s35, 0x40000")
        for S in (S_R0, S_R1, S_R2): e(f"s_mov_b32 {s(S+3)}, 0x20000")
        e(f"s_cmp_ge_u32 {s(S_W)}, 4"); e("s_cbranch_scc1 L_roleB")

    def bar(self, P, R):
        e = self.e
        if P["bar"]:
            need = P[R]["need"]
            if need is not None: e.wait_tag(need, lgkm=0)
            else: e.wait(lgkm=0)
            e.barrier()

    def role_A(self):
        e = self.e; a = self.a
        ACC = 16; LINV = 40; XA = 43; QA = 45
        UB = [4, 48, 56]
        VA0, VA1, OA = 3, 12, 13
        FR = lambda qt, kap: 64 + (kap * 3 + qt) * 4
        e("v_lshrrev_b32 v46, 3, v0"); e("v_and_b32 v47, 7, v0")
        e(f"v_bfe_u32 {v(T0)}, v0, 4, 3"); e(f"v_xor_b32 {v(T0)}, {v(T0)}, v47"); e(f"v_lshlrev_b32 {v(T0)}, 4, {v(T0)}")
        e("v_mul_u32_u24 v1, 896, v46"); e(f"v_add_u32 v1, v1, {v(T0)}")
        e(f"v_bfe_u32 {v(T0)}, v0, 4, 1"); e(f"v_bfe_u32 {v(T1)}, v0, 6, 1"); e(f"v_lshl_add_u32 {v(T0)}, {v(T1)}, 1, {v(T0)}")
        e(f"v_lshlrev_b32 {v(T0)}, 1, {v(T0)}"); e(f"v_xor_b32 {v(T0)}, {v(T0)}, v47"); e(f"v_lshlrev_b32 {v(T0)}, 4, {v(T0)}")
        e(f"v_lshl_add_u32 v2, v46, 13, {v(T0)}")
        e(f"s_lshl_b32 {s(S_A0)}, {s(S_R7)}, 7"); e(f"s_lshl_b32 {s(S_A1)}, {s(S_R7)}, 19"); e(f"s_lshl_b32 {s(S_A2)}, {s(S_R4)}, 7"); e(f"s_mov_b32 {s(S_A3)}, {s(S_A2)}")
        e(f"s_mov_b32 {s(S_R0+2)}, 86016"); e(f"s_mov_b32 {s(S_R1+2)}, {447*8192+512}"); e(f"s_mov_b32 {s(S_R2+2)}, 262144")
        e(f"s_mul_i32 s36, {s(S_B)}, 86016"); e(f"s_lshl_b32 s37, {s(S_H)}, 9")
        if a.diag == 1: e("s_xor_b32 s37, s37, 512")
        e(f"s_cmp_eq_u32 {s(S_BLK)}, 0")
        e.wait(lgkm=0)
        e(f"s_cselect_b64 {s(S_R0,2)}, s[40:41], s[50:51]")
        e(f"s_cselect_b64 {s(S_R1,2)}, s[46:47], s[56:57]")
        e(f"s_cselect_b64 {s(S_R2,2)}, s[44:45], s[54:55]")
        for S, o in ((S_R0, 36), (S_R1, 37), (S_R2, 35)):
            e(f"s_add_u32 {s(S)}, {s(S)}, s{o}"); e(f"s_addc_u32 {s(S+1)}, {s(S+1)}, 0")
        pending = []
        for ti, P in enumerate(self.plan):
            self.bar(P, "A")
            iss = list(P["A"]["issue"])
            acts = P["A"]["act"]
            units = []
            for act in acts:
                if act[0] in "WV": units += [(act[0], act[1], act[2], 0), (act[0], act[1], act[2], 1)]
            def uread(u, b):
                ty, i, sl, k2 = u
                second = 512 if ty == "W" else 1024
                if k2 == 0:
                    e(f"v_add_u32 {v(T0)}, {sl*SLOT}, {v(VA0)}"); e(f"v_add_u32 {v(T1)}, {sl*SLOT}, {v(VA1)}")
                for dt in range(2):
                    e(f"ds_read_b64_tr_b16 {v(b+4*dt,2)}, {v(T0+dt)} offset:{4096*k2}")
                    e(f"ds_read_b64_tr_b16 {v(b+4*dt+2,2)}, {v(T0+dt)} offset:{4096*k2+second}")
            def umfma(u, b):
                ty, i, sl, k2 = u
                kap = 2 * (i % (7 if ty == "W" else 8)) + k2
                for dt in range(2):
                    for qt in range(3):
                        acc = ACC + 12 * dt + 4 * qt
                        c = "0" if kap == 0 else v(acc, 4)
                        e(f"v_mfma_f32_16x16x32_bf16 {v(acc,4)}, {v(b+4*dt,4)}, {v(FR(qt,kap),4)}, {c}")
            for act in acts:
                if act[0] == "init":
                    for it in iss: self.issue(*it)
                    iss = []
                    e(f"v_and_b32 {v(T0)}, 15, v0"); e(f"v_bfe_u32 {v(T1)}, v0, 7, 1"); e(f"v_lshl_add_u32 v46, {v(T1)}, 4, {v(T0)}")
                    e(f"v_bfe_u32 {v(T0)}, v0, 1, 3"); e(f"v_bfe_u32 {v(T1)}, v0, 4, 2"); e(f"v_xor_b32 {v(T1)}, {v(T1)}, {v(T0)}"); e(f"v_lshlrev_b32 {v(T1)}, 4, {v(T1)}")
                    e(f"v_lshl_add_u32 {v(XA)}, v46, 7, {v(T1)}"); e(f"v_xor_b32 {v(XA+1)}, 64, {v(XA)}")
                    e(f"v_bfe_u32 {v(T1)}, v0, 5, 1"); e(f"v_bfe_u32 v47, v0, 6, 1"); e(f"v_lshl_add_u32 {v(T1)}, v47, 2, {v(T1)}")
                    e(f"v_xor_b32 {v(T1)}, {v(T1)}, {v(T0)}"); e(f"v_lshlrev_b32 {v(T1)}, 4, {v(T1)}"); e(f"v_lshl_add_u32 {v(QA)}, v46, 7, {v(T1)}")
                    e(f"v_bfe_u32 {v(T1)}, v0, 4, 1"); e(f"v_lshl_add_u32 {v(QA)}, {v(T1)}, 3, {v(QA)}"); e(f"v_xor_b32 v13, 32, {v(QA)}")
                    e(f"v_bfe_u32 {v(T0)}, v0, 2, 2"); e(f"v_bfe_u32 {v(T1)}, v0, 4, 2")
                    e(f"v_lshl_add_u32 {v(VA0)}, {v(T1)}, 3, {v(T0)}"); e(f"v_lshlrev_b32 {v(VA0)}, 7, {v(VA0)}")
                    e(f"v_bfe_u32 {v(T0)}, v0, 3, 2"); e(f"v_lshlrev_b32 {v(T1)}, 1, v47")
                    e(f"v_xor_b32 {v(T0)}, {v(T0)}, {v(T1)}"); e(f"v_lshl_add_u32 {v(VA0)}, {v(T0)}, 5, {v(VA0)}")
                    e(f"v_and_b32 {v(T0)}, 3, v0"); e(f"v_lshl_add_u32 {v(VA0)}, {v(T0)}, 3, {v(VA0)}")
                    e(f"v_xor_b32 {v(VA1)}, 32, {v(VA0)}")
                elif act[0] == "X":
                    n = act[1]
                    for k2 in range(2):
                        for qt in range(3):
                            e(f"ds_read_b128 {v(FR(qt, 2*n+k2),4)}, {v(XA+k2)} offset:{(n%4)*12288 + qt*4096}")
                elif act[0] == "initv":
                    if a.fused == 6:
                        assert not e.vm
                        self.srd6()
                        e("v_and_b32 v46, 1, v0"); e(f"s_and_b32 {s(S_TMP)}, s63, 12"); e(f"v_mul_u32_u24 v46, {s(S_TMP)}, v46"); e("v_sub_u32 v46, s63, v46")
                        self.poll("L_pc", "buffer_load_dword v47, v46, s[40:43], 0 offen sc1", "v_lshrrev_b32 v45, 24, v47|v_cmp_le_u32 vcc, 4, v45")
                        e("v_readfirstlane_b32 s48, v47"); e(f"s_lshl_b32 {s(S_TMP)}, 4, s62"); e(f"s_add_u32 {s(S_TMP)}, {s(S_TMP)}, 0x4000000")
                        e(f"s_cmp_eq_u32 s48, {s(S_TMP)}"); e(f"s_cselect_b32 s48, {0 if not a.forceslow else 1}, 1")
                    if a.fused == 4:
                        assert not e.vm
                        self.flag_srd()
                        e("v_mov_b32 v46, 0")
                        self.poll("L_pc", "buffer_load_dword v47, v46, s[40:43], s63 offen sc1", "v_cmp_le_u32 vcc, 1, v47")
                    if a.fused in (3, 7): self.flag_srd()
                    if a.s16:
                        e(f"v_bfe_u32 {v(T0)}, v0, 2, 4"); e(f"v_lshlrev_b32 {v(VA0)}, 7, {v(T0)}")
                    else:
                        e(f"v_bfe_u32 {v(T0)}, v0, 2, 3"); e(f"v_bfe_u32 {v(T1)}, v0, 5, 1")
                        e(f"v_lshl_add_u32 {v(VA0)}, {v(T1)}, 4, {v(T0)}"); e(f"v_lshlrev_b32 {v(VA0)}, 7, {v(VA0)}")
                    e(f"v_bfe_u32 {v(T0)}, v0, 3, 2"); e(f"v_bfe_u32 {v(T1)}, v0, 6, 1"); e(f"v_lshlrev_b32 {v(T1)}, 1, {v(T1)}")
                    e(f"v_xor_b32 {v(T0)}, {v(T0)}, {v(T1)}"); e(f"v_lshl_add_u32 {v(VA0)}, {v(T0)}, 5, {v(VA0)}")
                    e(f"v_and_b32 {v(T0)}, 3, v0"); e(f"v_lshl_add_u32 {v(VA0)}, {v(T0)}, 3, {v(VA0)}")
                    e(f"v_xor_b32 {v(VA1)}, 32, {v(VA0)}")
                    e(f"v_and_b32 {v(T0)}, 63, v0"); e(f"v_lshlrev_b32 {v(XA)}, 4, {v(T0)}")
                    e(f"v_bfe_u32 {v(T0)}, v0, 7, 1"); e(f"v_lshl_add_u32 {v(XA)}, {v(T0)}, 10, {v(XA)}")
                    e(f"v_bfe_u32 {v(T1)}, v0, 6, 1"); e(f"v_mul_u32_u24 {v(T1)}, 6144, {v(T1)}"); e(f"v_add_u32 {v(OA)}, {v(XA)}, {v(T1)}")
                    e(f"v_and_b32 {v(T1)}, 15, v0"); e(f"v_lshl_add_u32 {v(T0)}, {v(T0)}, 4, {v(T1)}"); e(f"v_lshlrev_b32 {v(T0)}, {6 if a.s16 else 5}, {v(T0)}")
                    e(f"v_add_u32 {v(XA+1)}, {STAT+(2048 if a.s16 else 4096)}, {v(T0)}")
                elif act[0] == "pread":
                    T = act[1]
                    for u in range(4):
                        for qt in range(3):
                            e(f"ds_read_b128 {v(FR(qt, 4*T+u),4)}, {v(XA)} offset:{PBUF[T%2] + u*6144 + qt*2048}")
            def linv(tb):
                if a.s16:
                    for qt in range(3):
                        for hf in range(2):
                            for k in range(2): e(f"ds_read_b128 {v(tb+4*k,4)}, {v(XA+1)} offset:{qt*2048+32*hf+16*k}")
                            e(f"v_pk_add_f32 {v(tb,2)}, {v(tb,2)}, {v(tb+4,2)}"); e(f"v_pk_add_f32 {v(tb+2,2)}, {v(tb+2,2)}, {v(tb+6,2)}")
                            e(f"v_pk_add_f32 {v(tb,2)}, {v(tb,2)}, {v(tb+2,2)}")
                            if hf == 0: e(f"v_add_f32 {v(LINV+qt)}, {v(tb)}, {v(tb+1)}")
                            else:
                                e(f"v_add_f32 {v(tb)}, {v(tb)}, {v(tb+1)}"); e(f"v_add_f32 {v(LINV+qt)}, {v(LINV+qt)}, {v(tb)}")
                        e(f"v_rcp_f32 {v(LINV+qt)}, {v(LINV+qt)}")
                    return
                for k in range(2): e(f"ds_read_b128 {v(tb+4*k,4)}, {v(XA+1)} offset:{16*k}")
                for qt in range(3):
                    b = tb
                    for k in range(4): e(f"v_add_f32 {v(b+k)}, {v(b+k)}, {v(b+4+k)}")
                    e(f"v_add_f32 {v(b)}, {v(b)}, {v(b+2)}"); e(f"v_add_f32 {v(b+1)}, {v(b+1)}, {v(b+3)}")
                    e(f"v_add_f32 {v(LINV+qt)}, {v(b)}, {v(b+1)}")
                    if qt < 2:
                        for k in range(2): e(f"ds_read_b128 {v(tb+4*k,4)}, {v(XA+1)} offset:{(qt+1)*1024+16*k}")
                    e(f"v_rcp_f32 {v(LINV+qt)}, {v(LINV+qt)}")
            def write_out(ty, c, tb):
                if ty == "W":
                    for qt in range(3):
                        for dt in range(2):
                            acc = ACC + 12 * dt + 4 * qt; tt = tb + 2 * ((2 * qt + dt) % 4)
                            e(f"v_cvt_pk_bf16_f32 {v(tt)}, {v(acc)}, {v(acc+1)}"); e(f"v_cvt_pk_bf16_f32 {v(tt+1)}, {v(acc+2)}, {v(acc+3)}")
                            e(f"ds_write_b64 {v(QA if dt == 0 else 13)}, {v(tt,2)} offset:{QBUF[c%2] + qt*4096}")
                else:
                    if c == 0 and not a.defer: linv(tb)
                    for qt in range(3):
                        tt = tb + 4 * (qt % 2)
                        for dt in range(2):
                            acc = ACC + 12 * dt + 4 * qt
                            for k in range(4 if not a.defer else 0): e(f"v_mul_f32 {v(acc+k)}, {v(LINV+qt)}, {v(acc+k)}")
                            e(f"v_cvt_pk_bf16_f32 {v(tt+2*dt)}, {v(acc)}, {v(acc+1)}"); e(f"v_cvt_pk_bf16_f32 {v(tt+2*dt+1)}, {v(acc+2)}, {v(acc+3)}")
                        e(f"ds_write_b128 {v(OA)}, {v(tt,4)} offset:{self.obuf(c) + qt*2048}")
            light = []
            heavy = []
            def umfma_l(u, b):
                ty, i, sl, k2 = u
                kap = 2 * (i % (7 if ty == "W" else 8)) + k2
                L = []
                for dt, qt in ([(d, q) for d in range(2) for q in range(3)] if not a.aord else [(0, 0), (1, 0), (1, 1), (0, 1), (0, 2), (1, 2)] if a.aord == 1 else [(0, 0), (0, 1), (0, 2), (1, 2), (1, 1), (1, 0)]):
                    if True:
                        acc = ACC + 12 * dt + 4 * qt
                        c = "0" if kap == 0 else v(acc, 4)
                        L.append(f"v_mfma_f32_16x16x32_bf16 {v(acc,4)}, {v(b+4*dt,4)}, {v(FR(qt,kap),4)}, {c}")
                return L
            def uread_l(u, b):
                ty, i, sl, k2 = u
                second = 512 if ty == "W" else (2048 if a.s16 else 1024)
                L = []
                for dt in range(2):
                    if k2 == 0: L.append(f"v_add_u32 {v(T0+dt)}, {sl*SLOT}, {v(VA0 if dt == 0 else VA1)}")
                    L.append(f"ds_read_b64_tr_b16 {v(b+4*dt,2)}, {v(T0+dt)} offset:{4096*k2}")
                    L.append(f"ds_read_b64_tr_b16 {v(b+4*dt+2,2)}, {v(T0+dt)} offset:{4096*k2+second}")
                return L
            def pop(nh=1):
                u, b = pending.pop(0)
                for n, m in enumerate(umfma_l(u, b)):
                    e(m)
                    if a.paceA and u[0] == "W": e.nop(a.paceA)
                    if a.paceV and u[0] == "V" and u[1] < 28: e.nop(a.paceV)
                    if P.get("burst") and heavy and n % a.bgap == 0: heavy.pop(0)()
                    if light:
                        for _ in range(a.wv):
                            if light: e(light.pop(0))
                    elif heavy and nh > 0 and n < 5 and not P.get("burst"):
                        heavy.pop(0)(); nh -= 1
                while light: e(light.pop(0))
                per = 7 if u[0] == "W" else 8
                if u[1] % per == per - 1 and u[3] == 1:
                    write_out(u[0], u[1] // per, b); return True
                return False
            names = [x[0] for x in acts]
            if a.fused == 7 and any(x[0] == "V" and x[1] == 12 for x in acts):
                e("v_mov_b32 v45, 12288"); e("v_mov_b32 v46, 0"); e("v_mov_b32 v47, 0"); e("ds_write_b64 v45, v[46:47]"); e("ds_write_b64 v45, v[46:47] offset:8")
            if a.fused == 7 and any(x[0] == "V" and x[1] == 20 for x in acts):
                e("v_mov_b32 v45, 0"); e("buffer_load_dword v46, v45, s[40:43], s63 offen sc1")
            if a.fused == 7 and any(x[0] == "V" and x[1] == 28 for x in acts):
                e("v_cmp_le_u32 vcc, 1, v46"); e("s_nop 0"); e("s_cmp_eq_u64 vcc, -1"); e("s_cbranch_scc1 L_pc_ok")
                snapv = list(e.vm)
                self.poll("L_pc", "buffer_load_dword v46, v45, s[40:43], s63 offen sc1", "v_cmp_le_u32 vcc, 1, v46")
                e.vm = snapv
            if a.fused == 5 and any(x[0] == "V" and x[1] == 12 for x in acts):
                e("v_mov_b32 v45, 12288"); e("v_mov_b32 v46, 0"); e("v_mov_b32 v47, 0"); e("ds_write_b64 v45, v[46:47]")
            for it in iss: heavy += self.issue_parts(*it)
            iss = []
            wrote = False
            for k, u in enumerate(units):
                while len(pending) >= 3: wrote |= pop()
                b = [x for x in UB if x not in [p[1] for p in pending]][0]
                light += uread_l(u, b)
                if len(pending) >= a.lag and pending:
                    left = len(units) - k
                    wrote |= pop(nh=-(-len(heavy) // left))
                else:
                    while light: e(light.pop(0))
                    if heavy: heavy.pop(0)()
                pending.append((u, b))
            if "drain" in names or not units or a.lag == 0:
                while pending: wrote |= pop(nh=2)
            if "flushw" in names:
                while not wrote and pending: wrote |= pop()
            while heavy: heavy.pop(0)()
            for it in iss: self.issue(*it)
        if a.fused == 3:
            e(f"s_cmp_lg_u32 {s(S_W)}, 0"); e("s_cbranch_scc1 L_red")
            e("v_mov_b32 v6, 0")
            self.poll("L_pc", "buffer_load_dword v10, v6, s[40:43], s63 offen sc1", "v_cmp_le_u32 vcc, 1, v10")
        if a.fused in (1, 3): e("s_branch L_red")
        else:
            if a.fused == 2: self.staged_reduce()
            if a.fused == 4: self.staged_reduce4()
            if a.fused == 7: self.tail7_A()
            if a.fused == 5: self.reduce5()
            if a.fused == 6: self.tail6_A()
            e("s_endpgm")

    def role_B(self):
        e = self.e; a = self.a
        KA, QA = 4, 8
        KF = 16; QF = 32; M = 56; SUM = 59
        SACC = lambda T, qt: 64 + (T * 3 + qt) * 16
        S16 = lambda T, q6: 64 + (T * 6 + q6) * 8
        ACC = lambda cb, q6: 64 + 24 * cb + 4 * q6
        self.ACC = ACC
        OF = lambda k2, q6: 16 + 4 * (6 * k2 + q6)
        WB = [232, 240, 248]
        e(f"v_bfe_u32 {v(T0)}, v0, 3, 3"); e(f"v_lshrrev_b32 {v(T1)}, 6, v0"); e(f"v_lshl_add_u32 {v(T0)}, {v(T1)}, 5, {v(T0)}")
        e("v_and_b32 v12, 7, v0"); e(f"v_bfe_u32 {v(T1)}, v0, 4, 2"); e(f"v_xor_b32 v13, v12, {v(T1)}"); e("v_lshlrev_b32 v13, 4, v13")
        e(f"v_lshl_add_u32 v1, {v(T0)}, 9, v13"); e("v_xor_b32 v2, 64, v1")
        e(f"s_lshl_b32 {s(S_A0)}, {s(S_R4)}, 7"); e(f"s_mul_i32 {s(S_A1)}, {s(S_R4)}, 57344"); e(f"s_lshl_b32 {s(S_A2)}, {s(S_RB)}, 7")
        e(f"s_lshl_b32 {s(S_A3)}, {s(S_U)}, 12"); e(f"s_mul_i32 {s(S_ST)}, {s(S_RB)}, 12288")
        e(f"s_mov_b32 {s(S_R0+2)}, 262144"); e(f"s_mov_b32 {s(S_R1+2)}, 229376"); e(f"s_mov_b32 {s(S_R2+2)}, 86016")
        e(f"s_mul_i32 s36, {s(S_H)}, 229376")
        e(f"s_lshl_b32 s37, {s(S_BLK)}, 7"); e("s_add_u32 s37, s37, s34"); e("s_mul_i32 s37, s37, 86016")
        if a.fused == 6:
            e("s_and_b32 s37, s2, 63"); e(f"s_mul_i32 s37, s37, {XQ}"); e(f"s_mov_b32 {s(S_R2+2)}, {XQ}")
            e(f"s_lshl_b32 {s(S_ST)}, {s(S_RB)}, 2"); e(f"s_add_u32 {s(S_ST)}, {s(S_ST)}, {s(S_PP)}"); e(f"s_mul_i32 {s(S_ST)}, {s(S_ST)}, 12288")
        e(f"s_cmp_eq_u32 {s(S_BLK)}, 0")
        e.wait(lgkm=0)
        e(f"s_cselect_b64 {s(S_R0,2)}, s[42:43], s[52:53]")
        e(f"s_cselect_b64 {s(S_R1,2)}, s[48:49], s[58:59]")
        e(f"s_mov_b64 {s(S_R2,2)}, s[60:61]")
        for S, o in ((S_R0, 35), (S_R1, 36), (S_R2, 37)):
            e(f"s_add_u32 {s(S)}, {s(S)}, s{o}"); e(f"s_addc_u32 {s(S+1)}, {s(S+1)}, 0")
        if a.prio in (2, 3): e("s_setprio 1")
        kpre = qpre = -1
        def qrd(i, n):
            if a.qhalf and i % a.qhalf != 0: return
            if a.s16:
                k2, q6 = divmod(n, 6)
                e(f"ds_read_b128 {v(QF+4*(n%6),4)}, {v(QA+k2)} offset:{QBUF[(i//4)%2] + q6*2048}"); return
            ks, qt = divmod(n, 3)
            e(f"ds_read_b128 {v(QF+4*(n%6),4)}, {v(QA+ks)} offset:{QBUF[(i//4)%2] + qt*4096}")
        def kreg(i): return SACC(3, i) if i in self.parked else KF
        def kread(i, ks):
            if a.s16:
                e(f"ds_read_b128 {v(kreg(i)+4*ks,4)}, {v(KA+(ks>>1))} offset:{(self.kslot[i]-self.KBASE)*SLOT + (ks&1)*2048}"); return
            e(f"ds_read_b128 {v(kreg(i)+4*ks,4)}, {v(KA+ks)} offset:{(self.kslot[i]-self.KBASE)*SLOT}")
        phase1 = True
        opend = []; done_cb = []
        for ti, P in enumerate(self.plan):
            if any(x[0] == "maxr" for x in P["B"]["act"]): phase1 = False
            if phase1:
                if getattr(self, "need_lgkm", False):
                    e.wait(lgkm=0); self.need_lgkm = False; self.maxinit_ok = True
                if P["bar"]: e.barrier()
            else: self.bar(P, "B")
            if ti in a.stamp_ticks: self.stamp()
            if ti == a.opf:
                e(f"s_mul_i32 {s(S_TMP)}, {s(S_B)}, 28672"); e("v_min_u32 v62, 223, v0"); e("v_lshlrev_b32 v62, 7, v62")
                e(f"buffer_load_dword v63, v62, {s(S_R1,4)}, {s(S_TMP)} offen")
            if a.fused == 6 and ti == 9:
                assert not any(t == "fz" for t, _ in e.vm)
                e(f"s_lshl_b32 {s(S_TMP)}, 1, s62"); e(f"s_add_u32 {s(S_TMP)}, {s(S_TMP)}, 0x1000000")
                e("v_lshlrev_b32 v62, 8, v0"); e(f"v_mov_b32 v63, {s(S_TMP)}")
                e("buffer_atomic_add v63, v62, s[40:43], s63 offen")
            if a.fused in (3, 4, 7) and ti == 9:
                assert not any(t == "fz" for t, _ in e.vm)
                e(f"s_lshl_b32 {s(S_TMP)}, {s(S_H)}, 8"); e(f"s_add_u32 {s(S_TMP)}, {s(S_TMP)}, s63")
                e("v_lshlrev_b32 v62, 8, v0"); e("v_mov_b32 v63, 1")
                e(f"buffer_atomic_add v63, v62, s[40:43], {s(S_TMP)} offen")
            if a.fused in (2, 5) and ti == 9:
                assert not any(t == "fz" for t, _ in e.vm)
                e("v_lshlrev_b32 v62, 8, v0"); e("v_mov_b32 v63, 1")
                e("buffer_atomic_add v63, v62, s[40:43], s63 offen")
            iss = list(P["B"]["issue"])
            acts = P["B"]["act"]
            for ai, act in enumerate(acts):
                if act[0] == "init":
                    for it in iss: self.issue(*it)
                    iss = []
                    e(f"s_mov_b32 {s(S_C)}, 0x3db8aa3b")
                    if a.codepf:
                        e("s_getpc_b64 s[92:93]")
                        e.label("L_pc0")
                        e(f"s_sub_u32 s92, s92, L_pc0-{NAME}_kernel"); e("s_subb_u32 s93, s93, 0")
                        e("s_lshr_b32 s94, s2, 3"); e("s_cmp_ge_u32 s94, 24"); e("s_cselect_b32 s95, 24, 0"); e("s_sub_u32 s94, s94, s95")
                        e("s_cmp_ge_u32 s94, 12"); e("s_cselect_b32 s95, 12, 0"); e("s_sub_u32 s94, s94, s95"); e("s_lshl_b32 s94, s94, 12")
                        e("v_lshlrev_b32 v62, 4, v0"); e("v_add_u32 v62, s94, v62")
                        e("global_load_dword v63, v62, s[92:93]")
                    if a.fused == 6:
                        self.srd6()
                        e("v_lshlrev_b32 v62, 20, v0"); e("v_mov_b32 v63, 0")
                        e(f"s_cmp_eq_u32 {s(S_PP)}, 0"); e(f"s_cselect_b32 {s(S_TMP)}, s46, 0x100000")
                        e(f"buffer_store_dword v63, v62, s[36:39], {s(S_TMP)} offen sc1")
                        e(f"s_cmp_lt_u32 {s(S_H)}, 4"); e(f"s_cselect_b32 {s(S_TMP)}, s47, 0x100000")
                        e(f"buffer_store_dword v63, v62, s[36:39], {s(S_TMP)} offen sc1", tag="fz")
                    if a.fused == 5:
                        self.flag_srd()
                        e(f"s_lshl_b32 s62, {s(S_H)}, 9")
                        e("v_lshlrev_b32 v62, 13, v0"); e("v_mov_b32 v63, 0")
                        e(f"buffer_store_dword v63, v62, s[36:39], s62 offen sc1", tag="fz")
                    if a.fused in (3, 7):
                        self.flag_srd()
                        e(f"s_lshl_b32 {s(S_TMP)}, {s(S_H)}, 13")
                        e("v_lshlrev_b32 v62, 12, v0"); e("v_mov_b32 v61, 0")
                        e(f"buffer_store_dword v61, v62, s[36:39], {s(S_TMP)} offen sc1", tag="fz")
                    if a.fused == 4:
                        self.flag_srd()
                        e(f"s_lshl_b32 s62, {s(S_U)}, 7")
                        e(f"s_lshl_b32 {s(S_TMP)}, {s(S_H)}, 13"); e(f"s_add_u32 {s(S_TMP)}, {s(S_TMP)}, s62")
                        e("v_and_b32 v62, 63, v0"); e("v_lshlrev_b32 v62, 13, v62"); e("v_mov_b32 v63, 0")
                        e(f"buffer_store_dword v63, v62, s[36:39], {s(S_TMP)} offen sc1", tag="fz")
                    if a.fused == 2:
                        self.flag_srd()
                        e(f"s_lshl_b32 s62, {s(S_H)}, 2"); e(f"s_add_u32 s62, s62, {s(S_U)}"); e("s_lshl_b32 s62, s62, 7")
                        e("v_and_b32 v62, 63, v0"); e("v_lshlrev_b32 v62, 13, v62"); e("v_mov_b32 v63, 0")
                        e("buffer_store_dword v63, v62, s[36:39], s62 offen sc1", tag="fz")
                    e(f"v_lshlrev_b32 {v(T1)}, 1, {v(T1)}"); e(f"v_xor_b32 {v(T1)}, {v(T1)}, v12"); e(f"v_lshlrev_b32 {v(T1)}, 4, {v(T1)}")
                    e("v_lshrrev_b32 v3, 3, v0"); e("v_mul_u32_u24 v3, 896, v3"); e(f"v_add_u32 v3, v3, {v(T1)}")
                    if a.s16:
                        e(f"v_and_b32 {v(T0)}, 15, v0"); e(f"v_bfe_u32 {v(T1)}, v0, 1, 3"); e("v_bfe_u32 v12, v0, 4, 2"); e(f"v_xor_b32 {v(T1)}, {v(T1)}, v12")
                        e(f"v_lshlrev_b32 {v(T1)}, 4, {v(T1)}"); e(f"v_lshl_add_u32 {v(QA)}, {v(T0)}, 7, {v(T1)}"); e(f"v_xor_b32 {v(QA+1)}, 64, {v(QA)}")
                        e(f"s_add_u32 {s(S_TMP)}, {s(S_A3)}, {self.KBASE*SLOT}")
                        for k2 in range(2): e(f"v_add_u32 {v(KA+k2)}, {s(S_TMP)}, {v(QA+k2)}")
                        e(f"v_lshlrev_b32 v13, 2, {v(T0)}"); e(f"v_add_u32 v13, {STAT}, v13")
                        e(f"v_lshlrev_b32 {v(T0)}, 6, {v(T0)}"); e(f"v_lshrrev_b32 {v(T1)}, 4, v0"); e(f"v_lshl_add_u32 v12, {v(T1)}, 2, {v(T0)}"); e(f"v_add_u32 v12, {STAT+2048}, v12")
                        e(f"v_and_b32 {v(T0)}, 63, v0"); e(f"s_mul_i32 {s(S_TMP)}, {s(S_U)}, 6144"); e(f"v_lshlrev_b32 v10, 4, {v(T0)}"); e(f"v_add_u32 v10, {s(S_TMP)}, v10")
                    else:
                        e(f"v_and_b32 {v(T0)}, 31, v0"); e(f"v_bfe_u32 {v(T1)}, v0, 1, 3"); e("v_bfe_u32 v12, v0, 5, 1"); e(f"v_xor_b32 {v(T1)}, {v(T1)}, v12")
                        e(f"v_lshlrev_b32 {v(T1)}, 4, {v(T1)}"); e(f"v_lshl_add_u32 {v(QA)}, {v(T0)}, 7, {v(T1)}")
                        for ks in range(1, 4): e(f"v_xor_b32 {v(QA+ks)}, {32*ks}, {v(QA)}")
                        e(f"s_add_u32 {s(S_TMP)}, {s(S_A3)}, {self.KBASE*SLOT}")
                        for ks in range(4): e(f"v_add_u32 {v(KA+ks)}, {s(S_TMP)}, {v(QA+ks)}")
                        e(f"v_lshlrev_b32 {v(T0)}, 5, {v(T0)}"); e(f"v_add_u32 v13, {STAT}, {v(T0)}")
                        e(f"v_lshrrev_b32 {v(T1)}, 5, v0"); e(f"v_lshl_add_u32 v12, {v(T1)}, 2, v13")
                elif act[0] == "Kpark":
                    for it in iss: self.issue(*it)
                    iss = []
                    e.wait_tag(("K", act[1]))
                    for ks in range(4): kread(act[1], ks)
                    e.wait(lgkm=0)
                elif act[0] == "Kpre":
                    e.wait_tag(("K", 0))
                    for ks in range(4): kread(0, ks)
                    kpre = 0; qpre = -1
                elif act[0] == "S":
                    _, i, sl = act
                    c, T = divmod(i, 4)
                    seq = [(ks, qt) for ks in range(4) for qt in range(3)]
                    dma = []
                    for it in iss: dma += self.issue_parts(*it)
                    iss = []
                    if qpre != i:
                        for n in range(3): qrd(i, n)
                    if kpre != i and i not in self.parked:
                        while dma: dma.pop(0)()
                        e.wait_tag(("K", i))
                        for ks in range(4): kread(i, ks)
                    if qpre != i:
                        for n in range(3, 6): qrd(i, n)
                    own = []
                    if ai + 1 < len(acts) and acts[ai + 1][0] == "issue": own = self.issue_parts(acts[ai + 1][1], acts[ai + 1][2])
                    mode = None; qok = False
                    if i + 1 < 16 and self.kage[i + 1] < ti:
                        mode = "roll" if ti - self.kage[i + 1] >= a.kpre else "after"
                        if i + 1 in self.parked: mode = None
                        qok = (i + 1) // 4 <= self.sinfo[i][1]
                    if a.s16 and i == 12:
                        e("v_mov_b32 v11, 0xff800000")
                        for q6 in range(6): e(f"ds_write_b32 v13, v11 offset:{64*q6}")
                        self.need_lgkm = True
                    for n in range(12 if a.s16 else 0):
                        k2, q6 = divmod(n, 6)
                        for kt in range(2):
                            r = S16(T, q6) + 4 * kt
                            e(f"v_mfma_f32_16x16x32_bf16 {v(r,4)}, {v(kreg(i)+4*(2*k2+kt),4)}, {v(QF+4*(n%6),4)}, {'0' if (c == 0 and k2 == 0) else v(r,4)}")
                            if kt == 0 and c == 3 and T > 0 and n >= 2 and n < 8:
                                self.max8(M + n - 2, S16(T - 1, n - 2), first=(T == 1))
                            if kt == 0 and dma and n % 2 == 1: dma.pop(0)()
                            if a.pace: e.nop(a.pace)
                        if n + 6 < 12: qrd(i, n + 6)
                        elif qok: qrd(i + 1, n - 6)
                        if mode == "roll" and q6 == 5:
                            if k2 == 0: e.wait_tag(("K", i + 1))
                            kread(i + 1, 2 * k2); kread(i + 1, 2 * k2 + 1)
                        if n == 0 and own:
                            e.wait_regs(set(range(KF, KF + 16)))
                            dma += own
                    for n, (ks, qt) in enumerate(seq if not a.s16 else []):
                        cc = "0" if (c == 0 and ks == 0) else v(SACC(T, qt), 16)
                        if a.s16hack:
                            for hh in range(2):
                                r = SACC(T, qt) + 4 * (2 * (ks & 1) + hh)
                                e(f"v_mfma_f32_16x16x32_bf16 {v(r,4)}, {v(kreg(i)+4*(ks ^ hh),4)}, {v(QF+4*(n%6),4)}, {'0' if (c == 0 and ks < 2) else v(r,4)}")
                        else:
                            e(f"v_mfma_f32_32x32x16_bf16 {v(SACC(T,qt),16)}, {v(kreg(i)+4*ks,4)}, {v(QF+4*(n%6),4)}, {cc}")
                        if a.pace: e.nop(a.pace)
                        if n + 6 < 12: qrd(i, n + 6)
                        elif qok: qrd(i + 1, n - 6)
                        if mode == "roll" and qt == 2 and not a.s16hack:
                            if ks == 0: e.wait_tag(("K", i + 1))
                            kread(i + 1, ks)
                        if mode == "roll" and qt == 2 and a.s16hack and ks & 1:
                            if ks == 1: e.wait_tag(("K", i + 1))
                            kread(i + 1, ks - 1); kread(i + 1, ks)
                        if n == 0 and own:
                            e.wait_regs(set(range(KF, KF + 16)))
                            dma += own
                        if dma and n % 2 == 0: dma.pop(0)()
                        if c == 3 and T > 0 and n >= 3 and (n - 3) < 9:
                            qq, part = divmod(n - 3, 3)
                            self.maxpart(M + qq, SACC(T - 1, qq), part, first=(T == 1))
                    while dma: dma.pop(0)()
                    if mode == "after":
                        e.wait_tag(("K", i + 1))
                        for ks in range(4): kread(i + 1, ks)
                    kpre = i + 1 if mode else -1
                    qpre = i + 1 if qok else -1
                elif act[0] == "maxw" and a.s16:
                    self.stamp()
                    assert getattr(self, "maxinit_ok", False)
                    for q6 in range(6):
                        self.max8(M + q6, S16(3, q6), first=False)
                        e(f"ds_max_f32 v13, {v(M+q6)} offset:{64*q6}")
                elif act[0] == "maxr" and a.s16:
                    if a.prio: e("s_setprio 1")
                    for q6 in range(6): e(f"ds_read_b32 {v(M+q6)}, v13 offset:{64*q6}")
                    for q6 in range(6):
                        e(f"v_mul_f32 {v(M+q6)}, {s(S_C)}, {v(M+q6)}")
                        if a.pkfma: e(f"v_sub_f32 {v(40+2*q6)}, 0, {v(M+q6)}")
                elif act[0] == "smx" and a.s16:
                    T = act[1]
                    def fe6(q6):
                        r = S16(T, q6)
                        if a.pkfma:
                            for k in range(0, 8, 2):
                                e(f"v_pk_fma_f32 {v(r+k,2)}, {v(r+k,2)}, {s(S_C,2)}, {v(40+2*q6,2)} op_sel_hi:[1,0,0]")
                        else:
                            for k in range(8): e(f"v_fma_f32 {v(r+k)}, {v(r+k)}, {s(S_C)}, -{v(M+q6)}")
                        for k in range(8): e(f"v_exp_f32 {v(r+k)}, {v(r+k)}")
                    fe6(0)
                    for q6 in range(6):
                        if q6 + 1 < 6: fe6(q6 + 1)
                        r = S16(T, q6); tt = 16 + 4 * q6
                        for k in range(4): e(f"v_cvt_pk_bf16_f32 {v(tt+k)}, {v(r+2*k)}, {v(r+2*k+1)}")
                        e(f"ds_write_b128 v10, {v(tt,4)} offset:{PBUF[T%2] + q6*1024}")
                    if not a.defer:
                        self.sums16(T, S16)
                        if T == 3: self.sumw16(S16)
                elif act[0] == "maxw":
                    self.stamp()
                    for qt in range(3):
                        for part in range(3): self.maxpart(M + qt, SACC(3, qt), part, first=False)
                        e(f"ds_write_b32 v12, {v(M+qt)} offset:{qt*1024}")
                elif act[0] == "maxr":
                    if a.prio: e("s_setprio 1")
                    for qt in range(3):
                        for k in range(2): e(f"ds_read_b128 {v(16+8*qt+4*k,4)}, v13 offset:{qt*1024+16*k}")
                    e(f"v_and_b32 {v(T0)}, 15, v0"); e(f"v_lshlrev_b32 v4, 4, {v(T0)}")
                    e(f"v_bfe_u32 {v(T0)}, v0, 4, 1"); e(f"v_lshl_add_u32 v4, {v(T0)}, 10, v4")
                    e(f"v_bfe_u32 {v(T0)}, v0, 5, 1"); e(f"v_lshl_add_u32 v4, {v(T0)}, 8, v4")
                    e(f"s_mul_i32 {s(S_TMP)}, {s(S_U)}, 6144"); e(f"v_add_u32 v4, {s(S_TMP)}, v4")
                    for qt in range(3):
                        b = 16 + 8 * qt
                        e(f"v_max3_f32 {v(M+qt)}, {v(b)}, {v(b+1)}, {v(b+2)}")
                        e(f"v_max3_f32 {v(M+qt)}, {v(M+qt)}, {v(b+3)}, {v(b+4)}"); e(f"v_max3_f32 {v(M+qt)}, {v(M+qt)}, {v(b+5)}, {v(b+6)}")
                        e(f"v_max_f32 {v(M+qt)}, {v(M+qt)}, {v(b+7)}")
                        e(f"v_mul_f32 {v(M+qt)}, {s(S_C)}, {v(M+qt)}")
                        if a.pkfma: e(f"v_sub_f32 {v(40+2*qt)}, 0, {v(M+qt)}")
                elif act[0] == "smx":
                    T = act[1]
                    grp = [(qt, hf) for qt in range(3) for hf in range(2)]
                    def fe(g):
                        r = SACC(T, g[0]) + 8 * g[1]
                        if a.pkfma:
                            for k in range(0, 8, 2):
                                e(f"v_pk_fma_f32 {v(r+k,2)}, {v(r+k,2)}, {s(S_C,2)}, {v(40+2*g[0],2)} op_sel_hi:[1,0,0]")
                        else:
                            for k in range(8): e(f"v_fma_f32 {v(r+k)}, {v(r+k)}, {s(S_C)}, -{v(M+g[0])}")
                        for k in range(8): e(f"v_exp_f32 {v(r+k)}, {v(r+k)}")
                    fe(grp[0])
                    for n, (qt, hf) in enumerate(grp):
                        if n + 1 < 6: fe(grp[n + 1])
                        r = SACC(T, qt) + 8 * hf
                        tt = 16 + 4 * n
                        for k in range(4): e(f"v_cvt_pk_bf16_f32 {v(tt+k)}, {v(r+2*k)}, {v(r+2*k+1)}")
                        e(f"ds_write_b128 v4, {v(tt,4)} offset:{PBUF[T%2] + qt*2048 + hf*512}")
                    if iss and a.b_smx_issue:
                        pass
                    self.defer_sum = (T,)
                    if not a.defer:
                        self.sums(T, SACC, SUM)
                        if T == 3:
                            for qt in range(3): e(f"ds_write_b32 v12, {v(SUM+qt)} offset:{4096+qt*1024}")
                elif act[0] == "inito":
                    self.stamp()
                    if a.prio in (1, 3): e("s_setprio 0")
                    if a.defer and a.s16:
                        for T in range(4): self.sums16(T, S16)
                        self.sumw16(S16)
                    elif a.defer:
                        for T in range(4): self.sums(T, SACC, SUM)
                        for qt in range(3): e(f"ds_write_b32 v12, {v(SUM+qt)} offset:{4096+qt*1024}")
                    e(f"v_bfe_u32 {v(T0)}, v0, 2, 4"); e(f"v_lshlrev_b32 v5, 7, {v(T0)}")
                    e(f"v_bfe_u32 {v(T0)}, v0, 3, 2"); e(f"v_bfe_u32 {v(T1)}, v0, 6, 2"); e(f"v_xor_b32 {v(T0)}, {v(T0)}, {v(T1)}")
                    e(f"v_lshl_add_u32 v5, {v(T0)}, 5, v5")
                    e(f"v_and_b32 {v(T0)}, 3, v0"); e(f"v_lshl_add_u32 v5, {v(T0)}, 3, v5")
                    e(f"v_and_b32 {v(T0)}, 63, v0"); e(f"v_lshlrev_b32 v6, 4, {v(T0)}")
                    e(f"v_lshlrev_b32 v7, 4, v0")
                    if a.own:
                        self.own_range()
                        e(f"s_sub_u32 s94, s94, {s(S_M0B)}")
                    if a.fused == 7: e(f"s_mov_b32 {s(S_ST)}, 0")
                    if a.fused == 4:
                        e(f"s_mul_i32 {s(S_ST)}, {s(S_U)}, 21504"); e("v_mov_b32 v7, v6")
                    e("v_lshlrev_b32 v8, 9, v6")
            if a.defer and ti > 0 and any(x[0] == "inito" for x in self.plan[ti - 1]["B"]["act"]):
                if a.s16:
                    e(f"v_and_b32 {v(T0)}, 15, v0"); e(f"v_lshlrev_b32 {v(T0)}, 6, {v(T0)}"); e(f"v_add_u32 {v(T0)}, {STAT+2048}, {v(T0)}")
                    for q6 in range(6):
                        for k in range(4): e(f"ds_read_b128 {v(64+16*q6+4*k,4)}, {v(T0)} offset:{q6*1024+16*k}")
                    for q6 in range(6):
                        b = 64 + 16 * q6
                        for k in range(0, 8, 2): e(f"v_pk_add_f32 {v(b+k,2)}, {v(b+k,2)}, {v(b+8+k,2)}")
                else:
                    e(f"v_and_b32 {v(T0)}, 15, v0"); e(f"v_lshlrev_b32 {v(T0)}, 5, {v(T0)}"); e(f"v_add_u32 {v(T0)}, {STAT+4096}, {v(T0)}")
                    for q6 in range(6):
                        for k in range(2): e(f"ds_read_b128 {v(64+8*q6+4*k,4)}, {v(T0)} offset:{q6*512+16*k}")
                for q6 in range(6):
                    b = 64 + (16 if a.s16 else 8) * q6
                    e(f"v_pk_add_f32 {v(b,2)}, {v(b,2)}, {v(b+4,2)}"); e(f"v_pk_add_f32 {v(b+2,2)}, {v(b+2,2)}, {v(b+6,2)}")
                    e(f"v_pk_add_f32 {v(b,2)}, {v(b,2)}, {v(b+2,2)}"); e(f"v_add_f32 {v(b)}, {v(b)}, {v(b+1)}")
                    e(f"v_rcp_f32 {v(8+q6)}, {v(b)}")
            ws = [x for x in acts if x[0] == "O"]
            dma = []
            for it in iss: dma += self.issue_parts(*it)
            blight = []
            def wread(x, b, defer=False):
                _, i, sl = x
                tt = T0 + (i % 2)
                L = [f"v_add_u32 {v(tt)}, {sl*SLOT}, v5"]
                for k2 in range(2):
                    L.append(f"ds_read_b64_tr_b16 {v(b+4*k2,2)}, {v(tt)} offset:{4096*k2}")
                    L.append(f"ds_read_b64_tr_b16 {v(b+4*k2+2,2)}, {v(tt)} offset:{4096*k2+2048}")
                if defer: blight.extend(L)
                else:
                    for t in L: e(t)
            def ord_(c, k2, q6):
                e(f"ds_read_b128 {v(OF(k2,q6),4)}, v6 offset:{self.obuf(c) + k2*6144 + q6*1024}")
            lastt = ti == len(self.plan) - 1
            remain = {}
            if lastt:
                for x in ws: remain[x[1] % 7] = remain.get(x[1] % 7, 0) + 1
            OF2 = lambda k2, q6: 64 + 4 * (6 * k2 + q6)
            def opop(roll=None):
                x, b = opend.pop(0)
                c, cb = divmod(x[1], 7)
                final = lastt and x in acts
                st = []; stcb = None
                if done_cb:
                    stcb = done_cb.pop(0); st = self.store_parts(stcb)
                of = OF2 if (final and c == 2) else OF
                for k2 in range(2):
                    for q6 in range(6):
                        acc = ACC(cb, q6)
                        cc = "0" if (c == 0 and k2 == 0) else v(acc, 4)
                        rep = 1
                        if a.op2hack and cb >= 2: rep = 0 if 3 - a.op2hack <= c < 3 else (1 + a.op2hack if c == 3 else 1)
                        for r_ in range(rep):
                            e(f"v_mfma_f32_16x16x32_bf16 {v(acc,4)}, {v(b+4*(k2 ^ (r_ & 1)),4)}, {v(of(k2,q6),4)}, {cc}")
                        if a.paceO and not final: e.nop(a.paceO)
                        if a.paceF and final: e.nop(a.paceF)
                        if roll is not None: ord_(roll, k2, q6)
                        if blight:
                            for _ in range(a.wv):
                                if blight: e(blight.pop(0))
                        elif dma and q6 % 3 == 2 and not P.get("burst"): dma.pop(0)()
                        if dma and P.get("burst") and q6 % a.bgap == 0: dma.pop(0)()
                        if st and (k2 or q6 >= 2):
                            for _ in range(4 if a.defer else 2):
                                if st: st.pop(0)()
                while st: st.pop(0)()
                if final and a.thr >= 0 and stcb is not None: e.force_wait(f"vmcnt({a.thr})")
                if a.nd and stcb in (0, 1):
                    e.nop(2)
                    for q6 in range(6): e(f"ds_read_b128 {v(OF2(stcb,q6),4)}, v6 offset:{self.obuf(2) + stcb*6144 + q6*1024}")
                if final:
                    assert a.fused in (0, 1, 3)
                    remain[cb] -= 1
                    if remain[cb] == 0: done_cb.append(cb)
                    if not any(remain.values()):
                        while done_cb:
                            for f in self.store_parts(done_cb.pop(0)): f()
            ord_c = [x[1] for x in acts if x[0] == "oread"]
            if ord_c:
                c = ord_c[0]
                if c == 3: self.stamp()
                if ws and len(opend) < 3:
                    b = [x for x in WB if x not in [p[1] for p in opend]][0]
                    first = (ws.pop(0), b); wread(*first)
                else: first = None
                while len(opend) > 1: opop()
                if opend: opop(roll=c)
                else:
                    for k2 in range(2):
                        for q6 in range(6): ord_(c, k2, q6)
                if first: opend.append(first)
            nows = not ws and not ord_c
            for x in ws:
                while len(opend) >= 3: opop()
                b = [y for y in WB if y not in [p[1] for p in opend]][0]
                go = len(opend) + 1 > (2 if lastt else max(a.blag, 1))
                wread(x, b, defer=go and a.wv > 0); opend.append((x, b))
                if go: opop()
            while len(opend) > (0 if (lastt or nows) else a.blag): opop()
            while dma: dma.pop(0)()
        if a.padto and a.padglob:
            e(f"s_cmp_lg_u32 {s(S_W)}, 4"); e("s_cbranch_scc1 L_end1")
            e("s_load_dwordx2 s[98:99], s[0:1], 88"); e.force_wait("vmcnt(0) lgkmcnt(0)")
            e("s_not_b32 s97, s96"); e("v_mov_b32 v10, 240"); e("v_mov_b32 v11, s97"); e("s_mov_b64 s[94:95], s[98:99]")
            e("s_mov_b64 exec, 1")
            e("global_atomic_umax v10, v11, s[94:95]"); e.force_wait("vmcnt(0)")
            e.label("L_pad0")
            e("s_memrealtime s[98:99]"); e.force_wait("lgkmcnt(0)")
            e("s_sub_u32 s98, s98, s96"); e(f"s_cmp_lt_u32 s98, 5000"); e("s_cbranch_scc1 L_pad0")
            e("global_load_dword v12, v10, s[94:95] sc1"); e.force_wait("vmcnt(0)")
            e("v_readfirstlane_b32 s96, v12"); e("s_nop 4"); e("s_not_b32 s96, s96")
            e.label("L_pad")
            e("s_memrealtime s[98:99]"); e.force_wait("lgkmcnt(0)")
            e("s_sub_u32 s98, s98, s96"); e(f"s_cmp_lt_u32 s98, {a.padto*100}"); e("s_cbranch_scc1 L_pad")
            e("s_mov_b64 exec, -1")
        elif a.padto:
            e.label("L_pad")
            e("s_memrealtime s[98:99]"); e.force_wait("lgkmcnt(0)")
            e("s_sub_u32 s98, s98, s96"); e(f"s_cmp_lt_u32 s98, {a.padto*100}"); e("s_cbranch_scc1 L_pad")
        self.stamp()
        if a.fused in (1, 3): self.fused_reduce()
        if a.fused == 5:
            e("v_mov_b32 v9, 12292"); e("v_mov_b32 v10, 1")
            e.force_wait("vmcnt(0)")
            e("s_mov_b64 exec, 1")
            e("ds_add_rtn_u32 v11, v9, v10"); e.force_wait("lgkmcnt(0)")
            e("v_readfirstlane_b32 s50, v11"); e("s_mov_b64 exec, -1")
            e("s_cmp_lg_u32 s50, 3"); e("s_cbranch_scc1 L_nosig")
            e("buffer_store_dword v10, v8, s[36:39], s62 offen sc1")
            e.label("L_nosig")
        if a.fused == 7: self.tail7_B()
        if a.fused == 6: self.tail6_B()
        if a.fused == 4: self.sig4(99)
        if a.fused == 2:
            for n in range(7 - a.flag_lag, 7): self.flag(n)
        if a.stamps:
            e.force_wait("vmcnt(0)")
            self.stamp()
            e(f"s_cmp_lg_u32 {s(S_W)}, 4"); e("s_cbranch_scc1 L_end1")
            e(f"s_add_u32 s60, s60, {STAMP_OFF}"); e("s_addc_u32 s61, s61, 0"); e("s_lshl_b32 s33, s2, 7"); e("s_add_u32 s60, s60, s33"); e("s_addc_u32 s61, s61, 0")
            e("v_mov_b32 v10, 0")
            for i in range(self.nst):
                e(f"v_mov_b32 v8, s{64+2*i}"); e(f"v_mov_b32 v9, s{65+2*i}")
                e(f"global_store_dwordx2 v10, v[8:9], s[60:61] offset:{8*i}"); e.nop(2)

    def own_range(self):
        e = self.e
        e(f"s_mul_i32 s94, {s(S_H)}, 21"); e("s_add_u32 s95, s94, 21"); e("s_lshr_b32 s94, s94, 2"); e("s_lshr_b32 s95, s95, 2")
        e("s_sub_u32 s95, s95, s94"); e("s_lshl_b32 s94, s94, 10"); e("s_lshl_b32 s95, s95, 10")

    def flag_srd(self):
        e = self.e
        e("s_load_dwordx4 s[44:47], s[0:1], 80")
        e(f"s_lshl_b32 s63, {s(S_BLK)}, 3"); e(f"s_add_u32 s63, s63, {s(S_B)}")
        e(f"s_mul_i32 {s(S_TMP)}, s63, {8448 if self.a.fused in (3, 7) else 8192}"); e(f"s_add_u32 {s(S_TMP)}, {s(S_TMP)}, {FLAG_OFF}")
        e(f"s_add_u32 s36, s60, {s(S_TMP)}"); e("s_addc_u32 s37, s61, 0"); e("s_mov_b32 s38, 8192"); e("s_mov_b32 s39, 0x20000")
        e("s_lshl_b32 s63, s63, 4")
        e.force_wait("lgkmcnt(0)")
        e("s_mov_b64 s[40:41], s[46:47]"); e("s_mov_b32 s42, 256"); e("s_mov_b32 s43, 0x20000")

    def flag(self, n):
        e = self.e
        e.wait_tag(("st", n))
        e(f"v_mov_b32 v9, {n+1}")
        e("buffer_store_dword v9, v8, s[36:39], s62 offen sc1")

    def sig7(self):
        e = self.e
        e("v_mov_b32 v4, 12288"); e("v_mov_b32 v3, 1")
        e.wait_tag(("st", self.a.st1 - 1))
        e("ds_add_u32 v4, v3")
        self.sig7_done = True

    def coord7(self, name, cnt_off, line, go_off):
        e = self.e
        e("v_mov_b32 v11, 12288"); e("s_mov_b32 s51, 0")
        e.label(name + "_c")
        e(f"ds_read_b32 v10, v11 offset:{cnt_off}"); e.force_wait("lgkmcnt(0)")
        e("v_readfirstlane_b32 s50, v10")
        if self.a.lsleep: e(f"s_sleep {self.a.lsleep}")
        e("s_cmp_lt_u32 s50, 256"); e(f"s_cbranch_scc1 {name}_c")
        e(f"v_mov_b32 v10, {line}"); e("v_mov_b32 v12, 1")
        e("s_mov_b64 exec, 1")
        e("buffer_atomic_add v12, v10, s[36:39], 0 offen sc0")
        e.force_wait("vmcnt(0)")
        e("v_add_u32 v12, 1, v12")
        e.label(name)
        e("v_readfirstlane_b32 s50, v12")
        e("s_add_u32 s51, s51, 1")
        e("s_cmp_ge_u32 s50, 16"); e(f"s_cbranch_scc1 {name}_ok")
        e("s_cmp_ge_u32 s51, 200000"); e(f"s_cbranch_scc1 {name}_ok")
        e("buffer_load_dword v12, v10, s[36:39], 0 offen sc1")
        e.force_wait("vmcnt(0)")
        e(f"s_branch {name}")
        e.label(name + "_ok")
        e("v_mov_b32 v12, 1")
        e(f"ds_write_b32 v11, v12 offset:{go_off}")
        e("s_endpgm")

    def tail7_A(self):
        e = self.e; a = self.a
        n1 = a.st1 * 768 // 16
        assert n1 % 24 == 0 and n1 // 3 <= 64
        e(f"s_cmp_lg_u32 {s(S_W)}, 0"); e("s_cbranch_scc1 L_a7")
        self.coord7("L_q1", 0, 0, 8)
        e.label("L_a7")
        e(f"s_mul_i32 s46, {s(S_H)}, {n1}"); e(f"s_mul_i32 {s(S_TMP)}, {s(S_U)}, {n1//3}"); e(f"s_add_u32 s46, s46, {s(S_TMP)}"); e(f"s_sub_u32 s46, s46, {n1//3}")
        e(f"s_mov_b32 s47, {n1//3}"); e("v_mov_b32 v11, 12296")
        e("s_branch L_sum")

    def tail7_B(self):
        e = self.e; a = self.a
        if not getattr(self, "sig7_done", False): self.sig7()
        n2 = (7 - a.st1) * 768 // 16
        assert n2 % 24 == 0 and n2 // 3 <= 64
        e.force_wait("vmcnt(0)")
        e("ds_add_u32 v4, v3 offset:4")
        self.stamp()
        e(f"s_cmp_lg_u32 {s(S_W)}, 7"); e("s_cbranch_scc1 L_b7")
        self.coord7("L_q2", 4, 4096, 12)
        e.label("L_b7")
        e(f"s_mul_i32 s46, {s(S_H)}, {n2}"); e(f"s_mul_i32 {s(S_TMP)}, {s(S_U)}, {n2//3}"); e(f"s_add_u32 s46, s46, {s(S_TMP)}"); e(f"s_add_u32 s46, s46, {a.st1*768}")
        e(f"s_mov_b32 s47, {n2//3}"); e("v_mov_b32 v11, 12300")
        e.label("L_sum")
        e("v_and_b32 v1, 63, v0"); e("v_add_u32 v2, s46, v1"); e("v_mov_b32 v4, 0x200000"); e("v_cmp_gt_u32 vcc, s47, v1")
        e("v_lshlrev_b32 v3, 4, v2"); e("v_cndmask_b32 v3, v4, v3, vcc")
        e("v_lshrrev_b32 v5, 8, v2"); e("v_mul_u32_u24 v6, 43, v5"); e("v_lshrrev_b32 v6, 7, v6")
        e("v_mul_u32_u24 v7, 3, v6"); e("v_sub_u32 v7, v5, v7")
        e(f"v_add_u32 v6, {s(S_RB)}, v6"); e("v_subrev_u32 v9, 7, v6"); e("v_min_u32 v6, v6, v9")
        e("v_and_b32 v8, 15, v2"); e("v_lshl_add_u32 v8, v7, 5, v8"); e("v_mul_u32_u24 v8, 1792, v8")
        e("v_lshl_add_u32 v8, v6, 7, v8"); e("v_bfe_u32 v9, v2, 4, 4"); e("v_lshl_add_u32 v8, v9, 3, v8")
        e("v_cndmask_b32 v8, v4, v8, vcc")
        e(f"s_lshr_b32 {s(S_TMP)}, s63, 4"); e(f"s_mul_i32 {s(S_TMP)}, {s(S_TMP)}, {16*86016}")
        e(f"s_add_u32 s52, s60, {s(S_TMP)}"); e("s_addc_u32 s53, s61, 0"); e(f"s_mov_b32 s54, {16*86016}"); e("s_mov_b32 s55, 0x20000")
        e("s_mov_b64 s[56:57], s[44:45]"); e(f"s_mov_b32 s58, {8*96*1792}"); e("s_mov_b32 s59, 0x20000")
        e(f"s_mul_i32 s49, {s(S_B)}, {96*1792}"); e(f"s_mul_i32 {s(S_TMP)}, {s(S_BLK)}, 896"); e(f"s_add_u32 s49, s49, {s(S_TMP)}")
        e(f"s_mov_b32 {s(S_SO)}, 0")
        e.label("L_go7")
        e("ds_read_b32 v10, v11"); e.force_wait("lgkmcnt(0)")
        e("v_readfirstlane_b32 s50, v10")
        if a.lsleep: e(f"s_sleep {a.lsleep}")
        e("s_cmp_eq_u32 s50, 0"); e("s_cbranch_scc1 L_go7")
        self.stamp()
        rp = self.pol(a.frpol)
        for h in range(16):
            e(f"buffer_load_dwordx4 {v(32+4*h,4)}, v3, s[52:55], {s(S_SO)} offen{rp}")
            if h < 15: e(f"s_add_u32 {s(S_SO)}, {s(S_SO)}, 86016")
        e("s_mov_b32 s50, 0xffff0000")
        for h in range(16):
            for k in range(4):
                r = 32 + 4 * h + k
                if h == 0:
                    e(f"v_lshlrev_b32 v{16+2*k}, 16, v{r}"); e(f"v_and_b32 v{17+2*k}, s50, v{r}")
                else:
                    e(f"v_lshlrev_b32 v{24+2*k}, 16, v{r}"); e(f"v_and_b32 v{25+2*k}, s50, v{r}")
                    e(f"v_pk_add_f32 {v(16+2*k,2)}, {v(16+2*k,2)}, {v(24+2*k,2)}")
        for k in range(4): e(f"v_cvt_pk_bf16_f32 v{24+k}, v{16+2*k}, v{17+2*k}")
        e("buffer_store_dwordx2 v[24:25], v8, s[56:59], s49 offen")
        e(f"s_add_u32 s49, s49, {16*1792}")
        e("buffer_store_dwordx2 v[26:27], v8, s[56:59], s49 offen")

    def srd6(self):
        e = self.e
        e("s_load_dwordx4 s[44:47], s[0:1], 80")
        e(f"s_add_u32 s36, s60, {FLAG_OFF}"); e("s_addc_u32 s37, s61, 0"); e(f"s_mov_b32 s38, {128*CSTR}"); e("s_mov_b32 s39, 0x20000")
        e("s_getreg_b32 s62, hwreg(HW_REG_XCC_ID, 0, 3)"); e("s_mul_i32 s62, s62, 3")
        e("s_and_b32 s63, s2, 63")
        e.force_wait("lgkmcnt(0)")
        e("s_mov_b64 s[40:41], s[46:47]"); e("s_mov_b32 s42, 256"); e("s_mov_b32 s43, 0x20000")
        e(f"s_mul_i32 s46, s63, {CSTR}")
        e("s_andn2_b32 s47, s63, 3"); e(f"s_add_u32 s47, s47, {s(S_PP)}"); e("s_add_u32 s47, s47, 64"); e(f"s_mul_i32 s47, s47, {CSTR}")
        e("s_lshl_b32 s63, s63, 2")

    def arrive(self, name, off):
        e = self.e
        e("v_mov_b32 v10, 0"); e("v_mov_b32 v12, 1")
        e("s_mov_b64 exec, 1")
        e(f"buffer_atomic_add v12, v10, s[36:39], {off} offen sc0")
        e("s_mov_b32 s51, 0")
        e.force_wait("vmcnt(0)")
        e("v_add_u32 v12, 1, v12")
        e.label(name)
        e("v_readfirstlane_b32 s50, v12")
        e("s_add_u32 s51, s51, 1")
        e("s_cmp_ge_u32 s50, 4"); e(f"s_cbranch_scc1 {name}_ok")
        e("s_cmp_ge_u32 s51, 200000"); e(f"s_cbranch_scc1 {name}_ok")
        if self.a.psleep: e(f"s_sleep {self.a.psleep}")
        e(f"buffer_load_dword v12, v10, s[36:39], {off} offen sc1")
        e.force_wait("vmcnt(0)")
        e(f"s_branch {name}")
        e.label(name + "_ok")
        e("s_mov_b64 exec, -1")

    def final6_setup(self):
        e = self.e
        e(f"s_lshr_b32 {s(S_TMP)}, {s(S_W)}, 2"); e(f"s_lshl_b32 {s(S_TMP)}, {s(S_TMP)}, 8"); e(f"v_add_u32 v1, {s(S_TMP)}, v0")
        e("v_cmp_le_u32 vcc, 192, v1"); e("v_subrev_u32 v2, 192, v1"); e("v_min_u32 v2, v2, v1")
        e(f"s_lshr_b32 {s(S_TMP)}, {s(S_H)}, 2"); e(f"s_mul_i32 {s(S_TMP)}, {s(S_TMP)}, 192"); e(f"v_add_u32 v2, {s(S_TMP)}, v2")
        e(f"s_add_u32 {s(S_TMP)}, {s(S_RB)}, 5"); e(f"v_mov_b32 v5, {s(S_TMP)}"); e("v_addc_co_u32 v5, vcc, 0, v5, vcc")
        e("v_subrev_u32 v6, 7, v5"); e("v_min_u32 v5, v5, v6")
        e(f"s_add_u32 {s(S_TMP)}, {s(S_PP)}, {self.a.yslot}"); e(f"s_and_b32 {s(S_TMP)}, {s(S_TMP)}, 3")
        e(f"v_lshl_add_u32 v6, v5, 2, {s(S_TMP)}"); e("v_mul_u32_u24 v6, 12288, v6"); e("v_lshl_add_u32 v3, v2, 4, v6")
        e("v_lshrrev_b32 v7, 8, v2"); e("v_and_b32 v8, 15, v2"); e("v_lshl_add_u32 v8, v7, 5, v8"); e("v_mul_u32_u24 v8, 1792, v8")
        e("v_lshl_add_u32 v8, v5, 7, v8"); e("v_bfe_u32 v9, v2, 4, 4"); e("v_lshl_add_u32 v8, v9, 3, v8")
        e(f"s_cmp_eq_u32 {s(S_PP)}, 3"); e(f"s_cselect_b32 {s(S_TMP)}, 192, 0"); e(f"v_subrev_u32 v9, {s(S_TMP)}, v1")
        e(f"s_sub_u32 {s(S_TMP)}, 384, {s(S_TMP)}"); e(f"v_cmp_gt_u32 vcc, {s(S_TMP)}, v9"); e("v_mov_b32 v4, 0x200000")
        e("v_cndmask_b32 v3, v4, v3, vcc"); e("v_cndmask_b32 v8, v4, v8, vcc")
        e("s_and_b32 s52, s2, 60"); e(f"s_mul_i32 {s(S_TMP)}, s52, {XQ}")
        e(f"s_add_u32 s52, s60, {s(S_TMP)}"); e("s_addc_u32 s53, s61, 0"); e(f"s_mov_b32 s54, {4*XQ}"); e("s_mov_b32 s55, 0x20000")
        e("s_mov_b64 s[56:57], s[44:45]"); e(f"s_mov_b32 s58, {8*96*1792}"); e("s_mov_b32 s59, 0x20000")
        e(f"s_mul_i32 s49, {s(S_B)}, {96*1792}"); e(f"s_mul_i32 {s(S_TMP)}, {s(S_BLK)}, 896"); e(f"s_add_u32 s49, s49, {s(S_TMP)}")

    def tail6_A(self):
        e = self.e; a = self.a
        self.final6_setup()
        e.barrier()
        e(f"s_cmp_lg_u32 {s(S_W)}, 0"); e("s_cbranch_scc1 L_a1")
        e("s_cmp_eq_u32 s48, 0"); e("s_cbranch_scc1 L_a0")
        e("buffer_wbl2 sc1"); e.force_wait("vmcnt(0)")
        e.label("L_a0")
        self.arrive("L_p1", "s46")
        e.label("L_a1")
        e.barrier()
        if a.junk == 1:
            e(f"s_cmp_lg_u32 {s(S_W)}, 1"); e("s_cbranch_scc1 L_j1"); e(f"s_cmp_ge_u32 s2, {a.junkn}"); e("s_cbranch_scc1 L_j1")
            e("buffer_wbl2 sc1")
            e.label("L_j1")
        e.barrier()
        if a.junk == 2:
            e(f"s_cmp_lg_u32 {s(S_W)}, 7"); e("s_cbranch_scc1 L_j1"); e.label("L_j1")
        e(f"s_cmp_lg_u32 {s(S_W)}, 0"); e("s_cbranch_scc1 L_fin")
        self.arrive("L_p2", "s47")
        e("s_branch L_fin")

    def tail6_B(self):
        e = self.e; a = self.a
        ACC = self.ACC
        e.force_wait("vmcnt(0)")
        e.barrier()
        for pi, pos in enumerate((5, 6)):
            e(f"s_add_u32 s{50+pi}, {s(S_RB)}, {pos}"); e(f"s_cmp_ge_u32 s{50+pi}, 7"); e(f"s_cselect_b32 {s(S_TMP)}, 7, 0"); e(f"s_sub_u32 s{50+pi}, s{50+pi}, {s(S_TMP)}")
            e(f"s_mul_i32 s{50+pi}, s{50+pi}, {4*12288}")
        e(f"s_cmp_eq_u32 {s(S_PP)}, 3"); e("s_cselect_b32 s50, 0x100000, s50")
        for j in range(0, 4):
            e(f"s_add_u32 s{91+j}, {s(S_PP)}, {j}"); e(f"s_and_b32 s{91+j}, s{91+j}, 3"); e(f"s_mul_i32 s{91+j}, s{91+j}, 12288")
        e("v_add_u32 v9, 4096, v7"); e("v_add_u32 v10, 8192, v7"); e("s_mov_b32 s95, 0xffff0000")
        self.stamp()
        e.barrier()
        self.stamp()
        VQ = [7, 9, 10]
        L = lambda pi, qt, j: 64 + 4 * ((pi * 3 + qt) * 3 + (j - 1))
        for pi in range(2):
            for qt in range(3):
                for j in range(1, 4):
                    e(f"s_add_u32 {s(S_SO)}, s{50+pi}, s{91+j}")
                    e(f"buffer_load_dwordx4 {v(L(pi,qt,j),4)}, v{VQ[qt]}, {s(S_R2,4)}, {s(S_SO)} offen{self.pol(a.xlpol)}")
        if a.stamps > 1:
            e.force_wait("vmcnt(0)"); self.stamp()
        for pi, pos in enumerate((5, 6)):
            for qt in range(3):
                a0 = ACC(pos, 2 * qt)
                for j in range(1, 4):
                    for k in range(4):
                        r = L(pi, qt, j) + k; t = 16 + 2 * ((j * 4 + k) % 8)
                        e(f"v_lshlrev_b32 v{t}, 16, v{r}"); e(f"v_and_b32 v{t+1}, s95, v{r}")
                        e(f"v_pk_add_f32 {v(a0+2*k,2)}, {v(a0+2*k,2)}, {v(t,2)}")
                for k in range(4): e(f"v_cvt_pk_bf16_f32 v{a0+k}, v{a0+2*k}, v{a0+2*k+1}")
                e(f"s_add_u32 {s(S_SO)}, s{50+pi}, s{91+a.yslot}")
                e(f"buffer_store_dwordx4 {v(a0,4)}, v{VQ[qt]}, {s(S_R2,4)}, {s(S_SO)} offen sc1")
        if a.stamps > 1: self.stamp()
        self.final6_setup()
        e.force_wait("vmcnt(0)")
        self.stamp()
        e.barrier()
        if a.junk == 2:
            e(f"s_cmp_lg_u32 {s(S_W)}, 7"); e("s_cbranch_scc1 L_fin"); e(f"s_cmp_ge_u32 s2, {a.junkn}"); e("s_cbranch_scc1 L_fin")
            e("buffer_wbl2 sc1")
        e.label("L_fin")
        e.barrier()
        self.stamp()
        e(f"s_cmp_ge_u32 {s(S_W)}, 6"); e("s_cbranch_scc1 L_end1")
        e(f"s_mov_b32 {s(S_SO)}, 0"); e("s_mov_b32 s50, 0xffff0000")
        for j in range(4):
            e(f"buffer_load_dwordx4 {v(32+4*j,4)}, v3, s[52:55], {s(S_SO)} offen sc1")
            if j < 3: e(f"s_add_u32 {s(S_SO)}, {s(S_SO)}, {XQ}")
        for h in range(4):
            for k in range(4):
                r = 32 + 4 * h + k
                if h == 0:
                    e(f"v_lshlrev_b32 v{16+2*k}, 16, v{r}"); e(f"v_and_b32 v{17+2*k}, s50, v{r}")
                else:
                    e(f"v_lshlrev_b32 v{24+2*k}, 16, v{r}"); e(f"v_and_b32 v{25+2*k}, s50, v{r}")
                    e(f"v_pk_add_f32 {v(16+2*k,2)}, {v(16+2*k,2)}, {v(24+2*k,2)}")
        for k in range(4): e(f"v_cvt_pk_bf16_f32 v{24+k}, v{16+2*k}, v{17+2*k}")
        e("buffer_store_dwordx2 v[24:25], v8, s[56:59], s49 offen")
        e(f"s_add_u32 s49, s49, {16*1792}")
        e("buffer_store_dwordx2 v[26:27], v8, s[56:59], s49 offen")

    def reduce5(self):
        e = self.e; a = self.a
        self.flag_srd()
        e("v_and_b32 v1, 63, v0"); e("v_mov_b32 v11, 12288")
        e(f"s_cmp_lg_u32 {s(S_W)}, 3"); e("s_cbranch_scc1 L_cons")
        e("v_mov_b32 v6, 0")
        self.poll("L_pc", "buffer_load_dword v10, v6, s[40:43], s63 offen sc1", "v_cmp_le_u32 vcc, 16, v10")
        e("v_and_b32 v5, 15, v1"); e("v_lshlrev_b32 v5, 9, v5")
        e("s_mov_b32 s51, 0")
        e.label("L_pl")
        e("buffer_load_dword v10, v5, s[36:39], 0 offen sc1"); e.force_wait("vmcnt(0)")
        e("v_cmp_ne_u32 vcc, 0, v10")
        e("s_add_u32 s51, s51, 1")
        e("s_and_b32 s50, vcc_lo, 0xffff")
        e("s_cmp_ge_u32 s51, 200000"); e("s_cselect_b32 s50, 0xffff, s50")
        e("v_mov_b32 v12, s50"); e("ds_write_b32 v11, v12")
        e("s_cmp_eq_u32 s50, 0xffff"); e("s_cbranch_scc1 L_end1")
        if a.psleep: e(f"s_sleep {a.psleep}")
        e("s_branch L_pl")
        e.label("L_cons")
        e(f"s_lshr_b32 {s(S_TMP)}, s63, 4"); e(f"s_mul_i32 {s(S_TMP)}, {s(S_TMP)}, {16*86016}")
        e(f"s_add_u32 s52, s60, {s(S_TMP)}"); e("s_addc_u32 s53, s61, 0"); e(f"s_mov_b32 s54, {16*86016}"); e("s_mov_b32 s55, 0x20000")
        e("s_mov_b64 s[56:57], s[44:45]"); e(f"s_mov_b32 s58, {8*96*1792}"); e("s_mov_b32 s59, 0x20000")
        e(f"s_mul_i32 {s(S_TMP)}, {s(S_H)}, 336"); e(f"s_mul_i32 s46, {s(S_U)}, 112"); e(f"s_add_u32 {s(S_TMP)}, {s(S_TMP)}, s46")
        e(f"v_add_u32 v2, {s(S_TMP)}, v1"); e("v_add_u32 v3, 64, v2"); e("v_mov_b32 v4, 0x200000")
        e("v_cmp_gt_u32 s[48:49], 48, v1")
        e(f"s_mul_i32 s47, {s(S_B)}, {96*1792}"); e(f"s_mul_i32 {s(S_TMP)}, {s(S_BLK)}, 896"); e(f"s_add_u32 s47, s47, {s(S_TMP)}")
        for E, LD, OUT in ((2, 6, 8), (3, 7, 9)):
            e(f"v_lshlrev_b32 v{LD}, 4, v{E}")
            e(f"v_lshrrev_b32 v10, 8, v{E}"); e("v_mul_u32_u24 v12, 43, v10"); e("v_lshrrev_b32 v12, 7, v12")
            e("v_mul_u32_u24 v13, 3, v12"); e("v_sub_u32 v13, v10, v13")
            e(f"v_and_b32 v{OUT}, 15, v{E}"); e(f"v_lshl_add_u32 v{OUT}, v13, 5, v{OUT}"); e(f"v_mul_u32_u24 v{OUT}, 1792, v{OUT}")
            e(f"v_lshl_add_u32 v{OUT}, v12, 7, v{OUT}"); e(f"v_bfe_u32 v13, v{E}, 4, 4"); e(f"v_lshl_add_u32 v{OUT}, v13, 3, v{OUT}")
        e("v_cndmask_b32 v7, v4, v7, s[48:49]"); e("v_cndmask_b32 v9, v4, v9, s[48:49]")
        e("s_mov_b32 s50, 0xffff0000"); e("s_mov_b32 s48, 0")
        rp = self.pol(a.frpol)
        e.label("L_cl")
        e("ds_read_b32 v10, v11"); e.force_wait("lgkmcnt(0)")
        e("v_readfirstlane_b32 s49, v10")
        e("s_andn2_b32 s46, s49, s48")
        e("s_cbranch_scc1 L_cn")
        e("s_sleep 1"); e("s_branch L_cl")
        e.label("L_cn")
        for h in range(16):
            e(f"s_bitcmp1_b32 s46, {h}"); e(f"s_cbranch_scc0 L_ch{h}")
            e(f"s_mov_b32 {s(S_SO)}, {h*86016}")
            e(f"buffer_load_dwordx4 {v(32+4*h,4)}, v6, s[52:55], {s(S_SO)} offen{rp}")
            e(f"buffer_load_dwordx4 {v(96+4*h,4)}, v7, s[52:55], {s(S_SO)} offen{rp}")
            e.label(f"L_ch{h}")
        e("s_or_b32 s48, s48, s46"); e("s_cmp_lg_u32 s48, 0xffff"); e("s_cbranch_scc1 L_cl")
        e.force_wait("vmcnt(0)")
        for base, OUT in ((32, 8), (96, 9)):
            for h in range(16):
                for k in range(4):
                    r = base + 4 * h + k
                    if h == 0:
                        e(f"v_lshlrev_b32 v{16+2*k}, 16, v{r}"); e(f"v_and_b32 v{17+2*k}, s50, v{r}")
                    else:
                        e(f"v_lshlrev_b32 v{24+2*k}, 16, v{r}"); e(f"v_and_b32 v{25+2*k}, s50, v{r}")
                        e(f"v_pk_add_f32 {v(16+2*k,2)}, {v(16+2*k,2)}, {v(24+2*k,2)}")
            for k in range(4): e(f"v_cvt_pk_bf16_f32 v{base+k}, v{16+2*k}, v{17+2*k}")
            e(f"buffer_store_dwordx2 {v(base,2)}, v{OUT}, s[56:59], s47 offen")
            e(f"s_add_u32 {s(S_TMP)}, s47, {16*1792}")
            e(f"buffer_store_dwordx2 {v(base+2,2)}, v{OUT}, s[56:59], {s(S_TMP)} offen")
        if a.stamps:
            e.force_wait("vmcnt(0)")
            e("s_memrealtime s[64:65]"); e.force_wait("lgkmcnt(0)")
            e(f"s_cmp_lg_u32 {s(S_W)}, 2"); e("s_cbranch_scc1 L_end1")
            e(f"s_add_u32 s60, s60, {STAMP_OFF}"); e("s_addc_u32 s61, s61, 0"); e("s_lshl_b32 s33, s2, 7"); e("s_add_u32 s60, s60, s33"); e("s_addc_u32 s61, s61, 0")
            e("v_mov_b32 v10, 0"); e("v_mov_b32 v8, s64"); e("v_mov_b32 v9, s65")
            e(f"global_store_dwordx2 v10, v[8:9], s[60:61] offset:{8*a.astamp}")

    def sig4(self, issued):
        e = self.e
        ends = [7, 15, 20]
        while self.nsig < 3 and issued - 1 - ends[self.nsig] >= self.a.sig_lag:
            e.wait_tag(("sp", ends[self.nsig]))
            e(f"v_mov_b32 v9, {1 << (8 * self.nsig)}")
            e("buffer_atomic_add v9, v8, s[36:39], s62 offen")
            self.nsig += 1

    def staged_reduce4(self):
        e = self.e; a = self.a
        e(f"s_lshr_b32 {s(S_TMP)}, s63, 4"); e(f"s_mul_i32 {s(S_TMP)}, {s(S_TMP)}, {16*86016}")
        e(f"s_add_u32 s52, s60, {s(S_TMP)}"); e("s_addc_u32 s53, s61, 0"); e(f"s_mov_b32 s54, {16*86016}"); e("s_mov_b32 s55, 0x20000")
        e("s_mov_b64 s[56:57], s[44:45]"); e(f"s_mov_b32 s58, {8*96*1792}"); e("s_mov_b32 s59, 0x20000")
        e(f"s_lshl_b32 s62, {s(S_U)}, 7")
        e("v_and_b32 v1, 63, v0"); e("v_mov_b32 v4, 0x200000")
        e("v_lshrrev_b32 v2, 5, v1"); e("v_lshlrev_b32 v2, 9, v2"); e("v_and_b32 v3, 31, v1"); e("v_add_u32 v2, v2, v3")
        e(f"s_lshl_b32 {s(S_TMP)}, {s(S_H)}, 5"); e(f"v_add_u32 v2, {s(S_TMP)}, v2")
        e(f"s_lshl_b32 {s(S_TMP)}, {s(S_H)}, 4"); e(f"s_add_u32 {s(S_TMP)}, {s(S_TMP)}, 1024"); e(f"v_add_u32 v3, {s(S_TMP)}, v1")
        e(f"s_lshl_b32 {s(S_TMP)}, {s(S_H)}, 3"); e(f"s_add_u32 {s(S_TMP)}, {s(S_TMP)}, 1264"); e(f"v_add_u32 v5, {s(S_TMP)}, v1")
        e("v_cmp_gt_u32 vcc, 16, v1"); e("v_cndmask_b32 v3, v5, v3, vcc")
        e(f"s_cmp_lt_u32 {s(S_H)}, 8"); e("s_cselect_b32 s46, 24, 16")
        e("v_cmp_gt_u32 s[48:49], s46, v1")
        e(f"s_mul_i32 s47, {s(S_B)}, {96*1792}"); e(f"s_mul_i32 {s(S_TMP)}, {s(S_BLK)}, 896"); e(f"s_add_u32 s47, s47, {s(S_TMP)}")
        e(f"s_lshl_b32 {s(S_TMP)}, {s(S_U)}, 5"); e(f"s_add_u32 s47, s47, {s(S_TMP)}")
        for E, LD, OUT in ((2, 6, 8), (3, 7, 9)):
            e(f"v_lshlrev_b32 v{LD}, 4, v{E}")
            e(f"v_lshrrev_b32 v10, 6, v{E}"); e("v_mul_u32_u24 v11, 43, v10"); e("v_lshrrev_b32 v11, 7, v11")
            e("v_mul_u32_u24 v12, 3, v11"); e("v_sub_u32 v12, v10, v12")
            e(f"v_add_u32 v11, {s(S_RB)}, v11"); e("v_subrev_u32 v13, 7, v11"); e("v_min_u32 v11, v11, v13")
            e(f"v_and_b32 v{OUT}, 15, v{E}"); e(f"v_lshl_add_u32 v{OUT}, v12, 5, v{OUT}"); e(f"v_mul_u32_u24 v{OUT}, 1792, v{OUT}")
            e(f"v_lshl_add_u32 v{OUT}, v11, 7, v{OUT}"); e(f"v_bfe_u32 v13, v{E}, 4, 2"); e(f"v_lshl_add_u32 v{OUT}, v13, 3, v{OUT}")
        e("v_cndmask_b32 v7, v4, v7, s[48:49]"); e("v_cndmask_b32 v9, v4, v9, s[48:49]")
        e("v_mov_b32 v5, 0"); e("s_mov_b32 s50, 0xffff0000")
        rp = self.pol(a.frpol)
        def summ(base, OUT):
            for h in range(16):
                for k in range(4):
                    r = base + 4 * h + k
                    if h == 0:
                        e(f"v_lshlrev_b32 v{16+2*k}, 16, v{r}"); e(f"v_and_b32 v{17+2*k}, s50, v{r}")
                    else:
                        e(f"v_lshlrev_b32 v{24+2*k}, 16, v{r}"); e(f"v_and_b32 v{25+2*k}, s50, v{r}")
                        e(f"v_pk_add_f32 {v(16+2*k,2)}, {v(16+2*k,2)}, {v(24+2*k,2)}")
            for k in range(4): e(f"v_cvt_pk_bf16_f32 v{24+k}, v{16+2*k}, v{17+2*k}")
            e(f"buffer_store_dwordx2 v[24:25], v{OUT}, s[56:59], s47 offen")
            e(f"s_add_u32 {s(S_TMP)}, s47, {16*1792}")
            e(f"buffer_store_dwordx2 v[26:27], v{OUT}, s[56:59], {s(S_TMP)} offen")
        for st in range(3):
            self.poll(f"L_pf{st}", "buffer_load_dword v10, v5, s[36:39], s62 offen sc1", f"v_bfe_u32 v10, v10, {8*st}, 8|v_cmp_le_u32 vcc, 16, v10")
            if st == 0: e("s_mov_b32 exec_hi, 0")
            if st == 1: e("s_mov_b32 exec_lo, 0")
            e(f"s_mul_i32 {s(S_SO)}, {s(S_U)}, 21504")
            for h in range(16):
                e(f"buffer_load_dwordx4 {v((32 if st < 2 else 96)+4*h,4)}, v{6 if st < 2 else 7}, s[52:55], {s(S_SO)} offen{rp}")
                if h < 15: e(f"s_add_u32 {s(S_SO)}, {s(S_SO)}, 86016")
            e("s_mov_b64 exec, -1")
        summ(32, 8)
        summ(96, 9)
        if a.stamps:
            e.force_wait("vmcnt(0)")
            e("s_memrealtime s[64:65]"); e.force_wait("lgkmcnt(0)")
            e(f"s_cmp_lg_u32 {s(S_W)}, 2"); e("s_cbranch_scc1 L_end1")
            e(f"s_add_u32 s60, s60, {STAMP_OFF}"); e("s_addc_u32 s61, s61, 0"); e("s_lshl_b32 s33, s2, 7"); e("s_add_u32 s60, s60, s33"); e("s_addc_u32 s61, s61, 0")
            e("v_mov_b32 v10, 0"); e("v_mov_b32 v8, s64"); e("v_mov_b32 v9, s65")
            e(f"global_store_dwordx2 v10, v[8:9], s[60:61] offset:{8*a.astamp}")

    def poll(self, name, load, cmp):
        e = self.e
        e("s_mov_b32 s51, 0")
        e.label(name)
        e(load); e.force_wait("vmcnt(0)")
        for cc in cmp.split("|"): e(cc)
        e("s_add_u32 s51, s51, 1")
        e("s_cmp_eq_u64 vcc, -1"); e(f"s_cbranch_scc1 {name}_ok")
        e("s_cmp_ge_u32 s51, 200000"); e(f"s_cbranch_scc1 {name}_ok")
        if self.a.psleep: e(f"s_sleep {self.a.psleep}")
        e(f"s_branch {name}")
        e.label(name + "_ok")

    def staged_reduce(self):
        e = self.e; a = self.a
        self.flag_srd()
        e(f"s_lshr_b32 {s(S_TMP)}, s63, 4"); e(f"s_mul_i32 {s(S_TMP)}, {s(S_TMP)}, {16*86016}")
        e(f"s_add_u32 s52, s60, {s(S_TMP)}"); e("s_addc_u32 s53, s61, 0"); e(f"s_mov_b32 s54, {16*86016}"); e("s_mov_b32 s55, 0x20000")
        e("s_mov_b64 s[56:57], s[44:45]"); e(f"s_mov_b32 s58, {8*96*1792}"); e("s_mov_b32 s59, 0x20000")
        e("v_and_b32 v1, 63, v0")
        e(f"s_lshr_b32 {s(S_TMP)}, {s(S_H)}, 2"); e(f"s_mul_i32 {s(S_TMP)}, {s(S_TMP)}, 48"); e(f"v_add_u32 v2, {s(S_TMP)}, v1")
        e("v_lshrrev_b32 v3, 6, v2"); e("v_and_b32 v2, 63, v2"); e("v_lshl_add_u32 v2, v3, 8, v2")
        e(f"s_and_b32 s46, {s(S_H)}, 3"); e(f"s_lshl_b32 {s(S_TMP)}, s46, 6"); e(f"v_add_u32 v2, {s(S_TMP)}, v2")
        e("s_lshl_b32 s46, s46, 7")
        e("v_mov_b32 v4, 0x200000"); e("v_cmp_gt_u32 vcc, 48, v1")
        e("v_lshlrev_b32 v3, 4, v2"); e("v_cndmask_b32 v3, v4, v3, vcc")
        e("v_lshrrev_b32 v7, 8, v2"); e("v_and_b32 v8, 15, v2"); e("v_lshl_add_u32 v8, v7, 5, v8"); e("v_mul_u32_u24 v8, 1792, v8")
        e("v_bfe_u32 v9, v2, 4, 4"); e("v_lshl_add_u32 v8, v9, 3, v8"); e("v_cndmask_b32 v8, v4, v8, vcc")
        e("v_and_b32 v5, 15, v1"); e("v_lshlrev_b32 v5, 9, v5"); e("v_mov_b32 v6, 0")
        e(f"s_mul_i32 s49, {s(S_B)}, {96*1792}"); e(f"s_mul_i32 {s(S_TMP)}, {s(S_BLK)}, 896"); e(f"s_add_u32 s49, s49, {s(S_TMP)}")
        e("s_mov_b32 s50, 0xffff0000")
        self.poll("L_pc", "buffer_load_dword v10, v6, s[40:43], s63 offen sc1", "v_cmp_le_u32 vcc, 16, v10")
        e(f"s_mov_b32 s48, {s(S_U)}")
        e.label("L_stage")
        self.poll("L_pf", "buffer_load_dword v10, v5, s[36:39], s46 offen sc1", "v_cmp_lt_u32 vcc, s48, v10")
        e(f"s_add_u32 s47, s48, {s(S_RB)}"); e("s_cmp_ge_u32 s47, 7"); e(f"s_cselect_b32 {s(S_TMP)}, 7, 0"); e(f"s_sub_u32 s47, s47, {s(S_TMP)}")
        e(f"s_mul_i32 {s(S_SO)}, s47, 12288")
        rp = self.pol(a.frpol)
        for h in range(16):
            e(f"buffer_load_dwordx4 {v(32+4*h,4)}, v3, s[52:55], {s(S_SO)} offen{rp}")
            if h < 15: e(f"s_add_u32 {s(S_SO)}, {s(S_SO)}, 86016")
        e("s_lshl_b32 s47, s47, 7"); e("s_add_u32 s47, s47, s49")
        for h in range(16):
            for k in range(4):
                r = 32 + 4 * h + k
                if h == 0:
                    e(f"v_lshlrev_b32 v{16+2*k}, 16, v{r}"); e(f"v_and_b32 v{17+2*k}, s50, v{r}")
                else:
                    e(f"v_lshlrev_b32 v{24+2*k}, 16, v{r}"); e(f"v_and_b32 v{25+2*k}, s50, v{r}")
                    e(f"v_pk_add_f32 {v(16+2*k,2)}, {v(16+2*k,2)}, {v(24+2*k,2)}")
        for k in range(4): e(f"v_cvt_pk_bf16_f32 v{24+k}, v{16+2*k}, v{17+2*k}")
        e("buffer_store_dwordx2 v[24:25], v8, s[56:59], s47 offen")
        e(f"s_add_u32 s47, s47, {16*1792}")
        e("buffer_store_dwordx2 v[26:27], v8, s[56:59], s47 offen")
        e("s_add_u32 s48, s48, 4"); e("s_cmp_lt_u32 s48, 7"); e("s_cbranch_scc1 L_stage")
        if a.stamps:
            e.force_wait("vmcnt(0)")
            e("s_memrealtime s[64:65]"); e.force_wait("lgkmcnt(0)")
            e(f"s_cmp_lg_u32 {s(S_W)}, 2"); e("s_cbranch_scc1 L_end1")
            e(f"s_add_u32 s60, s60, {STAMP_OFF}"); e("s_addc_u32 s61, s61, 0"); e("s_lshl_b32 s33, s2, 7"); e("s_add_u32 s60, s60, s33"); e("s_addc_u32 s61, s61, 0")
            e("v_mov_b32 v10, 0"); e("v_mov_b32 v8, s64"); e("v_mov_b32 v9, s65")
            e(f"global_store_dwordx2 v10, v[8:9], s[60:61] offset:{8*a.astamp}")

    def fused_reduce(self):
        e = self.e; a = self.a
        e.label("L_red")
        e.nop(12)
        e("s_load_dwordx4 s[40:43], s[0:1], 80")
        e(f"s_lshr_b32 {s(S_TMP)}, {s(S_W)}, 2"); e(f"s_lshl_b32 {s(S_TMP)}, {s(S_TMP)}, 8")
        e(f"v_add_u32 v1, {s(S_TMP)}, v0")
        if a.own:
            self.own_range()
            e(f"s_lshr_b32 {s(S_TMP)}, s94, 4"); e("s_lshr_b32 s95, s95, 4")
        else:
            e(f"s_mul_i32 {s(S_TMP)}, {s(S_H)}, 336"); e("s_mov_b32 s95, 336")
        e(f"v_add_u32 v2, {s(S_TMP)}, v1")
        e("v_lshlrev_b32 v3, 4, v2")
        e("v_mov_b32 v4, 0x200000")
        e("v_cmp_gt_u32 vcc, s95, v1")
        e("v_cndmask_b32 v3, v4, v3, vcc")
        e(f"s_lshl_b32 s48, {s(S_BLK)}, 3"); e(f"s_add_u32 s48, s48, {s(S_B)}")
        e(f"s_mul_i32 {s(S_TMP)}, s48, {16*86016}")
        e(f"s_add_u32 s44, s60, {s(S_TMP)}"); e("s_addc_u32 s45, s61, 0"); e(f"s_mov_b32 s46, {16*86016}"); e("s_mov_b32 s47, 0x20000")
        e("v_lshrrev_b32 v5, 8, v2"); e("v_mul_u32_u24 v6, 43, v5"); e("v_lshrrev_b32 v6, 7, v6")
        e("v_mul_u32_u24 v7, 3, v6"); e("v_sub_u32 v7, v5, v7")
        e("v_and_b32 v8, 15, v2"); e("v_lshl_add_u32 v8, v7, 5, v8"); e("v_mul_u32_u24 v8, 1792, v8")
        e("v_lshl_add_u32 v8, v6, 7, v8"); e("v_bfe_u32 v9, v2, 4, 4"); e("v_lshl_add_u32 v8, v9, 3, v8")
        e("v_cndmask_b32 v8, v4, v8, vcc")
        e(f"s_mul_i32 s49, {s(S_B)}, {96*1792}"); e(f"s_mul_i32 {s(S_TMP)}, {s(S_BLK)}, 896"); e(f"s_add_u32 s49, s49, {s(S_TMP)}")
        e.force_wait("vmcnt(0) lgkmcnt(0)")
        e("s_mov_b64 s[52:53], s[40:41]"); e(f"s_mov_b32 s54, {8*96*1792}"); e("s_mov_b32 s55, 0x20000")
        e.barrier()
        e(f"s_cmp_lg_u32 {s(S_W)}, 0"); e("s_cbranch_scc1 L_go")
        e("s_lshl_b32 s50, s48, 4")
        if a.fused == 3:
            e("s_mov_b32 s50, 0"); e("s_mov_b64 s[42:43], s[36:37]")
        e("v_mov_b32 v10, s50"); e("v_mov_b32 v11, 1")
        e("s_mov_b64 exec, 1")
        e("global_atomic_add v12, v10, v11, s[42:43] sc0")
        e("s_mov_b32 s51, 0")
        e.force_wait("vmcnt(0)")
        e("v_add_u32 v12, 1, v12")
        e.label("L_poll")
        e("v_readfirstlane_b32 s50, v12")
        e("s_add_u32 s51, s51, 1")
        e("s_cmp_ge_u32 s50, 16"); e("s_cbranch_scc1 L_polled")
        e(f"s_cmp_ge_u32 s51, 200000"); e("s_cbranch_scc1 L_polled")
        if a.psleep: e(f"s_sleep {a.psleep}")
        e("global_load_dword v12, v10, s[42:43] sc1")
        e.force_wait("vmcnt(0)")
        e("s_branch L_poll")
        e.label("L_polled")
        e("s_mov_b64 exec, -1")
        e.label("L_go")
        e.barrier()
        self.stamp()
        e(f"s_cmp_ge_u32 {s(S_W)}, 6"); e("s_cbranch_scc1 L_end1")
        rp = self.pol(a.frpol)
        if a.own:
            e(f"s_mul_i32 {s(S_SO)}, {s(S_H)}, 86016")
            for h in range(15):
                e(f"s_add_u32 {s(S_SO)}, {s(S_SO)}, 86016"); e(f"s_cmp_eq_u32 {s(S_SO)}, {16*86016}"); e(f"s_cselect_b32 {s(S_SO)}, 0, {s(S_SO)}")
                e(f"buffer_load_dwordx4 {v(36+4*h,4)}, v3, s[44:47], {s(S_SO)} offen{rp}")
            e("v_lshlrev_b32 v1, 4, v1"); e(f"v_add_u32 v1, {self.own_lds}, v1"); e("ds_read_b128 v[32:35], v1")
        for h in range(16 if not a.own else 0):
            e(f"s_mov_b32 {s(S_SO)}, {h*86016}")
            e(f"buffer_load_dwordx4 {v(32+4*h,4)}, v3, s[44:47], {s(S_SO)} offen{rp}")
        e("s_mov_b32 s50, 0xffff0000")
        for h in range(16):
            for k in range(4):
                r = 32 + 4 * h + k
                if h == 0:
                    e(f"v_lshlrev_b32 v{16+2*k}, 16, v{r}"); e(f"v_and_b32 v{17+2*k}, s50, v{r}")
                else:
                    e(f"v_lshlrev_b32 v{24+2*k}, 16, v{r}"); e(f"v_and_b32 v{25+2*k}, s50, v{r}")
                    e(f"v_pk_add_f32 {v(16+2*k,2)}, {v(16+2*k,2)}, {v(24+2*k,2)}")
        for k in range(4): e(f"v_cvt_pk_bf16_f32 v{24+k}, v{16+2*k}, v{17+2*k}")
        e("buffer_store_dwordx2 v[24:25], v8, s[52:55], s49 offen")
        e(f"s_add_u32 s49, s49, {16*1792}")
        e("buffer_store_dwordx2 v[26:27], v8, s[52:55], s49 offen")

    def maxpart(self, m, b, part, first):
        e = self.e
        if part == 0:
            if first:
                e(f"v_max3_f32 {v(m)}, {v(b)}, {v(b+1)}, {v(b+1)}")
            else:
                e(f"v_max3_f32 {v(m)}, {v(m)}, {v(b)}, {v(b+1)}")
            e(f"v_max3_f32 {v(m)}, {v(m)}, {v(b+2)}, {v(b+3)}"); e(f"v_max3_f32 {v(m)}, {v(m)}, {v(b+4)}, {v(b+5)}")
        elif part == 1:
            for k in (6, 8, 10): e(f"v_max3_f32 {v(m)}, {v(m)}, {v(b+k)}, {v(b+k+1)}")
        else:
            for k in (12, 14): e(f"v_max3_f32 {v(m)}, {v(m)}, {v(b+k)}, {v(b+k+1)}")

    def max8(self, m, b, first):
        e = self.e
        if first: e(f"v_max_f32 {v(m)}, {v(b)}, {v(b+1)}")
        else: e(f"v_max3_f32 {v(m)}, {v(m)}, {v(b)}, {v(b+1)}")
        for k in (2, 4, 6): e(f"v_max3_f32 {v(m)}, {v(m)}, {v(b+k)}, {v(b+k+1)}")

    def sums16(self, T, S16):
        e = self.e
        for q6 in range(6):
            r = S16(T, q6)
            e(f"v_pk_add_f32 {v(r,2)}, {v(r,2)}, {v(r+4,2)}"); e(f"v_pk_add_f32 {v(r+2,2)}, {v(r+2,2)}, {v(r+6,2)}")
        for q6 in range(6):
            r = S16(T, q6)
            e(f"v_pk_add_f32 {v(r,2)}, {v(r,2)}, {v(r+2,2)}")
        for q6 in range(6 if T else 0):
            e(f"v_pk_add_f32 {v(S16(0,q6),2)}, {v(S16(0,q6),2)}, {v(S16(T,q6),2)}")

    def sumw16(self, S16):
        e = self.e
        for q6 in range(6):
            r = S16(0, q6)
            e(f"v_add_f32 {v(r)}, {v(r)}, {v(r+1)}")
            e(f"ds_write_b32 v12, {v(r)} offset:{q6*1024}")

    def sums(self, T, SACC, SUM):
        e = self.e
        for qt in range(3):
            r = SACC(T, qt)
            for k in range(0, 8, 2): e(f"v_pk_add_f32 {v(r+k,2)}, {v(r+k,2)}, {v(r+8+k,2)}")
            for k in range(0, 4, 2): e(f"v_pk_add_f32 {v(r+k,2)}, {v(r+k,2)}, {v(r+4+k,2)}")
            e(f"v_pk_add_f32 {v(r,2)}, {v(r,2)}, {v(r+2,2)}")
            if T == 0: e(f"v_add_f32 {v(SUM+qt)}, {v(r)}, {v(r+1)}")
            else:
                e(f"v_add_f32 {v(r)}, {v(r)}, {v(r+1)}"); e(f"v_add_f32 {v(SUM+qt)}, {v(SUM+qt)}, {v(r)}")

    def store_cb(self, cb):
        e = self.e
        wp = self.pol(self.a.wpol)
        for qt in range(3):
            a0, a1 = self.ACC(cb, 2 * qt), self.ACC(cb, 2 * qt + 1)
            tt = a0
            if self.a.fused == 6:
                wp = self.pol(self.a.xpol)
                if cb == 5:
                    tt = self.ACC(3, 2 * qt)
                    if qt == 0:
                        e(f"s_cmp_eq_u32 {s(S_PP)}, 3"); e(f"s_cselect_b32 {s(S_ST)}, {s(S_ST)}, 0x100000")
            if self.a.defer:
                assert self.a.fused in (0, 1, 3, 7)
                for k in range(4): e(f"v_mul_f32 {v(a0+k)}, {v(8+2*qt)}, {v(a0+k)}")
                for k in range(4): e(f"v_mul_f32 {v(a1+k)}, {v(9+2*qt)}, {v(a1+k)}")
            e(f"v_cvt_pk_bf16_f32 {v(tt)}, {v(a0)}, {v(a0+1)}"); e(f"v_cvt_pk_bf16_f32 {v(tt+1)}, {v(a0+2)}, {v(a0+3)}")
            e(f"v_cvt_pk_bf16_f32 {v(tt+2)}, {v(a1)}, {v(a1+1)}"); e(f"v_cvt_pk_bf16_f32 {v(tt+3)}, {v(a1+2)}, {v(a1+3)}")
            if self.a.fused == 4:
                e(f"buffer_store_dwordx4 {v(tt,4)}, v7, {s(S_R2,4)}, {s(S_ST)} offen offset:{qt*1024}{wp}", tag=("sp", 3 * cb + qt))
                if qt == 2:
                    e(f"s_add_u32 {s(S_ST)}, {s(S_ST)}, 3072"); e("s_nop 0"); e("s_nop 0")
                    return
                continue
            if self.a.stconst:
                for k in range(4): e(f"v_mov_b32 {v(tt+k)}, 0")
            if self.a.own:
                lab = f"L_ow{cb}_{qt}"
                e("#BEGIN")
                e(f"s_sub_u32 {s(S_TMP)}, {s(S_ST)}, s94"); e(f"s_cmp_lt_u32 {s(S_TMP)}, s95"); e(f"s_cbranch_scc1 {lab}")
                e(f"buffer_store_dwordx4 {v(tt,4)}, v7, {s(S_R2,4)}, {s(S_ST)} offen{wp}", tag=("st", cb))
                e(f"#LABEL {lab}_r")
                e("#END")
                self.own_blocks.append((lab, tt))
            else:
                e(f"buffer_store_dwordx4 {v(tt,4)}, v7, {s(S_R2,4)}, {s(S_ST)} offen{wp}", tag=("st", cb))
            if qt < 2: e(f"s_add_u32 {s(S_ST)}, {s(S_ST)}, 4096")
        if self.a.fused == 6:
            e(f"s_add_u32 {s(S_ST)}, {s(S_ST)}, {4096 + 3*12288 - XQ & 0xffffffff}"); e(f"s_cselect_b32 {s(S_TMP)}, 0, {XQ}"); e(f"s_add_u32 {s(S_ST)}, {s(S_ST)}, {s(S_TMP)}")
            return
        e(f"s_add_u32 {s(S_ST)}, {s(S_ST)}, 4096"); e(f"s_cmp_eq_u32 {s(S_ST)}, 86016"); e(f"s_cselect_b32 {s(S_ST)}, 0, {s(S_ST)}")

    def kernel1(self):
        e = self.e
        self.oage = {}; self.sinfo = {}; self.parked = set(); self.nsig = 0; self.own_blocks = []
        self.build_plan()
        e.label(NAME + "_kernel")
        self.prologue()
        snap = e.snapshot(); nst = self.nst
        self.role_A()
        e.restore(snap); self.nst = nst
        e.label("L_roleB")
        self.role_B()
        e.label("L_end1"); e("s_endpgm")
        for lab, tt in self.own_blocks:
            e.label(lab)
            e.raw(f"    v_add_u32 v4, {s(S_TMP)}, v6")
            e.raw(f"    v_add_u32 v4, {self.own_lds}, v4")
            e.raw(f"    ds_write_b128 v4, {v(tt,4)}")
            e.raw(f"    s_waitcnt lgkmcnt(0)")
            e.raw(f"    s_branch {lab}_r")

from gen1 import desc

def reducer2(a):
    per, thr = a.rper, a.rthr
    nwg = 16 * 5376 // per
    assert 5376 % per == 0
    wpg = 5376 // per
    e = Emitter()
    e.label("reduce_kernel")
    e(f"s_cmp_ge_u32 s2, {nwg}"); e("s_cbranch_scc1 L_end2")
    e("s_load_dwordx2 s[4:5], s[0:1], 96")
    e("s_load_dwordx2 s[8:9], s[0:1], 80")
    if a.stamps: e("s_memrealtime s[24:25]")
    e(f"s_mul_hi_u32 s12, s2, {-(-(1<<32)//wpg)}")
    e(f"s_mul_i32 s13, s12, {wpg}"); e("s_sub_u32 s13, s2, s13"); e(f"s_mul_i32 s13, s13, {per}")
    e("v_add_u32 v2, s13, v0")
    e("v_lshlrev_b32 v3, 4, v2")
    if per != thr:
        e("v_mov_b32 v4, 0x200000"); e(f"v_cmp_gt_u32 vcc, {per}, v0"); e("v_cndmask_b32 v3, v4, v3, vcc")
    e(f"s_mul_i32 s16, s12, {16*86016}")
    e(f"s_mov_b32 s6, {16*86016}"); e("s_mov_b32 s7, 0x20000"); e(f"s_mov_b32 s10, {8*96*1792}"); e("s_mov_b32 s11, 0x20000")
    e("s_mov_b32 s18, 0")
    e.wait(lgkm=0)
    if a.stamps: e("s_mov_b64 s[28:29], s[4:5]")
    e("s_add_u32 s4, s4, s16"); e("s_addc_u32 s5, s5, 0")
    rp = (" " + a.rpol) if a.rpol else ""
    for h in range(16):
        e(f"buffer_load_dwordx4 {v(32+4*h,4)}, v3, s[4:7], s18 offen{rp}")
        if h < 15: e("s_add_u32 s18, s18, 86016")
    e("v_lshrrev_b32 v5, 8, v2"); e("v_mul_u32_u24 v6, 43, v5"); e("v_lshrrev_b32 v6, 7, v6")
    e("v_mul_u32_u24 v7, 3, v6"); e("v_sub_u32 v7, v5, v7")
    e("v_and_b32 v8, 15, v2"); e("v_lshl_add_u32 v8, v7, 5, v8"); e("v_mul_u32_u24 v8, 1792, v8")
    e("v_lshl_add_u32 v8, v6, 7, v8"); e("v_bfe_u32 v9, v2, 4, 4"); e("v_lshl_add_u32 v8, v9, 3, v8")
    if per != thr: e("v_cndmask_b32 v8, v4, v8, vcc")
    e("s_and_b32 s19, s12, 7"); e("s_lshr_b32 s20, s12, 3")
    e(f"s_mul_i32 s19, s19, {96*1792}"); e("s_mul_i32 s20, s20, 896"); e("s_add_u32 s19, s19, s20")
    e("s_mov_b32 s22, 0xffff0000")
    for h in range(16):
        for k in range(4):
            r = 32 + 4 * h + k
            if h == 0:
                e(f"v_lshlrev_b32 v{16+2*k}, 16, v{r}"); e(f"v_and_b32 v{17+2*k}, s22, v{r}")
            else:
                e(f"v_lshlrev_b32 v{24+2*k}, 16, v{r}"); e(f"v_and_b32 v{25+2*k}, s22, v{r}")
                e(f"v_pk_add_f32 {v(16+2*k,2)}, {v(16+2*k,2)}, {v(24+2*k,2)}")
    for k in range(4): e(f"v_cvt_pk_bf16_f32 v{24+k}, v{16+2*k}, v{17+2*k}")
    op = (" " + a.opol) if a.opol else ""
    e(f"buffer_store_dwordx2 v[24:25], v8, s[8:11], s19 offen{op}")
    e(f"s_add_u32 s19, s19, {16*1792}")
    e(f"buffer_store_dwordx2 v[26:27], v8, s[8:11], s19 offen{op}")
    if a.stamps:
        e.force_wait("vmcnt(0)")
        e("s_memrealtime s[26:27]"); e.force_wait("lgkmcnt(0)")
        e(f"s_add_u32 s28, s28, {STAMP_OFF + 65536}"); e("s_addc_u32 s29, s29, 0"); e("s_lshl_b32 s13, s2, 4"); e("s_add_u32 s28, s28, s13"); e("s_addc_u32 s29, s29, 0")
        e("v_mov_b32 v10, 0"); e("v_mov_b32 v12, s24"); e("v_mov_b32 v13, s25"); e("v_mov_b32 v14, s26"); e("v_mov_b32 v15, s27")
        e("global_store_dwordx4 v10, v[12:15], s[28:29]")
    e.label("L_end2"); e("s_endpgm")
    return e, nwg

ilist = lambda x: [int(t) for t in x.split(",") if t]

def main(argv=None):
    ap = argparse.ArgumentParser()
    ap.add_argument("-o", default="k3.s")
    ap.add_argument("--stamps", type=int, default=0)
    ap.add_argument("--stamp_ticks", type=ilist, default=[])
    ap.add_argument("--clk", type=int, default=0)
    ap.add_argument("--rot", type=int, default=1)
    ap.add_argument("--nkd", type=int, default=4)
    ap.add_argument("--la", type=float, default=6)
    ap.add_argument("--k0", type=int, default=1)
    ap.add_argument("--kticks", type=ilist, default=[4, 6, 7])
    ap.add_argument("--wrate", type=float, default=2.0)
    ap.add_argument("--alt1", type=int, default=0)
    ap.add_argument("--alt2", type=int, default=0)
    ap.add_argument("--opf", type=int, default=-1)
    ap.add_argument("--thr", type=int, default=-1)
    ap.add_argument("--remap", type=int, default=0)
    ap.add_argument("--diag", type=int, default=0)
    ap.add_argument("--st1", type=int, default=4)
    ap.add_argument("--lsleep", type=int, default=0)
    ap.add_argument("--own", type=int, default=0)
    ap.add_argument("--pace", type=int, default=0)
    ap.add_argument("--stag", type=int, default=0)
    ap.add_argument("--stagbit", type=int, default=2)
    ap.add_argument("--qhalf", type=int, default=0)
    ap.add_argument("--paceA", type=int, default=0)
    ap.add_argument("--op2hack", type=int, default=0)
    ap.add_argument("--aord", type=int, default=0)
    ap.add_argument("--s16", type=int, default=0)
    ap.add_argument("--nd", type=int, default=0)
    ap.add_argument("--paceO", type=int, default=0)
    ap.add_argument("--paceV", type=int, default=0)
    ap.add_argument("--opr", type=float, default=0)
    ap.add_argument("--paceF", type=int, default=0)
    ap.add_argument("--stconst", type=int, default=0)
    ap.add_argument("--p2", default="")
    ap.add_argument("--bgap", type=int, default=1)
    ap.add_argument("--wv", type=int, default=1)
    ap.add_argument("--lag", type=int, default=2)
    ap.add_argument("--qdrain", type=ilist, default=[0, 3])
    ap.add_argument("--odrain", type=ilist, default=[0])
    ap.add_argument("--kpre", type=int, default=2)
    ap.add_argument("--blag", type=int, default=1)
    ap.add_argument("--kmax", type=int, default=2)
    ap.add_argument("--kmax_from", type=int, default=99)
    ap.add_argument("--klag", type=int, default=2)
    ap.add_argument("--kburn", type=int, default=1)
    ap.add_argument("--kkeep", type=int, default=1)
    ap.add_argument("--vtr0", type=int, default=2)
    ap.add_argument("--vtr1", type=int, default=3)
    ap.add_argument("--lv0", type=int, default=10)
    ap.add_argument("--vmax0", type=int, default=3)
    ap.add_argument("--prio", type=int, default=0)
    ap.add_argument("--vend", type=int, default=2)
    ap.add_argument("--vdrain", type=int, default=1)
    ap.add_argument("--opn_end", type=int, default=2)
    ap.add_argument("--park", type=int, default=0)
    ap.add_argument("--parkfast", type=int, default=1)
    ap.add_argument("--oearly", type=int, default=0)
    ap.add_argument("--oe_from", type=int, default=16)
    ap.add_argument("--oe_rate", type=int, default=2)
    ap.add_argument("--lv", type=int, default=6)
    ap.add_argument("--lc", type=int, default=9)
    ap.add_argument("--vcmax", type=int, default=3)
    ap.add_argument("--vmax", type=int, default=2)
    ap.add_argument("--lo", type=int, default=9)
    ap.add_argument("--omax", type=int, default=3)
    ap.add_argument("--ostart", type=int, default=4)
    ap.add_argument("--olag", type=int, default=2)
    ap.add_argument("--opn", type=int, default=2)
    ap.add_argument("--vres", type=int, default=0)
    ap.add_argument("--a_first", type=int, default=1)
    ap.add_argument("--b_first", type=int, default=1)
    ap.add_argument("--b_smx_issue", type=int, default=0)
    ap.add_argument("--defer", type=int, default=0)
    ap.add_argument("--pkfma", type=int, default=0)
    ap.add_argument("--kvpol", default="nt")
    ap.add_argument("--spol", default="")
    ap.add_argument("--wpol", default="sc1")
    ap.add_argument("--rpol", default="")
    ap.add_argument("--opol", default="")
    ap.add_argument("--rper", type=int, default=336)
    ap.add_argument("--rthr", type=int, default=384)
    ap.add_argument("--rlds", type=int, default=0)
    ap.add_argument("--fused", type=int, default=0)
    ap.add_argument("--xpol", default="")
    ap.add_argument("--xlpol", default="sc1")
    ap.add_argument("--yslot", type=int, default=0)
    ap.add_argument("--junk", type=int, default=0)
    ap.add_argument("--junkn", type=int, default=8)
    ap.add_argument("--forceslow", type=int, default=0)
    ap.add_argument("--sig_lag", type=int, default=4)
    ap.add_argument("--flag_lag", type=int, default=1)
    ap.add_argument("--astamp", type=int, default=8)
    ap.add_argument("--psleep", type=int, default=0)
    ap.add_argument("--frpol", default="sc1")
    ap.add_argument("--s16hack", type=int, default=0)
    ap.add_argument("--codepf", type=int, default=0)
    ap.add_argument("--skip", default="")
    ap.add_argument("--padto", type=int, default=0)
    ap.add_argument("--padglob", type=int, default=0)
    ap.add_argument("--verbose", action="store_true")
    a = ap.parse_args(argv)
    g = Gen(a); g.kernel1()
    out = HEADER
    if a.fused:
        out += "; @launch grid=(256,1,1) block=(512,1,1) lds=163840\n"
    else:
        out += f"; @launch kernel={NAME}_kernel grid=(256,1,1) block=(512,1,1) lds=163840\n"
        re_, nwg = reducer2(a)
        out += f"; @launch kernel=reduce_kernel grid=({nwg},1,1) block=({a.rthr},1,1) lds={a.rlds}\n"
    out += '.amdgcn_target "amdgcn-amd-amdhsa--gfx950"\n.text\n'
    out += f".globl {NAME}_kernel\n.p2align 8\n.type {NAME}_kernel,@function\n" + g.e.text()
    if not a.fused:
        out += ".globl reduce_kernel\n.p2align 8\n.type reduce_kernel,@function\n" + re_.text()
    if a.codepf: out += f".fill (49152 - (. - {NAME}_kernel)) / 4, 4, 0xbf810000\n"
    out += '.section .rodata,"a"\n.p2align 6\n' + desc(NAME + "_kernel", 256)
    if not a.fused: out += ".p2align 6\n" + desc("reduce_kernel", 96, 32)
    open(a.o, "w").write(out)
    print(f"{a.o}: k1 insts {g.e.ninst} (nops {g.e.nops}), ticks {len(g.plan)}, stamps {g.nst}", file=sys.stderr)

if __name__ == "__main__":
    main()
```

```python
import sys, argparse
from emit import Emitter

NAME = "concat_heads__mha_block_cached__mha_block_cached__near_ridge"
STAMP_OFF = 200 << 20
SLOT = 8192
STAT = 19 * SLOT
HEADER = open("cdna_kernels/" + NAME + ".s.ref").read().split("; Override launch")[0]

def v(a, n=1): return f"v{a}" if n == 1 else f"v[{a}:{a+n-1}]"
def s(a, n=1): return f"s{a}" if n == 1 else f"s[{a}:{a+n-1}]"

T0, T1 = 14, 15
S_R0, S_R1, S_R2 = 4, 8, 12
S_W, S_M0B, S_SO, S_TMP, S_C = 16, 17, 18, 19, 20
S_BLK, S_H, S_B, S_PP, S_U = 21, 22, 23, 24, 25
S_R7, S_R4, S_RB = 26, 27, 28
S_A0, S_A1, S_A2, S_A3, S_ST = 29, 30, 31, 32, 33
FLAG_OFF = 32 << 20
XQ = 7 * 4 * 12288
CSTR = 4352
QBUF = [0, 12288]
PBUF = [0, 24576]
OBUF = [0, 0]

class Gen:
    def __init__(self, a):
        self.a = a
        self.e = Emitter()
        D = dict(mfma=("v_mfma",), m32=("v_mfma_f32_32",), m16=("v_mfma_f32_16",), ds=("ds_",), valu=("v_exp", "v_fma_f32", "v_max", "v_cvt_pk", "v_pk_", "v_mul_f32", "v_add_f32", "v_rcp"), store=("buffer_store",), dma=("buffer_load",))
        self.e.drop = tuple(x for k in a.skip.split(",") if k for x in D[k])
        self.nst = 0

    def stamp(self, wait=True):
        if self.a.stamps:
            i = self.nst; self.nst += 1
            assert i < 16 or self.a.clk == 2
            if self.a.clk == 2:
                if i >= 15: self.nst -= 1; return
                self.e(f"s_memrealtime {s(64+2*i,2)}"); self.e(f"s_memtime {s(66+2*i,2)}"); self.nst += 1
            else:
                self.e(f"{'s_memtime' if self.a.clk else 's_memrealtime'} {s(64+2*i,2)}")
            if wait: self.e.force_wait("lgkmcnt(0)")

    def obuf(self, c): return 12288 if (self.a.nd and c % 2 == 1) else 0

    def pol(self, p): return (" " + p) if p else ""

    def issue(self, item, slot):
        e = self.e; a = self.a
        ty = item[0]
        sh, kv = self.pol(a.spol), self.pol(a.kvpol)
        if ty == "X":
            n = item[1]
            for j in range(3):
                e(f"s_add_u32 m0, {s(S_M0B)}, {(n%4)*12288 + j*4096}")
                e(f"s_add_u32 {s(S_SO)}, {s(S_A0)}, {j*32*896}")
                e(f"buffer_load_dwordx4 v1, {s(S_R0,4)}, {s(S_SO)} offen{sh} lds", tag=item)
            e(f"s_add_u32 {s(S_A0)}, {s(S_A0)}, 128"); e(f"s_cmp_eq_u32 {s(S_A0)}, 896"); e(f"s_cselect_b32 {s(S_A0)}, 0, {s(S_A0)}")
        elif ty == "W":
            c, n = divmod(item[1], 7)
            e(f"s_add_u32 m0, {s(S_M0B)}, {slot*SLOT}")
            e(f"s_add_u32 {s(S_SO)}, {s(S_A1)}, {s(S_A2)}")
            e(f"buffer_load_dwordx4 v2, {s(S_R1,4)}, {s(S_SO)} offen{sh} lds", tag=item)
            e(f"s_add_u32 m0, {s(S_M0B)}, {slot*SLOT+4096}")
            e(f"s_add_u32 {s(S_SO)}, {s(S_SO)}, {32*8192}")
            e(f"buffer_load_dwordx4 v2, {s(S_R1,4)}, {s(S_SO)} offen{sh} lds", tag=item)
            e(f"s_add_u32 {s(S_A1)}, {s(S_A1)}, {64*8192}"); e(f"s_cmp_eq_u32 {s(S_A1)}, {7*64*8192}"); e(f"s_cselect_b32 {s(S_A1)}, 0, {s(S_A1)}")
            if n == 6:
                e(f"s_add_u32 {s(S_A2)}, {s(S_A2)}, 128"); e(f"s_and_b32 {s(S_A2)}, {s(S_A2)}, 511")
        elif ty == "V":
            c, i = divmod(item[1], 8)
            if item[1] == 0: self.setup_dv()
            for j in range(2):
                e(f"s_add_u32 m0, {s(S_M0B)}, {slot*SLOT + j*4096}")
                e(f"s_add_u32 {s(S_SO)}, {s(S_A3)}, {(i*64+j*32)*512}")
                e(f"buffer_load_dwordx4 v1, {s(S_R2,4)}, {s(S_SO)} offen{kv} lds", tag=item)
            if i == 7:
                e(f"s_add_u32 {s(S_A3)}, {s(S_A3)}, 128"); e(f"s_and_b32 {s(S_A3)}, {s(S_A3)}, 511")
        elif ty == "K":
            c, T = divmod(item[1], 4)
            for p in range(4):
                e(f"s_add_u32 m0, {s(S_A3)}, {slot*SLOT + p*1024}")
                e(f"s_add_u32 {s(S_SO)}, {s(S_A0)}, {(128*T+8*p)*512}")
                e(f"buffer_load_dwordx4 v{1+(p&1)}, {s(S_R0,4)}, {s(S_SO)} offen{kv} lds", tag=item)
            if T == 3:
                e(f"s_add_u32 {s(S_A0)}, {s(S_A0)}, 128"); e(f"s_and_b32 {s(S_A0)}, {s(S_A0)}, 511")
        elif ty == "O":
            c, n = divmod(item[1], 7)
            e(f"s_add_u32 m0, {s(S_M0B)}, {slot*SLOT}")
            e(f"s_add_u32 {s(S_SO)}, {s(S_A1)}, {s(S_A2)}")
            e(f"buffer_load_dwordx4 v3, {s(S_R1,4)}, {s(S_SO)} offen{sh} lds", tag=item)
            e(f"s_add_u32 m0, {s(S_M0B)}, {slot*SLOT+4096}")
            e(f"s_add_u32 {s(S_SO)}, {s(S_SO)}, {32*896}")
            e(f"buffer_load_dwordx4 v3, {s(S_R1,4)}, {s(S_SO)} offen{sh} lds", tag=item)
            e(f"s_add_u32 {s(S_A2)}, {s(S_A2)}, 128"); e(f"s_cmp_eq_u32 {s(S_A2)}, 896"); e(f"s_cselect_b32 {s(S_A2)}, 0, {s(S_A2)}")
            if n == 6:
                e(f"s_add_u32 {s(S_A1)}, {s(S_A1)}, 57344"); e(f"s_cmp_eq_u32 {s(S_A1)}, {4*57344}"); e(f"s_cselect_b32 {s(S_A1)}, 0, {s(S_A1)}")

    def issue_parts(self, item, slot):
        class Rec:
            def __init__(s2): s2.l = []
            def __call__(s2, t, tag=None): s2.l.append((t, tag))
        real = self.e; rec = Rec(); self.e = rec
        self.issue(item, slot)
        self.e = real
        parts = []; cur = []
        for t, tag in rec.l:
            cur.append((t, tag))
            if t.startswith("buffer_load"): parts.append(cur); cur = []
        parts[-1] += cur
        return [(lambda p=p: [real(t, tag=tag) for t, tag in p]) for p in parts]

    def store_parts(self, cb):
        class Rec:
            def __init__(s2): s2.l = []
            def __call__(s2, t, tag=None): s2.l.append((t, tag))
        real = self.e; rec = Rec(); self.e = rec
        self.store_cb(cb)
        self.e = real
        L = rec.l
        parts = []; grp = None
        for x in L[:-3]:
            if x[0] == "#BEGIN": grp = []
            elif x[0] == "#END": parts.append(grp); grp = None
            elif grp is not None: grp.append(x)
            else: parts.append([x])
        parts[-1] += L[-3:]
        def run(p):
            for t, tag in p:
                if t.startswith("#LABEL"): real.label(t.split()[1])
                else: real(t, tag=tag)
        return [(lambda p=p: run(p)) for p in parts]

    def setup_dv(self):
        e = self.e
        e(f"v_bfe_u32 v46, v0, 4, 2"); e("v_lshlrev_b32 v46, 1, v46"); e("v_and_b32 v47, 7, v0"); e("v_xor_b32 v46, v46, v47"); e("v_lshlrev_b32 v46, 4, v46")
        e("v_lshrrev_b32 v1, 3, v0"); e("v_lshl_add_u32 v1, v1, 9, v46")

    def build_plan(self):
        a = self.a
        nkd = a.nkd
        kslots = [19 - 2 * (i + 1) for i in range(nkd)]
        self.KBASE = min(kslots)
        free = list(range(6, self.KBASE)) + [19]
        WONLY = {3, 4, 5, 19}
        kfree = sorted(kslots)
        plan = []
        slot = {}
        def newtick(bar=True):
            P = dict(bar=bar, A=dict(need=None, issue=[], act=[]), B=dict(need=None, issue=[], act=[])); plan.append(P); return P
        pend = []
        astr = []
        for n in range(7): astr += [("X", n), ("W", n)]
        astr += [("W", i) for i in range(7, 28)]
        ia = 0; ca = 0; xdone = 0
        ik = 0; ck = 0
        def cost(it): return 1.5 if it[0] == "X" else 1.0
        def issueA(P, la):
            nonlocal ia
            while ia < len(astr) and sum(cost(x) for x in astr[ca:ia + 1]) <= la:
                it = astr[ia]
                if it[0] == "X":
                    if it[1] - 4 >= xdone: break
                    P["A"]["issue"].append((it, None))
                else:
                    if not free: break
                    slot[it] = free.pop(0); P["A"]["issue"].append((it, slot[it]))
                ia += 1
        def issueK(P, n):
            nonlocal ik
            while n > 0 and ik < 16 and kfree:
                slot[("K", ik)] = kfree.pop(0); P["B"]["issue"].append((("K", ik), slot[("K", ik)])); ik += 1; n -= 1
        P = newtick(False); issueA(P, a.la); issueK(P, a.k0)
        P["A"]["act"].append(("init",)); P["B"]["act"].append(("init",))
        qwritten = -1; qready = -1; xread = 0
        tick = 0
        wacc = 0.0
        kage = {i: 0 for i in range(ik)}
        iv = 0
        def issueV(P, n):
            nonlocal iv
            while n > 0 and iv < 32 and [x for x in free if x not in WONLY]:
                slot[("V", iv)] = [x for x in free if x not in WONLY][0]; free.remove(slot[("V", iv)]); P["A"]["issue"].append((("V", iv), slot[("V", iv)])); iv += 1; n -= 1
        ckprev = 0; vinit = False; qdefer = None; io = 0; npark = 0; parked_free = []
        while ck < 16:
            tick += 1
            P = newtick()
            free += pend; pend = []; free.sort(); xdone = xread; qready = qwritten; ckprev = ck
            kfree += parked_free; parked_free = []
            if qdefer is not None:
                qwritten = qdefer; qdefer = None; P["A"]["act"].append(("flushw",))
            if ca < 14: n = 2
            else:
                wacc += a.wrate; n = int(wacc + 1e-9); wacc -= n
            took = []
            while n > 0 and ca < min(ia, len(astr)):
                it = astr[ca]
                if it[0] == "W" and it[1] % 7 == 6 and it[1] // 7 >= 2 and ckprev < 4 * (it[1] // 7 - 1):
                    break
                took.append(it); ca += 1; n -= 1
                if it[0] == "X":
                    P["A"]["act"].append(("X", it[1])); xread = it[1] + 1
                    if it[1] == 6: pend += [3, 4, 5]
                else:
                    P["A"]["act"].append(("W", it[1], slot[it])); pend.append(slot[it])
                    if it[1] % 7 == 6:
                        cq = it[1] // 7
                        if a.lag == 0 or cq in a.qdrain:
                            P["A"]["act"].append(("drain",)); qwritten = cq; break
                        else: qdefer = cq
            if qdefer is not None and took[-1] != ("W", 7 * qdefer + 6):
                qwritten = qdefer; qdefer = None; P["A"]["act"].append(("flushw",))
            if took: P["A"]["need"] = took[-1]
            if not a.alt1 or tick < 8 or tick % 2 == 1: issueA(P, a.la)
            if qready == 3 and not vinit:
                P["A"]["act"].append(("initv",)); vinit = True
            if qready < 0 and npark < a.park and npark < ik and tick - kage[npark] >= 2:
                P["B"]["act"].append(("Kpark", npark)); parked_free.append(slot[("K", npark)]); self.parked.add(npark); npark += 1
            if qwritten == 0 and qready < 0 and 0 not in self.parked: P["B"]["act"].append(("Kpre", 0))
            issued = False
            n = a.kmax if (ca == len(astr) and not took) or tick >= a.kmax_from else 1
            last = ik == 16 and qready == 3 and 16 - ck <= a.kburn
            while ck < ik and ck // 4 <= qready and (last or (n > 0 and tick - kage[ck] >= a.klag)):
                sl = slot[("K", ck)]
                P["B"]["act"].append(("S", ck, sl)); self.sinfo[ck] = (tick, qready); ck += 1; n -= 1
                if ck - 1 in self.parked:
                    n += a.parkfast if len([x for x in P["B"]["act"] if x[0] == "S"]) < 2 else 0
                    continue
                if a.alt1 and ia < len(astr):
                    if tick % 2 == 0 and ik < 16 and (kfree or tick == 8):
                        if kfree:
                            k2_ = kfree.pop(0); slot[("K", ik)] = k2_; P["B"]["issue"].append((("K", ik), k2_)); kage[ik] = tick; ik += 1
                        if ik < 16:
                            slot[("K", ik)] = sl; P["B"]["act"].append(("issue", ("K", ik), sl)); kage[ik] = tick; ik += 1
                        else: kfree.append(sl)
                    else: kfree.append(sl)
                    issued = True
                elif ik < 16 and not issued and not kfree:
                    slot[("K", ik)] = sl; P["B"]["act"].append(("issue", ("K", ik), sl)); kage[ik] = tick; ik += 1; issued = True
                else:
                    kfree.append(sl)
            if not issued and ik < 16 and (tick in a.kticks or tick >= 8):
                cand = [x for x in kfree if not any(ac[0] == "S" and ac[2] == x and ac[1] not in self.parked for ac in P["B"]["act"])]
                if cand:
                    kfree.remove(cand[0]); slot[("K", ik)] = cand[0]; P["B"]["issue"].append((("K", ik), cand[0])); kage[ik] = tick; ik += 1
            while tick >= 8 and len(kfree) > min(16 - ik, a.kkeep):
                k = kfree.pop(0); pend += [k, k + 1]
            if ia == len(astr) and tick >= a.oe_from:
                n = a.oe_rate
                while n > 0 and io < a.oearly and [x for x in free if x not in WONLY]:
                    sl = [x for x in free if x not in WONLY][-1]; free.remove(sl)
                    slot[("O", io)] = sl; P["B"]["issue"].append((("O", io), sl)); self.oage[("O", io)] = -9; io += 1; n -= 1
            if ik == 16 and kage[15] < tick and ia == len(astr):
                issueV(P, a.vtr0 if last else 2)
            assert tick < 100
        assert vinit
        self.kage = kage; self.kslot = {i: slot[("K", i)] for i in range(16)}
        P["B"]["act"].append(("maxw",))
        P = newtick()
        free += pend; pend = []; free.sort()
        assert not kfree and all(x in free for x in WONLY)
        for x in sorted(WONLY): free.remove(x)
        WONLY.clear()
        P["B"]["act"] += [("maxr",), ("smx", 0)]
        issueV(P, a.vtr1)
        ostr = [("O", i) for i in range(28)]
        co = 0; cv = 0
        pw = 0
        oready = oloaded = owritten = -1
        odefer = None; oacc = 0.0
        t2 = 0
        if a.p2:
            spec = [tuple(int(x) for x in t.split(",")) for t in a.p2.split("/")]
            for (vi, vc, oi, oc) in spec:
                t2 += 1
                P = newtick()
                free += pend; pend = []; free.sort(); oready = owritten
                if odefer is not None:
                    owritten = odefer; odefer = None; P["A"]["act"].append(("flushw",))
                if t2 <= 4:
                    P["A"]["act"].append(("pread", t2 - 1))
                    if t2 <= 3: P["B"]["act"].append(("smx", t2))
                    if t2 == 4: P["B"]["act"].append(("inito",)); pend += [3, 4, 5] if a.nd else [2, 3, 4, 5]
                if t2 == 5: pend += [19]
                for k in range(vc):
                    assert cv < iv, f"t2={t2}: V{cv} not issued"
                    assert not ((cv + 1) % 8 == 0 and oloaded < (cv + 1) // 8 - (3 if a.nd else 2)), f"t2={t2}: O buffer busy"
                    P["A"]["act"].append(("V", cv, slot[("V", cv)])); pend.append(slot[("V", cv)]); P["A"]["need"] = ("V", cv); cv += 1
                    if cv % 8 == 0:
                        if k + 1 < vc: P["A"]["act"].append(("flushw",)); owritten = cv // 8 - 1
                        elif cv == 32 or (cv // 8 - 1) in a.odrain: P["A"]["act"].append(("drain",)); owritten = cv // 8 - 1
                        else: odefer = cv // 8 - 1
                if oloaded < oready and co == 7 * (oloaded + 1):
                    oloaded += 1; P["B"]["act"].append(("oread", oloaded))
                for k in range(oc):
                    assert co < io and co < 7 * (oloaded + 1), f"t2={t2}: O{co} not consumable"
                    P["B"]["act"].append(("O", co, slot[("O", co)])); pend.append(slot[("O", co)]); P["B"]["need"] = ("O", co); co += 1
                assert len(free) >= vi + oi, f"t2={t2}: slots {free} < {vi+oi}"
                issueV(P, vi)
                for k in range(oi):
                    slot[("O", io)] = free.pop(); P["B"]["issue"].append((("O", io), slot[("O", io)])); io += 1
                P["burst"] = t2 > 4
            if a.nd: assert cv == 32 and co == 21 - a.nd and io == 28, (cv, co, io)
            else: assert cv == 32 and co == 28 and oloaded == 3, (cv, co, oloaded)
        while cv < 32 or co < 28 or oloaded < 3:
            t2 += 1
            P = newtick()
            free += pend; pend = []; free.sort(); oready = owritten
            if odefer is not None:
                owritten = odefer; odefer = None; P["A"]["act"].append(("flushw",))
            if t2 <= 4:
                P["A"]["act"].append(("pread", t2 - 1))
                if t2 <= 3: P["B"]["act"].append(("smx", t2))
                if t2 == 4: P["B"]["act"].append(("inito",)); pend += [3, 4, 5] if a.nd else [2, 3, 4, 5]
            if t2 == 5: pend += [19]
            if a.nd and oready == 3 and co == 21 - a.nd and io == 28:
                f0 = 7 - a.nd
                seqf = [21 + k for k in range(f0)]
                rest2 = list(range(f0, 7))
                lead = max(0, 4 - f0)
                seqf += [21 + k for k in rest2[:lead]] + [14 + k for k in rest2[:lead]]
                for k in rest2[lead:]: seqf += [21 + k, 14 + k]
                P["B"]["act"].append(("oread", 3))
                for i in seqf: P["B"]["act"].append(("O", i, slot[("O", i)]))
                P["B"]["need"] = ("O", 27)
                break
            if cv < 32:
                if t2 <= 4: nvt = 2
                elif cv >= 32 - a.vend: nvt = 1
                else:
                    nvt = max(2 if iv < 32 or cv + 2 <= 32 - a.vend else 1, min(a.vcmax, iv - a.lc - cv))
                    nvt = min(nvt, 32 - a.vend - cv)
                nvt = min(nvt, iv - cv)
                k = 0
                while k < nvt:
                    if (cv + 1) % 8 == 0 and oloaded < (cv + 1) // 8 - (3 if a.nd else 2): break
                    P["A"]["act"].append(("V", cv, slot[("V", cv)])); pend.append(slot[("V", cv)]); P["A"]["need"] = ("V", cv); cv += 1; k += 1
                    if cv % 8 == 0:
                        if k < nvt and a.lag:
                            P["A"]["act"].append(("flushw",)); owritten = cv // 8 - 1
                        elif a.lag == 0 or cv == 32 or (cv // 8 - 1) in a.odrain:
                            P["A"]["act"].append(("drain",)); owritten = cv // 8 - 1
                        else: odefer = cv // 8 - 1
                if cv >= 32 - a.vend and a.vdrain: P["A"]["act"].append(("drain",))
            if oloaded < oready and co == 7 * (oloaded + 1):
                oloaded += 1; P["B"]["act"].append(("oread", oloaded))
            nop = 7 if oloaded == 3 else (a.opn_end if (cv > 32 - a.vend and cv < 32) else a.opn)
            if a.opr and oloaded >= 0 and cv < 32:
                oacc = min(oacc + a.opr, 2.0); nop = int(oacc + 1e-9); oacc -= nop
            while nop > 0 and co < 7 * (oloaded + 1) and (not a.nd or co < 21 - a.nd) and co < io and (("O", co) in self.oage and t2 - self.oage[("O", co)] >= a.olag or cv >= 32):
                P["B"]["act"].append(("O", co, slot[("O", co)])); pend.append(slot[("O", co)]); P["B"]["need"] = ("O", co); co += 1; nop -= 1
            lv = a.lv0 if t2 <= 4 else a.lv
            if t2 <= 4 or not a.alt2 or t2 % 2 == 0 or io == 28:
                issueV(P, max(0, min(a.vmax0 if t2 <= 4 else a.vmax, cv + lv - iv)))
            if t2 >= a.ostart and (not a.alt2 or t2 % 2 == 1 or iv == 32):
                n = a.omax
                while n > 0 and io < 28 and free and io < co + a.lo and len(free) > (1 if iv < 32 else 0) * a.vres:
                    slot[("O", io)] = free.pop(); P["B"]["issue"].append((("O", io), slot[("O", io)])); self.oage[("O", io)] = t2; io += 1; n -= 1
            assert t2 < 100, "plan stuck"
        self.plan = plan
        busy = {slot[("O", i)] for i in range(21 - a.nd, 28)}
        self.own_lds = [x for x in range(3, 20) if x not in busy][0] * SLOT
        if a.verbose:
            f = lambda L: " ".join(str(x[0]) + (str(x[1]) if len(x) > 1 else "") for x in L)
            g = lambda L: " ".join(f"{x[0][0]}{x[0][1]}@{x[1]}" for x in L)
            for i, P in enumerate(plan):
                print(f"{i:2d} A[need {P['A']['need']} iss {g(P['A']['issue'])} act {f(P['A']['act'])}]  B[need {P['B']['need']} iss {g(P['B']['issue'])} act {f(P['B']['act'])}]", file=sys.stderr)

    def prologue(self):
        e = self.e; a = self.a
        e("s_cmp_ge_u32 s2, 256"); e("s_cbranch_scc1 L_end1")
        e("s_load_dwordx16 s[40:55], s[0:1], 0")
        e("s_load_dwordx4 s[56:59], s[0:1], 64")
        e("s_load_dwordx2 s[60:61], s[0:1], 96")
        self.stamp(wait=False)
        if a.padto: e("s_memrealtime s[96:97]")
        e("s_and_b32 s3, s2, 7"); e("s_lshr_b32 s39, s2, 3")
        if a.remap == 1:
            e("s_and_b32 s38, s39, 3"); e("s_lshl_b32 s38, s38, 3"); e("s_lshr_b32 s39, s39, 2"); e("s_or_b32 s39, s39, s38")
        if a.remap == 2:
            e("s_xor_b32 s39, s39, 8")
        e(f"s_lshr_b32 {s(S_PP)}, s39, 3"); e("s_lshl_b32 s3, s3, 2"); e(f"s_add_u32 s3, s3, {s(S_PP)}")
        e(f"s_lshr_b32 {s(S_BLK)}, s3, 4"); e(f"s_and_b32 {s(S_H)}, s3, 15"); e(f"s_and_b32 {s(S_B)}, s39, 7")
        if a.stag:
            e(f"s_bitcmp1_b32 {s(S_B)}, {a.stagbit}"); e("s_cbranch_scc0 L_nostag")
            for _ in range(a.stag): e("s_sleep 16")
            e.label("L_nostag")
        e(f"v_lshrrev_b32 {v(T0)}, 6, v0")
        e(f"v_readfirstlane_b32 {s(S_W)}, {v(T0)}")
        e("v_and_b32 v0, 255, v0")
        if a.rot:
            e(f"s_lshr_b32 {s(S_RB)}, {s(S_B)}, 2"); e(f"s_and_b32 {s(S_R4)}, {s(S_B)}, 3")
            e(f"s_mul_i32 {s(S_RB)}, {s(S_RB)}, 3")
            e(f"s_lshl_b32 {s(S_R7)}, {s(S_PP)}, 1"); e(f"s_add_u32 {s(S_R7)}, {s(S_R7)}, {s(S_RB)}")
            e(f"s_cmp_ge_u32 {s(S_R7)}, 7"); e(f"s_cselect_b32 {s(S_TMP)}, 7, 0"); e(f"s_sub_u32 {s(S_R7)}, {s(S_R7)}, {s(S_TMP)}")
        else:
            for r in (S_R7, S_R4, S_RB): e(f"s_mov_b32 {s(r)}, 0")
        if a.fused == 6:
            e(f"s_lshl_b32 {s(S_TMP)}, {s(S_PP)}, 1"); e(f"s_add_u32 {s(S_TMP)}, {s(S_TMP)}, 2"); e(f"s_and_b32 {s(S_TMP)}, {s(S_TMP)}, 7")
            e(f"s_add_u32 {s(S_RB)}, {s(S_RB)}, {s(S_TMP)}")
            e(f"s_cmp_ge_u32 {s(S_RB)}, 7"); e(f"s_cselect_b32 {s(S_TMP)}, 7, 0"); e(f"s_sub_u32 {s(S_RB)}, {s(S_RB)}, {s(S_TMP)}")
        e(f"s_and_b32 {s(S_U)}, {s(S_W)}, 3"); e(f"s_lshl_b32 {s(S_M0B)}, {s(S_U)}, 10")
        e(f"s_lshl_b32 s34, {s(S_B)}, 4"); e(f"s_add_u32 s34, s34, {s(S_H)}"); e("s_lshl_b32 s35, s34, 18")
        if a.diag == 2: e("s_xor_b32 s35, s35, 0x40000")
        for S in (S_R0, S_R1, S_R2): e(f"s_mov_b32 {s(S+3)}, 0x20000")
        e(f"s_cmp_ge_u32 {s(S_W)}, 4"); e("s_cbranch_scc1 L_roleB")

    def bar(self, P, R):
        e = self.e
        if P["bar"]:
            need = P[R]["need"]
            if need is not None: e.wait_tag(need, lgkm=0)
            else: e.wait(lgkm=0)
            e.barrier()

    def role_A(self):
        e = self.e; a = self.a
        ACC = 16; LINV = 40; XA = 43; QA = 45
        UB = [4, 48, 56]
        VA0, VA1, OA = 3, 12, 13
        FR = lambda qt, kap: 64 + (kap * 3 + qt) * 4
        e("v_lshrrev_b32 v46, 3, v0"); e("v_and_b32 v47, 7, v0")
        e(f"v_bfe_u32 {v(T0)}, v0, 4, 3"); e(f"v_xor_b32 {v(T0)}, {v(T0)}, v47"); e(f"v_lshlrev_b32 {v(T0)}, 4, {v(T0)}")
        e("v_mul_u32_u24 v1, 896, v46"); e(f"v_add_u32 v1, v1, {v(T0)}")
        e(f"v_bfe_u32 {v(T0)}, v0, 4, 1"); e(f"v_bfe_u32 {v(T1)}, v0, 6, 1"); e(f"v_lshl_add_u32 {v(T0)}, {v(T1)}, 1, {v(T0)}")
        e(f"v_lshlrev_b32 {v(T0)}, 1, {v(T0)}"); e(f"v_xor_b32 {v(T0)}, {v(T0)}, v47"); e(f"v_lshlrev_b32 {v(T0)}, 4, {v(T0)}")
        e(f"v_lshl_add_u32 v2, v46, 13, {v(T0)}")
        e(f"s_lshl_b32 {s(S_A0)}, {s(S_R7)}, 7"); e(f"s_lshl_b32 {s(S_A1)}, {s(S_R7)}, 19"); e(f"s_lshl_b32 {s(S_A2)}, {s(S_R4)}, 7"); e(f"s_mov_b32 {s(S_A3)}, {s(S_A2)}")
        e(f"s_mov_b32 {s(S_R0+2)}, 86016"); e(f"s_mov_b32 {s(S_R1+2)}, {447*8192+512}"); e(f"s_mov_b32 {s(S_R2+2)}, 262144")
        e(f"s_mul_i32 s36, {s(S_B)}, 86016"); e(f"s_lshl_b32 s37, {s(S_H)}, 9")
        if a.diag == 1: e("s_xor_b32 s37, s37, 512")
        e(f"s_cmp_eq_u32 {s(S_BLK)}, 0")
        e.wait(lgkm=0)
        e(f"s_cselect_b64 {s(S_R0,2)}, s[40:41], s[50:51]")
        e(f"s_cselect_b64 {s(S_R1,2)}, s[46:47], s[56:57]")
        e(f"s_cselect_b64 {s(S_R2,2)}, s[44:45], s[54:55]")
        for S, o in ((S_R0, 36), (S_R1, 37), (S_R2, 35)):
            e(f"s_add_u32 {s(S)}, {s(S)}, s{o}"); e(f"s_addc_u32 {s(S+1)}, {s(S+1)}, 0")
        pending = []
        for ti, P in enumerate(self.plan):
            self.bar(P, "A")
            iss = list(P["A"]["issue"])
            acts = P["A"]["act"]
            units = []
            for act in acts:
                if act[0] in "WV": units += [(act[0], act[1], act[2], 0), (act[0], act[1], act[2], 1)]
            def uread(u, b):
                ty, i, sl, k2 = u
                second = 512 if ty == "W" else 1024
                if k2 == 0:
                    e(f"v_add_u32 {v(T0)}, {sl*SLOT}, {v(VA0)}"); e(f"v_add_u32 {v(T1)}, {sl*SLOT}, {v(VA1)}")
                for dt in range(2):
                    e(f"ds_read_b64_tr_b16 {v(b+4*dt,2)}, {v(T0+dt)} offset:{4096*k2}")
                    e(f"ds_read_b64_tr_b16 {v(b+4*dt+2,2)}, {v(T0+dt)} offset:{4096*k2+second}")
            def umfma(u, b):
                ty, i, sl, k2 = u
                kap = 2 * (i % (7 if ty == "W" else 8)) + k2
                for dt in range(2):
                    for qt in range(3):
                        acc = ACC + 12 * dt + 4 * qt
                        c = "0" if kap == 0 else v(acc, 4)
                        e(f"v_mfma_f32_16x16x32_bf16 {v(acc,4)}, {v(b+4*dt,4)}, {v(FR(qt,kap),4)}, {c}")
            for act in acts:
                if act[0] == "init":
                    for it in iss: self.issue(*it)
                    iss = []
                    e(f"v_and_b32 {v(T0)}, 15, v0"); e(f"v_bfe_u32 {v(T1)}, v0, 7, 1"); e(f"v_lshl_add_u32 v46, {v(T1)}, 4, {v(T0)}")
                    e(f"v_bfe_u32 {v(T0)}, v0, 1, 3"); e(f"v_bfe_u32 {v(T1)}, v0, 4, 2"); e(f"v_xor_b32 {v(T1)}, {v(T1)}, {v(T0)}"); e(f"v_lshlrev_b32 {v(T1)}, 4, {v(T1)}")
                    e(f"v_lshl_add_u32 {v(XA)}, v46, 7, {v(T1)}"); e(f"v_xor_b32 {v(XA+1)}, 64, {v(XA)}")
                    e(f"v_bfe_u32 {v(T1)}, v0, 5, 1"); e(f"v_bfe_u32 v47, v0, 6, 1"); e(f"v_lshl_add_u32 {v(T1)}, v47, 2, {v(T1)}")
                    e(f"v_xor_b32 {v(T1)}, {v(T1)}, {v(T0)}"); e(f"v_lshlrev_b32 {v(T1)}, 4, {v(T1)}"); e(f"v_lshl_add_u32 {v(QA)}, v46, 7, {v(T1)}")
                    e(f"v_bfe_u32 {v(T1)}, v0, 4, 1"); e(f"v_lshl_add_u32 {v(QA)}, {v(T1)}, 3, {v(QA)}"); e(f"v_xor_b32 v13, 32, {v(QA)}")
                    e(f"v_bfe_u32 {v(T0)}, v0, 2, 2"); e(f"v_bfe_u32 {v(T1)}, v0, 4, 2")
                    e(f"v_lshl_add_u32 {v(VA0)}, {v(T1)}, 3, {v(T0)}"); e(f"v_lshlrev_b32 {v(VA0)}, 7, {v(VA0)}")
                    e(f"v_bfe_u32 {v(T0)}, v0, 3, 2"); e(f"v_lshlrev_b32 {v(T1)}, 1, v47")
                    e(f"v_xor_b32 {v(T0)}, {v(T0)}, {v(T1)}"); e(f"v_lshl_add_u32 {v(VA0)}, {v(T0)}, 5, {v(VA0)}")
                    e(f"v_and_b32 {v(T0)}, 3, v0"); e(f"v_lshl_add_u32 {v(VA0)}, {v(T0)}, 3, {v(VA0)}")
                    e(f"v_xor_b32 {v(VA1)}, 32, {v(VA0)}")
                elif act[0] == "X":
                    n = act[1]
                    for k2 in range(2):
                        for qt in range(3):
                            e(f"ds_read_b128 {v(FR(qt, 2*n+k2),4)}, {v(XA+k2)} offset:{(n%4)*12288 + qt*4096}")
                elif act[0] == "initv":
                    if a.fused == 6:
                        assert not e.vm
                        self.srd6()
                        e("v_and_b32 v46, 1, v0"); e(f"s_and_b32 {s(S_TMP)}, s63, 12"); e(f"v_mul_u32_u24 v46, {s(S_TMP)}, v46"); e("v_sub_u32 v46, s63, v46")
                        self.poll("L_pc", "buffer_load_dword v47, v46, s[40:43], 0 offen sc1", "v_lshrrev_b32 v45, 24, v47|v_cmp_le_u32 vcc, 4, v45")
                        e("v_readfirstlane_b32 s48, v47"); e(f"s_lshl_b32 {s(S_TMP)}, 4, s62"); e(f"s_add_u32 {s(S_TMP)}, {s(S_TMP)}, 0x4000000")
                        e(f"s_cmp_eq_u32 s48, {s(S_TMP)}"); e(f"s_cselect_b32 s48, {0 if not a.forceslow else 1}, 1")
                    if a.fused == 4:
                        assert not e.vm
                        self.flag_srd()
                        e("v_mov_b32 v46, 0")
                        self.poll("L_pc", "buffer_load_dword v47, v46, s[40:43], s63 offen sc1", "v_cmp_le_u32 vcc, 1, v47")
                    if a.fused in (3, 7): self.flag_srd()
                    if a.s16:
                        e(f"v_bfe_u32 {v(T0)}, v0, 2, 4"); e(f"v_lshlrev_b32 {v(VA0)}, 7, {v(T0)}")
                    else:
                        e(f"v_bfe_u32 {v(T0)}, v0, 2, 3"); e(f"v_bfe_u32 {v(T1)}, v0, 5, 1")
                        e(f"v_lshl_add_u32 {v(VA0)}, {v(T1)}, 4, {v(T0)}"); e(f"v_lshlrev_b32 {v(VA0)}, 7, {v(VA0)}")
                    e(f"v_bfe_u32 {v(T0)}, v0, 3, 2"); e(f"v_bfe_u32 {v(T1)}, v0, 6, 1"); e(f"v_lshlrev_b32 {v(T1)}, 1, {v(T1)}")
                    e(f"v_xor_b32 {v(T0)}, {v(T0)}, {v(T1)}"); e(f"v_lshl_add_u32 {v(VA0)}, {v(T0)}, 5, {v(VA0)}")
                    e(f"v_and_b32 {v(T0)}, 3, v0"); e(f"v_lshl_add_u32 {v(VA0)}, {v(T0)}, 3, {v(VA0)}")
                    e(f"v_xor_b32 {v(VA1)}, 32, {v(VA0)}")
                    e(f"v_and_b32 {v(T0)}, 63, v0"); e(f"v_lshlrev_b32 {v(XA)}, 4, {v(T0)}")
                    e(f"v_bfe_u32 {v(T0)}, v0, 7, 1"); e(f"v_lshl_add_u32 {v(XA)}, {v(T0)}, 10, {v(XA)}")
                    e(f"v_bfe_u32 {v(T1)}, v0, 6, 1"); e(f"v_mul_u32_u24 {v(T1)}, 6144, {v(T1)}"); e(f"v_add_u32 {v(OA)}, {v(XA)}, {v(T1)}")
                    e(f"v_and_b32 {v(T1)}, 15, v0"); e(f"v_lshl_add_u32 {v(T0)}, {v(T0)}, 4, {v(T1)}"); e(f"v_lshlrev_b32 {v(T0)}, {6 if a.s16 else 5}, {v(T0)}")
                    e(f"v_add_u32 {v(XA+1)}, {STAT+(2048 if a.s16 else 4096)}, {v(T0)}")
                elif act[0] == "pread":
                    T = act[1]
                    for u in range(4):
                        for qt in range(3):
                            e(f"ds_read_b128 {v(FR(qt, 4*T+u),4)}, {v(XA)} offset:{PBUF[T%2] + u*6144 + qt*2048}")
            def linv(tb):
                if a.s16:
                    for qt in range(3):
                        for hf in range(2):
                            for k in range(2): e(f"ds_read_b128 {v(tb+4*k,4)}, {v(XA+1)} offset:{qt*2048+32*hf+16*k}")
                            e(f"v_pk_add_f32 {v(tb,2)}, {v(tb,2)}, {v(tb+4,2)}"); e(f"v_pk_add_f32 {v(tb+2,2)}, {v(tb+2,2)}, {v(tb+6,2)}")
                            e(f"v_pk_add_f32 {v(tb,2)}, {v(tb,2)}, {v(tb+2,2)}")
                            if hf == 0: e(f"v_add_f32 {v(LINV+qt)}, {v(tb)}, {v(tb+1)}")
                            else:
                                e(f"v_add_f32 {v(tb)}, {v(tb)}, {v(tb+1)}"); e(f"v_add_f32 {v(LINV+qt)}, {v(LINV+qt)}, {v(tb)}")
                        e(f"v_rcp_f32 {v(LINV+qt)}, {v(LINV+qt)}")
                    return
                for k in range(2): e(f"ds_read_b128 {v(tb+4*k,4)}, {v(XA+1)} offset:{16*k}")
                for qt in range(3):
                    b = tb
                    for k in range(4): e(f"v_add_f32 {v(b+k)}, {v(b+k)}, {v(b+4+k)}")
                    e(f"v_add_f32 {v(b)}, {v(b)}, {v(b+2)}"); e(f"v_add_f32 {v(b+1)}, {v(b+1)}, {v(b+3)}")
                    e(f"v_add_f32 {v(LINV+qt)}, {v(b)}, {v(b+1)}")
                    if qt < 2:
                        for k in range(2): e(f"ds_read_b128 {v(tb+4*k,4)}, {v(XA+1)} offset:{(qt+1)*1024+16*k}")
                    e(f"v_rcp_f32 {v(LINV+qt)}, {v(LINV+qt)}")
            def write_out(ty, c, tb):
                if ty == "W":
                    for qt in range(3):
                        for dt in range(2):
                            acc = ACC + 12 * dt + 4 * qt; tt = tb + 2 * ((2 * qt + dt) % 4)
                            e(f"v_cvt_pk_bf16_f32 {v(tt)}, {v(acc)}, {v(acc+1)}"); e(f"v_cvt_pk_bf16_f32 {v(tt+1)}, {v(acc+2)}, {v(acc+3)}")
                            e(f"ds_write_b64 {v(QA if dt == 0 else 13)}, {v(tt,2)} offset:{QBUF[c%2] + qt*4096}")
                else:
                    if c == 0 and not a.defer: linv(tb)
                    for qt in range(3):
                        tt = tb + 4 * (qt % 2)
                        for dt in range(2):
                            acc = ACC + 12 * dt + 4 * qt
                            for k in range(4 if not a.defer else 0): e(f"v_mul_f32 {v(acc+k)}, {v(LINV+qt)}, {v(acc+k)}")
                            e(f"v_cvt_pk_bf16_f32 {v(tt+2*dt)}, {v(acc)}, {v(acc+1)}"); e(f"v_cvt_pk_bf16_f32 {v(tt+2*dt+1)}, {v(acc+2)}, {v(acc+3)}")
                        e(f"ds_write_b128 {v(OA)}, {v(tt,4)} offset:{self.obuf(c) + qt*2048}")
            light = []
            heavy = []
            def umfma_l(u, b):
                ty, i, sl, k2 = u
                kap = 2 * (i % (7 if ty == "W" else 8)) + k2
                L = []
                for dt, qt in ([(d, q) for d in range(2) for q in range(3)] if not a.aord else [(0, 0), (1, 0), (1, 1), (0, 1), (0, 2), (1, 2)] if a.aord == 1 else [(0, 0), (0, 1), (0, 2), (1, 2), (1, 1), (1, 0)]):
                    if True:
                        acc = ACC + 12 * dt + 4 * qt
                        c = "0" if kap == 0 else v(acc, 4)
                        L.append(f"v_mfma_f32_16x16x32_bf16 {v(acc,4)}, {v(b+4*dt,4)}, {v(FR(qt,kap),4)}, {c}")
                return L
            def uread_l(u, b):
                ty, i, sl, k2 = u
                second = 512 if ty == "W" else (2048 if a.s16 else 1024)
                L = []
                for dt in range(2):
                    if k2 == 0: L.append(f"v_add_u32 {v(T0+dt)}, {sl*SLOT}, {v(VA0 if dt == 0 else VA1)}")
                    L.append(f"ds_read_b64_tr_b16 {v(b+4*dt,2)}, {v(T0+dt)} offset:{4096*k2}")
                    L.append(f"ds_read_b64_tr_b16 {v(b+4*dt+2,2)}, {v(T0+dt)} offset:{4096*k2+second}")
                return L
            def pop(nh=1):
                u, b = pending.pop(0)
                for n, m in enumerate(umfma_l(u, b)):
                    e(m)
                    if a.paceA and u[0] == "W": e.nop(a.paceA)
                    if a.paceV and u[0] == "V" and u[1] < 28: e.nop(a.paceV)
                    if P.get("burst") and heavy and n % a.bgap == 0: heavy.pop(0)()
                    if light:
                        for _ in range(a.wv):
                            if light: e(light.pop(0))
                    elif heavy and nh > 0 and n < 5 and not P.get("burst"):
                        heavy.pop(0)(); nh -= 1
                while light: e(light.pop(0))
                per = 7 if u[0] == "W" else 8
                if u[1] % per == per - 1 and u[3] == 1:
                    write_out(u[0], u[1] // per, b); return True
                return False
            names = [x[0] for x in acts]
            if a.fused == 7 and any(x[0] == "V" and x[1] == 12 for x in acts):
                e("v_mov_b32 v45, 12288"); e("v_mov_b32 v46, 0"); e("v_mov_b32 v47, 0"); e("ds_write_b64 v45, v[46:47]"); e("ds_write_b64 v45, v[46:47] offset:8")
            if a.fused == 7 and any(x[0] == "V" and x[1] == 20 for x in acts):
                e("v_mov_b32 v45, 0"); e("buffer_load_dword v46, v45, s[40:43], s63 offen sc1")
            if a.fused == 7 and any(x[0] == "V" and x[1] == 28 for x in acts):
                e("v_cmp_le_u32 vcc, 1, v46"); e("s_nop 0"); e("s_cmp_eq_u64 vcc, -1"); e("s_cbranch_scc1 L_pc_ok")
                snapv = list(e.vm)
                self.poll("L_pc", "buffer_load_dword v46, v45, s[40:43], s63 offen sc1", "v_cmp_le_u32 vcc, 1, v46")
                e.vm = snapv
            if a.fused == 5 and any(x[0] == "V" and x[1] == 12 for x in acts):
                e("v_mov_b32 v45, 12288"); e("v_mov_b32 v46, 0"); e("v_mov_b32 v47, 0"); e("ds_write_b64 v45, v[46:47]")
            for it in iss: heavy += self.issue_parts(*it)
            iss = []
            wrote = False
            for k, u in enumerate(units):
                while len(pending) >= 3: wrote |= pop()
                b = [x for x in UB if x not in [p[1] for p in pending]][0]
                light += uread_l(u, b)
                if len(pending) >= a.lag and pending:
                    left = len(units) - k
                    wrote |= pop(nh=-(-len(heavy) // left))
                else:
                    while light: e(light.pop(0))
                    if heavy: heavy.pop(0)()
                pending.append((u, b))
            if "drain" in names or not units or a.lag == 0:
                while pending: wrote |= pop(nh=2)
            if "flushw" in names:
                while not wrote and pending: wrote |= pop()
            while heavy: heavy.pop(0)()
            for it in iss: self.issue(*it)
        if a.fused == 3:
            e(f"s_cmp_lg_u32 {s(S_W)}, 0"); e("s_cbranch_scc1 L_red")
            e("v_mov_b32 v6, 0")
            self.poll("L_pc", "buffer_load_dword v10, v6, s[40:43], s63 offen sc1", "v_cmp_le_u32 vcc, 1, v10")
        if a.fused in (1, 3): e("s_branch L_red")
        else:
            if a.fused == 2: self.staged_reduce()
            if a.fused == 4: self.staged_reduce4()
            if a.fused == 7: self.tail7_A()
            if a.fused == 5: self.reduce5()
            if a.fused == 6: self.tail6_A()
            e("s_endpgm")

    def role_B(self):
        e = self.e; a = self.a
        KA, QA = 4, 8
        KF = 16; QF = 32; M = 56; SUM = 59
        SACC = lambda T, qt: 64 + (T * 3 + qt) * 16
        S16 = lambda T, q6: 64 + (T * 6 + q6) * 8
        ACC = lambda cb, q6: 64 + 24 * cb + 4 * q6
        self.ACC = ACC
        OF = lambda k2, q6: 16 + 4 * (6 * k2 + q6)
        WB = [232, 240, 248]
        e(f"v_bfe_u32 {v(T0)}, v0, 3, 3"); e(f"v_lshrrev_b32 {v(T1)}, 6, v0"); e(f"v_lshl_add_u32 {v(T0)}, {v(T1)}, 5, {v(T0)}")
        e("v_and_b32 v12, 7, v0"); e(f"v_bfe_u32 {v(T1)}, v0, 4, 2"); e(f"v_xor_b32 v13, v12, {v(T1)}"); e("v_lshlrev_b32 v13, 4, v13")
        e(f"v_lshl_add_u32 v1, {v(T0)}, 9, v13"); e("v_xor_b32 v2, 64, v1")
        e(f"s_lshl_b32 {s(S_A0)}, {s(S_R4)}, 7"); e(f"s_mul_i32 {s(S_A1)}, {s(S_R4)}, 57344"); e(f"s_lshl_b32 {s(S_A2)}, {s(S_RB)}, 7")
        e(f"s_lshl_b32 {s(S_A3)}, {s(S_U)}, 12"); e(f"s_mul_i32 {s(S_ST)}, {s(S_RB)}, 12288")
        e(f"s_mov_b32 {s(S_R0+2)}, 262144"); e(f"s_mov_b32 {s(S_R1+2)}, 229376"); e(f"s_mov_b32 {s(S_R2+2)}, 86016")
        e(f"s_mul_i32 s36, {s(S_H)}, 229376")
        e(f"s_lshl_b32 s37, {s(S_BLK)}, 7"); e("s_add_u32 s37, s37, s34"); e("s_mul_i32 s37, s37, 86016")
        if a.fused == 6:
            e("s_and_b32 s37, s2, 63"); e(f"s_mul_i32 s37, s37, {XQ}"); e(f"s_mov_b32 {s(S_R2+2)}, {XQ}")
            e(f"s_lshl_b32 {s(S_ST)}, {s(S_RB)}, 2"); e(f"s_add_u32 {s(S_ST)}, {s(S_ST)}, {s(S_PP)}"); e(f"s_mul_i32 {s(S_ST)}, {s(S_ST)}, 12288")
        e(f"s_cmp_eq_u32 {s(S_BLK)}, 0")
        e.wait(lgkm=0)
        e(f"s_cselect_b64 {s(S_R0,2)}, s[42:43], s[52:53]")
        e(f"s_cselect_b64 {s(S_R1,2)}, s[48:49], s[58:59]")
        e(f"s_mov_b64 {s(S_R2,2)}, s[60:61]")
        for S, o in ((S_R0, 35), (S_R1, 36), (S_R2, 37)):
            e(f"s_add_u32 {s(S)}, {s(S)}, s{o}"); e(f"s_addc_u32 {s(S+1)}, {s(S+1)}, 0")
        if a.prio in (2, 3): e("s_setprio 1")
        kpre = qpre = -1
        def qrd(i, n):
            if a.qhalf and i % a.qhalf != 0: return
            if a.s16:
                k2, q6 = divmod(n, 6)
                e(f"ds_read_b128 {v(QF+4*(n%6),4)}, {v(QA+k2)} offset:{QBUF[(i//4)%2] + q6*2048}"); return
            ks, qt = divmod(n, 3)
            e(f"ds_read_b128 {v(QF+4*(n%6),4)}, {v(QA+ks)} offset:{QBUF[(i//4)%2] + qt*4096}")
        def kreg(i): return SACC(3, i) if i in self.parked else KF
        def kread(i, ks):
            if a.s16:
                e(f"ds_read_b128 {v(kreg(i)+4*ks,4)}, {v(KA+(ks>>1))} offset:{(self.kslot[i]-self.KBASE)*SLOT + (ks&1)*2048}"); return
            e(f"ds_read_b128 {v(kreg(i)+4*ks,4)}, {v(KA+ks)} offset:{(self.kslot[i]-self.KBASE)*SLOT}")
        phase1 = True
        opend = []; done_cb = []
        for ti, P in enumerate(self.plan):
            if any(x[0] == "maxr" for x in P["B"]["act"]): phase1 = False
            if phase1:
                if getattr(self, "need_lgkm", False):
                    e.wait(lgkm=0); self.need_lgkm = False; self.maxinit_ok = True
                if P["bar"]: e.barrier()
            else: self.bar(P, "B")
            if ti in a.stamp_ticks: self.stamp()
            if ti == a.opf:
                e(f"s_mul_i32 {s(S_TMP)}, {s(S_B)}, 28672"); e("v_min_u32 v62, 223, v0"); e("v_lshlrev_b32 v62, 7, v62")
                e(f"buffer_load_dword v63, v62, {s(S_R1,4)}, {s(S_TMP)} offen")
            if a.fused == 6 and ti == 9:
                assert not any(t == "fz" for t, _ in e.vm)
                e(f"s_lshl_b32 {s(S_TMP)}, 1, s62"); e(f"s_add_u32 {s(S_TMP)}, {s(S_TMP)}, 0x1000000")
                e("v_lshlrev_b32 v62, 8, v0"); e(f"v_mov_b32 v63, {s(S_TMP)}")
                e("buffer_atomic_add v63, v62, s[40:43], s63 offen")
            if a.fused in (3, 4, 7) and ti == 9:
                assert not any(t == "fz" for t, _ in e.vm)
                e(f"s_lshl_b32 {s(S_TMP)}, {s(S_H)}, 8"); e(f"s_add_u32 {s(S_TMP)}, {s(S_TMP)}, s63")
                e("v_lshlrev_b32 v62, 8, v0"); e("v_mov_b32 v63, 1")
                e(f"buffer_atomic_add v63, v62, s[40:43], {s(S_TMP)} offen")
            if a.fused in (2, 5) and ti == 9:
                assert not any(t == "fz" for t, _ in e.vm)
                e("v_lshlrev_b32 v62, 8, v0"); e("v_mov_b32 v63, 1")
                e("buffer_atomic_add v63, v62, s[40:43], s63 offen")
            iss = list(P["B"]["issue"])
            acts = P["B"]["act"]
            for ai, act in enumerate(acts):
                if act[0] == "init":
                    for it in iss: self.issue(*it)
                    iss = []
                    e(f"s_mov_b32 {s(S_C)}, 0x3db8aa3b")
                    if a.codepf:
                        e("s_getpc_b64 s[92:93]")
                        e.label("L_pc0")
                        e(f"s_sub_u32 s92, s92, L_pc0-{NAME}_kernel"); e("s_subb_u32 s93, s93, 0")
                        e("s_lshr_b32 s94, s2, 3"); e("s_cmp_ge_u32 s94, 24"); e("s_cselect_b32 s95, 24, 0"); e("s_sub_u32 s94, s94, s95")
                        e("s_cmp_ge_u32 s94, 12"); e("s_cselect_b32 s95, 12, 0"); e("s_sub_u32 s94, s94, s95"); e("s_lshl_b32 s94, s94, 12")
                        e("v_lshlrev_b32 v62, 4, v0"); e("v_add_u32 v62, s94, v62")
                        e("global_load_dword v63, v62, s[92:93]")
                    if a.fused == 6:
                        self.srd6()
                        e("v_lshlrev_b32 v62, 20, v0"); e("v_mov_b32 v63, 0")
                        e(f"s_cmp_eq_u32 {s(S_PP)}, 0"); e(f"s_cselect_b32 {s(S_TMP)}, s46, 0x100000")
                        e(f"buffer_store_dword v63, v62, s[36:39], {s(S_TMP)} offen sc1")
                        e(f"s_cmp_lt_u32 {s(S_H)}, 4"); e(f"s_cselect_b32 {s(S_TMP)}, s47, 0x100000")
                        e(f"buffer_store_dword v63, v62, s[36:39], {s(S_TMP)} offen sc1", tag="fz")
                    if a.fused == 5:
                        self.flag_srd()
                        e(f"s_lshl_b32 s62, {s(S_H)}, 9")
                        e("v_lshlrev_b32 v62, 13, v0"); e("v_mov_b32 v63, 0")
                        e(f"buffer_store_dword v63, v62, s[36:39], s62 offen sc1", tag="fz")
                    if a.fused in (3, 7):
                        self.flag_srd()
                        e(f"s_lshl_b32 {s(S_TMP)}, {s(S_H)}, 13")
                        e("v_lshlrev_b32 v62, 12, v0"); e("v_mov_b32 v61, 0")
                        e(f"buffer_store_dword v61, v62, s[36:39], {s(S_TMP)} offen sc1", tag="fz")
                    if a.fused == 4:
                        self.flag_srd()
                        e(f"s_lshl_b32 s62, {s(S_U)}, 7")
                        e(f"s_lshl_b32 {s(S_TMP)}, {s(S_H)}, 13"); e(f"s_add_u32 {s(S_TMP)}, {s(S_TMP)}, s62")
                        e("v_and_b32 v62, 63, v0"); e("v_lshlrev_b32 v62, 13, v62"); e("v_mov_b32 v63, 0")
                        e(f"buffer_store_dword v63, v62, s[36:39], {s(S_TMP)} offen sc1", tag="fz")
                    if a.fused == 2:
                        self.flag_srd()
                        e(f"s_lshl_b32 s62, {s(S_H)}, 2"); e(f"s_add_u32 s62, s62, {s(S_U)}"); e("s_lshl_b32 s62, s62, 7")
                        e("v_and_b32 v62, 63, v0"); e("v_lshlrev_b32 v62, 13, v62"); e("v_mov_b32 v63, 0")
                        e("buffer_store_dword v63, v62, s[36:39], s62 offen sc1", tag="fz")
                    e(f"v_lshlrev_b32 {v(T1)}, 1, {v(T1)}"); e(f"v_xor_b32 {v(T1)}, {v(T1)}, v12"); e(f"v_lshlrev_b32 {v(T1)}, 4, {v(T1)}")
                    e("v_lshrrev_b32 v3, 3, v0"); e("v_mul_u32_u24 v3, 896, v3"); e(f"v_add_u32 v3, v3, {v(T1)}")
                    if a.s16:
                        e(f"v_and_b32 {v(T0)}, 15, v0"); e(f"v_bfe_u32 {v(T1)}, v0, 1, 3"); e("v_bfe_u32 v12, v0, 4, 2"); e(f"v_xor_b32 {v(T1)}, {v(T1)}, v12")
                        e(f"v_lshlrev_b32 {v(T1)}, 4, {v(T1)}"); e(f"v_lshl_add_u32 {v(QA)}, {v(T0)}, 7, {v(T1)}"); e(f"v_xor_b32 {v(QA+1)}, 64, {v(QA)}")
                        e(f"s_add_u32 {s(S_TMP)}, {s(S_A3)}, {self.KBASE*SLOT}")
                        for k2 in range(2): e(f"v_add_u32 {v(KA+k2)}, {s(S_TMP)}, {v(QA+k2)}")
                        e(f"v_lshlrev_b32 v13, 2, {v(T0)}"); e(f"v_add_u32 v13, {STAT}, v13")
                        e(f"v_lshlrev_b32 {v(T0)}, 6, {v(T0)}"); e(f"v_lshrrev_b32 {v(T1)}, 4, v0"); e(f"v_lshl_add_u32 v12, {v(T1)}, 2, {v(T0)}"); e(f"v_add_u32 v12, {STAT+2048}, v12")
                        e(f"v_and_b32 {v(T0)}, 63, v0"); e(f"s_mul_i32 {s(S_TMP)}, {s(S_U)}, 6144"); e(f"v_lshlrev_b32 v10, 4, {v(T0)}"); e(f"v_add_u32 v10, {s(S_TMP)}, v10")
                    else:
                        e(f"v_and_b32 {v(T0)}, 31, v0"); e(f"v_bfe_u32 {v(T1)}, v0, 1, 3"); e("v_bfe_u32 v12, v0, 5, 1"); e(f"v_xor_b32 {v(T1)}, {v(T1)}, v12")
                        e(f"v_lshlrev_b32 {v(T1)}, 4, {v(T1)}"); e(f"v_lshl_add_u32 {v(QA)}, {v(T0)}, 7, {v(T1)}")
                        for ks in range(1, 4): e(f"v_xor_b32 {v(QA+ks)}, {32*ks}, {v(QA)}")
                        e(f"s_add_u32 {s(S_TMP)}, {s(S_A3)}, {self.KBASE*SLOT}")
                        for ks in range(4): e(f"v_add_u32 {v(KA+ks)}, {s(S_TMP)}, {v(QA+ks)}")
                        e(f"v_lshlrev_b32 {v(T0)}, 5, {v(T0)}"); e(f"v_add_u32 v13, {STAT}, {v(T0)}")
                        e(f"v_lshrrev_b32 {v(T1)}, 5, v0"); e(f"v_lshl_add_u32 v12, {v(T1)}, 2, v13")
                elif act[0] == "Kpark":
                    for it in iss: self.issue(*it)
                    iss = []
                    e.wait_tag(("K", act[1]))
                    for ks in range(4): kread(act[1], ks)
                    e.wait(lgkm=0)
                elif act[0] == "Kpre":
                    e.wait_tag(("K", 0))
                    for ks in range(4): kread(0, ks)
                    kpre = 0; qpre = -1
                elif act[0] == "S":
                    _, i, sl = act
                    c, T = divmod(i, 4)
                    seq = [(ks, qt) for ks in range(4) for qt in range(3)]
                    dma = []
                    for it in iss: dma += self.issue_parts(*it)
                    iss = []
                    if qpre != i:
                        for n in range(3): qrd(i, n)
                    if kpre != i and i not in self.parked:
                        while dma: dma.pop(0)()
                        e.wait_tag(("K", i))
                        for ks in range(4): kread(i, ks)
                    if qpre != i:
                        for n in range(3, 6): qrd(i, n)
                    own = []
                    if ai + 1 < len(acts) and acts[ai + 1][0] == "issue": own = self.issue_parts(acts[ai + 1][1], acts[ai + 1][2])
                    mode = None; qok = False
                    if i + 1 < 16 and self.kage[i + 1] < ti:
                        mode = "roll" if ti - self.kage[i + 1] >= a.kpre else "after"
                        if i + 1 in self.parked: mode = None
                        qok = (i + 1) // 4 <= self.sinfo[i][1]
                    if a.s16 and i == 12:
                        e("v_mov_b32 v11, 0xff800000")
                        for q6 in range(6): e(f"ds_write_b32 v13, v11 offset:{64*q6}")
                        self.need_lgkm = True
                    for n in range(12 if a.s16 else 0):
                        k2, q6 = divmod(n, 6)
                        for kt in range(2):
                            r = S16(T, q6) + 4 * kt
                            e(f"v_mfma_f32_16x16x32_bf16 {v(r,4)}, {v(kreg(i)+4*(2*k2+kt),4)}, {v(QF+4*(n%6),4)}, {'0' if (c == 0 and k2 == 0) else v(r,4)}")
                            if kt == 0 and c == 3 and T > 0 and n >= 2 and n < 8:
                                self.max8(M + n - 2, S16(T - 1, n - 2), first=(T == 1))
                            if kt == 0 and dma and n % 2 == 1: dma.pop(0)()
                            if a.pace: e.nop(a.pace)
                        if n + 6 < 12: qrd(i, n + 6)
                        elif qok: qrd(i + 1, n - 6)
                        if mode == "roll" and q6 == 5:
                            if k2 == 0: e.wait_tag(("K", i + 1))
                            kread(i + 1, 2 * k2); kread(i + 1, 2 * k2 + 1)
                        if n == 0 and own:
                            e.wait_regs(set(range(KF, KF + 16)))
                            dma += own
                    for n, (ks, qt) in enumerate(seq if not a.s16 else []):
                        cc = "0" if (c == 0 and ks == 0) else v(SACC(T, qt), 16)
                        if a.s16hack:
                            for hh in range(2):
                                r = SACC(T, qt) + 4 * (2 * (ks & 1) + hh)
                                e(f"v_mfma_f32_16x16x32_bf16 {v(r,4)}, {v(kreg(i)+4*(ks ^ hh),4)}, {v(QF+4*(n%6),4)}, {'0' if (c == 0 and ks < 2) else v(r,4)}")
                        else:
                            e(f"v_mfma_f32_32x32x16_bf16 {v(SACC(T,qt),16)}, {v(kreg(i)+4*ks,4)}, {v(QF+4*(n%6),4)}, {cc}")
                        if a.pace: e.nop(a.pace)
                        if n + 6 < 12: qrd(i, n + 6)
                        elif qok: qrd(i + 1, n - 6)
                        if mode == "roll" and qt == 2 and not a.s16hack:
                            if ks == 0: e.wait_tag(("K", i + 1))
                            kread(i + 1, ks)
                        if mode == "roll" and qt == 2 and a.s16hack and ks & 1:
                            if ks == 1: e.wait_tag(("K", i + 1))
                            kread(i + 1, ks - 1); kread(i + 1, ks)
                        if n == 0 and own:
                            e.wait_regs(set(range(KF, KF + 16)))
                            dma += own
                        if dma and n % 2 == 0: dma.pop(0)()
                        if c == 3 and T > 0 and n >= 3 and (n - 3) < 9:
                            qq, part = divmod(n - 3, 3)
                            self.maxpart(M + qq, SACC(T - 1, qq), part, first=(T == 1))
                    while dma: dma.pop(0)()
                    if mode == "after":
                        e.wait_tag(("K", i + 1))
                        for ks in range(4): kread(i + 1, ks)
                    kpre = i + 1 if mode else -1
                    qpre = i + 1 if qok else -1
                elif act[0] == "maxw" and a.s16:
                    self.stamp()
                    assert getattr(self, "maxinit_ok", False)
                    for q6 in range(6):
                        self.max8(M + q6, S16(3, q6), first=False)
                        e(f"ds_max_f32 v13, {v(M+q6)} offset:{64*q6}")
                elif act[0] == "maxr" and a.s16:
                    if a.prio: e("s_setprio 1")
                    for q6 in range(6): e(f"ds_read_b32 {v(M+q6)}, v13 offset:{64*q6}")
                    for q6 in range(6):
                        e(f"v_mul_f32 {v(M+q6)}, {s(S_C)}, {v(M+q6)}")
                        if a.pkfma: e(f"v_sub_f32 {v(40+2*q6)}, 0, {v(M+q6)}")
                elif act[0] == "smx" and a.s16:
                    T = act[1]
                    def fe6(q6):
                        r = S16(T, q6)
                        if a.pkfma:
                            for k in range(0, 8, 2):
                                e(f"v_pk_fma_f32 {v(r+k,2)}, {v(r+k,2)}, {s(S_C,2)}, {v(40+2*q6,2)} op_sel_hi:[1,0,0]")
                        else:
                            for k in range(8): e(f"v_fma_f32 {v(r+k)}, {v(r+k)}, {s(S_C)}, -{v(M+q6)}")
                        for k in range(8): e(f"v_exp_f32 {v(r+k)}, {v(r+k)}")
                    fe6(0)
                    for q6 in range(6):
                        if q6 + 1 < 6: fe6(q6 + 1)
                        r = S16(T, q6); tt = 16 + 4 * q6
                        for k in range(4): e(f"v_cvt_pk_bf16_f32 {v(tt+k)}, {v(r+2*k)}, {v(r+2*k+1)}")
                        e(f"ds_write_b128 v10, {v(tt,4)} offset:{PBUF[T%2] + q6*1024}")
                    if not a.defer:
                        self.sums16(T, S16)
                        if T == 3: self.sumw16(S16)
                elif act[0] == "maxw":
                    self.stamp()
                    for qt in range(3):
                        for part in range(3): self.maxpart(M + qt, SACC(3, qt), part, first=False)
                        e(f"ds_write_b32 v12, {v(M+qt)} offset:{qt*1024}")
                elif act[0] == "maxr":
                    if a.prio: e("s_setprio 1")
                    for qt in range(3):
                        for k in range(2): e(f"ds_read_b128 {v(16+8*qt+4*k,4)}, v13 offset:{qt*1024+16*k}")
                    e(f"v_and_b32 {v(T0)}, 15, v0"); e(f"v_lshlrev_b32 v4, 4, {v(T0)}")
                    e(f"v_bfe_u32 {v(T0)}, v0, 4, 1"); e(f"v_lshl_add_u32 v4, {v(T0)}, 10, v4")
                    e(f"v_bfe_u32 {v(T0)}, v0, 5, 1"); e(f"v_lshl_add_u32 v4, {v(T0)}, 8, v4")
                    e(f"s_mul_i32 {s(S_TMP)}, {s(S_U)}, 6144"); e(f"v_add_u32 v4, {s(S_TMP)}, v4")
                    for qt in range(3):
                        b = 16 + 8 * qt
                        e(f"v_max3_f32 {v(M+qt)}, {v(b)}, {v(b+1)}, {v(b+2)}")
                        e(f"v_max3_f32 {v(M+qt)}, {v(M+qt)}, {v(b+3)}, {v(b+4)}"); e(f"v_max3_f32 {v(M+qt)}, {v(M+qt)}, {v(b+5)}, {v(b+6)}")
                        e(f"v_max_f32 {v(M+qt)}, {v(M+qt)}, {v(b+7)}")
                        e(f"v_mul_f32 {v(M+qt)}, {s(S_C)}, {v(M+qt)}")
                        if a.pkfma: e(f"v_sub_f32 {v(40+2*qt)}, 0, {v(M+qt)}")
                elif act[0] == "smx":
                    T = act[1]
                    grp = [(qt, hf) for qt in range(3) for hf in range(2)]
                    def fe(g):
                        r = SACC(T, g[0]) + 8 * g[1]
                        if a.pkfma:
                            for k in range(0, 8, 2):
                                e(f"v_pk_fma_f32 {v(r+k,2)}, {v(r+k,2)}, {s(S_C,2)}, {v(40+2*g[0],2)} op_sel_hi:[1,0,0]")
                        else:
                            for k in range(8): e(f"v_fma_f32 {v(r+k)}, {v(r+k)}, {s(S_C)}, -{v(M+g[0])}")
                        for k in range(8): e(f"v_exp_f32 {v(r+k)}, {v(r+k)}")
                    fe(grp[0])
                    for n, (qt, hf) in enumerate(grp):
                        if n + 1 < 6: fe(grp[n + 1])
                        r = SACC(T, qt) + 8 * hf
                        tt = 16 + 4 * n
                        for k in range(4): e(f"v_cvt_pk_bf16_f32 {v(tt+k)}, {v(r+2*k)}, {v(r+2*k+1)}")
                        e(f"ds_write_b128 v4, {v(tt,4)} offset:{PBUF[T%2] + qt*2048 + hf*512}")
                    if iss and a.b_smx_issue:
                        pass
                    self.defer_sum = (T,)
                    if not a.defer:
                        self.sums(T, SACC, SUM)
                        if T == 3:
                            for qt in range(3): e(f"ds_write_b32 v12, {v(SUM+qt)} offset:{4096+qt*1024}")
                elif act[0] == "inito":
                    self.stamp()
                    if a.prio in (1, 3): e("s_setprio 0")
                    if a.defer and a.s16:
                        for T in range(4): self.sums16(T, S16)
                        self.sumw16(S16)
                    elif a.defer:
                        for T in range(4): self.sums(T, SACC, SUM)
                        for qt in range(3): e(f"ds_write_b32 v12, {v(SUM+qt)} offset:{4096+qt*1024}")
                    e(f"v_bfe_u32 {v(T0)}, v0, 2, 4"); e(f"v_lshlrev_b32 v5, 7, {v(T0)}")
                    e(f"v_bfe_u32 {v(T0)}, v0, 3, 2"); e(f"v_bfe_u32 {v(T1)}, v0, 6, 2"); e(f"v_xor_b32 {v(T0)}, {v(T0)}, {v(T1)}")
                    e(f"v_lshl_add_u32 v5, {v(T0)}, 5, v5")
                    e(f"v_and_b32 {v(T0)}, 3, v0"); e(f"v_lshl_add_u32 v5, {v(T0)}, 3, v5")
                    e(f"v_and_b32 {v(T0)}, 63, v0"); e(f"v_lshlrev_b32 v6, 4, {v(T0)}")
                    e(f"v_lshlrev_b32 v7, 4, v0")
                    if a.own:
                        self.own_range()
                        e(f"s_sub_u32 s94, s94, {s(S_M0B)}")
                    if a.fused == 7: e(f"s_mov_b32 {s(S_ST)}, 0")
                    if a.fused == 4:
                        e(f"s_mul_i32 {s(S_ST)}, {s(S_U)}, 21504"); e("v_mov_b32 v7, v6")
                    e("v_lshlrev_b32 v8, 9, v6")
            if a.defer and ti > 0 and any(x[0] == "inito" for x in self.plan[ti - 1]["B"]["act"]):
                if a.s16:
                    e(f"v_and_b32 {v(T0)}, 15, v0"); e(f"v_lshlrev_b32 {v(T0)}, 6, {v(T0)}"); e(f"v_add_u32 {v(T0)}, {STAT+2048}, {v(T0)}")
                    for q6 in range(6):
                        for k in range(4): e(f"ds_read_b128 {v(64+16*q6+4*k,4)}, {v(T0)} offset:{q6*1024+16*k}")
                    for q6 in range(6):
                        b = 64 + 16 * q6
                        for k in range(0, 8, 2): e(f"v_pk_add_f32 {v(b+k,2)}, {v(b+k,2)}, {v(b+8+k,2)}")
                else:
                    e(f"v_and_b32 {v(T0)}, 15, v0"); e(f"v_lshlrev_b32 {v(T0)}, 5, {v(T0)}"); e(f"v_add_u32 {v(T0)}, {STAT+4096}, {v(T0)}")
                    for q6 in range(6):
                        for k in range(2): e(f"ds_read_b128 {v(64+8*q6+4*k,4)}, {v(T0)} offset:{q6*512+16*k}")
                for q6 in range(6):
                    b = 64 + (16 if a.s16 else 8) * q6
                    e(f"v_pk_add_f32 {v(b,2)}, {v(b,2)}, {v(b+4,2)}"); e(f"v_pk_add_f32 {v(b+2,2)}, {v(b+2,2)}, {v(b+6,2)}")
                    e(f"v_pk_add_f32 {v(b,2)}, {v(b,2)}, {v(b+2,2)}"); e(f"v_add_f32 {v(b)}, {v(b)}, {v(b+1)}")
                    e(f"v_rcp_f32 {v(8+q6)}, {v(b)}")
            ws = [x for x in acts if x[0] == "O"]
            dma = []
            for it in iss: dma += self.issue_parts(*it)
            blight = []
            def wread(x, b, defer=False):
                _, i, sl = x
                tt = T0 + (i % 2)
                L = [f"v_add_u32 {v(tt)}, {sl*SLOT}, v5"]
                for k2 in range(2):
                    L.append(f"ds_read_b64_tr_b16 {v(b+4*k2,2)}, {v(tt)} offset:{4096*k2}")
                    L.append(f"ds_read_b64_tr_b16 {v(b+4*k2+2,2)}, {v(tt)} offset:{4096*k2+2048}")
                if defer: blight.extend(L)
                else:
                    for t in L: e(t)
            def ord_(c, k2, q6):
                e(f"ds_read_b128 {v(OF(k2,q6),4)}, v6 offset:{self.obuf(c) + k2*6144 + q6*1024}")
            lastt = ti == len(self.plan) - 1
            remain = {}
            if lastt:
                for x in ws: remain[x[1] % 7] = remain.get(x[1] % 7, 0) + 1
            OF2 = lambda k2, q6: 64 + 4 * (6 * k2 + q6)
            def opop(roll=None):
                x, b = opend.pop(0)
                c, cb = divmod(x[1], 7)
                final = lastt and x in acts
                st = []; stcb = None
                if done_cb:
                    stcb = done_cb.pop(0); st = self.store_parts(stcb)
                of = OF2 if (final and c == 2) else OF
                for k2 in range(2):
                    for q6 in range(6):
                        acc = ACC(cb, q6)
                        cc = "0" if (c == 0 and k2 == 0) else v(acc, 4)
                        rep = 1
                        if a.op2hack and cb >= 2: rep = 0 if 3 - a.op2hack <= c < 3 else (1 + a.op2hack if c == 3 else 1)
                        for r_ in range(rep):
                            e(f"v_mfma_f32_16x16x32_bf16 {v(acc,4)}, {v(b+4*(k2 ^ (r_ & 1)),4)}, {v(of(k2,q6),4)}, {cc}")
                        if a.paceO and not final: e.nop(a.paceO)
                        if a.paceF and final: e.nop(a.paceF)
                        if roll is not None: ord_(roll, k2, q6)
                        if blight:
                            for _ in range(a.wv):
                                if blight: e(blight.pop(0))
                        elif dma and q6 % 3 == 2 and not P.get("burst"): dma.pop(0)()
                        if dma and P.get("burst") and q6 % a.bgap == 0: dma.pop(0)()
                        if st and (k2 or q6 >= 2):
                            for _ in range(4 if a.defer else 2):
                                if st: st.pop(0)()
                while st: st.pop(0)()
                if final and a.thr >= 0 and stcb is not None: e.force_wait(f"vmcnt({a.thr})")
                if a.nd and stcb in (0, 1):
                    e.nop(2)
                    for q6 in range(6): e(f"ds_read_b128 {v(OF2(stcb,q6),4)}, v6 offset:{self.obuf(2) + stcb*6144 + q6*1024}")
                if final:
                    assert a.fused in (0, 1, 3)
                    remain[cb] -= 1
                    if remain[cb] == 0: done_cb.append(cb)
                    if not any(remain.values()):
                        while done_cb:
                            for f in self.store_parts(done_cb.pop(0)): f()
            ord_c = [x[1] for x in acts if x[0] == "oread"]
            if ord_c:
                c = ord_c[0]
                if c == 3: self.stamp()
                if ws and len(opend) < 3:
                    b = [x for x in WB if x not in [p[1] for p in opend]][0]
                    first = (ws.pop(0), b); wread(*first)
                else: first = None
                while len(opend) > 1: opop()
                if opend: opop(roll=c)
                else:
                    for k2 in range(2):
                        for q6 in range(6): ord_(c, k2, q6)
                if first: opend.append(first)
            nows = not ws and not ord_c
            for x in ws:
                while len(opend) >= 3: opop()
                b = [y for y in WB if y not in [p[1] for p in opend]][0]
                go = len(opend) + 1 > (2 if lastt else max(a.blag, 1))
                wread(x, b, defer=go and a.wv > 0); opend.append((x, b))
                if go: opop()
            while len(opend) > (0 if (lastt or nows) else a.blag): opop()
            while dma: dma.pop(0)()
        if a.padto and a.padglob:
            e(f"s_cmp_lg_u32 {s(S_W)}, 4"); e("s_cbranch_scc1 L_end1")
            e("s_load_dwordx2 s[98:99], s[0:1], 88"); e.force_wait("vmcnt(0) lgkmcnt(0)")
            e("s_not_b32 s97, s96"); e("v_mov_b32 v10, 240"); e("v_mov_b32 v11, s97"); e("s_mov_b64 s[94:95], s[98:99]")
            e("s_mov_b64 exec, 1")
            e("global_atomic_umax v10, v11, s[94:95]"); e.force_wait("vmcnt(0)")
            e.label("L_pad0")
            e("s_memrealtime s[98:99]"); e.force_wait("lgkmcnt(0)")
            e("s_sub_u32 s98, s98, s96"); e(f"s_cmp_lt_u32 s98, 5000"); e("s_cbranch_scc1 L_pad0")
            e("global_load_dword v12, v10, s[94:95] sc1"); e.force_wait("vmcnt(0)")
            e("v_readfirstlane_b32 s96, v12"); e("s_nop 4"); e("s_not_b32 s96, s96")
            e.label("L_pad")
            e("s_memrealtime s[98:99]"); e.force_wait("lgkmcnt(0)")
            e("s_sub_u32 s98, s98, s96"); e(f"s_cmp_lt_u32 s98, {a.padto*100}"); e("s_cbranch_scc1 L_pad")
            e("s_mov_b64 exec, -1")
        elif a.padto:
            e.label("L_pad")
            e("s_memrealtime s[98:99]"); e.force_wait("lgkmcnt(0)")
            e("s_sub_u32 s98, s98, s96"); e(f"s_cmp_lt_u32 s98, {a.padto*100}"); e("s_cbranch_scc1 L_pad")
        self.stamp()
        if a.fused in (1, 3): self.fused_reduce()
        if a.fused == 5:
            e("v_mov_b32 v9, 12292"); e("v_mov_b32 v10, 1")
            e.force_wait("vmcnt(0)")
            e("s_mov_b64 exec, 1")
            e("ds_add_rtn_u32 v11, v9, v10"); e.force_wait("lgkmcnt(0)")
            e("v_readfirstlane_b32 s50, v11"); e("s_mov_b64 exec, -1")
            e("s_cmp_lg_u32 s50, 3"); e("s_cbranch_scc1 L_nosig")
            e("buffer_store_dword v10, v8, s[36:39], s62 offen sc1")
            e.label("L_nosig")
        if a.fused == 7: self.tail7_B()
        if a.fused == 6: self.tail6_B()
        if a.fused == 4: self.sig4(99)
        if a.fused == 2:
            for n in range(7 - a.flag_lag, 7): self.flag(n)
        if a.stamps:
            e.force_wait("vmcnt(0)")
            self.stamp()
            e(f"s_cmp_lg_u32 {s(S_W)}, 4"); e("s_cbranch_scc1 L_end1")
            e(f"s_add_u32 s60, s60, {STAMP_OFF}"); e("s_addc_u32 s61, s61, 0"); e("s_lshl_b32 s33, s2, 7"); e("s_add_u32 s60, s60, s33"); e("s_addc_u32 s61, s61, 0")
            e("v_mov_b32 v10, 0")
            for i in range(self.nst):
                e(f"v_mov_b32 v8, s{64+2*i}"); e(f"v_mov_b32 v9, s{65+2*i}")
                e(f"global_store_dwordx2 v10, v[8:9], s[60:61] offset:{8*i}"); e.nop(2)

    def own_range(self):
        e = self.e
        e(f"s_mul_i32 s94, {s(S_H)}, 21"); e("s_add_u32 s95, s94, 21"); e("s_lshr_b32 s94, s94, 2"); e("s_lshr_b32 s95, s95, 2")
        e("s_sub_u32 s95, s95, s94"); e("s_lshl_b32 s94, s94, 10"); e("s_lshl_b32 s95, s95, 10")

    def flag_srd(self):
        e = self.e
        e("s_load_dwordx4 s[44:47], s[0:1], 80")
        e(f"s_lshl_b32 s63, {s(S_BLK)}, 3"); e(f"s_add_u32 s63, s63, {s(S_B)}")
        e(f"s_mul_i32 {s(S_TMP)}, s63, {8448 if self.a.fused in (3, 7) else 8192}"); e(f"s_add_u32 {s(S_TMP)}, {s(S_TMP)}, {FLAG_OFF}")
        e(f"s_add_u32 s36, s60, {s(S_TMP)}"); e("s_addc_u32 s37, s61, 0"); e("s_mov_b32 s38, 8192"); e("s_mov_b32 s39, 0x20000")
        e("s_lshl_b32 s63, s63, 4")
        e.force_wait("lgkmcnt(0)")
        e("s_mov_b64 s[40:41], s[46:47]"); e("s_mov_b32 s42, 256"); e("s_mov_b32 s43, 0x20000")

    def flag(self, n):
        e = self.e
        e.wait_tag(("st", n))
        e(f"v_mov_b32 v9, {n+1}")
        e("buffer_store_dword v9, v8, s[36:39], s62 offen sc1")

    def sig7(self):
        e = self.e
        e("v_mov_b32 v4, 12288"); e("v_mov_b32 v3, 1")
        e.wait_tag(("st", self.a.st1 - 1))
        e("ds_add_u32 v4, v3")
        self.sig7_done = True

    def coord7(self, name, cnt_off, line, go_off):
        e = self.e
        e("v_mov_b32 v11, 12288"); e("s_mov_b32 s51, 0")
        e.label(name + "_c")
        e(f"ds_read_b32 v10, v11 offset:{cnt_off}"); e.force_wait("lgkmcnt(0)")
        e("v_readfirstlane_b32 s50, v10")
        if self.a.lsleep: e(f"s_sleep {self.a.lsleep}")
        e("s_cmp_lt_u32 s50, 256"); e(f"s_cbranch_scc1 {name}_c")
        e(f"v_mov_b32 v10, {line}"); e("v_mov_b32 v12, 1")
        e("s_mov_b64 exec, 1")
        e("buffer_atomic_add v12, v10, s[36:39], 0 offen sc0")
        e.force_wait("vmcnt(0)")
        e("v_add_u32 v12, 1, v12")
        e.label(name)
        e("v_readfirstlane_b32 s50, v12")
        e("s_add_u32 s51, s51, 1")
        e("s_cmp_ge_u32 s50, 16"); e(f"s_cbranch_scc1 {name}_ok")
        e("s_cmp_ge_u32 s51, 200000"); e(f"s_cbranch_scc1 {name}_ok")
        e("buffer_load_dword v12, v10, s[36:39], 0 offen sc1")
        e.force_wait("vmcnt(0)")
        e(f"s_branch {name}")
        e.label(name + "_ok")
        e("v_mov_b32 v12, 1")
        e(f"ds_write_b32 v11, v12 offset:{go_off}")
        e("s_endpgm")

    def tail7_A(self):
        e = self.e; a = self.a
        n1 = a.st1 * 768 // 16
        assert n1 % 24 == 0 and n1 // 3 <= 64
        e(f"s_cmp_lg_u32 {s(S_W)}, 0"); e("s_cbranch_scc1 L_a7")
        self.coord7("L_q1", 0, 0, 8)
        e.label("L_a7")
        e(f"s_mul_i32 s46, {s(S_H)}, {n1}"); e(f"s_mul_i32 {s(S_TMP)}, {s(S_U)}, {n1//3}"); e(f"s_add_u32 s46, s46, {s(S_TMP)}"); e(f"s_sub_u32 s46, s46, {n1//3}")
        e(f"s_mov_b32 s47, {n1//3}"); e("v_mov_b32 v11, 12296")
        e("s_branch L_sum")

    def tail7_B(self):
        e = self.e; a = self.a
        if not getattr(self, "sig7_done", False): self.sig7()
        n2 = (7 - a.st1) * 768 // 16
        assert n2 % 24 == 0 and n2 // 3 <= 64
        e.force_wait("vmcnt(0)")
        e("ds_add_u32 v4, v3 offset:4")
        self.stamp()
        e(f"s_cmp_lg_u32 {s(S_W)}, 7"); e("s_cbranch_scc1 L_b7")
        self.coord7("L_q2", 4, 4096, 12)
        e.label("L_b7")
        e(f"s_mul_i32 s46, {s(S_H)}, {n2}"); e(f"s_mul_i32 {s(S_TMP)}, {s(S_U)}, {n2//3}"); e(f"s_add_u32 s46, s46, {s(S_TMP)}"); e(f"s_add_u32 s46, s46, {a.st1*768}")
        e(f"s_mov_b32 s47, {n2//3}"); e("v_mov_b32 v11, 12300")
        e.label("L_sum")
        e("v_and_b32 v1, 63, v0"); e("v_add_u32 v2, s46, v1"); e("v_mov_b32 v4, 0x200000"); e("v_cmp_gt_u32 vcc, s47, v1")
        e("v_lshlrev_b32 v3, 4, v2"); e("v_cndmask_b32 v3, v4, v3, vcc")
        e("v_lshrrev_b32 v5, 8, v2"); e("v_mul_u32_u24 v6, 43, v5"); e("v_lshrrev_b32 v6, 7, v6")
        e("v_mul_u32_u24 v7, 3, v6"); e("v_sub_u32 v7, v5, v7")
        e(f"v_add_u32 v6, {s(S_RB)}, v6"); e("v_subrev_u32 v9, 7, v6"); e("v_min_u32 v6, v6, v9")
        e("v_and_b32 v8, 15, v2"); e("v_lshl_add_u32 v8, v7, 5, v8"); e("v_mul_u32_u24 v8, 1792, v8")
        e("v_lshl_add_u32 v8, v6, 7, v8"); e("v_bfe_u32 v9, v2, 4, 4"); e("v_lshl_add_u32 v8, v9, 3, v8")
        e("v_cndmask_b32 v8, v4, v8, vcc")
        e(f"s_lshr_b32 {s(S_TMP)}, s63, 4"); e(f"s_mul_i32 {s(S_TMP)}, {s(S_TMP)}, {16*86016}")
        e(f"s_add_u32 s52, s60, {s(S_TMP)}"); e("s_addc_u32 s53, s61, 0"); e(f"s_mov_b32 s54, {16*86016}"); e("s_mov_b32 s55, 0x20000")
        e("s_mov_b64 s[56:57], s[44:45]"); e(f"s_mov_b32 s58, {8*96*1792}"); e("s_mov_b32 s59, 0x20000")
        e(f"s_mul_i32 s49, {s(S_B)}, {96*1792}"); e(f"s_mul_i32 {s(S_TMP)}, {s(S_BLK)}, 896"); e(f"s_add_u32 s49, s49, {s(S_TMP)}")
        e(f"s_mov_b32 {s(S_SO)}, 0")
        e.label("L_go7")
        e("ds_read_b32 v10, v11"); e.force_wait("lgkmcnt(0)")
        e("v_readfirstlane_b32 s50, v10")
        if a.lsleep: e(f"s_sleep {a.lsleep}")
        e("s_cmp_eq_u32 s50, 0"); e("s_cbranch_scc1 L_go7")
        self.stamp()
        rp = self.pol(a.frpol)
        for h in range(16):
            e(f"buffer_load_dwordx4 {v(32+4*h,4)}, v3, s[52:55], {s(S_SO)} offen{rp}")
            if h < 15: e(f"s_add_u32 {s(S_SO)}, {s(S_SO)}, 86016")
        e("s_mov_b32 s50, 0xffff0000")
        for h in range(16):
            for k in range(4):
                r = 32 + 4 * h + k
                if h == 0:
                    e(f"v_lshlrev_b32 v{16+2*k}, 16, v{r}"); e(f"v_and_b32 v{17+2*k}, s50, v{r}")
                else:
                    e(f"v_lshlrev_b32 v{24+2*k}, 16, v{r}"); e(f"v_and_b32 v{25+2*k}, s50, v{r}")
                    e(f"v_pk_add_f32 {v(16+2*k,2)}, {v(16+2*k,2)}, {v(24+2*k,2)}")
        for k in range(4): e(f"v_cvt_pk_bf16_f32 v{24+k}, v{16+2*k}, v{17+2*k}")
        e("buffer_store_dwordx2 v[24:25], v8, s[56:59], s49 offen")
        e(f"s_add_u32 s49, s49, {16*1792}")
        e("buffer_store_dwordx2 v[26:27], v8, s[56:59], s49 offen")

    def srd6(self):
        e = self.e
        e("s_load_dwordx4 s[44:47], s[0:1], 80")
        e(f"s_add_u32 s36, s60, {FLAG_OFF}"); e("s_addc_u32 s37, s61, 0"); e(f"s_mov_b32 s38, {128*CSTR}"); e("s_mov_b32 s39, 0x20000")
        e("s_getreg_b32 s62, hwreg(HW_REG_XCC_ID, 0, 3)"); e("s_mul_i32 s62, s62, 3")
        e("s_and_b32 s63, s2, 63")
        e.force_wait("lgkmcnt(0)")
        e("s_mov_b64 s[40:41], s[46:47]"); e("s_mov_b32 s42, 256"); e("s_mov_b32 s43, 0x20000")
        e(f"s_mul_i32 s46, s63, {CSTR}")
        e("s_andn2_b32 s47, s63, 3"); e(f"s_add_u32 s47, s47, {s(S_PP)}"); e("s_add_u32 s47, s47, 64"); e(f"s_mul_i32 s47, s47, {CSTR}")
        e("s_lshl_b32 s63, s63, 2")

    def arrive(self, name, off):
        e = self.e
        e("v_mov_b32 v10, 0"); e("v_mov_b32 v12, 1")
        e("s_mov_b64 exec, 1")
        e(f"buffer_atomic_add v12, v10, s[36:39], {off} offen sc0")
        e("s_mov_b32 s51, 0")
        e.force_wait("vmcnt(0)")
        e("v_add_u32 v12, 1, v12")
        e.label(name)
        e("v_readfirstlane_b32 s50, v12")
        e("s_add_u32 s51, s51, 1")
        e("s_cmp_ge_u32 s50, 4"); e(f"s_cbranch_scc1 {name}_ok")
        e("s_cmp_ge_u32 s51, 200000"); e(f"s_cbranch_scc1 {name}_ok")
        if self.a.psleep: e(f"s_sleep {self.a.psleep}")
        e(f"buffer_load_dword v12, v10, s[36:39], {off} offen sc1")
        e.force_wait("vmcnt(0)")
        e(f"s_branch {name}")
        e.label(name + "_ok")
        e("s_mov_b64 exec, -1")

    def final6_setup(self):
        e = self.e
        e(f"s_lshr_b32 {s(S_TMP)}, {s(S_W)}, 2"); e(f"s_lshl_b32 {s(S_TMP)}, {s(S_TMP)}, 8"); e(f"v_add_u32 v1, {s(S_TMP)}, v0")
        e("v_cmp_le_u32 vcc, 192, v1"); e("v_subrev_u32 v2, 192, v1"); e("v_min_u32 v2, v2, v1")
        e(f"s_lshr_b32 {s(S_TMP)}, {s(S_H)}, 2"); e(f"s_mul_i32 {s(S_TMP)}, {s(S_TMP)}, 192"); e(f"v_add_u32 v2, {s(S_TMP)}, v2")
        e(f"s_add_u32 {s(S_TMP)}, {s(S_RB)}, 5"); e(f"v_mov_b32 v5, {s(S_TMP)}"); e("v_addc_co_u32 v5, vcc, 0, v5, vcc")
        e("v_subrev_u32 v6, 7, v5"); e("v_min_u32 v5, v5, v6")
        e(f"s_add_u32 {s(S_TMP)}, {s(S_PP)}, {self.a.yslot}"); e(f"s_and_b32 {s(S_TMP)}, {s(S_TMP)}, 3")
        e(f"v_lshl_add_u32 v6, v5, 2, {s(S_TMP)}"); e("v_mul_u32_u24 v6, 12288, v6"); e("v_lshl_add_u32 v3, v2, 4, v6")
        e("v_lshrrev_b32 v7, 8, v2"); e("v_and_b32 v8, 15, v2"); e("v_lshl_add_u32 v8, v7, 5, v8"); e("v_mul_u32_u24 v8, 1792, v8")
        e("v_lshl_add_u32 v8, v5, 7, v8"); e("v_bfe_u32 v9, v2, 4, 4"); e("v_lshl_add_u32 v8, v9, 3, v8")
        e(f"s_cmp_eq_u32 {s(S_PP)}, 3"); e(f"s_cselect_b32 {s(S_TMP)}, 192, 0"); e(f"v_subrev_u32 v9, {s(S_TMP)}, v1")
        e(f"s_sub_u32 {s(S_TMP)}, 384, {s(S_TMP)}"); e(f"v_cmp_gt_u32 vcc, {s(S_TMP)}, v9"); e("v_mov_b32 v4, 0x200000")
        e("v_cndmask_b32 v3, v4, v3, vcc"); e("v_cndmask_b32 v8, v4, v8, vcc")
        e("s_and_b32 s52, s2, 60"); e(f"s_mul_i32 {s(S_TMP)}, s52, {XQ}")
        e(f"s_add_u32 s52, s60, {s(S_TMP)}"); e("s_addc_u32 s53, s61, 0"); e(f"s_mov_b32 s54, {4*XQ}"); e("s_mov_b32 s55, 0x20000")
        e("s_mov_b64 s[56:57], s[44:45]"); e(f"s_mov_b32 s58, {8*96*1792}"); e("s_mov_b32 s59, 0x20000")
        e(f"s_mul_i32 s49, {s(S_B)}, {96*1792}"); e(f"s_mul_i32 {s(S_TMP)}, {s(S_BLK)}, 896"); e(f"s_add_u32 s49, s49, {s(S_TMP)}")

    def tail6_A(self):
        e = self.e; a = self.a
        self.final6_setup()
        e.barrier()
        e(f"s_cmp_lg_u32 {s(S_W)}, 0"); e("s_cbranch_scc1 L_a1")
        e("s_cmp_eq_u32 s48, 0"); e("s_cbranch_scc1 L_a0")
        e("buffer_wbl2 sc1"); e.force_wait("vmcnt(0)")
        e.label("L_a0")
        self.arrive("L_p1", "s46")
        e.label("L_a1")
        e.barrier()
        if a.junk == 1:
            e(f"s_cmp_lg_u32 {s(S_W)}, 1"); e("s_cbranch_scc1 L_j1"); e(f"s_cmp_ge_u32 s2, {a.junkn}"); e("s_cbranch_scc1 L_j1")
            e("buffer_wbl2 sc1")
            e.label("L_j1")
        e.barrier()
        if a.junk == 2:
            e(f"s_cmp_lg_u32 {s(S_W)}, 7"); e("s_cbranch_scc1 L_j1"); e.label("L_j1")
        e(f"s_cmp_lg_u32 {s(S_W)}, 0"); e("s_cbranch_scc1 L_fin")
        self.arrive("L_p2", "s47")
        e("s_branch L_fin")

    def tail6_B(self):
        e = self.e; a = self.a
        ACC = self.ACC
        e.force_wait("vmcnt(0)")
        e.barrier()
        for pi, pos in enumerate((5, 6)):
            e(f"s_add_u32 s{50+pi}, {s(S_RB)}, {pos}"); e(f"s_cmp_ge_u32 s{50+pi}, 7"); e(f"s_cselect_b32 {s(S_TMP)}, 7, 0"); e(f"s_sub_u32 s{50+pi}, s{50+pi}, {s(S_TMP)}")
            e(f"s_mul_i32 s{50+pi}, s{50+pi}, {4*12288}")
        e(f"s_cmp_eq_u32 {s(S_PP)}, 3"); e("s_cselect_b32 s50, 0x100000, s50")
        for j in range(0, 4):
            e(f"s_add_u32 s{91+j}, {s(S_PP)}, {j}"); e(f"s_and_b32 s{91+j}, s{91+j}, 3"); e(f"s_mul_i32 s{91+j}, s{91+j}, 12288")
        e("v_add_u32 v9, 4096, v7"); e("v_add_u32 v10, 8192, v7"); e("s_mov_b32 s95, 0xffff0000")
        self.stamp()
        e.barrier()
        self.stamp()
        VQ = [7, 9, 10]
        L = lambda pi, qt, j: 64 + 4 * ((pi * 3 + qt) * 3 + (j - 1))
        for pi in range(2):
            for qt in range(3):
                for j in range(1, 4):
                    e(f"s_add_u32 {s(S_SO)}, s{50+pi}, s{91+j}")
                    e(f"buffer_load_dwordx4 {v(L(pi,qt,j),4)}, v{VQ[qt]}, {s(S_R2,4)}, {s(S_SO)} offen{self.pol(a.xlpol)}")
        if a.stamps > 1:
            e.force_wait("vmcnt(0)"); self.stamp()
        for pi, pos in enumerate((5, 6)):
            for qt in range(3):
                a0 = ACC(pos, 2 * qt)
                for j in range(1, 4):
                    for k in range(4):
                        r = L(pi, qt, j) + k; t = 16 + 2 * ((j * 4 + k) % 8)
                        e(f"v_lshlrev_b32 v{t}, 16, v{r}"); e(f"v_and_b32 v{t+1}, s95, v{r}")
                        e(f"v_pk_add_f32 {v(a0+2*k,2)}, {v(a0+2*k,2)}, {v(t,2)}")
                for k in range(4): e(f"v_cvt_pk_bf16_f32 v{a0+k}, v{a0+2*k}, v{a0+2*k+1}")
                e(f"s_add_u32 {s(S_SO)}, s{50+pi}, s{91+a.yslot}")
                e(f"buffer_store_dwordx4 {v(a0,4)}, v{VQ[qt]}, {s(S_R2,4)}, {s(S_SO)} offen sc1")
        if a.stamps > 1: self.stamp()
        self.final6_setup()
        e.force_wait("vmcnt(0)")
        self.stamp()
        e.barrier()
        if a.junk == 2:
            e(f"s_cmp_lg_u32 {s(S_W)}, 7"); e("s_cbranch_scc1 L_fin"); e(f"s_cmp_ge_u32 s2, {a.junkn}"); e("s_cbranch_scc1 L_fin")
            e("buffer_wbl2 sc1")
        e.label("L_fin")
        e.barrier()
        self.stamp()
        e(f"s_cmp_ge_u32 {s(S_W)}, 6"); e("s_cbranch_scc1 L_end1")
        e(f"s_mov_b32 {s(S_SO)}, 0"); e("s_mov_b32 s50, 0xffff0000")
        for j in range(4):
            e(f"buffer_load_dwordx4 {v(32+4*j,4)}, v3, s[52:55], {s(S_SO)} offen sc1")
            if j < 3: e(f"s_add_u32 {s(S_SO)}, {s(S_SO)}, {XQ}")
        for h in range(4):
            for k in range(4):
                r = 32 + 4 * h + k
                if h == 0:
                    e(f"v_lshlrev_b32 v{16+2*k}, 16, v{r}"); e(f"v_and_b32 v{17+2*k}, s50, v{r}")
                else:
                    e(f"v_lshlrev_b32 v{24+2*k}, 16, v{r}"); e(f"v_and_b32 v{25+2*k}, s50, v{r}")
                    e(f"v_pk_add_f32 {v(16+2*k,2)}, {v(16+2*k,2)}, {v(24+2*k,2)}")
        for k in range(4): e(f"v_cvt_pk_bf16_f32 v{24+k}, v{16+2*k}, v{17+2*k}")
        e("buffer_store_dwordx2 v[24:25], v8, s[56:59], s49 offen")
        e(f"s_add_u32 s49, s49, {16*1792}")
        e("buffer_store_dwordx2 v[26:27], v8, s[56:59], s49 offen")

    def reduce5(self):
        e = self.e; a = self.a
        self.flag_srd()
        e("v_and_b32 v1, 63, v0"); e("v_mov_b32 v11, 12288")
        e(f"s_cmp_lg_u32 {s(S_W)}, 3"); e("s_cbranch_scc1 L_cons")
        e("v_mov_b32 v6, 0")
        self.poll("L_pc", "buffer_load_dword v10, v6, s[40:43], s63 offen sc1", "v_cmp_le_u32 vcc, 16, v10")
        e("v_and_b32 v5, 15, v1"); e("v_lshlrev_b32 v5, 9, v5")
        e("s_mov_b32 s51, 0")
        e.label("L_pl")
        e("buffer_load_dword v10, v5, s[36:39], 0 offen sc1"); e.force_wait("vmcnt(0)")
        e("v_cmp_ne_u32 vcc, 0, v10")
        e("s_add_u32 s51, s51, 1")
        e("s_and_b32 s50, vcc_lo, 0xffff")
        e("s_cmp_ge_u32 s51, 200000"); e("s_cselect_b32 s50, 0xffff, s50")
        e("v_mov_b32 v12, s50"); e("ds_write_b32 v11, v12")
        e("s_cmp_eq_u32 s50, 0xffff"); e("s_cbranch_scc1 L_end1")
        if a.psleep: e(f"s_sleep {a.psleep}")
        e("s_branch L_pl")
        e.label("L_cons")
        e(f"s_lshr_b32 {s(S_TMP)}, s63, 4"); e(f"s_mul_i32 {s(S_TMP)}, {s(S_TMP)}, {16*86016}")
        e(f"s_add_u32 s52, s60, {s(S_TMP)}"); e("s_addc_u32 s53, s61, 0"); e(f"s_mov_b32 s54, {16*86016}"); e("s_mov_b32 s55, 0x20000")
        e("s_mov_b64 s[56:57], s[44:45]"); e(f"s_mov_b32 s58, {8*96*1792}"); e("s_mov_b32 s59, 0x20000")
        e(f"s_mul_i32 {s(S_TMP)}, {s(S_H)}, 336"); e(f"s_mul_i32 s46, {s(S_U)}, 112"); e(f"s_add_u32 {s(S_TMP)}, {s(S_TMP)}, s46")
        e(f"v_add_u32 v2, {s(S_TMP)}, v1"); e("v_add_u32 v3, 64, v2"); e("v_mov_b32 v4, 0x200000")
        e("v_cmp_gt_u32 s[48:49], 48, v1")
        e(f"s_mul_i32 s47, {s(S_B)}, {96*1792}"); e(f"s_mul_i32 {s(S_TMP)}, {s(S_BLK)}, 896"); e(f"s_add_u32 s47, s47, {s(S_TMP)}")
        for E, LD, OUT in ((2, 6, 8), (3, 7, 9)):
            e(f"v_lshlrev_b32 v{LD}, 4, v{E}")
            e(f"v_lshrrev_b32 v10, 8, v{E}"); e("v_mul_u32_u24 v12, 43, v10"); e("v_lshrrev_b32 v12, 7, v12")
            e("v_mul_u32_u24 v13, 3, v12"); e("v_sub_u32 v13, v10, v13")
            e(f"v_and_b32 v{OUT}, 15, v{E}"); e(f"v_lshl_add_u32 v{OUT}, v13, 5, v{OUT}"); e(f"v_mul_u32_u24 v{OUT}, 1792, v{OUT}")
            e(f"v_lshl_add_u32 v{OUT}, v12, 7, v{OUT}"); e(f"v_bfe_u32 v13, v{E}, 4, 4"); e(f"v_lshl_add_u32 v{OUT}, v13, 3, v{OUT}")
        e("v_cndmask_b32 v7, v4, v7, s[48:49]"); e("v_cndmask_b32 v9, v4, v9, s[48:49]")
        e("s_mov_b32 s50, 0xffff0000"); e("s_mov_b32 s48, 0")
        rp = self.pol(a.frpol)
        e.label("L_cl")
        e("ds_read_b32 v10, v11"); e.force_wait("lgkmcnt(0)")
        e("v_readfirstlane_b32 s49, v10")
        e("s_andn2_b32 s46, s49, s48")
        e("s_cbranch_scc1 L_cn")
        e("s_sleep 1"); e("s_branch L_cl")
        e.label("L_cn")
        for h in range(16):
            e(f"s_bitcmp1_b32 s46, {h}"); e(f"s_cbranch_scc0 L_ch{h}")
            e(f"s_mov_b32 {s(S_SO)}, {h*86016}")
            e(f"buffer_load_dwordx4 {v(32+4*h,4)}, v6, s[52:55], {s(S_SO)} offen{rp}")
            e(f"buffer_load_dwordx4 {v(96+4*h,4)}, v7, s[52:55], {s(S_SO)} offen{rp}")
            e.label(f"L_ch{h}")
        e("s_or_b32 s48, s48, s46"); e("s_cmp_lg_u32 s48, 0xffff"); e("s_cbranch_scc1 L_cl")
        e.force_wait("vmcnt(0)")
        for base, OUT in ((32, 8), (96, 9)):
            for h in range(16):
                for k in range(4):
                    r = base + 4 * h + k
                    if h == 0:
                        e(f"v_lshlrev_b32 v{16+2*k}, 16, v{r}"); e(f"v_and_b32 v{17+2*k}, s50, v{r}")
                    else:
                        e(f"v_lshlrev_b32 v{24+2*k}, 16, v{r}"); e(f"v_and_b32 v{25+2*k}, s50, v{r}")
                        e(f"v_pk_add_f32 {v(16+2*k,2)}, {v(16+2*k,2)}, {v(24+2*k,2)}")
            for k in range(4): e(f"v_cvt_pk_bf16_f32 v{base+k}, v{16+2*k}, v{17+2*k}")
            e(f"buffer_store_dwordx2 {v(base,2)}, v{OUT}, s[56:59], s47 offen")
            e(f"s_add_u32 {s(S_TMP)}, s47, {16*1792}")
            e(f"buffer_store_dwordx2 {v(base+2,2)}, v{OUT}, s[56:59], {s(S_TMP)} offen")
        if a.stamps:
            e.force_wait("vmcnt(0)")
            e("s_memrealtime s[64:65]"); e.force_wait("lgkmcnt(0)")
            e(f"s_cmp_lg_u32 {s(S_W)}, 2"); e("s_cbranch_scc1 L_end1")
            e(f"s_add_u32 s60, s60, {STAMP_OFF}"); e("s_addc_u32 s61, s61, 0"); e("s_lshl_b32 s33, s2, 7"); e("s_add_u32 s60, s60, s33"); e("s_addc_u32 s61, s61, 0")
            e("v_mov_b32 v10, 0"); e("v_mov_b32 v8, s64"); e("v_mov_b32 v9, s65")
            e(f"global_store_dwordx2 v10, v[8:9], s[60:61] offset:{8*a.astamp}")

    def sig4(self, issued):
        e = self.e
        ends = [7, 15, 20]
        while self.nsig < 3 and issued - 1 - ends[self.nsig] >= self.a.sig_lag:
            e.wait_tag(("sp", ends[self.nsig]))
            e(f"v_mov_b32 v9, {1 << (8 * self.nsig)}")
            e("buffer_atomic_add v9, v8, s[36:39], s62 offen")
            self.nsig += 1

    def staged_reduce4(self):
        e = self.e; a = self.a
        e(f"s_lshr_b32 {s(S_TMP)}, s63, 4"); e(f"s_mul_i32 {s(S_TMP)}, {s(S_TMP)}, {16*86016}")
        e(f"s_add_u32 s52, s60, {s(S_TMP)}"); e("s_addc_u32 s53, s61, 0"); e(f"s_mov_b32 s54, {16*86016}"); e("s_mov_b32 s55, 0x20000")
        e("s_mov_b64 s[56:57], s[44:45]"); e(f"s_mov_b32 s58, {8*96*1792}"); e("s_mov_b32 s59, 0x20000")
        e(f"s_lshl_b32 s62, {s(S_U)}, 7")
        e("v_and_b32 v1, 63, v0"); e("v_mov_b32 v4, 0x200000")
        e("v_lshrrev_b32 v2, 5, v1"); e("v_lshlrev_b32 v2, 9, v2"); e("v_and_b32 v3, 31, v1"); e("v_add_u32 v2, v2, v3")
        e(f"s_lshl_b32 {s(S_TMP)}, {s(S_H)}, 5"); e(f"v_add_u32 v2, {s(S_TMP)}, v2")
        e(f"s_lshl_b32 {s(S_TMP)}, {s(S_H)}, 4"); e(f"s_add_u32 {s(S_TMP)}, {s(S_TMP)}, 1024"); e(f"v_add_u32 v3, {s(S_TMP)}, v1")
        e(f"s_lshl_b32 {s(S_TMP)}, {s(S_H)}, 3"); e(f"s_add_u32 {s(S_TMP)}, {s(S_TMP)}, 1264"); e(f"v_add_u32 v5, {s(S_TMP)}, v1")
        e("v_cmp_gt_u32 vcc, 16, v1"); e("v_cndmask_b32 v3, v5, v3, vcc")
        e(f"s_cmp_lt_u32 {s(S_H)}, 8"); e("s_cselect_b32 s46, 24, 16")
        e("v_cmp_gt_u32 s[48:49], s46, v1")
        e(f"s_mul_i32 s47, {s(S_B)}, {96*1792}"); e(f"s_mul_i32 {s(S_TMP)}, {s(S_BLK)}, 896"); e(f"s_add_u32 s47, s47, {s(S_TMP)}")
        e(f"s_lshl_b32 {s(S_TMP)}, {s(S_U)}, 5"); e(f"s_add_u32 s47, s47, {s(S_TMP)}")
        for E, LD, OUT in ((2, 6, 8), (3, 7, 9)):
            e(f"v_lshlrev_b32 v{LD}, 4, v{E}")
            e(f"v_lshrrev_b32 v10, 6, v{E}"); e("v_mul_u32_u24 v11, 43, v10"); e("v_lshrrev_b32 v11, 7, v11")
            e("v_mul_u32_u24 v12, 3, v11"); e("v_sub_u32 v12, v10, v12")
            e(f"v_add_u32 v11, {s(S_RB)}, v11"); e("v_subrev_u32 v13, 7, v11"); e("v_min_u32 v11, v11, v13")
            e(f"v_and_b32 v{OUT}, 15, v{E}"); e(f"v_lshl_add_u32 v{OUT}, v12, 5, v{OUT}"); e(f"v_mul_u32_u24 v{OUT}, 1792, v{OUT}")
            e(f"v_lshl_add_u32 v{OUT}, v11, 7, v{OUT}"); e(f"v_bfe_u32 v13, v{E}, 4, 2"); e(f"v_lshl_add_u32 v{OUT}, v13, 3, v{OUT}")
        e("v_cndmask_b32 v7, v4, v7, s[48:49]"); e("v_cndmask_b32 v9, v4, v9, s[48:49]")
        e("v_mov_b32 v5, 0"); e("s_mov_b32 s50, 0xffff0000")
        rp = self.pol(a.frpol)
        def summ(base, OUT):
            for h in range(16):
                for k in range(4):
                    r = base + 4 * h + k
                    if h == 0:
                        e(f"v_lshlrev_b32 v{16+2*k}, 16, v{r}"); e(f"v_and_b32 v{17+2*k}, s50, v{r}")
                    else:
                        e(f"v_lshlrev_b32 v{24+2*k}, 16, v{r}"); e(f"v_and_b32 v{25+2*k}, s50, v{r}")
                        e(f"v_pk_add_f32 {v(16+2*k,2)}, {v(16+2*k,2)}, {v(24+2*k,2)}")
            for k in range(4): e(f"v_cvt_pk_bf16_f32 v{24+k}, v{16+2*k}, v{17+2*k}")
            e(f"buffer_store_dwordx2 v[24:25], v{OUT}, s[56:59], s47 offen")
            e(f"s_add_u32 {s(S_TMP)}, s47, {16*1792}")
            e(f"buffer_store_dwordx2 v[26:27], v{OUT}, s[56:59], {s(S_TMP)} offen")
        for st in range(3):
            self.poll(f"L_pf{st}", "buffer_load_dword v10, v5, s[36:39], s62 offen sc1", f"v_bfe_u32 v10, v10, {8*st}, 8|v_cmp_le_u32 vcc, 16, v10")
            if st == 0: e("s_mov_b32 exec_hi, 0")
            if st == 1: e("s_mov_b32 exec_lo, 0")
            e(f"s_mul_i32 {s(S_SO)}, {s(S_U)}, 21504")
            for h in range(16):
                e(f"buffer_load_dwordx4 {v((32 if st < 2 else 96)+4*h,4)}, v{6 if st < 2 else 7}, s[52:55], {s(S_SO)} offen{rp}")
                if h < 15: e(f"s_add_u32 {s(S_SO)}, {s(S_SO)}, 86016")
            e("s_mov_b64 exec, -1")
        summ(32, 8)
        summ(96, 9)
        if a.stamps:
            e.force_wait("vmcnt(0)")
            e("s_memrealtime s[64:65]"); e.force_wait("lgkmcnt(0)")
            e(f"s_cmp_lg_u32 {s(S_W)}, 2"); e("s_cbranch_scc1 L_end1")
            e(f"s_add_u32 s60, s60, {STAMP_OFF}"); e("s_addc_u32 s61, s61, 0"); e("s_lshl_b32 s33, s2, 7"); e("s_add_u32 s60, s60, s33"); e("s_addc_u32 s61, s61, 0")
            e("v_mov_b32 v10, 0"); e("v_mov_b32 v8, s64"); e("v_mov_b32 v9, s65")
            e(f"global_store_dwordx2 v10, v[8:9], s[60:61] offset:{8*a.astamp}")

    def poll(self, name, load, cmp):
        e = self.e
        e("s_mov_b32 s51, 0")
        e.label(name)
        e(load); e.force_wait("vmcnt(0)")
        for cc in cmp.split("|"): e(cc)
        e("s_add_u32 s51, s51, 1")
        e("s_cmp_eq_u64 vcc, -1"); e(f"s_cbranch_scc1 {name}_ok")
        e("s_cmp_ge_u32 s51, 200000"); e(f"s_cbranch_scc1 {name}_ok")
        if self.a.psleep: e(f"s_sleep {self.a.psleep}")
        e(f"s_branch {name}")
        e.label(name + "_ok")

    def staged_reduce(self):
        e = self.e; a = self.a
        self.flag_srd()
        e(f"s_lshr_b32 {s(S_TMP)}, s63, 4"); e(f"s_mul_i32 {s(S_TMP)}, {s(S_TMP)}, {16*86016}")
        e(f"s_add_u32 s52, s60, {s(S_TMP)}"); e("s_addc_u32 s53, s61, 0"); e(f"s_mov_b32 s54, {16*86016}"); e("s_mov_b32 s55, 0x20000")
        e("s_mov_b64 s[56:57], s[44:45]"); e(f"s_mov_b32 s58, {8*96*1792}"); e("s_mov_b32 s59, 0x20000")
        e("v_and_b32 v1, 63, v0")
        e(f"s_lshr_b32 {s(S_TMP)}, {s(S_H)}, 2"); e(f"s_mul_i32 {s(S_TMP)}, {s(S_TMP)}, 48"); e(f"v_add_u32 v2, {s(S_TMP)}, v1")
        e("v_lshrrev_b32 v3, 6, v2"); e("v_and_b32 v2, 63, v2"); e("v_lshl_add_u32 v2, v3, 8, v2")
        e(f"s_and_b32 s46, {s(S_H)}, 3"); e(f"s_lshl_b32 {s(S_TMP)}, s46, 6"); e(f"v_add_u32 v2, {s(S_TMP)}, v2")
        e("s_lshl_b32 s46, s46, 7")
        e("v_mov_b32 v4, 0x200000"); e("v_cmp_gt_u32 vcc, 48, v1")
        e("v_lshlrev_b32 v3, 4, v2"); e("v_cndmask_b32 v3, v4, v3, vcc")
        e("v_lshrrev_b32 v7, 8, v2"); e("v_and_b32 v8, 15, v2"); e("v_lshl_add_u32 v8, v7, 5, v8"); e("v_mul_u32_u24 v8, 1792, v8")
        e("v_bfe_u32 v9, v2, 4, 4"); e("v_lshl_add_u32 v8, v9, 3, v8"); e("v_cndmask_b32 v8, v4, v8, vcc")
        e("v_and_b32 v5, 15, v1"); e("v_lshlrev_b32 v5, 9, v5"); e("v_mov_b32 v6, 0")
        e(f"s_mul_i32 s49, {s(S_B)}, {96*1792}"); e(f"s_mul_i32 {s(S_TMP)}, {s(S_BLK)}, 896"); e(f"s_add_u32 s49, s49, {s(S_TMP)}")
        e("s_mov_b32 s50, 0xffff0000")
        self.poll("L_pc", "buffer_load_dword v10, v6, s[40:43], s63 offen sc1", "v_cmp_le_u32 vcc, 16, v10")
        e(f"s_mov_b32 s48, {s(S_U)}")
        e.label("L_stage")
        self.poll("L_pf", "buffer_load_dword v10, v5, s[36:39], s46 offen sc1", "v_cmp_lt_u32 vcc, s48, v10")
        e(f"s_add_u32 s47, s48, {s(S_RB)}"); e("s_cmp_ge_u32 s47, 7"); e(f"s_cselect_b32 {s(S_TMP)}, 7, 0"); e(f"s_sub_u32 s47, s47, {s(S_TMP)}")
        e(f"s_mul_i32 {s(S_SO)}, s47, 12288")
        rp = self.pol(a.frpol)
        for h in range(16):
            e(f"buffer_load_dwordx4 {v(32+4*h,4)}, v3, s[52:55], {s(S_SO)} offen{rp}")
            if h < 15: e(f"s_add_u32 {s(S_SO)}, {s(S_SO)}, 86016")
        e("s_lshl_b32 s47, s47, 7"); e("s_add_u32 s47, s47, s49")
        for h in range(16):
            for k in range(4):
                r = 32 + 4 * h + k
                if h == 0:
                    e(f"v_lshlrev_b32 v{16+2*k}, 16, v{r}"); e(f"v_and_b32 v{17+2*k}, s50, v{r}")
                else:
                    e(f"v_lshlrev_b32 v{24+2*k}, 16, v{r}"); e(f"v_and_b32 v{25+2*k}, s50, v{r}")
                    e(f"v_pk_add_f32 {v(16+2*k,2)}, {v(16+2*k,2)}, {v(24+2*k,2)}")
        for k in range(4): e(f"v_cvt_pk_bf16_f32 v{24+k}, v{16+2*k}, v{17+2*k}")
        e("buffer_store_dwordx2 v[24:25], v8, s[56:59], s47 offen")
        e(f"s_add_u32 s47, s47, {16*1792}")
        e("buffer_store_dwordx2 v[26:27], v8, s[56:59], s47 offen")
        e("s_add_u32 s48, s48, 4"); e("s_cmp_lt_u32 s48, 7"); e("s_cbranch_scc1 L_stage")
        if a.stamps:
            e.force_wait("vmcnt(0)")
            e("s_memrealtime s[64:65]"); e.force_wait("lgkmcnt(0)")
            e(f"s_cmp_lg_u32 {s(S_W)}, 2"); e("s_cbranch_scc1 L_end1")
            e(f"s_add_u32 s60, s60, {STAMP_OFF}"); e("s_addc_u32 s61, s61, 0"); e("s_lshl_b32 s33, s2, 7"); e("s_add_u32 s60, s60, s33"); e("s_addc_u32 s61, s61, 0")
            e("v_mov_b32 v10, 0"); e("v_mov_b32 v8, s64"); e("v_mov_b32 v9, s65")
            e(f"global_store_dwordx2 v10, v[8:9], s[60:61] offset:{8*a.astamp}")

    def fused_reduce(self):
        e = self.e; a = self.a
        e.label("L_red")
        e.nop(12)
        e("s_load_dwordx4 s[40:43], s[0:1], 80")
        e(f"s_lshr_b32 {s(S_TMP)}, {s(S_W)}, 2"); e(f"s_lshl_b32 {s(S_TMP)}, {s(S_TMP)}, 8")
        e(f"v_add_u32 v1, {s(S_TMP)}, v0")
        if a.own:
            self.own_range()
            e(f"s_lshr_b32 {s(S_TMP)}, s94, 4"); e("s_lshr_b32 s95, s95, 4")
        else:
            e(f"s_mul_i32 {s(S_TMP)}, {s(S_H)}, 336"); e("s_mov_b32 s95, 336")
        e(f"v_add_u32 v2, {s(S_TMP)}, v1")
        e("v_lshlrev_b32 v3, 4, v2")
        e("v_mov_b32 v4, 0x200000")
        e("v_cmp_gt_u32 vcc, s95, v1")
        e("v_cndmask_b32 v3, v4, v3, vcc")
        e(f"s_lshl_b32 s48, {s(S_BLK)}, 3"); e(f"s_add_u32 s48, s48, {s(S_B)}")
        e(f"s_mul_i32 {s(S_TMP)}, s48, {16*86016}")
        e(f"s_add_u32 s44, s60, {s(S_TMP)}"); e("s_addc_u32 s45, s61, 0"); e(f"s_mov_b32 s46, {16*86016}"); e("s_mov_b32 s47, 0x20000")
        e("v_lshrrev_b32 v5, 8, v2"); e("v_mul_u32_u24 v6, 43, v5"); e("v_lshrrev_b32 v6, 7, v6")
        e("v_mul_u32_u24 v7, 3, v6"); e("v_sub_u32 v7, v5, v7")
        e("v_and_b32 v8, 15, v2"); e("v_lshl_add_u32 v8, v7, 5, v8"); e("v_mul_u32_u24 v8, 1792, v8")
        e("v_lshl_add_u32 v8, v6, 7, v8"); e("v_bfe_u32 v9, v2, 4, 4"); e("v_lshl_add_u32 v8, v9, 3, v8")
        e("v_cndmask_b32 v8, v4, v8, vcc")
        e(f"s_mul_i32 s49, {s(S_B)}, {96*1792}"); e(f"s_mul_i32 {s(S_TMP)}, {s(S_BLK)}, 896"); e(f"s_add_u32 s49, s49, {s(S_TMP)}")
        e.force_wait("vmcnt(0) lgkmcnt(0)")
        e("s_mov_b64 s[52:53], s[40:41]"); e(f"s_mov_b32 s54, {8*96*1792}"); e("s_mov_b32 s55, 0x20000")
        e.barrier()
        e(f"s_cmp_lg_u32 {s(S_W)}, 0"); e("s_cbranch_scc1 L_go")
        e("s_lshl_b32 s50, s48, 4")
        if a.fused == 3:
            e("s_mov_b32 s50, 0"); e("s_mov_b64 s[42:43], s[36:37]")
        e("v_mov_b32 v10, s50"); e("v_mov_b32 v11, 1")
        e("s_mov_b64 exec, 1")
        e("global_atomic_add v12, v10, v11, s[42:43] sc0")
        e("s_mov_b32 s51, 0")
        e.force_wait("vmcnt(0)")
        e("v_add_u32 v12, 1, v12")
        e.label("L_poll")
        e("v_readfirstlane_b32 s50, v12")
        e("s_add_u32 s51, s51, 1")
        e("s_cmp_ge_u32 s50, 16"); e("s_cbranch_scc1 L_polled")
        e(f"s_cmp_ge_u32 s51, 200000"); e("s_cbranch_scc1 L_polled")
        if a.psleep: e(f"s_sleep {a.psleep}")
        e("global_load_dword v12, v10, s[42:43] sc1")
        e.force_wait("vmcnt(0)")
        e("s_branch L_poll")
        e.label("L_polled")
        e("s_mov_b64 exec, -1")
        e.label("L_go")
        e.barrier()
        self.stamp()
        e(f"s_cmp_ge_u32 {s(S_W)}, 6"); e("s_cbranch_scc1 L_end1")
        rp = self.pol(a.frpol)
        if a.own:
            e(f"s_mul_i32 {s(S_SO)}, {s(S_H)}, 86016")
            for h in range(15):
                e(f"s_add_u32 {s(S_SO)}, {s(S_SO)}, 86016"); e(f"s_cmp_eq_u32 {s(S_SO)}, {16*86016}"); e(f"s_cselect_b32 {s(S_SO)}, 0, {s(S_SO)}")
                e(f"buffer_load_dwordx4 {v(36+4*h,4)}, v3, s[44:47], {s(S_SO)} offen{rp}")
            e("v_lshlrev_b32 v1, 4, v1"); e(f"v_add_u32 v1, {self.own_lds}, v1"); e("ds_read_b128 v[32:35], v1")
        for h in range(16 if not a.own else 0):
            e(f"s_mov_b32 {s(S_SO)}, {h*86016}")
            e(f"buffer_load_dwordx4 {v(32+4*h,4)}, v3, s[44:47], {s(S_SO)} offen{rp}")
        e("s_mov_b32 s50, 0xffff0000")
        for h in range(16):
            for k in range(4):
                r = 32 + 4 * h + k
                if h == 0:
                    e(f"v_lshlrev_b32 v{16+2*k}, 16, v{r}"); e(f"v_and_b32 v{17+2*k}, s50, v{r}")
                else:
                    e(f"v_lshlrev_b32 v{24+2*k}, 16, v{r}"); e(f"v_and_b32 v{25+2*k}, s50, v{r}")
                    e(f"v_pk_add_f32 {v(16+2*k,2)}, {v(16+2*k,2)}, {v(24+2*k,2)}")
        for k in range(4): e(f"v_cvt_pk_bf16_f32 v{24+k}, v{16+2*k}, v{17+2*k}")
        e("buffer_store_dwordx2 v[24:25], v8, s[52:55], s49 offen")
        e(f"s_add_u32 s49, s49, {16*1792}")
        e("buffer_store_dwordx2 v[26:27], v8, s[52:55], s49 offen")

    def maxpart(self, m, b, part, first):
        e = self.e
        if part == 0:
            if first:
                e(f"v_max3_f32 {v(m)}, {v(b)}, {v(b+1)}, {v(b+1)}")
            else:
                e(f"v_max3_f32 {v(m)}, {v(m)}, {v(b)}, {v(b+1)}")
            e(f"v_max3_f32 {v(m)}, {v(m)}, {v(b+2)}, {v(b+3)}"); e(f"v_max3_f32 {v(m)}, {v(m)}, {v(b+4)}, {v(b+5)}")
        elif part == 1:
            for k in (6, 8, 10): e(f"v_max3_f32 {v(m)}, {v(m)}, {v(b+k)}, {v(b+k+1)}")
        else:
            for k in (12, 14): e(f"v_max3_f32 {v(m)}, {v(m)}, {v(b+k)}, {v(b+k+1)}")

    def max8(self, m, b, first):
        e = self.e
        if first: e(f"v_max_f32 {v(m)}, {v(b)}, {v(b+1)}")
        else: e(f"v_max3_f32 {v(m)}, {v(m)}, {v(b)}, {v(b+1)}")
        for k in (2, 4, 6): e(f"v_max3_f32 {v(m)}, {v(m)}, {v(b+k)}, {v(b+k+1)}")

    def sums16(self, T, S16):
        e = self.e
        for q6 in range(6):
            r = S16(T, q6)
            e(f"v_pk_add_f32 {v(r,2)}, {v(r,2)}, {v(r+4,2)}"); e(f"v_pk_add_f32 {v(r+2,2)}, {v(r+2,2)}, {v(r+6,2)}")
        for q6 in range(6):
            r = S16(T, q6)
            e(f"v_pk_add_f32 {v(r,2)}, {v(r,2)}, {v(r+2,2)}")
        for q6 in range(6 if T else 0):
            e(f"v_pk_add_f32 {v(S16(0,q6),2)}, {v(S16(0,q6),2)}, {v(S16(T,q6),2)}")

    def sumw16(self, S16):
        e = self.e
        for q6 in range(6):
            r = S16(0, q6)
            e(f"v_add_f32 {v(r)}, {v(r)}, {v(r+1)}")
            e(f"ds_write_b32 v12, {v(r)} offset:{q6*1024}")

    def sums(self, T, SACC, SUM):
        e = self.e
        for qt in range(3):
            r = SACC(T, qt)
            for k in range(0, 8, 2): e(f"v_pk_add_f32 {v(r+k,2)}, {v(r+k,2)}, {v(r+8+k,2)}")
            for k in range(0, 4, 2): e(f"v_pk_add_f32 {v(r+k,2)}, {v(r+k,2)}, {v(r+4+k,2)}")
            e(f"v_pk_add_f32 {v(r,2)}, {v(r,2)}, {v(r+2,2)}")
            if T == 0: e(f"v_add_f32 {v(SUM+qt)}, {v(r)}, {v(r+1)}")
            else:
                e(f"v_add_f32 {v(r)}, {v(r)}, {v(r+1)}"); e(f"v_add_f32 {v(SUM+qt)}, {v(SUM+qt)}, {v(r)}")

    def store_cb(self, cb):
        e = self.e
        wp = self.pol(self.a.wpol)
        for qt in range(3):
            a0, a1 = self.ACC(cb, 2 * qt), self.ACC(cb, 2 * qt + 1)
            tt = a0
            if self.a.fused == 6:
                wp = self.pol(self.a.xpol)
                if cb == 5:
                    tt = self.ACC(3, 2 * qt)
                    if qt == 0:
                        e(f"s_cmp_eq_u32 {s(S_PP)}, 3"); e(f"s_cselect_b32 {s(S_ST)}, {s(S_ST)}, 0x100000")
            if self.a.defer:
                assert self.a.fused in (0, 1, 3, 7)
                for k in range(4): e(f"v_mul_f32 {v(a0+k)}, {v(8+2*qt)}, {v(a0+k)}")
                for k in range(4): e(f"v_mul_f32 {v(a1+k)}, {v(9+2*qt)}, {v(a1+k)}")
            e(f"v_cvt_pk_bf16_f32 {v(tt)}, {v(a0)}, {v(a0+1)}"); e(f"v_cvt_pk_bf16_f32 {v(tt+1)}, {v(a0+2)}, {v(a0+3)}")
            e(f"v_cvt_pk_bf16_f32 {v(tt+2)}, {v(a1)}, {v(a1+1)}"); e(f"v_cvt_pk_bf16_f32 {v(tt+3)}, {v(a1+2)}, {v(a1+3)}")
            if self.a.fused == 4:
                e(f"buffer_store_dwordx4 {v(tt,4)}, v7, {s(S_R2,4)}, {s(S_ST)} offen offset:{qt*1024}{wp}", tag=("sp", 3 * cb + qt))
                if qt == 2:
                    e(f"s_add_u32 {s(S_ST)}, {s(S_ST)}, 3072"); e("s_nop 0"); e("s_nop 0")
                    return
                continue
            if self.a.stconst:
                for k in range(4): e(f"v_mov_b32 {v(tt+k)}, 0")
            if self.a.own:
                lab = f"L_ow{cb}_{qt}"
                e("#BEGIN")
                e(f"s_sub_u32 {s(S_TMP)}, {s(S_ST)}, s94"); e(f"s_cmp_lt_u32 {s(S_TMP)}, s95"); e(f"s_cbranch_scc1 {lab}")
                e(f"buffer_store_dwordx4 {v(tt,4)}, v7, {s(S_R2,4)}, {s(S_ST)} offen{wp}", tag=("st", cb))
                e(f"#LABEL {lab}_r")
                e("#END")
                self.own_blocks.append((lab, tt))
            else:
                e(f"buffer_store_dwordx4 {v(tt,4)}, v7, {s(S_R2,4)}, {s(S_ST)} offen{wp}", tag=("st", cb))
            if qt < 2: e(f"s_add_u32 {s(S_ST)}, {s(S_ST)}, 4096")
        if self.a.fused == 6:
            e(f"s_add_u32 {s(S_ST)}, {s(S_ST)}, {4096 + 3*12288 - XQ & 0xffffffff}"); e(f"s_cselect_b32 {s(S_TMP)}, 0, {XQ}"); e(f"s_add_u32 {s(S_ST)}, {s(S_ST)}, {s(S_TMP)}")
            return
        e(f"s_add_u32 {s(S_ST)}, {s(S_ST)}, 4096"); e(f"s_cmp_eq_u32 {s(S_ST)}, 86016"); e(f"s_cselect_b32 {s(S_ST)}, 0, {s(S_ST)}")

    def kernel1(self):
        e = self.e
        self.oage = {}; self.sinfo = {}; self.parked = set(); self.nsig = 0; self.own_blocks = []
        self.build_plan()
        e.label(NAME + "_kernel")
        self.prologue()
        snap = e.snapshot(); nst = self.nst
        self.role_A()
        e.restore(snap); self.nst = nst
        e.label("L_roleB")
        self.role_B()
        e.label("L_end1"); e("s_endpgm")
        for lab, tt in self.own_blocks:
            e.label(lab)
            e.raw(f"    v_add_u32 v4, {s(S_TMP)}, v6")
            e.raw(f"    v_add_u32 v4, {self.own_lds}, v4")
            e.raw(f"    ds_write_b128 v4, {v(tt,4)}")
            e.raw(f"    s_waitcnt lgkmcnt(0)")
            e.raw(f"    s_branch {lab}_r")

from gen1 import desc

def reducer2(a):
    per, thr = a.rper, a.rthr
    nwg = 16 * 5376 // per
    assert 5376 % per == 0
    wpg = 5376 // per
    e = Emitter()
    e.label("reduce_kernel")
    e(f"s_cmp_ge_u32 s2, {nwg}"); e("s_cbranch_scc1 L_end2")
    e("s_load_dwordx2 s[4:5], s[0:1], 96")
    e("s_load_dwordx2 s[8:9], s[0:1], 80")
    if a.stamps: e("s_memrealtime s[24:25]")
    e(f"s_mul_hi_u32 s12, s2, {-(-(1<<32)//wpg)}")
    e(f"s_mul_i32 s13, s12, {wpg}"); e("s_sub_u32 s13, s2, s13"); e(f"s_mul_i32 s13, s13, {per}")
    e("v_add_u32 v2, s13, v0")
    e("v_lshlrev_b32 v3, 4, v2")
    if per != thr:
        e("v_mov_b32 v4, 0x200000"); e(f"v_cmp_gt_u32 vcc, {per}, v0"); e("v_cndmask_b32 v3, v4, v3, vcc")
    e(f"s_mul_i32 s16, s12, {16*86016}")
    e(f"s_mov_b32 s6, {16*86016}"); e("s_mov_b32 s7, 0x20000"); e(f"s_mov_b32 s10, {8*96*1792}"); e("s_mov_b32 s11, 0x20000")
    e("s_mov_b32 s18, 0")
    e.wait(lgkm=0)
    if a.stamps: e("s_mov_b64 s[28:29], s[4:5]")
    e("s_add_u32 s4, s4, s16"); e("s_addc_u32 s5, s5, 0")
    rp = (" " + a.rpol) if a.rpol else ""
    for h in range(16):
        e(f"buffer_load_dwordx4 {v(32+4*h,4)}, v3, s[4:7], s18 offen{rp}")
        if h < 15: e("s_add_u32 s18, s18, 86016")
    e("v_lshrrev_b32 v5, 8, v2"); e("v_mul_u32_u24 v6, 43, v5"); e("v_lshrrev_b32 v6, 7, v6")
    e("v_mul_u32_u24 v7, 3, v6"); e("v_sub_u32 v7, v5, v7")
    e("v_and_b32 v8, 15, v2"); e("v_lshl_add_u32 v8, v7, 5, v8"); e("v_mul_u32_u24 v8, 1792, v8")
    e("v_lshl_add_u32 v8, v6, 7, v8"); e("v_bfe_u32 v9, v2, 4, 4"); e("v_lshl_add_u32 v8, v9, 3, v8")
    if per != thr: e("v_cndmask_b32 v8, v4, v8, vcc")
    e("s_and_b32 s19, s12, 7"); e("s_lshr_b32 s20, s12, 3")
    e(f"s_mul_i32 s19, s19, {96*1792}"); e("s_mul_i32 s20, s20, 896"); e("s_add_u32 s19, s19, s20")
    e("s_mov_b32 s22, 0xffff0000")
    for h in range(16):
        for k in range(4):
            r = 32 + 4 * h + k
            if h == 0:
                e(f"v_lshlrev_b32 v{16+2*k}, 16, v{r}"); e(f"v_and_b32 v{17+2*k}, s22, v{r}")
            else:
                e(f"v_lshlrev_b32 v{24+2*k}, 16, v{r}"); e(f"v_and_b32 v{25+2*k}, s22, v{r}")
                e(f"v_pk_add_f32 {v(16+2*k,2)}, {v(16+2*k,2)}, {v(24+2*k,2)}")
    for k in range(4): e(f"v_cvt_pk_bf16_f32 v{24+k}, v{16+2*k}, v{17+2*k}")
    op = (" " + a.opol) if a.opol else ""
    e(f"buffer_store_dwordx2 v[24:25], v8, s[8:11], s19 offen{op}")
    e(f"s_add_u32 s19, s19, {16*1792}")
    e(f"buffer_store_dwordx2 v[26:27], v8, s[8:11], s19 offen{op}")
    if a.stamps:
        e.force_wait("vmcnt(0)")
        e("s_memrealtime s[26:27]"); e.force_wait("lgkmcnt(0)")
        e(f"s_add_u32 s28, s28, {STAMP_OFF + 65536}"); e("s_addc_u32 s29, s29, 0"); e("s_lshl_b32 s13, s2, 4"); e("s_add_u32 s28, s28, s13"); e("s_addc_u32 s29, s29, 0")
        e("v_mov_b32 v10, 0"); e("v_mov_b32 v12, s24"); e("v_mov_b32 v13, s25"); e("v_mov_b32 v14, s26"); e("v_mov_b32 v15, s27")
        e("global_store_dwordx4 v10, v[12:15], s[28:29]")
    e.label("L_end2"); e("s_endpgm")
    return e, nwg

ilist = lambda x: [int(t) for t in x.split(",") if t]

DOC = """; One workgroup per (block, batch, head); 8 waves in two roles, all operands streamed through LDS by LDS-DMA in 8 KB slots.
"""

def main(argv=None):
    ap = argparse.ArgumentParser()
    ap.add_argument("-o", default="k3.s")
    ap.add_argument("--stamps", type=int, default=0)
    ap.add_argument("--stamp_ticks", type=ilist, default=[])
    ap.add_argument("--clk", type=int, default=0)
    ap.add_argument("--rot", type=int, default=1)
    ap.add_argument("--nkd", type=int, default=4)
    ap.add_argument("--la", type=float, default=6)
    ap.add_argument("--k0", type=int, default=1)
    ap.add_argument("--kticks", type=ilist, default=[4, 6, 7])
    ap.add_argument("--wrate", type=float, default=2.0)
    ap.add_argument("--alt1", type=int, default=0)
    ap.add_argument("--alt2", type=int, default=0)
    ap.add_argument("--opf", type=int, default=-1)
    ap.add_argument("--thr", type=int, default=-1)
    ap.add_argument("--remap", type=int, default=0)
    ap.add_argument("--diag", type=int, default=0)
    ap.add_argument("--st1", type=int, default=4)
    ap.add_argument("--lsleep", type=int, default=0)
    ap.add_argument("--own", type=int, default=0)
    ap.add_argument("--pace", type=int, default=0)
    ap.add_argument("--stag", type=int, default=0)
    ap.add_argument("--stagbit", type=int, default=2)
    ap.add_argument("--qhalf", type=int, default=0)
    ap.add_argument("--paceA", type=int, default=0)
    ap.add_argument("--op2hack", type=int, default=0)
    ap.add_argument("--aord", type=int, default=0)
    ap.add_argument("--s16", type=int, default=0)
    ap.add_argument("--nd", type=int, default=0)
    ap.add_argument("--paceO", type=int, default=0)
    ap.add_argument("--paceV", type=int, default=0)
    ap.add_argument("--opr", type=float, default=0)
    ap.add_argument("--paceF", type=int, default=0)
    ap.add_argument("--stconst", type=int, default=0)
    ap.add_argument("--p2", default="")
    ap.add_argument("--bgap", type=int, default=1)
    ap.add_argument("--wv", type=int, default=1)
    ap.add_argument("--lag", type=int, default=2)
    ap.add_argument("--qdrain", type=ilist, default=[0, 3])
    ap.add_argument("--odrain", type=ilist, default=[0])
    ap.add_argument("--kpre", type=int, default=2)
    ap.add_argument("--blag", type=int, default=1)
    ap.add_argument("--kmax", type=int, default=2)
    ap.add_argument("--kmax_from", type=int, default=99)
    ap.add_argument("--klag", type=int, default=2)
    ap.add_argument("--kburn", type=int, default=1)
    ap.add_argument("--kkeep", type=int, default=1)
    ap.add_argument("--vtr0", type=int, default=2)
    ap.add_argument("--vtr1", type=int, default=3)
    ap.add_argument("--lv0", type=int, default=10)
    ap.add_argument("--vmax0", type=int, default=3)
    ap.add_argument("--prio", type=int, default=0)
    ap.add_argument("--vend", type=int, default=2)
    ap.add_argument("--vdrain", type=int, default=1)
    ap.add_argument("--opn_end", type=int, default=2)
    ap.add_argument("--park", type=int, default=0)
    ap.add_argument("--parkfast", type=int, default=1)
    ap.add_argument("--oearly", type=int, default=0)
    ap.add_argument("--oe_from", type=int, default=16)
    ap.add_argument("--oe_rate", type=int, default=2)
    ap.add_argument("--lv", type=int, default=6)
    ap.add_argument("--lc", type=int, default=9)
    ap.add_argument("--vcmax", type=int, default=3)
    ap.add_argument("--vmax", type=int, default=2)
    ap.add_argument("--lo", type=int, default=9)
    ap.add_argument("--omax", type=int, default=3)
    ap.add_argument("--ostart", type=int, default=4)
    ap.add_argument("--olag", type=int, default=2)
    ap.add_argument("--opn", type=int, default=2)
    ap.add_argument("--vres", type=int, default=0)
    ap.add_argument("--a_first", type=int, default=1)
    ap.add_argument("--b_first", type=int, default=1)
    ap.add_argument("--b_smx_issue", type=int, default=0)
    ap.add_argument("--defer", type=int, default=0)
    ap.add_argument("--pkfma", type=int, default=0)
    ap.add_argument("--kvpol", default="nt")
    ap.add_argument("--spol", default="")
    ap.add_argument("--wpol", default="sc1")
    ap.add_argument("--rpol", default="")
    ap.add_argument("--opol", default="")
    ap.add_argument("--rper", type=int, default=336)
    ap.add_argument("--rthr", type=int, default=384)
    ap.add_argument("--rlds", type=int, default=0)
    ap.add_argument("--fused", type=int, default=0)
    ap.add_argument("--xpol", default="")
    ap.add_argument("--xlpol", default="sc1")
    ap.add_argument("--yslot", type=int, default=0)
    ap.add_argument("--junk", type=int, default=0)
    ap.add_argument("--junkn", type=int, default=8)
    ap.add_argument("--forceslow", type=int, default=0)
    ap.add_argument("--sig_lag", type=int, default=4)
    ap.add_argument("--flag_lag", type=int, default=1)
    ap.add_argument("--astamp", type=int, default=8)
    ap.add_argument("--psleep", type=int, default=0)
    ap.add_argument("--frpol", default="sc1")
    ap.add_argument("--s16hack", type=int, default=0)
    ap.add_argument("--codepf", type=int, default=0)
    ap.add_argument("--skip", default="")
    ap.add_argument("--padto", type=int, default=0)
    ap.add_argument("--padglob", type=int, default=0)
    ap.add_argument("--verbose", action="store_true")
    a = ap.parse_args(argv)
    g = Gen(a); g.kernel1()
    out = HEADER
    if a.fused:
        out += "; @launch grid=(256,1,1) block=(512,1,1) lds=163840\n"
    else:
        out += f"; @launch kernel={NAME}_kernel grid=(256,1,1) block=(512,1,1) lds=163840\n"
        re_, nwg = reducer2(a)
        out += f"; @launch kernel=reduce_kernel grid=({nwg},1,1) block=({a.rthr},1,1) lds={a.rlds}\n"
    out += DOC
    out += '.amdgcn_target "amdgcn-amd-amdhsa--gfx950"\n.text\n'
    out += f".globl {NAME}_kernel\n.p2align 8\n.type {NAME}_kernel,@function\n" + g.e.text()
    if not a.fused:
        out += ".globl reduce_kernel\n.p2align 8\n.type reduce_kernel,@function\n" + re_.text()
    if a.codepf: out += f".fill (49152 - (. - {NAME}_kernel)) / 4, 4, 0xbf810000\n"
    out += '.section .rodata,"a"\n.p2align 6\n' + desc(NAME + "_kernel", 256)
    if not a.fused: out += ".p2align 6\n" + desc("reduce_kernel", 96, 32)
    open(a.o, "w").write(out)
    print(f"{a.o}: k1 insts {g.e.ninst} (nops {g.e.nops}), ticks {len(g.plan)}, stamps {g.nst}", file=sys.stderr)

if __name__ == "__main__":
    main()
```
